```python
import torch

def _softmax(x, axis=-1):
    return torch.softmax(x, dim=axis)

def _gelu(x):
    return torch.nn.functional.gelu(x, approximate='tanh')

def _silu(x):
    return torch.nn.functional.silu(x)

def _sigmoid(x):
    return torch.sigmoid(x)

def _layernorm(x, axis=-1, eps=1e-05):
    m = x.mean(dim=axis, keepdim=True)
    v = x.var(dim=axis, keepdim=True, unbiased=False)
    return (x - m) / torch.sqrt(v + eps)

def _scatter_add(tgt, idx, src, axis=0):
    return tgt.clone().index_add_(axis, idx, src)

def _segment_sum(src, seg, n):
    out = torch.zeros((n,) + src.shape[1:], dtype=src.dtype)
    return out.index_add_(0, seg, src)

def _pad(x, pw):
    flat = tuple((v for pair in reversed(pw) for v in pair))
    return torch.nn.functional.pad(x, flat)
kernel_name = 'adaLN_cond__gqa_block_cached__swiglu_ffn__decode'

def setup_inputs():

    _w = lambda a: (lambda t: t.to(torch.bfloat16) if t.is_floating_point() else t)(torch.as_tensor(a))

    def _A_setup():
        B, Sq, D = (4, 1, 512)
        Hq, Hkv, Sk, Dh = (32, 8, 4096, 128)
        assert Hq % Hkv == 0, (Hq, Hkv)
        return {'x': _w((lambda *s: torch.randn(*s, dtype=torch.bfloat16) * 0.05)(B, Sq, D)), 'k_cache': _w((lambda *s: torch.randn(*s, dtype=torch.bfloat16) * 3.2)(B, Hkv, Sk, Dh)), 'v_cache': _w((lambda *s: torch.randn(*s, dtype=torch.bfloat16) * 0.4)(B, Hkv, Sk, Dh)), 'wq': _w((lambda *s: torch.randn(*s, dtype=torch.bfloat16) * 3.2)(D, Hq * Dh) * D ** (-0.5)), 'wo': _w((lambda *s: torch.randn(*s, dtype=torch.bfloat16) * 0.4)(Hq * Dh, D) * (Hq * Dh) ** (-0.5))}
    _A_in = _A_setup()

    def _B_setup():
        B, S, D, F = (4, 1, 512, 1792)
        return {'x': _w((lambda *s: torch.randn(*s, dtype=torch.bfloat16) * 0.05)(B, S, D)), 'w_gate': _w((lambda *s: torch.randn(*s, dtype=torch.bfloat16) * 0.05)(D, F)), 'w_up': _w((lambda *s: torch.randn(*s, dtype=torch.bfloat16) * 0.05)(D, F)), 'w_down': _w((lambda *s: torch.randn(*s, dtype=torch.bfloat16) * 0.05)(F, D))}
    _B_in = _B_setup()
    return {'A_x': _A_in['x'], 'A_k_cache': _A_in['k_cache'], 'A_v_cache': _A_in['v_cache'], 'A_wq': _A_in['wq'], 'A_wo': _A_in['wo'], 'B_x': _B_in['x'], 'B_w_gate': _B_in['w_gate'], 'B_w_up': _B_in['w_up'], 'B_w_down': _B_in['w_down'], 'c': _w((lambda *s: torch.randn(*s, dtype=torch.bfloat16) * 0.2)(4, 512) * 8.0), 'w_mod': _w((lambda *s: torch.randn(*s, dtype=torch.bfloat16) * 0.2)(512, 6 * 512) * 512 ** (-0.5) * 8.0)}

def reference(A_x, A_k_cache, A_v_cache, A_wq, A_wo, B_x, B_w_gate, B_w_up, B_w_down, c, w_mod):

    def _A_ref(x, k_cache, v_cache, wq, wo):
        B, Sq, D = x.shape
        Hq, Dh = (32, 128)
        Hkv = k_cache.shape[1]
        rep = Hq // Hkv
        q = (lambda x, *d: x.permute(*d))((x @ wq).reshape(B, Sq, Hq, Dh), 0, 2, 1, 3)
        k = (lambda x, n, axis: torch.repeat_interleave(x, n, dim=axis))(k_cache, rep, axis=1)
        v = (lambda x, n, axis: torch.repeat_interleave(x, n, dim=axis))(v_cache, rep, axis=1)
        scores = torch.einsum('bhqd,bhkd->bhqk', q, k) * Dh ** (-0.5)
        p = _softmax(scores, axis=-1)
        o = torch.einsum('bhqk,bhkd->bhqd', p, v)
        return (lambda x, *d: x.permute(*d))(o, 0, 2, 1, 3).reshape(B, Sq, Hq * Dh) @ wo

    def _B_ref(x, w_gate, w_up, w_down):
        g = _silu(x @ w_gate)
        u = x @ w_up
        return g * u @ w_down
    x = A_x
    mod = (_silu(c) @ w_mod).reshape(c.shape[0], 6, 1, -1)
    sa, ca, ga, sb, cb, gb = (mod[:, 0].clone(), mod[:, 1].clone(), mod[:, 2].clone(), mod[:, 3].clone(), mod[:, 4].clone(), mod[:, 5].clone())
    h = _layernorm(x, axis=-1) * (1 + ca) + sa
    x = x + ga * _A_ref(h, A_k_cache, A_v_cache, A_wq, A_wo)
    h = _layernorm(x, axis=-1) * (1 + cb) + sb
    x = x + gb * _B_ref(h, B_w_gate, B_w_up, B_w_down)
    return x
```

```python
import sys
KN = "adaLN_cond__gqa_block_cached__swiglu_ffn__decode_kernel"

WS_E = 0
WS_MOD = 0x1000
WS_QP = 0x10000
WS_OPP = 0x100000
WS_ML = 0x180000
WS_AP = 0x200000
WS_X1 = 0x280000
WS_DP = 0x300000
WS_DBG = 0x3C0000
WS_SIZE = 0x400000
L_F1P = 0
L_RP = 4096
L_QL = 12288
L_OW = 16384
L_MLW = 32768
L_ST = 33024
L_CNT = 33152
L_GU = 33280
LDS_SIZE = 40960

F1_N = 96
T2_0 = 96
T2_N = 56
R_0 = 152
LIMIT = 4000

S_K, S_V, S_WS, S_WQ, S_WO, S_WM, S_WG, S_WU, S_WD, S_X, S_C, S_OUT = 4, 8, 12, 16, 20, 24, 28, 32, 36, 40, 44, 48
S_WID, S_T, S_SO, S_IT, S_V4, S_TMP, S_TMP2, S_E = 52, 53, 54, 55, 56, 57, 58, 59
S_B0, S_B1 = 60, 62
S_FF00 = 90
S_HI16 = 91
S_TS = 92
S_T0 = 94
S_R = 96


class Gen:
    def __init__(self, dbg=False, kv_first=4, prio=3):
        self.L = []
        self.dbg = dbg
        self.kv_first = kv_first
        self.prio = prio
        self.lbl = 0

    def a(self, s):
        self.L.append(s)

    def label(self, p):
        self.lbl += 1
        return f"L_{p}_{self.lbl}"

    def nop(self, n):
        while n > 0:
            k = min(n, 16)
            self.a(f"s_nop {k-1}")
            n -= k

    def srd(self, s, plo, size):
        self.a(f"s_mov_b32 s{s}, s{plo}")
        self.a(f"s_mov_b32 s{s+1}, s{plo+1}")
        self.a(f"s_mov_b32 s{s+2}, {size}")
        self.a(f"s_mov_b32 s{s+3}, 0x00020000")

    def stamp(self, slot, vtmp):
        if not self.dbg:
            return
        a = self.a
        a(f"s_memrealtime s[{S_TS}:{S_TS+1}]")
        a("s_waitcnt lgkmcnt(0)")
        a(f"v_mov_b32 v{vtmp}, s{S_TS}")
        a(f"v_mov_b32 v{vtmp+1}, s{S_TS+1}")
        a(f"s_lshl_b32 s{S_TMP2}, s2, 7")
        a(f"s_add_u32 s{S_TMP2}, s{S_TMP2}, {WS_DBG + slot*8}")
        a(f"v_mov_b32 v{vtmp+2}, s{S_TMP2}")
        a("s_mov_b64 exec, 1")
        a(f"buffer_store_dwordx2 v[{vtmp}:{vtmp+1}], v{vtmp+2}, s[{S_WS}:{S_WS+3}], 0 offen")
        a("s_mov_b64 exec, -1")
        a("s_nop 1")

    def allreduce(self, r, t, op, quad=True, rows=True):
        a = self.a
        if quad:
            self.nop(2)
            a(f"{op}_dpp v{r}, v{r}, v{r} quad_perm:[1,0,3,2] row_mask:0xf bank_mask:0xf")
            self.nop(2)
            a(f"{op}_dpp v{r}, v{r}, v{r} quad_perm:[2,3,0,1] row_mask:0xf bank_mask:0xf")
        if rows:
            a(f"v_mov_b32 v{t}, v{r}")
            self.nop(2)
            a(f"v_permlane16_swap_b32 v{r}, v{t}")
            a(f"{op} v{r}, v{r}, v{t}")
            a(f"v_mov_b32 v{t}, v{r}")
            self.nop(2)
            a(f"v_permlane32_swap_b32 v{r}, v{t}")
            a(f"{op} v{r}, v{r}, v{t}")

    def round2(self, x0, x1, t):
        a = self.a
        a(f"v_cvt_pk_bf16_f32 v{t}, v{x0}, v{x1}")
        a(f"v_lshlrev_b32 v{x0}, 16, v{t}")
        a(f"v_and_b32 v{x1}, s{S_HI16}, v{t}")

    def round1(self, x, t=None):
        a = self.a
        a(f"v_cvt_pk_bf16_f32 v{x}, v{x}, v{x}")
        a(f"v_and_b32 v{x}, s{S_HI16}, v{x}")

    def poll(self, issue, regs, vA, vO, vT):
        a = self.a
        lp = self.label("poll")
        ld = self.label("pd")
        a(f"s_mov_b32 s{S_IT}, 0")
        a(f"{lp}:")
        issue()
        a("s_waitcnt vmcnt(0)")
        rs = list(regs)
        assert len(rs) >= 3
        a(f"v_bitop3_b32 v{vA}, v{rs[0]}, v{rs[1]}, v{rs[2]} bitop3:0x80")
        a(f"v_or3_b32 v{vO}, v{rs[0]}, v{rs[1]}, v{rs[2]}")
        i = 3
        while i < len(rs):
            r1 = rs[i]
            r2 = rs[i+1] if i+1 < len(rs) else rs[i]
            a(f"v_bitop3_b32 v{vA}, v{vA}, v{r1}, v{r2} bitop3:0x80")
            a(f"v_or3_b32 v{vO}, v{vO}, v{r1}, v{r2}")
            i += 2
        a(f"v_xor_b32 v{vA}, v{vA}, v{vT}")
        a(f"v_xor_b32 v{vO}, v{vO}, v{vT}")
        a(f"v_or_b32 v{vA}, v{vA}, v{vO}")
        a(f"v_and_b32 v{vA}, 0xff, v{vA}")
        a(f"v_cmp_ne_u32 vcc, 0, v{vA}")
        a(f"s_add_u32 s{S_IT}, s{S_IT}, 1")
        a(f"s_cmp_lt_u32 s{S_IT}, {LIMIT}")
        a(f"s_cbranch_scc0 {ld}")
        a(f"s_cbranch_vccnz {lp}")
        a(f"{ld}:")

    def lds_bar(self, k, n, vA, vB):
        a = self.a
        lp = self.label("lb")
        ld = self.label("lbd")
        a("s_waitcnt lgkmcnt(0)")
        a(f"v_mov_b32 v{vA}, {L_CNT + 4*k}")
        a(f"v_mov_b32 v{vB}, 1")
        a("s_mov_b64 exec, 1")
        a(f"ds_add_u32 v{vA}, v{vB}")
        a("s_mov_b64 exec, -1")
        self.lds_wait(k, n, vA, vB, sleep=False)

    def lds_wait(self, k, n, vA, vB, sleep=True):
        a = self.a
        lp = self.label("lw")
        ld = self.label("lwd")
        a(f"v_mov_b32 v{vA}, {L_CNT + 4*k}")
        a(f"s_mov_b32 s{S_IT}, 0")
        a(f"{lp}:")
        a(f"ds_read_b32 v{vB}, v{vA}")
        a("s_waitcnt lgkmcnt(0)")
        a(f"v_readfirstlane_b32 s{S_TMP}, v{vB}")
        a(f"s_add_u32 s{S_IT}, s{S_IT}, 1")
        a(f"s_cmp_ge_u32 s{S_TMP}, {n}")
        a(f"s_cbranch_scc1 {ld}")
        if sleep:
            a("s_sleep 1")
        a(f"s_cmp_lt_u32 s{S_IT}, 400000")
        a(f"s_cbranch_scc1 {lp}")
        a(f"{ld}:")

    def tag32(self, r, vT):
        self.a(f"v_and_or_b32 v{r}, v{r}, s{S_FF00}, v{vT}")

    def masks(self, vM0, vM1, vt, four=True):
        a = self.a
        a(f"v_mov_b32 v{vt}, 0xffff")
        a(f"v_mov_b32 v{vM0}, s{S_HI16}")
        a(f"v_cndmask_b32 v{vM0}, v{vt}, v{vM0}, s[{S_B0}:{S_B0+1}]")
        if four:
            a(f"v_mov_b32 v{vt}, 0")
            a(f"v_cndmask_b32 v{vM1}, v{vt}, v{vM0}, s[{S_B1}:{S_B1+1}]")
            a(f"v_cndmask_b32 v{vM0}, v{vM0}, v{vt}, s[{S_B1}:{S_B1+1}]")

    def prologue(self):
        a = self.a
        a("s_cmp_ge_u32 s2, 256")
        a("s_cbranch_scc1 L_end")
        a("s_load_dwordx16 s[64:79], s[0:1], 0")
        a("s_load_dwordx8 s[80:87], s[0:1], 64")
        a("s_load_dwordx2 s[88:89], s[0:1], 104")
        a("v_lshrrev_b32 v1, 6, v0")
        a("v_and_b32 v0, 63, v0")
        a(f"s_mov_b32 s{S_B0}, 0xaaaaaaaa")
        a(f"s_mov_b32 s{S_B0+1}, 0xaaaaaaaa")
        a(f"v_readfirstlane_b32 s{S_WID}, v1")
        a(f"s_mov_b32 s{S_B1}, 0xcccccccc")
        a(f"s_mov_b32 s{S_B1+1}, 0xcccccccc")
        a(f"s_mov_b32 s{S_FF00}, 0xffffff00")
        a(f"s_mov_b32 s{S_HI16}, 0xffff0000")
        a("s_waitcnt lgkmcnt(0)")
        a(f"s_load_dword s{S_E}, s[88:89], {WS_E}")
        self.srd(S_WS, 88, WS_SIZE)
        a(f"s_cmp_ge_u32 s{S_WID}, 4")
        a("s_cbranch_scc1 L_kv")

    def get_tag(self, vT):
        a = self.a
        a("s_waitcnt lgkmcnt(0)")
        a(f"s_add_u32 s{S_E}, s{S_E}, 1")
        a(f"s_and_b32 s{S_T}, s{S_E}, 0xff")
        a(f"v_mov_b32 v{vT}, s{S_T}")

    def kv(self):
        a = self.a
        a("L_kv:")
        KR = 40
        VR = 104
        vKa, vVa, vT, vM0, vM1, vt0, vt1, vt2 = 1, 2, 3, 4, 5, 6, 7, 8
        vQ = 12
        vD = 16
        vS = 32
        vm, vl = 36, 37
        self.srd(S_K, 66, 0x2000000)
        self.srd(S_V, 68, 0x2000000)
        a(f"s_sub_u32 s{S_V4}, s{S_WID}, 4")
        a(f"s_lshl_b32 s{S_TMP}, s2, 17")
        a(f"s_lshl_b32 s{S_TMP2}, s{S_V4}, 14")
        a(f"s_add_u32 s{S_TMP}, s{S_TMP}, s{S_TMP2}")
        a(f"v_and_b32 v{vt0}, 3, v0")
        a(f"v_lshlrev_b32 v{vt0}, 4, v{vt0}")
        a(f"v_bfe_u32 v{vt1}, v0, 2, 2")
        a(f"v_lshl_add_u32 v{vt0}, v{vt1}, 8, v{vt0}")
        a(f"v_lshrrev_b32 v{vt1}, 4, v0")
        a(f"v_lshl_add_u32 v{vt0}, v{vt1}, 6, v{vt0}")
        a(f"v_add_u32 v{vKa}, s{S_TMP}, v{vt0}")
        a(f"v_lshlrev_b32 v{vt0}, 4, v0")
        a(f"v_add_u32 v{vVa}, s{S_TMP}, v{vt0}")
        a("s_mov_b32 s80, 4096")
        a("s_mov_b32 s81, 8192")
        a("s_mov_b32 s82, 12288")
        so = ["0", "s80", "s81", "s82"]

        def ld(srd, va, reg, j):
            a(f"buffer_load_dwordx4 v[{reg}:{reg+3}], v{va}, s[{srd}:{srd+3}], {so[j//4]} offen offset:{(j%4)*1024} nt")
        for j in range(16):
            if j == self.kv_first:
                a("s_barrier")
            ld(S_K, vKa, KR+4*j, j)
        if self.kv_first >= 16:
            a("s_barrier")
        for j in range(16):
            ld(S_V, vVa, VR+4*j, j)
        self.masks(vM0, vM1, vt0)
        self.get_tag(vT)
        self.stamp(8, 8) if False else None
        self.lds_wait(2, 4, vt0, vt1)
        a(f"v_bfe_u32 v{vt0}, v0, 2, 2")
        a(f"v_lshlrev_b32 v{vt0}, 8, v{vt0}")
        a(f"v_lshrrev_b32 v{vt1}, 4, v0")
        a(f"v_lshl_add_u32 v{vt0}, v{vt1}, 6, v{vt0}")
        a(f"v_and_b32 v{vt1}, 3, v0")
        a(f"v_lshl_add_u32 v{vt0}, v{vt1}, 4, v{vt0}")
        a(f"ds_read_b128 v[{vQ}:{vQ+3}], v{vt0} offset:{L_QL}")
        a("s_waitcnt lgkmcnt(0)")
        nst = 1 if self.dbg else 0
        for J in range(4):
            a(f"s_waitcnt vmcnt({16 + 12 - 4*J})")
            for jj in range(4):
                k = KR + 4*(4*J+jj)
                d = vD + 4*jj
                a(f"v_mfma_f32_16x16x32_bf16 v[{d}:{d+3}], v[{k}:{k+3}], v[{vQ}:{vQ+3}], 0")
            self.nop(8)
            for jj in range(4):
                d = vD + 4*jj
                a(f"v_cndmask_b32 v{d}, v{d}, v{d+1}, s[{S_B0}:{S_B0+1}]")
                a(f"v_cndmask_b32 v{d+2}, v{d+2}, v{d+3}, s[{S_B0}:{S_B0+1}]")
                a(f"v_cndmask_b32 v{d}, v{d}, v{d+2}, s[{S_B1}:{S_B1+1}]")
            v0_, v1_, v2_, v3_ = vD, vD+4, vD+8, vD+12
            a(f"v_cndmask_b32 v{v0_+1}, v{v0_}, v{v1_}, s[{S_B0}:{S_B0+1}]")
            a(f"v_cndmask_b32 v{v0_+2}, v{v1_}, v{v0_}, s[{S_B0}:{S_B0+1}]")
            a(f"v_cndmask_b32 v{v2_+1}, v{v2_}, v{v3_}, s[{S_B0}:{S_B0+1}]")
            a(f"v_cndmask_b32 v{v2_+2}, v{v3_}, v{v2_}, s[{S_B0}:{S_B0+1}]")
            self.nop(1)
            a(f"v_add_f32_dpp v{v0_}, v{v0_+2}, v{v0_+1} quad_perm:[1,0,3,2] row_mask:0xf bank_mask:0xf")
            a(f"v_add_f32_dpp v{v2_}, v{v2_+2}, v{v2_+1} quad_perm:[1,0,3,2] row_mask:0xf bank_mask:0xf")
            a(f"v_cndmask_b32 v{v0_+1}, v{v0_}, v{v2_}, s[{S_B1}:{S_B1+1}]")
            a(f"v_cndmask_b32 v{v0_+2}, v{v2_}, v{v0_}, s[{S_B1}:{S_B1+1}]")
            self.nop(2)
            a(f"v_add_f32_dpp v{vS+J}, v{v0_+2}, v{v0_+1} quad_perm:[2,3,0,1] row_mask:0xf bank_mask:0xf")
        self.round2(vS, vS+1, vt0)
        self.round2(vS+2, vS+3, vt1)
        for J in range(4):
            a(f"v_mul_f32 v{vS+J}, 0x3db504f3, v{vS+J}")
        self.round2(vS, vS+1, vt0)
        self.round2(vS+2, vS+3, vt1)
        a(f"v_max3_f32 v{vm}, v{vS}, v{vS+1}, v{vS+2}")
        a(f"v_max_f32 v{vm}, v{vm}, v{vS+3}")
        self.allreduce(vm, vt0, "v_max_f32")
        for J in range(4):
            a(f"v_sub_f32 v{vS+J}, v{vS+J}, v{vm}")
        for J in range(4):
            a(f"v_mul_f32 v{vS+J}, 0x3fb8aa3b, v{vS+J}")
        for J in range(4):
            a(f"v_exp_f32 v{vS+J}, v{vS+J}")
        self.nop(1)
        a(f"v_add_f32 v{vl}, v{vS}, v{vS+1}")
        a(f"v_add_f32 v{vt0}, v{vS+2}, v{vS+3}")
        a(f"v_add_f32 v{vl}, v{vl}, v{vt0}")
        for J in range(4):
            a(f"v_cvt_pk_bf16_f32 v{vS+J}, v{vS+J}, v{vS+J}")
        self.nop(1)
        for j in range(16):
            J, jj = j//4, j % 4
            a(f"v_and_b32_dpp v{KR+2*j}, v{vS+J}, v{vM0} quad_perm:[{jj},{jj},{jj},{jj}] row_mask:0xf bank_mask:0xf")
            a(f"v_and_b32_dpp v{KR+2*j+1}, v{vS+J}, v{vM1} quad_perm:[{jj},{jj},{jj},{jj}] row_mask:0xf bank_mask:0xf")
        self.allreduce(vl, vt0, "v_add_f32")
        a(f"v_mov_b32 v{vt1}, v{vm}")
        a(f"v_mov_b32 v{vt2}, v{vl}")
        a(f"v_bfe_u32 v{vt0}, v0, 2, 2")
        a(f"v_lshlrev_b32 v{vt0}, 6, v{vt0}")
        a(f"s_lshl_b32 s{S_TMP}, s{S_V4}, 3")
        a(f"v_add_u32 v{vt0}, s{S_TMP}, v{vt0}")
        a("s_mov_b64 exec, 0x1111")
        a(f"ds_write_b64 v{vt0}, v[{vt1-1+1}:{vt2}] offset:{L_MLW}") if False else None
        a(f"ds_write_b32 v{vt0}, v{vm} offset:{L_MLW}")
        a(f"ds_write_b32 v{vt0}, v{vl} offset:{L_MLW+4}")
        a("s_mov_b64 exec, -1")
        AC = KR + 32
        for j in range(16):
            a(f"s_waitcnt vmcnt({15-j})")
            v = VR + 4*j
            p = j & 1
            d1 = AC + 8*p
            d2 = d1 + 4
            c1 = "0" if j < 2 else f"v[{d1}:{d1+3}]"
            c2 = "0" if j < 2 else f"v[{d2}:{d2+3}]"
            a(f"v_mfma_f32_16x16x16_bf16 v[{d1}:{d1+3}], v[{v}:{v+1}], v[{KR+2*j}:{KR+2*j+1}], {c1}")
            a(f"v_mfma_f32_16x16x16_bf16 v[{d2}:{d2+3}], v[{v+2}:{v+3}], v[{KR+2*j}:{KR+2*j+1}], {c2}")
        self.nop(8)
        for r in range(8):
            a(f"v_add_f32 v{AC+r}, v{AC+r}, v{AC+8+r}")
        a(f"s_lshl_b32 s{S_TMP}, s{S_V4}, 11")
        a(f"v_lshlrev_b32 v{vt0}, 4, v0")
        a(f"v_add_u32 v{vt0}, s{S_TMP}, v{vt0}")
        a(f"ds_write_b128 v{vt0}, v[{AC}:{AC+3}] offset:{L_OW}")
        a(f"ds_write_b128 v{vt0}, v[{AC+4}:{AC+7}] offset:{L_OW+1024}")
        a("s_waitcnt lgkmcnt(0)")
        a("s_barrier")
        a(f"s_cmp_ge_u32 s{S_V4}, 2")
        a("s_cbranch_scc1 L_end")
        OW = VR
        MLr = VR + 32
        a(f"s_lshl_b32 s{S_TMP}, s{S_V4}, 10")
        a(f"v_lshlrev_b32 v{vt0}, 4, v0")
        a(f"v_add_u32 v{vt0}, s{S_TMP}, v{vt0}")
        a(f"v_bfe_u32 v{vt1}, v0, 2, 2")
        a(f"v_lshlrev_b32 v{vt1}, 6, v{vt1}")
        for i in range(4):
            a(f"ds_read_b128 v[{MLr+4*i}:{MLr+4*i+3}], v{vt1} offset:{L_MLW+16*i}")
        for w in range(8):
            a(f"ds_read_b128 v[{OW+4*w}:{OW+4*w+3}], v{vt0} offset:{L_OW+2048*w}")
        a("s_waitcnt lgkmcnt(8)")
        a(f"v_max3_f32 v{vm}, v{MLr}, v{MLr+2}, v{MLr+4}")
        a(f"v_max3_f32 v{vm}, v{vm}, v{MLr+6}, v{MLr+8}")
        a(f"v_max3_f32 v{vm}, v{vm}, v{MLr+10}, v{MLr+12}")
        a(f"v_max_f32 v{vm}, v{vm}, v{MLr+14}")
        for w in range(8):
            a(f"v_sub_f32 v{MLr+2*w}, v{MLr+2*w}, v{vm}")
        for w in range(8):
            a(f"v_mul_f32 v{MLr+2*w}, 0x3fb8aa3b, v{MLr+2*w}")
        for w in range(8):
            a(f"v_exp_f32 v{MLr+2*w}, v{MLr+2*w}")
        self.nop(1)
        a(f"v_mul_f32 v{vl}, v{MLr}, v{MLr+1}")
        for w in range(1, 8):
            a(f"v_fmac_f32 v{vl}, v{MLr+2*w}, v{MLr+2*w+1}")
        a("s_waitcnt lgkmcnt(0)")
        O = AC
        for r in range(4):
            a(f"v_mul_f32 v{O+r}, v{MLr}, v{OW+r}")
        for w in range(1, 8):
            for r in range(4):
                a(f"v_fmac_f32 v{O+r}, v{MLr+2*w}, v{OW+4*w+r}")
        for r in range(4):
            self.tag32(O+r, vT)
        a(f"s_lshl_b32 s{S_TMP}, s2, 11")
        a(f"s_add_u32 s{S_TMP}, s{S_TMP}, {WS_OPP}")
        a(f"buffer_store_dwordx4 v[{O}:{O+3}], v{vt0}, s[{S_WS}:{S_WS+3}], s{S_TMP} offen sc1")
        a(f"s_cmp_lg_u32 s{S_V4}, 0")
        a("s_cbranch_scc1 L_end")
        a(f"v_or_b32 v{vm}, v{vm}, v{vT}")
        self.tag32(vl, vT)
        a(f"s_lshr_b32 s{S_TMP}, s2, 3")
        a(f"s_lshl_b32 s{S_TMP}, s{S_TMP}, 8")
        a(f"s_and_b32 s{S_TMP2}, s2, 3")
        a(f"s_lshl_b32 s{S_TMP2}, s{S_TMP2}, 4")
        a(f"s_add_u32 s{S_TMP}, s{S_TMP}, s{S_TMP2}")
        a(f"s_bfe_u32 s{S_TMP2}, s2, 0x10002")
        a(f"s_lshl_b32 s{S_TMP2}, s{S_TMP2}, 3")
        a(f"s_add_u32 s{S_TMP}, s{S_TMP}, s{S_TMP2}")
        a(f"s_add_u32 s{S_TMP}, s{S_TMP}, {WS_ML}")
        a("s_mov_b64 exec, 0x1111")
        a(f"buffer_store_dwordx2 v[{vm}:{vl}], v{vt1}, s[{S_WS}:{S_WS+3}], s{S_TMP} offen sc1")
        a("s_mov_b64 exec, -1")
        self.stamp(9, 8)
        a("s_endpgm")

    def svc(self):
        a = self.a
        vT, vM0, vM1, vMe, vG, vB, vU = 1, 2, 3, 4, 5, 6, 7
        vA, vO, vt0, vt1, vt2, vt3 = 8, 9, 10, 11, 12, 13
        vC16 = 14
        vL16 = 15
        W0 = 16
        WA = 40
        WB = 56
        WC = 72
        SC = WC + 32
        if self.prio:
            a(f"s_setprio {self.prio}")
        self.srd(S_WQ, 70, 512*4096*2)
        self.srd(S_WO, 72, 512*4096*2)
        self.srd(S_WM, 84, 512*3072*2)
        self.srd(S_WG, 76, 512*1792*2)
        self.srd(S_WU, 78, 512*1792*2)
        self.srd(S_WD, 80, 512*1792*2)
        self.srd(S_X, 64, 4096)
        self.srd(S_C, 82, 4096)
        self.srd(S_OUT, 86, 4096)
        v = S_WID
        a(f"v_lshrrev_b32 v{vG}, 4, v0")
        a(f"v_bfe_u32 v{vB}, v0, 2, 2")
        a(f"v_and_b32 v{vU}, 3, v0")
        a(f"v_and_b32 v{vC16}, 15, v0")
        a(f"v_lshlrev_b32 v{vC16}, 4, v{vC16}")
        a(f"v_lshlrev_b32 v{vL16}, 4, v0")
        a(f"v_mov_b32 v{vt0}, 0")
        a(f"v_lshlrev_b32 v{vt1}, 2, v0")
        a(f"s_cmp_lg_u32 s{v}, 0")
        a("s_cbranch_scc1 L_s_nz")
        a("s_mov_b64 exec, 0xffff")
        a(f"ds_write_b32 v{vt1}, v{vt0} offset:{L_CNT}")
        a("s_mov_b64 exec, -1")
        a("L_s_nz:")
        a(f"s_cmp_ge_u32 s2, {F1_N}")
        a("s_cbranch_scc1 L_s_nof1a")
        vCc = W0
        a(f"v_lshlrev_b32 v{vt0}, 10, v{vB}")
        a(f"v_lshl_add_u32 v{vt0}, v{vG}, 6, v{vt0}")
        a(f"v_lshl_add_u32 v{vt0}, v{vU}, 4, v{vt0}")
        a(f"s_lshl_b32 s{S_TMP}, s{v}, 8")
        a(f"buffer_load_dwordx4 v[{vCc}:{vCc+3}], v{vt0}, s[{S_C}:{S_C+3}], s{S_TMP} offen")
        a(f"v_mul_u32_u24 v{vt0}, {32*6144}, v{vG}")
        a(f"v_and_b32 v{vt1}, 15, v0")
        a(f"v_lshl_add_u32 v{vt0}, v{vt1}, 2, v{vt0}")
        a(f"s_mul_i32 s{S_TMP}, s{v}, {128*6144}")
        a(f"s_lshl_b32 s{S_TMP2}, s2, 6")
        a(f"s_add_u32 s{S_TMP}, s{S_TMP}, s{S_TMP2}")
        for t in range(32):
            a(f"buffer_load_dword v{WC+t}, v{vt0}, s[{S_WM}:{S_WM+3}], s{S_TMP} offen nt")
            if t < 31:
                a(f"s_add_u32 s{S_TMP}, s{S_TMP}, 6144")
        a("L_s_nof1a:")
        XS = SC
        XO = W0 + 4
        a(f"v_lshlrev_b32 v{vt0}, 10, v{vB}")
        a(f"v_lshl_add_u32 v{vt0}, v{vG}, 8, v{vt0}")
        a(f"v_lshl_add_u32 v{vt0}, v{vU}, 6, v{vt0}")
        for i in range(4):
            a(f"buffer_load_dwordx4 v[{XS+4*i}:{XS+4*i+3}], v{vt0}, s[{S_X}:{S_X+3}], 0 offen offset:{16*i}")
        SK0 = S_R
        a(f"s_and_b32 s{SK0}, s2, 7")
        a(f"s_lshl_b32 s{SK0}, s{SK0}, 6")
        a(f"s_lshl_b32 s{S_TMP}, s{v}, 4")
        a(f"s_add_u32 s{SK0}, s{SK0}, s{S_TMP}")
        a(f"v_lshlrev_b32 v{vt0}, 10, v{vB}")
        a(f"v_lshl_add_u32 v{vt0}, v{vG}, 3, v{vt0}")
        a(f"s_lshl_b32 s{S_TMP}, s{SK0}, 1")
        a(f"buffer_load_dwordx2 v[{XO}:{XO+1}], v{vt0}, s[{S_X}:{S_X+3}], s{S_TMP} offen")
        a(f"v_lshlrev_b32 v{vt0}, 15, v{vG}")
        a(f"v_add_u32 v{vt0}, v{vt0}, v{vC16}")
        a(f"s_lshl_b32 s{S_TMP}, s{SK0}, 13")
        a(f"s_lshr_b32 s{S_TMP2}, s2, 3")
        a(f"s_lshl_b32 s{S_TMP2}, s{S_TMP2}, 8")
        a(f"s_add_u32 s{S_TMP}, s{S_TMP}, s{S_TMP2}")
        for j in range(4):
            a(f"buffer_load_dwordx4 v[{WA+4*j}:{WA+4*j+3}], v{vt0}, s[{S_WQ}:{S_WQ+3}], s{S_TMP} offen nt")
            if j < 3:
                a(f"s_add_u32 s{S_TMP}, s{S_TMP}, 8192")
        a("s_waitcnt lgkmcnt(0)")
        a("s_barrier")
        self.masks(vM0, vM1, vt0)
        self.masks(vMe, None, vt0, four=False)
        self.get_tag(vT)
        self.stamp(0, W0+8) if self.dbg else None
        NST = 0
        a(f"s_cmp_ge_u32 s2, {F1_N}")
        a("s_cbranch_scc1 L_s_nof1b")
        DU = W0 + 8
        BB = W0 + 16
        ACC = W0
        a("s_waitcnt vmcnt(41)" if not self.dbg else "s_waitcnt vmcnt(41)")
        for i in range(4):
            a(f"v_lshlrev_b32 v{DU+2*i}, 16, v{vCc+i}")
            a(f"v_and_b32 v{DU+2*i+1}, s{S_HI16}, v{vCc+i}")
        for i in range(8):
            a(f"v_mul_f32 v{BB+i}, 0xbfb8aa3b, v{DU+i}")
        for i in range(8):
            a(f"v_exp_f32 v{BB+i}, v{BB+i}")
        self.nop(1)
        for i in range(8):
            a(f"v_add_f32 v{BB+i}, 1.0, v{BB+i}")
        for i in range(8):
            a(f"v_rcp_f32 v{BB+i}, v{BB+i}")
        self.nop(1)
        for i in range(8):
            a(f"v_mul_f32 v{DU+i}, v{DU+i}, v{BB+i}")
        for i in range(8):
            a(f"v_cvt_pk_bf16_f32 v{DU+i}, v{DU+i}, v{DU+i}")
        self.nop(1)
        for T in range(8):
            us = T//2
            bb = BB + 4*(T & 1)
            for j in range(4):
                a(f"v_and_b32_dpp v{bb+j}, v{DU+4*(T%2)+j}, v{vMe} quad_perm:[{us},{us},{us},{us}] row_mask:0xf bank_mask:0xf")
            a(f"s_waitcnt vmcnt({9 + 28 - 4*T})")
            self.nop(1)
            c = "0" if T == 0 else f"v[{ACC}:{ACC+3}]"
            a(f"v_mfma_f32_16x16x32_bf16 v[{ACC}:{ACC+3}], v[{WC+4*T}:{WC+4*T+3}], v[{bb}:{bb+3}], {c}")
        self.nop(8)
        a(f"s_lshl_b32 s{S_TMP}, s{v}, 10")
        a(f"v_add_u32 v{vt0}, s{S_TMP}, v{vL16}")
        a(f"ds_write_b128 v{vt0}, v[{ACC}:{ACC+3}] offset:{L_F1P}")
        self.lds_bar(0, 4, vt0, vt1)
        a(f"s_lshl_b32 s{S_TMP}, s{v}, 2")
        a(f"v_add_u32 v{vt0}, s{S_TMP}, v{vL16}")
        for i in range(4):
            a(f"ds_read_b32 v{DU+i}, v{vt0} offset:{L_F1P+1024*i}")
        a("s_waitcnt lgkmcnt(0)")
        a(f"v_add_f32 v{DU}, v{DU}, v{DU+1}")
        a(f"v_add_f32 v{DU+2}, v{DU+2}, v{DU+3}")
        a(f"v_add_f32 v{DU}, v{DU}, v{DU+2}")
        a(f"v_cvt_pk_bf16_f32 v{DU}, v{DU}, v{DU}")
        a(f"v_lshl_or_b32 v{DU}, v{DU}, 16, v{vT}")
        a(f"v_mul_u32_u24 v{vt0}, {3072*4}, v{vB}")
        a(f"v_lshl_add_u32 v{vt0}, v{vG}, 5, v{vt0}")
        a(f"v_and_b32 v{vt1}, 1, v0")
        a(f"v_lshl_add_u32 v{vt0}, v{vt1}, 2, v{vt0}")
        a(f"s_lshl_b32 s{S_TMP}, s2, 7")
        a(f"s_lshl_b32 s{S_TMP2}, s{v}, 3")
        a(f"s_add_u32 s{S_TMP}, s{S_TMP}, s{S_TMP2}")
        a(f"s_add_u32 s{S_TMP}, s{S_TMP}, {WS_MOD}")
        a("s_mov_b32 exec_lo, 0x33333333")
        a("s_mov_b32 exec_hi, 0x33333333")
        a(f"buffer_store_dword v{DU}, v{vt0}, s[{S_WS}:{S_WS+3}], s{S_TMP} offen sc1")
        a("s_mov_b64 exec, -1")
        self.stamp(1, W0+8)
        a("L_s_nof1b:")
        XF = SC + 16
        a("s_waitcnt vmcnt(4)")
        for i in range(16):
            a(f"v_lshlrev_b32 v{XF+2*i}, 16, v{XS+i}")
            a(f"v_and_b32 v{XF+2*i+1}, s{S_HI16}, v{XS+i}")
        vMean, vVar = W0+6, W0+7
        Y = W0 + 8
        self.ln_sum(XF, 32, vMean, vt0)
        self.allreduce(vMean, vt0, "v_add_f32")
        a(f"v_mul_f32 v{vMean}, 0x3b000000, v{vMean}")
        for i in range(32):
            a(f"v_sub_f32 v{XF+i}, v{XF+i}, v{vMean}")
        a(f"v_mul_f32 v{vVar}, v{XF}, v{XF}")
        a(f"v_mul_f32 v{vt0}, v{XF+1}, v{XF+1}")
        for i in range(2, 32, 2):
            a(f"v_fmac_f32 v{vVar}, v{XF+i}, v{XF+i}")
            a(f"v_fmac_f32 v{vt0}, v{XF+i+1}, v{XF+i+1}")
        a(f"v_add_f32 v{vVar}, v{vVar}, v{vt0}")
        self.allreduce(vVar, vt0, "v_add_f32")
        a(f"v_mul_f32 v{vVar}, 0x3b000000, v{vVar}")
        self.ln_fin(vMean, vVar, vt0)
        a(f"v_lshlrev_b32 v{Y}, 16, v{XO}")
        a(f"v_and_b32 v{Y+1}, s{S_HI16}, v{XO}")
        a(f"v_lshlrev_b32 v{Y+2}, 16, v{XO+1}")
        a(f"v_and_b32 v{Y+3}, s{S_HI16}, v{XO+1}")
        self.ln_norm(Y, 4, vMean, vVar, vt0, vt1)
        SA = W0 + 12
        CA = W0 + 16
        a(f"v_mul_u32_u24 v{vt2}, {3072*4}, v{vB}")
        a(f"v_lshl_add_u32 v{vt2}, v{vG}, 4, v{vt2}")
        a(f"s_lshl_b32 s{S_SO}, s{SK0}, 2")
        a(f"s_add_u32 s{S_SO}, s{S_SO}, {WS_MOD}")

        def iss():
            a(f"buffer_load_dwordx4 v[{SA}:{SA+3}], v{vt2}, s[{S_WS}:{S_WS+3}], s{S_SO} offen sc1")
            a(f"buffer_load_dwordx4 v[{CA}:{CA+3}], v{vt2}, s[{S_WS}:{S_WS+3}], s{S_SO} offen offset:2048 sc1")
        self.poll(iss, list(range(SA, SA+4)) + list(range(CA, CA+4)), vA, vO, vT)
        self.stamp(2, W0+20)
        self.modulate(Y, 4, SA, CA, vt0, vt1)
        D1, D2 = W0, W0+4
        XB = W0 + 12
        self.gemv_x4(Y, WA, 4, XB, D1, D2, vM0, vM1)
        self.cu_reduce_store(D1, D2, 1, WS_QP, vt0, vt1, vT, vL16, W0+8, qp=True)
        self.stamp(3, W0+20)
        QD = W0
        a(f"v_lshrrev_b32 v{vt2}, 5, v0")
        a(f"v_lshlrev_b32 v{vt2}, 16, v{vt2}")
        a(f"v_bfe_u32 v{vt3}, v0, 4, 1")
        a(f"v_lshl_add_u32 v{vt2}, v{vt3}, 10, v{vt2}")
        a(f"v_lshl_add_u32 v{vt2}, v{vB}, 8, v{vt2}")
        a(f"v_lshl_add_u32 v{vt2}, v{vU}, 4, v{vt2}")
        a(f"s_bfe_u32 s{S_TMP}, s2, 0x30003")
        a(f"s_lshl_b32 s{S_TMP}, s{S_TMP}, 2")
        a(f"s_add_u32 s{S_TMP}, s{S_TMP}, s{v}")
        a(f"s_lshl_b32 s{S_TMP}, s{S_TMP}, 11")
        a(f"s_lshr_b32 s{S_TMP2}, s2, 6")
        a(f"s_lshl_b32 s{S_TMP2}, s{S_TMP2}, 6")
        a(f"s_add_u32 s{S_TMP}, s{S_TMP}, s{S_TMP2}")
        a(f"s_add_u32 s{S_SO}, s{S_TMP}, {WS_QP}")
        a(f"s_add_u32 s97, s{S_SO}, {1 << 17}")
        a(f"s_add_u32 s98, s{S_SO}, {2 << 17}")
        a(f"s_add_u32 s99, s{S_SO}, {3 << 17}")

        def iss():
            for q, s in enumerate([S_SO, 97, 98, 99]):
                a(f"buffer_load_dwordx4 v[{QD+4*q}:{QD+4*q+3}], v{vt2}, s[{S_WS}:{S_WS+3}], s{s} offen sc1")
        self.poll(iss, list(range(QD, QD+16)), vA, vO, vT)
        for r in range(4):
            a(f"v_add_f32 v{QD+r}, v{QD+r}, v{QD+4+r}")
            a(f"v_add_f32 v{QD+8+r}, v{QD+8+r}, v{QD+12+r}")
        for r in range(4):
            a(f"v_add_f32 v{QD+r}, v{QD+r}, v{QD+8+r}")
        self.nop(2)
        a(f"v_permlane32_swap_b32 v{QD}, v{QD+2}")
        a(f"v_permlane32_swap_b32 v{QD+1}, v{QD+3}")
        a(f"v_add_f32 v{QD}, v{QD}, v{QD+2}")
        a(f"v_add_f32 v{QD+1}, v{QD+1}, v{QD+3}")
        a(f"v_cvt_pk_bf16_f32 v{QD}, v{QD}, v{QD+1}")
        a(f"v_lshlrev_b32 v{vt0}, 6, v{vB}")
        a(f"v_lshrrev_b32 v{vt1}, 5, v0")
        a(f"v_lshl_add_u32 v{vt0}, v{vt1}, 5, v{vt0}")
        a(f"v_lshl_add_u32 v{vt0}, v{vt3}, 3, v{vt0}")
        a(f"v_lshl_add_u32 v{vt0}, v{vU}, 1, v{vt0}")
        a(f"s_lshl_b32 s{S_TMP}, s{v}, 8")
        a(f"v_add_u32 v{vt0}, s{S_TMP}, v{vt0}")
        a(f"ds_write_b16 v{vt0}, v{QD} offset:{L_QL}")
        a(f"ds_write_b16_d16_hi v{vt0}, v{QD} offset:{L_QL+16}")
        a("s_waitcnt lgkmcnt(0)")
        a(f"v_mov_b32 v{vt0}, {L_CNT+8}")
        a(f"v_mov_b32 v{vt1}, 1")
        a("s_mov_b64 exec, 1")
        a(f"ds_add_u32 v{vt0}, v{vt1}")
        a("s_mov_b64 exec, -1")
        self.stamp(4, W0+20)
        SBC = WA
        a(f"s_cmp_ge_u32 s2, {T2_0}")
        a("s_cbranch_scc0 L_s_prep_done")
        a(f"s_cmp_ge_u32 s2, {R_0}")
        a("s_cbranch_scc1 L_s_prep_r")
        a(f"v_mul_u32_u24 v{vt2}, {3072*4}, v{vB}")
        a(f"v_lshl_add_u32 v{vt2}, v{vG}, 7, v{vt2}")
        a(f"v_lshl_add_u32 v{vt2}, v{vU}, 5, v{vt2}")
        a(f"s_lshl_b32 s{S_SO}, s{v}, 9")
        a(f"s_add_u32 s{S_SO}, s{S_SO}, {WS_MOD + 1536*4}")

        def iss():
            a(f"buffer_load_dwordx4 v[{SBC}:{SBC+3}], v{vt2}, s[{S_WS}:{S_WS+3}], s{S_SO} offen sc1")
            a(f"buffer_load_dwordx4 v[{SBC+4}:{SBC+7}], v{vt2}, s[{S_WS}:{S_WS+3}], s{S_SO} offen offset:16 sc1")
            a(f"buffer_load_dwordx4 v[{SBC+8}:{SBC+11}], v{vt2}, s[{S_WS}:{S_WS+3}], s{S_SO} offen offset:2048 sc1")
            a(f"buffer_load_dwordx4 v[{SBC+12}:{SBC+15}], v{vt2}, s[{S_WS}:{S_WS+3}], s{S_SO} offen offset:2064 sc1")
        self.poll(iss, list(range(SBC, SBC+16)), vA, vO, vT)
        a("s_branch L_s_prep_done")
        a("L_s_prep_r:")
        a(f"s_cmp_ge_u32 s2, {R_0+32}")
        a("s_cbranch_scc1 L_s_prep_done")
        a(f"s_cmp_lg_u32 s{v}, 2")
        a("s_cbranch_scc1 L_s_prep_done")
        SCOL = 100
        a(f"s_sub_u32 s{S_TMP}, s2, {R_0}")
        a(f"s_lshr_b32 s{SCOL}, s{S_TMP}, 1")
        a(f"s_lshl_b32 s{SCOL}, s{SCOL}, 5")
        a(f"s_and_b32 s{S_TMP}, s{S_TMP}, 1")
        a(f"s_lshl_b32 s{S_TMP}, s{S_TMP}, 2")
        a(f"s_add_u32 s{SCOL}, s{SCOL}, s{S_TMP}")
        vCol = SBC + 3
        a(f"v_lshl_add_u32 v{vCol}, v{vG}, 3, v{vU}")
        a(f"v_add_u32 v{vCol}, s{SCOL}, v{vCol}")
        a(f"v_lshl_add_u32 v{vt0}, v{vB}, 9, v{vCol}")
        a(f"v_lshlrev_b32 v{vt0}, 1, v{vt0}")
        a(f"buffer_load_ushort v{SBC+2}, v{vt0}, s[{S_X}:{S_X+3}], 0 offen")
        a(f"v_mul_u32_u24 v{vt2}, 3072, v{vB}")
        a(f"v_add_u32 v{vt2}, v{vt2}, v{vCol}")
        a(f"v_lshlrev_b32 v{vt2}, 2, v{vt2}")
        a(f"s_mov_b32 s{S_SO}, {WS_MOD + 1024*4}")
        a(f"s_mov_b32 s97, {WS_MOD + 2560*4}")

        def iss():
            a(f"buffer_load_dword v{SBC}, v{vt2}, s[{S_WS}:{S_WS+3}], s{S_SO} offen sc1")
            a(f"buffer_load_dword v{SBC+1}, v{vt2}, s[{S_WS}:{S_WS+3}], s97 offen sc1")
        self.poll(iss, [SBC, SBC+1, SBC+1], vA, vO, vT)
        a("L_s_prep_done:")
        SROW = 101
        a(f"s_lshr_b32 s{S_TMP}, s2, 3")
        a(f"s_lshl_b32 s{SROW}, s{S_TMP}, 7")
        a(f"s_bfe_u32 s{S_TMP}, s2, 0x10002")
        a(f"s_lshl_b32 s{S_TMP}, s{S_TMP}, 6")
        a(f"s_add_u32 s{SROW}, s{SROW}, s{S_TMP}")
        a(f"s_lshr_b32 s{S_TMP}, s{v}, 1")
        a(f"s_lshl_b32 s{S_TMP}, s{S_TMP}, 5")
        a(f"s_add_u32 s{SROW}, s{SROW}, s{S_TMP}")
        a(f"s_and_b32 s{S_TMP}, s{v}, 1")
        a(f"s_lshl_b32 s{S_TMP}, s{S_TMP}, 2")
        a(f"s_add_u32 s{SROW}, s{SROW}, s{S_TMP}")
        a(f"s_lshl_b32 s{S_TMP}, s{SROW}, 10")
        a(f"s_and_b32 s{S_TMP2}, s2, 3")
        a(f"s_lshl_b32 s{S_TMP2}, s{S_TMP2}, 8")
        a(f"s_add_u32 s{S_TMP}, s{S_TMP}, s{S_TMP2}")
        a(f"v_lshl_add_u32 v{vt0}, v{vG}, 10, v{vC16}")
        for j in range(4):
            a(f"buffer_load_dwordx4 v[{WB+4*j}:{WB+4*j+3}], v{vt0}, s[{S_WO}:{S_WO+3}], s{S_TMP} offen nt")
            if j < 3:
                a(f"s_add_u32 s{S_TMP}, s{S_TMP}, 8192")
        a(f"s_cmp_ge_u32 s2, {T2_0}")
        a("s_cbranch_scc0 L_s_now2")
        a(f"s_cmp_ge_u32 s2, {R_0}")
        a("s_cbranch_scc1 L_s_now2")
        STILE = 102 - 2
        a(f"s_sub_u32 s{STILE}, s2, {T2_0}")
        a(f"v_mul_u32_u24 v{vt0}, {32*3584}, v{vG}")
        a(f"v_and_b32 v{vt1}, 15, v0")
        a(f"v_lshl_add_u32 v{vt0}, v{vt1}, 2, v{vt0}")
        a(f"s_mul_i32 s{S_TMP}, s{v}, {128*3584}")
        a(f"s_lshl_b32 s{S_TMP2}, s{STILE}, 6")
        a(f"s_add_u32 s{S_TMP}, s{S_TMP}, s{S_TMP2}")
        for t in range(32):
            a(f"buffer_load_dword v{WC+t}, v{vt0}, s[{S_WG}:{S_WG+3}], s{S_TMP} offen nt")
            a(f"buffer_load_dword v{WC+32+t}, v{vt0}, s[{S_WU}:{S_WU+3}], s{S_TMP} offen nt")
            if t < 31:
                a(f"s_add_u32 s{S_TMP}, s{S_TMP}, 3584")
        a(f"v_lshl_add_u32 v{vt0}, v{vG}, 13, v{vC16}")
        a(f"s_lshl_b32 s{S_TMP}, s{STILE}, 15")
        a(f"s_lshl_b32 s{S_TMP2}, s{v}, 8")
        a(f"s_add_u32 s{S_TMP}, s{S_TMP}, s{S_TMP2}")
        for j in range(8):
            a(f"buffer_load_dwordx4 v[{WC+64+4*j}:{WC+64+4*j+3}], v{vt0}, s[{S_WD}:{S_WD+3}], s{S_TMP} offen nt")
            if j < 7:
                a(f"s_add_u32 s{S_TMP}, s{S_TMP}, 1024")
        a("L_s_now2:")
        a("s_barrier")
        self.stamp(5, W0+20)
        OA, OB, MLr = W0, W0+4, W0+8
        a(f"v_lshlrev_b32 v{vt2}, 17, v{vB}")
        a(f"v_lshl_add_u32 v{vt2}, v{vU}, 11, v{vt2}")
        a(f"v_lshl_add_u32 v{vt2}, v{vG}, 4, v{vt2}")
        a(f"s_lshr_b32 s{S_TMP}, s2, 5")
        a(f"s_lshl_b32 s{S_SO}, s{S_TMP}, 14")
        a(f"s_and_b32 s{S_TMP}, s{v}, 1")
        a(f"s_lshl_b32 s{S_TMP}, s{S_TMP}, 10")
        a(f"s_add_u32 s{S_SO}, s{S_SO}, s{S_TMP}")
        a(f"s_bfe_u32 s{S_TMP}, s2, 0x10002")
        a(f"s_lshl_b32 s{S_TMP}, s{S_TMP}, 1")
        a(f"s_lshr_b32 s{S_TMP2}, s{v}, 1")
        a(f"s_add_u32 s{S_TMP}, s{S_TMP}, s{S_TMP2}")
        a(f"s_lshl_b32 s{S_TMP}, s{S_TMP}, 8")
        a(f"s_add_u32 s{S_SO}, s{S_SO}, s{S_TMP}")
        a(f"s_bfe_u32 s{S_TMP}, s2, 0x20003")
        a(f"s_lshl_b32 s{S_TMP2}, s{S_TMP}, 6")
        a(f"s_add_u32 s{S_SO}, s{S_SO}, s{S_TMP2}")
        a(f"s_add_u32 s{S_SO}, s{S_SO}, {WS_OPP}")
        a(f"s_add_u32 s97, s{S_SO}, 8192")
        a(f"v_lshlrev_b32 v{vt3}, 11, v{vB}")
        a(f"v_lshl_add_u32 v{vt3}, v{vU}, 4, v{vt3}")
        a(f"s_lshr_b32 s98, s2, 3")
        a(f"s_lshl_b32 s98, s98, 6")
        a(f"s_add_u32 s98, s98, {WS_ML}")

        def iss():
            a(f"buffer_load_dwordx4 v[{OA}:{OA+3}], v{vt2}, s[{S_WS}:{S_WS+3}], s{S_SO} offen sc1")
            a(f"buffer_load_dwordx4 v[{OB}:{OB+3}], v{vt2}, s[{S_WS}:{S_WS+3}], s97 offen sc1")
            a(f"buffer_load_dwordx4 v[{MLr}:{MLr+3}], v{vt3}, s[{S_WS}:{S_WS+3}], s98 offen sc1")
        self.poll(iss, list(range(OA, OA+12)), vA, vO, vT)
        self.stamp(6, W0+20)
        m0, l0, m1, l1 = MLr, MLr+1, MLr+2, MLr+3
        a(f"v_and_b32 v{m0}, s{S_HI16}, v{m0}")
        a(f"v_and_b32 v{m1}, s{S_HI16}, v{m1}")
        a(f"v_max_f32 v{vt0}, v{m0}, v{m1}")
        self.allreduce(vt0, vt1, "v_max_f32", rows=False)
        a(f"v_sub_f32 v{m0}, v{m0}, v{vt0}")
        a(f"v_sub_f32 v{m1}, v{m1}, v{vt0}")
        a(f"v_mul_f32 v{m0}, 0x3fb8aa3b, v{m0}")
        a(f"v_mul_f32 v{m1}, 0x3fb8aa3b, v{m1}")
        a(f"v_exp_f32 v{m0}, v{m0}")
        a(f"v_exp_f32 v{m1}, v{m1}")
        self.nop(1)
        a(f"v_mul_f32 v{l0}, v{m0}, v{l0}")
        a(f"v_fmac_f32 v{l0}, v{m1}, v{l1}")
        for r in range(4):
            a(f"v_mul_f32 v{OA+r}, v{m0}, v{OA+r}")
        for r in range(4):
            a(f"v_fmac_f32 v{OA+r}, v{m1}, v{OB+r}")
        self.nop(2)
        for x in [l0] + [OA+r for r in range(4)]:
            a(f"v_add_f32_dpp v{x}, v{x}, v{x} quad_perm:[1,0,3,2] row_mask:0xf bank_mask:0xf")
        for x in [l0] + [OA+r for r in range(4)]:
            a(f"v_add_f32_dpp v{x}, v{x}, v{x} quad_perm:[2,3,0,1] row_mask:0xf bank_mask:0xf")
        a(f"v_rcp_f32 v{l0}, v{l0}")
        self.nop(1)
        for r in range(4):
            a(f"v_mul_f32 v{OA+r}, v{OA+r}, v{l0}")
        for r in range(4):
            a(f"v_cvt_pk_bf16_f32 v{OA+r}, v{OA+r}, v{OA+r}")
        D1, D2 = W0+4, W0+8
        XB = W0 + 12
        self.gemv_x4(OA, WB, 4, XB, D1, D2, vM0, vM1)
        self.cu_reduce_store(D1, D2, None, WS_AP, vt0, vt1, vT, vL16, W0+8, qp=False)
        self.stamp(7, W0+20)
        a(f"s_cmp_ge_u32 s2, {T2_0}")
        a("s_cbranch_scc0 L_end")
        a(f"s_cmp_ge_u32 s2, {R_0}")
        a("s_cbranch_scc1 L_s_r")
        X1r = W0
        a(f"v_lshlrev_b32 v{vt2}, 11, v{vB}")
        a(f"v_lshl_add_u32 v{vt2}, v{vG}, 7, v{vt2}")
        a(f"v_lshl_add_u32 v{vt2}, v{vU}, 5, v{vt2}")
        a(f"s_lshl_b32 s{S_SO}, s{v}, 9")
        a(f"s_add_u32 s{S_SO}, s{S_SO}, {WS_X1}")

        def iss():
            a(f"buffer_load_dwordx4 v[{X1r}:{X1r+3}], v{vt2}, s[{S_WS}:{S_WS+3}], s{S_SO} offen sc1")
            a(f"buffer_load_dwordx4 v[{X1r+4}:{X1r+7}], v{vt2}, s[{S_WS}:{S_WS+3}], s{S_SO} offen offset:16 sc1")
        self.poll(iss, list(range(X1r, X1r+8)), vA, vO, vT)
        self.stamp(10, W0+20)
        for i in range(8):
            a(f"v_and_b32 v{X1r+i}, s{S_HI16}, v{X1r+i}")
        s1, s2_ = W0+8, W0+9
        self.ln_sum(X1r, 8, s1, vt0)
        a(f"v_mul_f32 v{s2_}, v{X1r}, v{X1r}")
        for i in range(1, 8):
            a(f"v_fmac_f32 v{s2_}, v{X1r+i}, v{X1r+i}")
        self.allreduce(s1, vt0, "v_add_f32")
        self.allreduce(s2_, vt0, "v_add_f32")
        a(f"v_lshlrev_b32 v{vt0}, 5, v{vB}")
        a(f"s_lshl_b32 s{S_TMP}, s{v}, 3")
        a(f"v_add_u32 v{vt1}, s{S_TMP}, v{vt0}")
        a("s_mov_b64 exec, 0x1111")
        a(f"ds_write_b64 v{vt1}, v[{s1}:{s2_}] offset:{L_ST}")
        a("s_mov_b64 exec, -1")
        a("s_waitcnt lgkmcnt(0)")
        a("s_barrier")
        ST = WB
        a(f"ds_read_b128 v[{ST}:{ST+3}], v{vt0} offset:{L_ST}")
        a(f"ds_read_b128 v[{ST+4}:{ST+7}], v{vt0} offset:{L_ST+16}")
        a("s_waitcnt lgkmcnt(0)")
        a(f"v_add_f32 v{s1}, v{ST}, v{ST+2}")
        a(f"v_add_f32 v{vt0}, v{ST+4}, v{ST+6}")
        a(f"v_add_f32 v{s1}, v{s1}, v{vt0}")
        a(f"v_add_f32 v{s2_}, v{ST+1}, v{ST+3}")
        a(f"v_add_f32 v{vt0}, v{ST+5}, v{ST+7}")
        a(f"v_add_f32 v{s2_}, v{s2_}, v{vt0}")
        a(f"v_mul_f32 v{s1}, 0x3b000000, v{s1}")
        a(f"v_mul_f32 v{s2_}, 0x3b000000, v{s2_}")
        a(f"v_fma_f32 v{s2_}, -v{s1}, v{s1}, v{s2_}")
        a(f"v_max_f32 v{s2_}, 0, v{s2_}")
        self.ln_fin(s1, s2_, vt0)
        self.ln_norm(X1r, 8, s1, s2_, vt0, vt1)
        self.modulate(X1r, 8, SBC, SBC+8, vt0, vt1)
        self.nop(1)
        BB = WB
        AG, AU = W0+8, W0+12
        a("s_waitcnt vmcnt(0)")
        for T in range(8):
            us = T//2
            bb = BB + 4*(T & 1)
            for j in range(4):
                a(f"v_and_b32_dpp v{bb+j}, v{X1r+4*(T%2)+j}, v{vMe} quad_perm:[{us},{us},{us},{us}] row_mask:0xf bank_mask:0xf")
            self.nop(2)
            c = "0" if T == 0 else f"v[{AG}:{AG+3}]"
            a(f"v_mfma_f32_16x16x32_bf16 v[{AG}:{AG+3}], v[{WC+4*T}:{WC+4*T+3}], v[{bb}:{bb+3}], {c}")
            c = "0" if T == 0 else f"v[{AU}:{AU+3}]"
            a(f"v_mfma_f32_16x16x32_bf16 v[{AU}:{AU+3}], v[{WC+32+4*T}:{WC+32+4*T+3}], v[{bb}:{bb+3}], {c}")
        self.nop(8)
        a(f"v_lshlrev_b32 v{vt0}, 9, v{vB}")
        a(f"v_lshl_add_u32 v{vt0}, v{vG}, 7, v{vt0}")
        a(f"v_and_b32 v{vt1}, 1, v0")
        a(f"v_lshl_add_u32 v{vt0}, v{vt1}, 4, v{vt0}")
        a(f"s_lshl_b32 s{S_TMP}, s{v}, 2")
        a(f"v_add_u32 v{vt0}, s{S_TMP}, v{vt0}")
        a("s_mov_b32 exec_lo, 0x33333333")
        a("s_mov_b32 exec_hi, 0x33333333")
        for r in range(4):
            a(f"ds_write_b32 v{vt0}, v{AG+r} offset:{L_GU + 32*r}")
            a(f"ds_write_b32 v{vt0}, v{AU+r} offset:{L_GU + 2048 + 32*r}")
        a("s_mov_b64 exec, -1")
        a("s_waitcnt lgkmcnt(0)")
        a("s_barrier")
        a(f"v_lshlrev_b32 v{vt0}, 9, v{vB}")
        a(f"v_lshl_add_u32 v{vt0}, v{vG}, 7, v{vt0}")
        a(f"v_lshl_add_u32 v{vt0}, v{vU}, 5, v{vt0}")
        GR = WB
        a(f"ds_read_b128 v[{GR}:{GR+3}], v{vt0} offset:{L_GU}")
        a(f"ds_read_b128 v[{GR+4}:{GR+7}], v{vt0} offset:{L_GU+16}")
        a(f"ds_read_b128 v[{GR+8}:{GR+11}], v{vt0} offset:{L_GU+2048}")
        a(f"ds_read_b128 v[{GR+12}:{GR+15}], v{vt0} offset:{L_GU+2048+16}")
        a("s_waitcnt lgkmcnt(0)")
        for i in range(4):
            g = GR + 4*i
            a(f"v_add_f32 v{g}, v{g}, v{g+1}")
            a(f"v_add_f32 v{g+2}, v{g+2}, v{g+3}")
            a(f"v_add_f32 v{g}, v{g}, v{g+2}")
        g0, g1, u0, u1 = GR, GR+4, GR+8, GR+12
        self.round2(g0, g1, vt0)
        self.round2(u0, u1, vt1)
        a(f"v_mul_f32 v{g0+1}, 0xbfb8aa3b, v{g0}")
        a(f"v_mul_f32 v{g1+1}, 0xbfb8aa3b, v{g1}")
        a(f"v_exp_f32 v{g0+1}, v{g0+1}")
        a(f"v_exp_f32 v{g1+1}, v{g1+1}")
        self.nop(1)
        a(f"v_add_f32 v{g0+1}, 1.0, v{g0+1}")
        a(f"v_add_f32 v{g1+1}, 1.0, v{g1+1}")
        a(f"v_rcp_f32 v{g0+1}, v{g0+1}")
        a(f"v_rcp_f32 v{g1+1}, v{g1+1}")
        self.nop(1)
        a(f"v_mul_f32 v{g0}, v{g0}, v{g0+1}")
        a(f"v_mul_f32 v{g1}, v{g1}, v{g1+1}")
        self.round2(g0, g1, vt0)
        a(f"v_mul_f32 v{g0}, v{g0}, v{u0}")
        a(f"v_mul_f32 v{g1}, v{g1}, v{u1}")
        AD = W0
        a(f"v_cvt_pk_bf16_f32 v{AD}, v{g0}, v{g0}")
        a(f"v_cvt_pk_bf16_f32 v{AD+1}, v{g1}, v{g1}")
        self.nop(1)
        XB = WB
        for j in range(8):
            us = j//2
            a(f"v_and_b32_dpp v{XB+2*j}, v{AD+(j%2)}, v{vM0} quad_perm:[{us},{us},{us},{us}] row_mask:0xf bank_mask:0xf")
            a(f"v_and_b32_dpp v{XB+2*j+1}, v{AD+(j%2)}, v{vM1} quad_perm:[{us},{us},{us},{us}] row_mask:0xf bank_mask:0xf")
        self.nop(2)
        D1, D2 = W0+4, W0+8
        for j in range(8):
            w = WC + 64 + 4*j
            c1 = "0" if j == 0 else f"v[{D1}:{D1+3}]"
            c2 = "0" if j == 0 else f"v[{D2}:{D2+3}]"
            a(f"v_mfma_f32_16x16x16_bf16 v[{D1}:{D1+3}], v[{w}:{w+1}], v[{XB+2*j}:{XB+2*j+1}], {c1}")
            a(f"v_mfma_f32_16x16x16_bf16 v[{D2}:{D2+3}], v[{w+2}:{w+3}], v[{XB+2*j}:{XB+2*j+1}], {c2}")
        self.nop(8)
        for r in range(8):
            self.tag32(D1+r, vT)
        a(f"s_lshl_b32 s{S_TMP}, s{STILE}, 2")
        a(f"s_add_u32 s{S_TMP}, s{S_TMP}, s{v}")
        a(f"s_lshl_b32 s{S_TMP}, s{S_TMP}, 11")
        a(f"s_add_u32 s{S_TMP}, s{S_TMP}, {WS_DP}")
        a(f"buffer_store_dwordx4 v[{D1}:{D1+3}], v{vL16}, s[{S_WS}:{S_WS+3}], s{S_TMP} offen sc1")
        a(f"buffer_store_dwordx4 v[{D2}:{D2+3}], v{vL16}, s[{S_WS}:{S_WS+3}], s{S_TMP} offen offset:1024 sc1")
        self.stamp(11, W0+20)
        a("s_endpgm")
        a("L_s_r:")
        a(f"s_cmp_ge_u32 s2, {R_0+32}")
        a("s_cbranch_scc1 L_end")
        a(f"s_cmp_lg_u32 s{v}, 2")
        a("s_cbranch_scc1 L_end")
        RD = WC
        SRB = 101
        a(f"s_sub_u32 s{S_TMP}, s2, {R_0}")
        a(f"s_lshr_b32 s{SRB}, s{S_TMP}, 3")
        a(f"s_lshl_b32 s{SRB}, s{SRB}, 11")
        a(f"s_and_b32 s{S_TMP2}, s{S_TMP}, 1")
        a(f"s_lshl_b32 s{S_TMP2}, s{S_TMP2}, 10")
        a(f"s_add_u32 s{SRB}, s{SRB}, s{S_TMP2}")
        a(f"s_bfe_u32 s{S_TMP2}, s{S_TMP}, 0x20001")
        a(f"s_lshl_b32 s{S_TMP2}, s{S_TMP2}, 8")
        a(f"s_add_u32 s{SRB}, s{SRB}, s{S_TMP2}")
        a(f"v_lshl_add_u32 v{vt2}, v{vG}, 13, v{vC16}")

        def iss():
            a(f"s_add_u32 s{S_SO}, s{SRB}, {WS_AP}")
            for q in range(16):
                a(f"buffer_load_dwordx4 v[{RD+4*q}:{RD+4*q+3}], v{vt2}, s[{S_WS}:{S_WS+3}], s{S_SO} offen sc1")
                if q < 15:
                    a(f"s_add_u32 s{S_SO}, s{S_SO}, 32768")
        self.poll(iss, list(range(RD, RD+64)), vA, vO, vT)
        self.stamp(12, W0+20)
        self.reduce_q(RD, 16)
        vga, vgb, vx = SBC, SBC+1, SBC+2
        self.round1(RD)
        a(f"v_and_b32 v{vga}, s{S_HI16}, v{vga}")
        a(f"v_and_b32 v{vgb}, s{S_HI16}, v{vgb}")
        a(f"v_lshlrev_b32 v{vx}, 16, v{vx}")
        a(f"v_mul_f32 v{RD}, v{vga}, v{RD}")
        self.round1(RD)
        a(f"v_add_f32 v{vx}, v{vx}, v{RD}")
        a(f"v_cvt_pk_bf16_f32 v{vx}, v{vx}, v{vx}")
        a(f"v_lshl_or_b32 v{RD}, v{vx}, 16, v{vT}")
        a(f"v_and_b32 v{vx}, s{S_HI16}, v{vx}")
        a(f"v_lshl_add_u32 v{vt0}, v{vB}, 9, v{vCol}")
        a(f"v_lshlrev_b32 v{vt1}, 2, v{vt0}")
        a(f"s_mov_b32 s{S_TMP}, {WS_X1}")
        a(f"buffer_store_dword v{RD}, v{vt1}, s[{S_WS}:{S_WS+3}], s{S_TMP} offen sc1")
        a(f"v_lshlrev_b32 v{vCol}, 1, v{vt0}")
        self.stamp(13, W0+20)

        def iss():
            a(f"s_add_u32 s{S_SO}, s{SRB}, {WS_DP}")
            for q in range(14):
                a(f"buffer_load_dwordx4 v[{RD+4*q}:{RD+4*q+3}], v{vt2}, s[{S_WS}:{S_WS+3}], s{S_SO} offen sc1")
                if q < 13:
                    a(f"s_add_u32 s{S_SO}, s{S_SO}, 32768")
        self.poll(iss, list(range(RD, RD+56)), vA, vO, vT)
        self.reduce_q(RD, 14)
        self.round1(RD)
        a(f"v_mul_f32 v{RD}, v{vgb}, v{RD}")
        self.round1(RD)
        a(f"v_add_f32 v{RD}, v{vx}, v{RD}")
        a(f"v_cvt_pk_bf16_f32 v{RD}, v{RD}, v{RD}")
        a(f"buffer_store_short v{RD}, v{vCol}, s[{S_OUT}:{S_OUT+3}], 0 offen")
        self.stamp(14, W0+20)
        a(f"s_cmp_lg_u32 s2, {R_0}")
        a("s_cbranch_scc1 L_end")
        a(f"v_mov_b32 v{vt0}, s{S_E}")
        a(f"v_mov_b32 v{vt1}, {WS_E}")
        a("s_mov_b64 exec, 1")
        a(f"buffer_store_dword v{vt0}, v{vt1}, s[{S_WS}:{S_WS+3}], 0 offen sc1")
        a("s_endpgm")

    def reduce_q(self, RD, n):
        a = self.a
        idx = list(range(n))
        while len(idx) > 1:
            nxt = []
            for i in range(0, len(idx)-1, 2):
                for r in range(4):
                    a(f"v_add_f32 v{RD+4*idx[i]+r}, v{RD+4*idx[i]+r}, v{RD+4*idx[i+1]+r}")
                nxt.append(idx[i])
            if len(idx) % 2:
                nxt.append(idx[-1])
            idx = nxt
        self.nop(2)
        a(f"v_permlane32_swap_b32 v{RD}, v{RD+2}")
        a(f"v_permlane32_swap_b32 v{RD+1}, v{RD+3}")
        a(f"v_add_f32 v{RD}, v{RD}, v{RD+2}")
        a(f"v_add_f32 v{RD+1}, v{RD+1}, v{RD+3}")
        self.nop(2)
        a(f"v_permlane16_swap_b32 v{RD}, v{RD+1}")
        a(f"v_add_f32 v{RD}, v{RD}, v{RD+1}")

    def ln_sum(self, R, n, dst, t):
        a = self.a
        a(f"v_add_f32 v{dst}, v{R}, v{R+1}")
        a(f"v_add_f32 v{t}, v{R+2}, v{R+3}")
        for i in range(4, n, 2):
            a(f"v_add_f32 v{dst}, v{dst}, v{R+i}")
            a(f"v_add_f32 v{t}, v{t}, v{R+i+1}")
        a(f"v_add_f32 v{dst}, v{dst}, v{t}")

    def ln_fin(self, vMean, vVar, t):
        a = self.a
        self.round2(vMean, vVar, t)
        a(f"v_add_f32 v{vVar}, 0x3727c5ac, v{vVar}")
        self.round1(vVar)
        a(f"v_sqrt_f32 v{vVar}, v{vVar}")
        self.nop(1)
        self.round1(vVar)
        a(f"v_rcp_f32 v{vVar}, v{vVar}")
        self.nop(1)

    def ln_norm(self, Y, n, vMean, vRcp, t0, t1):
        a = self.a
        for i in range(n):
            a(f"v_sub_f32 v{Y+i}, v{Y+i}, v{vMean}")
        for i in range(0, n, 2):
            self.round2(Y+i, Y+i+1, t0 if (i//2) % 2 == 0 else t1)
        for i in range(n):
            a(f"v_mul_f32 v{Y+i}, v{Y+i}, v{vRcp}")
        for i in range(0, n, 2):
            self.round2(Y+i, Y+i+1, t0 if (i//2) % 2 == 0 else t1)

    def modulate(self, Y, n, SH, SCL, t0, t1):
        a = self.a
        for i in range(n):
            a(f"v_and_b32 v{SH+i}, s{S_HI16}, v{SH+i}")
            a(f"v_and_b32 v{SCL+i}, s{S_HI16}, v{SCL+i}")
        for i in range(n):
            a(f"v_add_f32 v{SCL+i}, 1.0, v{SCL+i}")
        for i in range(0, n, 2):
            self.round2(SCL+i, SCL+i+1, t0 if (i//2) % 2 == 0 else t1)
        for i in range(n):
            a(f"v_mul_f32 v{Y+i}, v{Y+i}, v{SCL+i}")
        for i in range(0, n, 2):
            self.round2(Y+i, Y+i+1, t0 if (i//2) % 2 == 0 else t1)
        for i in range(n):
            a(f"v_add_f32 v{Y+i}, v{Y+i}, v{SH+i}")
        for i in range(n):
            a(f"v_cvt_pk_bf16_f32 v{Y+i}, v{Y+i}, v{Y+i}")

    def gemv_x4(self, DU, W, n, XB, D1, D2, vM0, vM1):
        a = self.a
        for j in range(n):
            a(f"v_and_b32 v{XB+2*j}, v{DU+j}, v{vM0}")
            a(f"v_and_b32 v{XB+2*j+1}, v{DU+j}, v{vM1}")
        self.nop(2)
        for j in range(n):
            w = W + 4*j
            c1 = "0" if j == 0 else f"v[{D1}:{D1+3}]"
            c2 = "0" if j == 0 else f"v[{D2}:{D2+3}]"
            a(f"v_mfma_f32_16x16x16_bf16 v[{D1}:{D1+3}], v[{w}:{w+1}], v[{XB+2*j}:{XB+2*j+1}], {c1}")
            a(f"v_mfma_f32_16x16x16_bf16 v[{D2}:{D2+3}], v[{w+2}:{w+3}], v[{XB+2*j}:{XB+2*j+1}], {c2}")
        self.nop(8)

    def cu_reduce_store(self, D1, D2, cnt, wsbase, vt0, vt1, vT, vL16, R, qp):
        a = self.a
        v = S_WID
        a(f"s_lshl_b32 s{S_TMP}, s{v}, 11")
        a(f"v_add_u32 v{vt0}, s{S_TMP}, v{vL16}")
        a(f"ds_write_b128 v{vt0}, v[{D1}:{D1+3}] offset:{L_RP}")
        a(f"ds_write_b128 v{vt0}, v[{D2}:{D2+3}] offset:{L_RP+1024}")
        if cnt is not None:
            self.lds_bar(cnt, 4, vt0, vt1)
        else:
            a("s_waitcnt lgkmcnt(0)")
            a("s_barrier")
        skip = self.label("crs")
        a(f"s_cmp_ge_u32 s{v}, 2")
        a(f"s_cbranch_scc1 {skip}")
        a(f"s_lshl_b32 s{S_TMP}, s{v}, 10")
        a(f"v_add_u32 v{vt0}, s{S_TMP}, v{vL16}")
        assert R % 4 == 0
        for i in range(4):
            a(f"ds_read_b128 v[{R+4*i}:{R+4*i+3}], v{vt0} offset:{L_RP+2048*i}")
        a("s_waitcnt lgkmcnt(0)")
        for r in range(4):
            a(f"v_add_f32 v{R+r}, v{R+r}, v{R+4+r}")
            a(f"v_add_f32 v{R+8+r}, v{R+8+r}, v{R+12+r}")
        for r in range(4):
            a(f"v_add_f32 v{R+r}, v{R+r}, v{R+8+r}")
        for r in range(4):
            self.tag32(R+r, vT)
        if qp:
            a(f"s_and_b32 s{S_TMP}, s2, 7")
            a(f"s_lshl_b32 s{S_TMP}, s{S_TMP}, 5")
            a(f"s_lshr_b32 s{S_TMP2}, s2, 3")
            a(f"s_add_u32 s{S_TMP}, s{S_TMP}, s{S_TMP2}")
            a(f"s_lshl_b32 s{S_TMP}, s{S_TMP}, 11")
        else:
            a(f"s_lshl_b32 s{S_TMP}, s2, 11")
        a(f"s_add_u32 s{S_TMP}, s{S_TMP}, {wsbase}")
        a(f"buffer_store_dwordx4 v[{R}:{R+3}], v{vt0}, s[{S_WS}:{S_WS+3}], s{S_TMP} offen sc1")
        a(f"{skip}:")

    def build(self):
        self.prologue()
        self.svc()
        self.kv()
        self.a("L_end:")
        body = "\n".join(self.L)
        return f"""; @launch grid=(256,1,1) block=(768,1,1) lds={LDS_SIZE}
.amdgcn_target "amdgcn-amd-amdhsa--gfx950"
.text
.globl {KN}
.p2align 8
.type {KN},@function
{KN}:
{body}
s_endpgm
.section .rodata,"a"
.p2align 6
.amdhsa_kernel {KN}
  .amdhsa_next_free_vgpr 168
  .amdhsa_next_free_sgpr 102
  .amdhsa_accum_offset 168
  .amdhsa_group_segment_fixed_size 0
  .amdhsa_kernarg_size 112
  .amdhsa_user_sgpr_count 2
  .amdhsa_user_sgpr_kernarg_segment_ptr 1
  .amdhsa_system_sgpr_workgroup_id_x 1
.end_amdhsa_kernel
"""


if __name__ == "__main__":
    import argparse
    ap = argparse.ArgumentParser()
    ap.add_argument("-o", default="k1.s")
    ap.add_argument("--dbg", action="store_true")
    ap.add_argument("--kv-first", type=int, default=4)
    ap.add_argument("--prio", type=int, default=3)
    args = ap.parse_args()
    g = Gen(dbg=args.dbg, kv_first=args.kv_first, prio=args.prio)
    open(args.o, "w").write(g.build())
```

```python
import sys
KN = "adaLN_cond__gqa_block_cached__swiglu_ffn__decode_kernel"

WS_E = 0
WS_MOD = 0x1000
WS_QP = 0x10000
WS_MODP = 0xA0000
WS_OPP = 0x100000
WS_ML = 0x180000
WS_AP = 0x200000
WS_X1 = 0x280000
WS_DP = 0x300000
WS_DBG = 0x3C0000
WS_SIZE = 0x400000
L_F1P = 0
L_RP = 4096
L_QL = 20480
L_OW = 24576
L_MLW = 40960
L_ST = 41216
L_CNT = 41344
L_GU = 41472
LDS_SIZE = 49152

NFRONT = 128
F1A_N = 64
T2_0 = 128
T2_N = 56
F1B_0 = 184
F1B_N = 64
R_0 = 64
LIMIT = 4000

S_K, S_V, S_WS, S_WQ, S_WO, S_WM, S_WG, S_WU, S_WD, S_X, S_C, S_OUT = 4, 8, 12, 16, 20, 24, 28, 32, 36, 40, 44, 48
S_WID, S_T, S_SO, S_IT, S_V4, S_TMP, S_TMP2, S_E = 52, 53, 54, 55, 56, 57, 58, 59
S_B0, S_B1 = 60, 62
S_FF00 = 90
S_HI16 = 91
S_TS = 92
S_T0 = 94
S_R = 96


class Gen:
    def __init__(self, dbg=False, kv_first=4, prio=3, pace=4, nv=8, pace_v=4, trickle=0, rel=4):
        self.L = []
        self.dbg = dbg
        self.kv_first = kv_first
        self.prio = prio
        self.pace = pace
        self.nv = nv
        self.pace_v = pace_v
        self.trickle = trickle
        self.rel = rel
        self.lbl = 0

    def a(self, s):
        self.L.append(s)

    def label(self, p):
        self.lbl += 1
        return f"L_{p}_{self.lbl}"

    def nop(self, n):
        while n > 0:
            k = min(n, 16)
            self.a(f"s_nop {k-1}")
            n -= k

    def srd(self, s, plo, size):
        self.a(f"s_mov_b32 s{s}, s{plo}")
        self.a(f"s_mov_b32 s{s+1}, s{plo+1}")
        self.a(f"s_mov_b32 s{s+2}, {size}")
        self.a(f"s_mov_b32 s{s+3}, 0x00020000")

    def stamp(self, slot, vtmp):
        if not self.dbg:
            return
        a = self.a
        a(f"s_memrealtime s[{S_TS}:{S_TS+1}]")
        a("s_waitcnt lgkmcnt(0)")
        a(f"v_mov_b32 v{vtmp}, s{S_TS}")
        a(f"v_mov_b32 v{vtmp+1}, s{S_TS+1}")
        a(f"s_lshl_b32 s{S_TMP2}, s2, 7")
        a(f"s_add_u32 s{S_TMP2}, s{S_TMP2}, {WS_DBG + slot*8}")
        a(f"v_mov_b32 v{vtmp+2}, s{S_TMP2}")
        a("s_mov_b64 exec, 1")
        a(f"buffer_store_dwordx2 v[{vtmp}:{vtmp+1}], v{vtmp+2}, s[{S_WS}:{S_WS+3}], 0 offen")
        a("s_mov_b64 exec, -1")
        a("s_nop 1")

    def allreduce(self, r, t, op, quad=True, rows=True):
        a = self.a
        if quad:
            self.nop(2)
            a(f"{op}_dpp v{r}, v{r}, v{r} quad_perm:[1,0,3,2] row_mask:0xf bank_mask:0xf")
            self.nop(2)
            a(f"{op}_dpp v{r}, v{r}, v{r} quad_perm:[2,3,0,1] row_mask:0xf bank_mask:0xf")
        if rows:
            a(f"v_mov_b32 v{t}, v{r}")
            self.nop(2)
            a(f"v_permlane16_swap_b32 v{r}, v{t}")
            a(f"{op} v{r}, v{r}, v{t}")
            a(f"v_mov_b32 v{t}, v{r}")
            self.nop(2)
            a(f"v_permlane32_swap_b32 v{r}, v{t}")
            a(f"{op} v{r}, v{r}, v{t}")

    def round2(self, x0, x1, t):
        a = self.a
        a(f"v_cvt_pk_bf16_f32 v{t}, v{x0}, v{x1}")
        a(f"v_lshlrev_b32 v{x0}, 16, v{t}")
        a(f"v_and_b32 v{x1}, s{S_HI16}, v{t}")

    def round1(self, x, t=None):
        a = self.a
        a(f"v_cvt_pk_bf16_f32 v{x}, v{x}, v{x}")
        a(f"v_and_b32 v{x}, s{S_HI16}, v{x}")

    def poll(self, issue, regs, vA, vO, vT):
        a = self.a
        lp = self.label("poll")
        ld = self.label("pd")
        a(f"s_mov_b32 s{S_IT}, 0")
        a(f"{lp}:")
        issue()
        a("s_waitcnt vmcnt(0)")
        rs = list(regs)
        assert len(rs) >= 3
        a(f"v_bitop3_b32 v{vA}, v{rs[0]}, v{rs[1]}, v{rs[2]} bitop3:0x80")
        a(f"v_or3_b32 v{vO}, v{rs[0]}, v{rs[1]}, v{rs[2]}")
        i = 3
        while i < len(rs):
            r1 = rs[i]
            r2 = rs[i+1] if i+1 < len(rs) else rs[i]
            a(f"v_bitop3_b32 v{vA}, v{vA}, v{r1}, v{r2} bitop3:0x80")
            a(f"v_or3_b32 v{vO}, v{vO}, v{r1}, v{r2}")
            i += 2
        a(f"v_xor_b32 v{vA}, v{vA}, v{vT}")
        a(f"v_xor_b32 v{vO}, v{vO}, v{vT}")
        a(f"v_or_b32 v{vA}, v{vA}, v{vO}")
        a(f"v_and_b32 v{vA}, 0xff, v{vA}")
        a(f"v_cmp_ne_u32 vcc, 0, v{vA}")
        a(f"s_add_u32 s{S_IT}, s{S_IT}, 1")
        a(f"s_cmp_lt_u32 s{S_IT}, {LIMIT}")
        a(f"s_cbranch_scc0 {ld}")
        a(f"s_cbranch_vccnz {lp}")
        a(f"{ld}:")

    def lds_bar(self, k, n, vA, vB):
        a = self.a
        lp = self.label("lb")
        ld = self.label("lbd")
        a("s_waitcnt lgkmcnt(0)")
        a(f"v_mov_b32 v{vA}, {L_CNT + 4*k}")
        a(f"v_mov_b32 v{vB}, 1")
        a("s_mov_b64 exec, 1")
        a(f"ds_add_u32 v{vA}, v{vB}")
        a("s_mov_b64 exec, -1")
        self.lds_wait(k, n, vA, vB, sleep=False)

    def lds_wait(self, k, n, vA, vB, sleep=True):
        a = self.a
        lp = self.label("lw")
        ld = self.label("lwd")
        a(f"v_mov_b32 v{vA}, {L_CNT + 4*k}")
        a(f"s_mov_b32 s{S_IT}, 0")
        a(f"{lp}:")
        a(f"ds_read_b32 v{vB}, v{vA}")
        a("s_waitcnt lgkmcnt(0)")
        a(f"v_readfirstlane_b32 s{S_TMP}, v{vB}")
        a(f"s_add_u32 s{S_IT}, s{S_IT}, 1")
        a(f"s_cmp_ge_u32 s{S_TMP}, {n}")
        a(f"s_cbranch_scc1 {ld}")
        if sleep:
            a("s_sleep 1")
        a(f"s_cmp_lt_u32 s{S_IT}, 400000")
        a(f"s_cbranch_scc1 {lp}")
        a(f"{ld}:")

    def tag32(self, r, vT):
        self.a(f"v_and_or_b32 v{r}, v{r}, s{S_FF00}, v{vT}")

    def masks(self, vM0, vM1, vt, four=True):
        a = self.a
        a(f"v_mov_b32 v{vt}, 0xffff")
        a(f"v_mov_b32 v{vM0}, s{S_HI16}")
        a(f"v_cndmask_b32 v{vM0}, v{vt}, v{vM0}, s[{S_B0}:{S_B0+1}]")
        if four:
            a(f"v_mov_b32 v{vt}, 0")
            a(f"v_cndmask_b32 v{vM1}, v{vt}, v{vM0}, s[{S_B1}:{S_B1+1}]")
            a(f"v_cndmask_b32 v{vM0}, v{vM0}, v{vt}, s[{S_B1}:{S_B1+1}]")

    def prologue(self):
        a = self.a
        a("s_cmp_ge_u32 s2, 256")
        a("s_cbranch_scc1 L_end")
        a("s_load_dwordx16 s[64:79], s[0:1], 0")
        a("s_load_dwordx8 s[80:87], s[0:1], 64")
        a("s_load_dwordx2 s[88:89], s[0:1], 104")
        a("v_lshrrev_b32 v1, 6, v0")
        a("v_and_b32 v0, 63, v0")
        a(f"s_mov_b32 s{S_B0}, 0xaaaaaaaa")
        a(f"s_mov_b32 s{S_B0+1}, 0xaaaaaaaa")
        a(f"v_readfirstlane_b32 s{S_WID}, v1")
        a(f"s_mov_b32 s{S_B1}, 0xcccccccc")
        a(f"s_mov_b32 s{S_B1+1}, 0xcccccccc")
        a(f"s_mov_b32 s{S_FF00}, 0xffffff00")
        a(f"s_mov_b32 s{S_HI16}, 0xffff0000")
        a("s_waitcnt lgkmcnt(0)")
        a(f"s_load_dword s{S_E}, s[88:89], {WS_E}")
        self.srd(S_WS, 88, WS_SIZE)
        a(f"s_cmp_ge_u32 s{S_WID}, 4")
        a("s_cbranch_scc1 L_kv")

    def get_tag(self, vT):
        a = self.a
        a("s_waitcnt lgkmcnt(0)")
        a(f"s_add_u32 s{S_E}, s{S_E}, 1")
        a(f"s_and_b32 s{S_T}, s{S_E}, 0xff")
        a(f"v_mov_b32 v{vT}, s{S_T}")

    def kv(self):
        a = self.a
        a("L_kv:")
        KR = 40
        VR = 104
        vKa, vVa, vT, vM0, vM1, vt0, vt1, vt2 = 1, 2, 3, 4, 5, 6, 7, 8
        vQ = 12
        vD = 16
        vS = 32
        vm, vl = 36, 37
        self.srd(S_K, 66, 0x2000000)
        self.srd(S_V, 68, 0x2000000)
        a(f"s_sub_u32 s{S_V4}, s{S_WID}, 4")
        a(f"s_lshl_b32 s{S_TMP}, s2, 17")
        a(f"s_lshl_b32 s{S_TMP2}, s{S_V4}, 14")
        a(f"s_add_u32 s{S_TMP}, s{S_TMP}, s{S_TMP2}")
        a(f"v_and_b32 v{vt0}, 3, v0")
        a(f"v_lshlrev_b32 v{vt0}, 4, v{vt0}")
        a(f"v_bfe_u32 v{vt1}, v0, 2, 2")
        a(f"v_lshl_add_u32 v{vt0}, v{vt1}, 8, v{vt0}")
        a(f"v_lshrrev_b32 v{vt1}, 4, v0")
        a(f"v_lshl_add_u32 v{vt0}, v{vt1}, 6, v{vt0}")
        a(f"v_add_u32 v{vKa}, s{S_TMP}, v{vt0}")
        a(f"v_lshlrev_b32 v{vt0}, 4, v0")
        a(f"v_add_u32 v{vVa}, s{S_TMP}, v{vt0}")
        a("s_mov_b32 s80, 4096")
        a("s_mov_b32 s81, 8192")
        a("s_mov_b32 s82, 12288")
        so = ["0", "s80", "s81", "s82"]

        def ld(srd, va, reg, j):
            a(f"buffer_load_dwordx4 v[{reg}:{reg+3}], v{va}, s[{srd}:{srd+3}], {so[j//4]} offen offset:{(j%4)*1024} nt")
        a(f"s_cmp_ge_u32 s2, {NFRONT}")
        a("s_cbranch_scc1 L_kv_flood")
        for j in range(self.kv_first):
            ld(S_K, vKa, KR+4*j, j)
        a("s_barrier")
        for j in range(self.kv_first, self.kv_first + self.trickle):
            a(f"s_waitcnt vmcnt({self.pace-1})")
            ld(S_K, vKa, KR+4*j, j)
        self.lds_wait(self.rel, 4, vt0, vt1)
        for j in range(self.kv_first + self.trickle, 16):
            ld(S_K, vKa, KR+4*j, j)
        for j in range(16):
            ld(S_V, vVa, VR+4*j, j)
        a("s_branch L_kv_flood2")
        a("L_kv_flood:")
        for j in range(16):
            ld(S_K, vKa, KR+4*j, j)
        for j in range(16):
            ld(S_V, vVa, VR+4*j, j)
        a("s_barrier")
        a("L_kv_flood2:")
        self.masks(vM0, vM1, vt0)
        self.get_tag(vT)
        self.lds_wait(2, 4, vt0, vt1)
        self.stamp(8, 8)
        a(f"v_bfe_u32 v{vt0}, v0, 2, 2")
        a(f"v_lshlrev_b32 v{vt0}, 8, v{vt0}")
        a(f"v_lshrrev_b32 v{vt1}, 4, v0")
        a(f"v_lshl_add_u32 v{vt0}, v{vt1}, 6, v{vt0}")
        a(f"v_and_b32 v{vt1}, 3, v0")
        a(f"v_lshl_add_u32 v{vt0}, v{vt1}, 4, v{vt0}")
        a(f"ds_read_b128 v[{vQ}:{vQ+3}], v{vt0} offset:{L_QL}")
        a("s_waitcnt lgkmcnt(0)")
        nst = 1 if self.dbg else 0
        for J in range(4):
            a(f"s_waitcnt vmcnt({16 + 12 - 4*J})")
            for jj in range(4):
                k = KR + 4*(4*J+jj)
                d = vD + 4*jj
                a(f"v_mfma_f32_16x16x32_bf16 v[{d}:{d+3}], v[{k}:{k+3}], v[{vQ}:{vQ+3}], 0")
            self.nop(8)
            for jj in range(4):
                d = vD + 4*jj
                a(f"v_cndmask_b32 v{d}, v{d}, v{d+1}, s[{S_B0}:{S_B0+1}]")
                a(f"v_cndmask_b32 v{d+2}, v{d+2}, v{d+3}, s[{S_B0}:{S_B0+1}]")
                a(f"v_cndmask_b32 v{d}, v{d}, v{d+2}, s[{S_B1}:{S_B1+1}]")
            v0_, v1_, v2_, v3_ = vD, vD+4, vD+8, vD+12
            a(f"v_cndmask_b32 v{v0_+1}, v{v0_}, v{v1_}, s[{S_B0}:{S_B0+1}]")
            a(f"v_cndmask_b32 v{v0_+2}, v{v1_}, v{v0_}, s[{S_B0}:{S_B0+1}]")
            a(f"v_cndmask_b32 v{v2_+1}, v{v2_}, v{v3_}, s[{S_B0}:{S_B0+1}]")
            a(f"v_cndmask_b32 v{v2_+2}, v{v3_}, v{v2_}, s[{S_B0}:{S_B0+1}]")
            self.nop(1)
            a(f"v_add_f32_dpp v{v0_}, v{v0_+2}, v{v0_+1} quad_perm:[1,0,3,2] row_mask:0xf bank_mask:0xf")
            a(f"v_add_f32_dpp v{v2_}, v{v2_+2}, v{v2_+1} quad_perm:[1,0,3,2] row_mask:0xf bank_mask:0xf")
            a(f"v_cndmask_b32 v{v0_+1}, v{v0_}, v{v2_}, s[{S_B1}:{S_B1+1}]")
            a(f"v_cndmask_b32 v{v0_+2}, v{v2_}, v{v0_}, s[{S_B1}:{S_B1+1}]")
            self.nop(2)
            a(f"v_add_f32_dpp v{vS+J}, v{v0_+2}, v{v0_+1} quad_perm:[2,3,0,1] row_mask:0xf bank_mask:0xf")
        self.round2(vS, vS+1, vt0)
        self.round2(vS+2, vS+3, vt1)
        for J in range(4):
            a(f"v_mul_f32 v{vS+J}, 0x3db504f3, v{vS+J}")
        self.round2(vS, vS+1, vt0)
        self.round2(vS+2, vS+3, vt1)
        a(f"v_max3_f32 v{vm}, v{vS}, v{vS+1}, v{vS+2}")
        a(f"v_max_f32 v{vm}, v{vm}, v{vS+3}")
        self.allreduce(vm, vt0, "v_max_f32")
        for J in range(4):
            a(f"v_sub_f32 v{vS+J}, v{vS+J}, v{vm}")
        for J in range(4):
            a(f"v_mul_f32 v{vS+J}, 0x3fb8aa3b, v{vS+J}")
        for J in range(4):
            a(f"v_exp_f32 v{vS+J}, v{vS+J}")
        self.nop(1)
        a(f"v_add_f32 v{vl}, v{vS}, v{vS+1}")
        a(f"v_add_f32 v{vt0}, v{vS+2}, v{vS+3}")
        a(f"v_add_f32 v{vl}, v{vl}, v{vt0}")
        for J in range(4):
            a(f"v_cvt_pk_bf16_f32 v{vS+J}, v{vS+J}, v{vS+J}")
        self.nop(1)
        for j in range(16):
            J, jj = j//4, j % 4
            a(f"v_and_b32_dpp v{KR+2*j}, v{vS+J}, v{vM0} quad_perm:[{jj},{jj},{jj},{jj}] row_mask:0xf bank_mask:0xf")
            a(f"v_and_b32_dpp v{KR+2*j+1}, v{vS+J}, v{vM1} quad_perm:[{jj},{jj},{jj},{jj}] row_mask:0xf bank_mask:0xf")
        self.allreduce(vl, vt0, "v_add_f32")
        a(f"v_mov_b32 v{vt1}, v{vm}")
        a(f"v_mov_b32 v{vt2}, v{vl}")
        a(f"v_bfe_u32 v{vt0}, v0, 2, 2")
        a(f"v_lshlrev_b32 v{vt0}, 6, v{vt0}")
        a(f"s_lshl_b32 s{S_TMP}, s{S_V4}, 3")
        a(f"v_add_u32 v{vt0}, s{S_TMP}, v{vt0}")
        a("s_mov_b64 exec, 0x1111")
        a(f"ds_write_b64 v{vt0}, v[{vt1-1+1}:{vt2}] offset:{L_MLW}") if False else None
        a(f"ds_write_b32 v{vt0}, v{vm} offset:{L_MLW}")
        a(f"ds_write_b32 v{vt0}, v{vl} offset:{L_MLW+4}")
        a("s_mov_b64 exec, -1")
        AC = KR + 32
        for j in range(16):
            a(f"s_waitcnt vmcnt({15-j})")
            v = VR + 4*j
            p = j & 1
            d1 = AC + 8*p
            d2 = d1 + 4
            c1 = "0" if j < 2 else f"v[{d1}:{d1+3}]"
            c2 = "0" if j < 2 else f"v[{d2}:{d2+3}]"
            a(f"v_mfma_f32_16x16x16_bf16 v[{d1}:{d1+3}], v[{v}:{v+1}], v[{KR+2*j}:{KR+2*j+1}], {c1}")
            a(f"v_mfma_f32_16x16x16_bf16 v[{d2}:{d2+3}], v[{v+2}:{v+3}], v[{KR+2*j}:{KR+2*j+1}], {c2}")
        self.nop(8)
        for r in range(8):
            a(f"v_add_f32 v{AC+r}, v{AC+r}, v{AC+8+r}")
        self.stamp(15, 8)
        a(f"s_lshl_b32 s{S_TMP}, s{S_V4}, 11")
        a(f"v_lshlrev_b32 v{vt0}, 4, v0")
        a(f"v_add_u32 v{vt0}, s{S_TMP}, v{vt0}")
        a(f"ds_write_b128 v{vt0}, v[{AC}:{AC+3}] offset:{L_OW}")
        a(f"ds_write_b128 v{vt0}, v[{AC+4}:{AC+7}] offset:{L_OW+1024}")
        a("s_waitcnt lgkmcnt(0)")
        a(f"v_mov_b32 v{vt1}, {L_CNT + 12}")
        a(f"v_mov_b32 v{vt2}, 1")
        a("s_mov_b64 exec, 1")
        a(f"ds_add_u32 v{vt1}, v{vt2}")
        a("s_mov_b64 exec, -1")
        a(f"s_cmp_ge_u32 s{S_V4}, 2")
        a("s_cbranch_scc1 L_end")
        self.lds_wait(3, 8, vt0, vt1, sleep=False)
        OW = VR
        MLr = VR + 32
        a(f"s_lshl_b32 s{S_TMP}, s{S_V4}, 10")
        a(f"v_lshlrev_b32 v{vt0}, 4, v0")
        a(f"v_add_u32 v{vt0}, s{S_TMP}, v{vt0}")
        a(f"v_bfe_u32 v{vt1}, v0, 2, 2")
        a(f"v_lshlrev_b32 v{vt1}, 6, v{vt1}")
        for i in range(4):
            a(f"ds_read_b128 v[{MLr+4*i}:{MLr+4*i+3}], v{vt1} offset:{L_MLW+16*i}")
        for w in range(8):
            a(f"ds_read_b128 v[{OW+4*w}:{OW+4*w+3}], v{vt0} offset:{L_OW+2048*w}")
        a("s_waitcnt lgkmcnt(8)")
        a(f"v_max3_f32 v{vm}, v{MLr}, v{MLr+2}, v{MLr+4}")
        a(f"v_max3_f32 v{vm}, v{vm}, v{MLr+6}, v{MLr+8}")
        a(f"v_max3_f32 v{vm}, v{vm}, v{MLr+10}, v{MLr+12}")
        a(f"v_max_f32 v{vm}, v{vm}, v{MLr+14}")
        for w in range(8):
            a(f"v_sub_f32 v{MLr+2*w}, v{MLr+2*w}, v{vm}")
        for w in range(8):
            a(f"v_mul_f32 v{MLr+2*w}, 0x3fb8aa3b, v{MLr+2*w}")
        for w in range(8):
            a(f"v_exp_f32 v{MLr+2*w}, v{MLr+2*w}")
        self.nop(1)
        a(f"v_mul_f32 v{vl}, v{MLr}, v{MLr+1}")
        for w in range(1, 8):
            a(f"v_fmac_f32 v{vl}, v{MLr+2*w}, v{MLr+2*w+1}")
        a("s_waitcnt lgkmcnt(0)")
        O = AC
        for r in range(4):
            a(f"v_mul_f32 v{O+r}, v{MLr}, v{OW+r}")
        for w in range(1, 8):
            for r in range(4):
                a(f"v_fmac_f32 v{O+r}, v{MLr+2*w}, v{OW+4*w+r}")
        for r in range(4):
            self.tag32(O+r, vT)
        a(f"s_lshl_b32 s{S_TMP}, s2, 11")
        a(f"s_add_u32 s{S_TMP}, s{S_TMP}, {WS_OPP}")
        a(f"buffer_store_dwordx4 v[{O}:{O+3}], v{vt0}, s[{S_WS}:{S_WS+3}], s{S_TMP} offen sc1")
        a(f"s_cmp_lg_u32 s{S_V4}, 0")
        a("s_cbranch_scc1 L_end")
        a(f"v_or_b32 v{vm}, v{vm}, v{vT}")
        self.tag32(vl, vT)
        a(f"s_lshr_b32 s{S_TMP}, s2, 3")
        a(f"s_lshl_b32 s{S_TMP}, s{S_TMP}, 8")
        a(f"s_and_b32 s{S_TMP2}, s2, 3")
        a(f"s_lshl_b32 s{S_TMP2}, s{S_TMP2}, 4")
        a(f"s_add_u32 s{S_TMP}, s{S_TMP}, s{S_TMP2}")
        a(f"s_bfe_u32 s{S_TMP2}, s2, 0x10002")
        a(f"s_lshl_b32 s{S_TMP2}, s{S_TMP2}, 3")
        a(f"s_add_u32 s{S_TMP}, s{S_TMP}, s{S_TMP2}")
        a(f"s_add_u32 s{S_TMP}, s{S_TMP}, {WS_ML}")
        a("s_mov_b64 exec, 0x1111")
        a(f"buffer_store_dwordx2 v[{vm}:{vl}], v{vt1}, s[{S_WS}:{S_WS+3}], s{S_TMP} offen sc1")
        a("s_mov_b64 exec, -1")
        self.stamp(9, 8)
        a("s_endpgm")

    def svc(self):
        a = self.a
        vT, vM0, vM1, vMe, vG, vB, vU = 1, 2, 3, 4, 5, 6, 7
        vA, vO, vt0, vt1, vt2, vt3 = 8, 9, 10, 11, 12, 13
        vC16 = 14
        vL16 = 15
        W0 = 16
        WA = 40
        WB = 56
        WC = 72
        SC = WC + 32
        if self.prio:
            a(f"s_setprio {self.prio}")
        self.srd(S_WQ, 70, 512*4096*2)
        self.srd(S_WO, 72, 512*4096*2)
        self.srd(S_WM, 84, 512*3072*2)
        self.srd(S_WG, 76, 512*1792*2)
        self.srd(S_WU, 78, 512*1792*2)
        self.srd(S_WD, 80, 512*1792*2)
        self.srd(S_X, 64, 4096)
        self.srd(S_C, 82, 4096)
        self.srd(S_OUT, 86, 4096)
        v = S_WID
        a(f"v_lshrrev_b32 v{vG}, 4, v0")
        a(f"v_bfe_u32 v{vB}, v0, 2, 2")
        a(f"v_and_b32 v{vU}, 3, v0")
        a(f"v_and_b32 v{vC16}, 15, v0")
        a(f"v_lshlrev_b32 v{vC16}, 4, v{vC16}")
        a(f"v_lshlrev_b32 v{vL16}, 4, v0")
        a(f"v_mov_b32 v{vt0}, 0")
        a(f"v_lshlrev_b32 v{vt1}, 2, v0")
        a(f"s_cmp_lg_u32 s{v}, 0")
        a("s_cbranch_scc1 L_s_nz")
        a("s_mov_b64 exec, 0xffff")
        a(f"ds_write_b32 v{vt1}, v{vt0} offset:{L_CNT}")
        a("s_mov_b64 exec, -1")
        a("L_s_nz:")

        def t1_loads():
            SROW = 101
            a(f"s_lshr_b32 s{S_TMP}, s2, 3")
            a(f"s_lshl_b32 s{SROW}, s{S_TMP}, 7")
            a(f"s_bfe_u32 s{S_TMP}, s2, 0x10002")
            a(f"s_lshl_b32 s{S_TMP}, s{S_TMP}, 6")
            a(f"s_add_u32 s{SROW}, s{SROW}, s{S_TMP}")
            a(f"s_lshr_b32 s{S_TMP}, s{v}, 1")
            a(f"s_lshl_b32 s{S_TMP}, s{S_TMP}, 5")
            a(f"s_add_u32 s{SROW}, s{SROW}, s{S_TMP}")
            a(f"s_and_b32 s{S_TMP}, s{v}, 1")
            a(f"s_lshl_b32 s{S_TMP}, s{S_TMP}, 2")
            a(f"s_add_u32 s{SROW}, s{SROW}, s{S_TMP}")
            a(f"s_lshl_b32 s{S_TMP}, s{SROW}, 10")
            a(f"s_and_b32 s{S_TMP2}, s2, 3")
            a(f"s_lshl_b32 s{S_TMP2}, s{S_TMP2}, 8")
            a(f"s_add_u32 s{S_TMP}, s{S_TMP}, s{S_TMP2}")
            a(f"v_lshl_add_u32 v{vt0}, v{vG}, 10, v{vC16}")
            for j in range(4):
                a(f"buffer_load_dwordx4 v[{WB+4*j}:{WB+4*j+3}], v{vt0}, s[{S_WO}:{S_WO+3}], s{S_TMP} offen nt")
                if j < 3:
                    a(f"s_add_u32 s{S_TMP}, s{S_TMP}, 8192")

        a(f"s_cmp_ge_u32 s2, {NFRONT}")
        a("s_cbranch_scc1 L_s_nf")
        SK0 = S_R
        a(f"s_and_b32 s{SK0}, s2, 7")
        a(f"s_lshl_b32 s{SK0}, s{SK0}, 6")
        a(f"s_cmp_ge_u32 s2, {F1A_N}")
        a("s_cbranch_scc1 L_s_nof1a")
        CC = W0
        a(f"s_lshl_b32 s{S_TMP}, s{v}, 4")
        a(f"s_add_u32 s{S_TMP}, s{S_TMP}, s{SK0}")
        a(f"v_lshlrev_b32 v{vt0}, 10, v{vB}")
        a(f"v_lshl_add_u32 v{vt0}, v{vG}, 3, v{vt0}")
        a(f"s_lshl_b32 s{S_TMP2}, s{S_TMP}, 1")
        a(f"buffer_load_dwordx2 v[{CC}:{CC+1}], v{vt0}, s[{S_C}:{S_C+3}], s{S_TMP2} offen")
        a(f"v_mul_u32_u24 v{vt0}, {4*6144}, v{vG}")
        a(f"v_add_u32 v{vt0}, v{vt0}, v{vC16}")
        a(f"s_mul_i32 s{S_TMP}, s{S_TMP}, 6144")
        a(f"s_lshr_b32 s{S_TMP2}, s2, 3")
        a(f"s_lshl_b32 s{S_TMP2}, s{S_TMP2}, 8")
        a(f"s_add_u32 s{S_TMP}, s{S_TMP}, s{S_TMP2}")
        for j in range(4):
            a(f"buffer_load_dwordx4 v[{WC+4*j}:{WC+4*j+3}], v{vt0}, s[{S_WM}:{S_WM+3}], s{S_TMP} offen nt")
            if j < 3:
                a(f"s_add_u32 s{S_TMP}, s{S_TMP}, 6144")
        a("L_s_nof1a:")
        XS = SC
        XO = W0 + 4
        a(f"v_lshlrev_b32 v{vt0}, 10, v{vB}")
        a(f"v_lshl_add_u32 v{vt0}, v{vG}, 8, v{vt0}")
        a(f"v_lshl_add_u32 v{vt0}, v{vU}, 6, v{vt0}")
        for i in range(4):
            a(f"buffer_load_dwordx4 v[{XS+4*i}:{XS+4*i+3}], v{vt0}, s[{S_X}:{S_X+3}], 0 offen offset:{16*i}")
        SRB0 = 97
        a(f"s_lshr_b32 s{S_TMP}, s{v}, 1")
        a(f"s_lshl_b32 s{S_TMP}, s{S_TMP}, 5")
        a(f"s_add_u32 s{SRB0}, s{SK0}, s{S_TMP}")
        a(f"s_and_b32 s{S_TMP}, s{v}, 1")
        a(f"s_lshl_b32 s{S_TMP}, s{S_TMP}, 2")
        a(f"s_add_u32 s{SRB0}, s{SRB0}, s{S_TMP}")
        a(f"v_lshlrev_b32 v{vt0}, 10, v{vB}")
        a(f"v_lshl_add_u32 v{vt0}, v{vG}, 1, v{vt0}")
        a(f"s_lshl_b32 s{S_TMP}, s{SRB0}, 1")
        for j in range(4):
            a(f"buffer_load_ushort v{XO+j}, v{vt0}, s[{S_X}:{S_X+3}], s{S_TMP} offen offset:{16*j}")
        a(f"v_lshl_add_u32 v{vt0}, v{vG}, 13, v{vC16}")
        a(f"s_lshl_b32 s{S_TMP}, s{SRB0}, 13")
        a(f"s_lshr_b32 s{S_TMP2}, s2, 3")
        a(f"s_lshl_b32 s{S_TMP2}, s{S_TMP2}, 9")
        a(f"s_add_u32 s{S_TMP}, s{S_TMP}, s{S_TMP2}")
        for j in range(4):
            a(f"buffer_load_dwordx4 v[{WA+4*j}:{WA+4*j+3}], v{vt0}, s[{S_WQ}:{S_WQ+3}], s{S_TMP} offen nt")
            a(f"buffer_load_dwordx4 v[{WB+4*j}:{WB+4*j+3}], v{vt0}, s[{S_WQ}:{S_WQ+3}], s{S_TMP} offen offset:256 nt")
            if j < 3:
                a(f"s_add_u32 s{S_TMP}, s{S_TMP}, {8*8192}")
        a("s_waitcnt lgkmcnt(0)")
        a("s_barrier")
        self.masks(vM0, vM1, vt0)
        self.get_tag(vT)
        self.stamp(0, W0+8)
        a(f"s_cmp_ge_u32 s2, {F1A_N}")
        a("s_cbranch_scc1 L_s_nof1b")
        DU = W0 + 8
        BB = W0 + 12
        a("s_waitcnt vmcnt(20)")
        for i in range(2):
            a(f"v_lshlrev_b32 v{DU+2*i}, 16, v{CC+i}")
            a(f"v_and_b32 v{DU+2*i+1}, s{S_HI16}, v{CC+i}")
        for i in range(4):
            a(f"v_mul_f32 v{BB+i}, 0xbfb8aa3b, v{DU+i}")
        for i in range(4):
            a(f"v_exp_f32 v{BB+i}, v{BB+i}")
        self.nop(1)
        for i in range(4):
            a(f"v_add_f32 v{BB+i}, 1.0, v{BB+i}")
        for i in range(4):
            a(f"v_rcp_f32 v{BB+i}, v{BB+i}")
        self.nop(1)
        for i in range(4):
            a(f"v_mul_f32 v{DU+i}, v{DU+i}, v{BB+i}")
        for i in range(4):
            a(f"v_cvt_pk_bf16_f32 v{DU+i}, v{DU+i}, v{DU+i}")
        XB = W0 + 12
        D1, D2 = WC+16, WC+20
        self.gemv_x_build(DU, 4, XB, vM0, vM1)
        a("s_waitcnt vmcnt(16)")
        self.gemv_mfma(WC, 4, XB, D1, D2)
        self.nop(8)

        def modp_addr():
            a(f"s_and_b32 s{S_TMP}, s2, 7")
            a(f"s_lshl_b32 s{S_TMP}, s{S_TMP}, 3")
            a(f"s_lshr_b32 s{S_TMP2}, s2, 3")
            a(f"s_add_u32 s{S_TMP}, s{S_TMP}, s{S_TMP2}")
            a(f"s_lshl_b32 s{S_TMP}, s{S_TMP}, 11")
            a(f"s_add_u32 s{S_TMP}, s{S_TMP}, {WS_MODP}")
        self.cu_reduce([(D1, D2)], 0, L_OW, modp_addr, vt0, vt1, vT, vL16, WC)
        self.stamp(1, W0+8)
        a("L_s_nof1b:")
        XF = SC + 16
        a("s_waitcnt vmcnt(8)")
        for i in range(16):
            a(f"v_lshlrev_b32 v{XF+2*i}, 16, v{XS+i}")
            a(f"v_and_b32 v{XF+2*i+1}, s{S_HI16}, v{XS+i}")
        vMean, vVar = W0, W0+1
        Y = W0 + 8
        self.ln_sum(XF, 32, vMean, vt0)
        self.allreduce(vMean, vt0, "v_add_f32")
        a(f"v_mul_f32 v{vMean}, 0x3b000000, v{vMean}")
        for i in range(32):
            a(f"v_sub_f32 v{XF+i}, v{XF+i}, v{vMean}")
        a(f"v_mul_f32 v{vVar}, v{XF}, v{XF}")
        a(f"v_mul_f32 v{vt0}, v{XF+1}, v{XF+1}")
        for i in range(2, 32, 2):
            a(f"v_fmac_f32 v{vVar}, v{XF+i}, v{XF+i}")
            a(f"v_fmac_f32 v{vt0}, v{XF+i+1}, v{XF+i+1}")
        a(f"v_add_f32 v{vVar}, v{vVar}, v{vt0}")
        self.allreduce(vVar, vt0, "v_add_f32")
        a(f"v_mul_f32 v{vVar}, 0x3b000000, v{vVar}")
        self.ln_fin(vMean, vVar, vt0)
        for j in range(4):
            a(f"v_lshlrev_b32 v{Y+j}, 16, v{XO+j}")
        self.ln_norm(Y, 4, vMean, vVar, vt0, vt1)
        P0 = WC
        a(f"v_lshlrev_b32 v{vt2}, 14, v{vU}")
        a(f"v_lshl_add_u32 v{vt2}, v{vB}, 6, v{vt2}")
        a(f"v_lshl_add_u32 v{vt2}, v{vG}, 4, v{vt2}")
        a(f"s_bfe_u32 s{S_TMP}, s2, 0x20001")
        a(f"s_lshl_b32 s{S_SO}, s{S_TMP}, 11")
        a(f"s_and_b32 s{S_TMP}, s{v}, 1")
        a(f"s_lshl_b32 s{S_TMP}, s{S_TMP}, 10")
        a(f"s_add_u32 s{S_SO}, s{S_SO}, s{S_TMP}")
        a(f"s_and_b32 s{S_TMP}, s2, 1")
        a(f"s_lshl_b32 s{S_TMP}, s{S_TMP}, 1")
        a(f"s_lshr_b32 s{S_TMP2}, s{v}, 1")
        a(f"s_add_u32 s{S_TMP}, s{S_TMP}, s{S_TMP2}")
        a(f"s_lshl_b32 s{S_TMP}, s{S_TMP}, 8")
        a(f"s_add_u32 s{S_SO}, s{S_SO}, s{S_TMP}")
        a(f"s_add_u32 s{S_SO}, s{S_SO}, {WS_MODP}")
        a(f"s_add_u32 s97, s{S_SO}, {4*8*2048}")
        a(f"s_add_u32 s98, s{S_SO}, {4*2048}")
        a(f"s_add_u32 s99, s{S_SO}, {4*8*2048 + 4*2048}")

        def iss():
            for q, sreg in enumerate([S_SO, 97, 98, 99]):
                a(f"buffer_load_dwordx4 v[{P0+4*q}:{P0+4*q+3}], v{vt2}, s[{S_WS}:{S_WS+3}], s{sreg} offen sc1")
        self.poll(iss, list(range(P0, P0+16)), vA, vO, vT)
        self.stamp(2, W0+20)
        SA, CA = P0, P0+8
        for r in range(4):
            a(f"v_add_f32 v{SA+r}, v{SA+r}, v{SA+4+r}")
            a(f"v_add_f32 v{CA+r}, v{CA+r}, v{CA+4+r}")
        xs = [SA+r for r in range(4)] + [CA+r for r in range(4)]
        self.nop(1)
        for x in xs:
            a(f"v_add_f32_dpp v{x}, v{x}, v{x} quad_perm:[1,0,3,2] row_mask:0xf bank_mask:0xf")
        for x in xs:
            a(f"v_add_f32_dpp v{x}, v{x}, v{x} quad_perm:[2,3,0,1] row_mask:0xf bank_mask:0xf")
        self.round2(SA, SA+1, vt0)
        self.round2(SA+2, SA+3, vt1)
        self.round2(CA, CA+1, vt0)
        self.round2(CA+2, CA+3, vt1)
        self.modulate(Y, 4, SA, CA, vt0, vt1, clean=True)
        XB = W0 + 12
        D1, D2, D3, D4 = W0, W0+4, WC+16, WC+20
        self.gemv_x_build(Y, 4, XB, vM0, vM1)
        self.nop(2)
        self.gemv_mfma(WA, 4, XB, D1, D2)
        self.gemv_mfma(WB, 4, XB, D3, D4)
        self.nop(8)

        def qp_addr():
            a(f"s_and_b32 s{S_TMP}, s2, 7")
            a(f"s_lshl_b32 s{S_TMP}, s{S_TMP}, 5")
            a(f"s_lshr_b32 s{S_TMP2}, s2, 3")
            a(f"s_lshl_b32 s{S_TMP2}, s{S_TMP2}, 1")
            a(f"s_add_u32 s{S_TMP}, s{S_TMP}, s{S_TMP2}")
            a(f"s_lshr_b32 s{S_TMP2}, s{v}, 1")
            a(f"s_add_u32 s{S_TMP}, s{S_TMP}, s{S_TMP2}")
            a(f"s_lshl_b32 s{S_TMP}, s{S_TMP}, 11")
            a(f"s_add_u32 s{S_TMP}, s{S_TMP}, {WS_QP}")
        self.cu_reduce([(D1, D2), (D3, D4)], 1, L_RP, qp_addr, vt0, vt1, vT, vL16, WC+24)
        a(f"v_mov_b32 v{vt0}, {L_CNT+16}")
        a(f"v_mov_b32 v{vt1}, 1")
        a("s_mov_b64 exec, 1")
        a(f"ds_add_u32 v{vt0}, v{vt1}")
        a("s_mov_b64 exec, -1")
        self.stamp(3, W0+20)
        a("s_branch L_s_join")
        a("L_s_nf:")
        t1_loads()
        STILE = 100
        a(f"s_cmp_ge_u32 s2, {F1B_0}")
        a("s_cbranch_scc1 L_s_nf1b")
        a(f"s_sub_u32 s{S_TMP}, s2, {T2_0}")
        a(f"s_and_b32 s{STILE}, s{S_TMP}, 7")
        a(f"s_mul_i32 s{STILE}, s{STILE}, 7")
        a(f"s_lshr_b32 s{S_TMP}, s{S_TMP}, 3")
        a(f"s_add_u32 s{STILE}, s{STILE}, s{S_TMP}")
        a(f"v_mul_u32_u24 v{vt0}, {32*3584}, v{vG}")
        a(f"v_and_b32 v{vt1}, 15, v0")
        a(f"v_lshl_add_u32 v{vt0}, v{vt1}, 2, v{vt0}")
        a(f"s_mul_i32 s{S_TMP}, s{v}, {128*3584}")
        a(f"s_lshl_b32 s{S_TMP2}, s{STILE}, 6")
        a(f"s_add_u32 s{S_TMP}, s{S_TMP}, s{S_TMP2}")
        for t in range(32):
            a(f"buffer_load_dword v{WC+t}, v{vt0}, s[{S_WG}:{S_WG+3}], s{S_TMP} offen nt")
            a(f"buffer_load_dword v{WC+32+t}, v{vt0}, s[{S_WU}:{S_WU+3}], s{S_TMP} offen nt")
            if t < 31:
                a(f"s_add_u32 s{S_TMP}, s{S_TMP}, 3584")
        a(f"v_lshl_add_u32 v{vt0}, v{vG}, 13, v{vC16}")
        a(f"s_lshl_b32 s{S_TMP}, s{STILE}, 15")
        a(f"s_lshl_b32 s{S_TMP2}, s{v}, 8")
        a(f"s_add_u32 s{S_TMP}, s{S_TMP}, s{S_TMP2}")
        for j in range(8):
            a(f"buffer_load_dwordx4 v[{WC+64+4*j}:{WC+64+4*j+3}], v{vt0}, s[{S_WD}:{S_WD+3}], s{S_TMP} offen nt")
            if j < 7:
                a(f"s_add_u32 s{S_TMP}, s{S_TMP}, 1024")
        a("s_waitcnt lgkmcnt(0)")
        a("s_barrier")
        self.get_tag(vT)
        a("s_branch L_s_nf2")
        a("L_s_nf1b:")
        a(f"s_cmp_ge_u32 s2, {F1B_0 + F1B_N}")
        a("s_cbranch_scc1 L_s_nf1c")
        a(f"s_sub_u32 s{S_TMP}, s2, {F1B_0}")
        a(f"s_and_b32 s{STILE}, s{S_TMP}, 7")
        a(f"s_lshl_b32 s{STILE}, s{STILE}, 3")
        a(f"s_lshr_b32 s{S_TMP}, s{S_TMP}, 3")
        a(f"s_add_u32 s{STILE}, s{STILE}, s{S_TMP}")
        a(f"s_add_u32 s{STILE}, s{STILE}, 32")
        vCc = W0
        a(f"v_lshlrev_b32 v{vt0}, 10, v{vB}")
        a(f"v_lshl_add_u32 v{vt0}, v{vG}, 6, v{vt0}")
        a(f"v_lshl_add_u32 v{vt0}, v{vU}, 4, v{vt0}")
        a(f"s_lshl_b32 s{S_TMP}, s{v}, 8")
        a(f"buffer_load_dwordx4 v[{vCc}:{vCc+3}], v{vt0}, s[{S_C}:{S_C+3}], s{S_TMP} offen")
        a(f"v_mul_u32_u24 v{vt0}, {32*6144}, v{vG}")
        a(f"v_and_b32 v{vt1}, 15, v0")
        a(f"v_lshl_add_u32 v{vt0}, v{vt1}, 2, v{vt0}")
        a(f"s_mul_i32 s{S_TMP}, s{v}, {128*6144}")
        a(f"s_lshl_b32 s{S_TMP2}, s{STILE}, 6")
        a(f"s_add_u32 s{S_TMP}, s{S_TMP}, s{S_TMP2}")
        for t in range(32):
            a(f"buffer_load_dword v{WC+t}, v{vt0}, s[{S_WM}:{S_WM+3}], s{S_TMP} offen nt")
            if t < 31:
                a(f"s_add_u32 s{S_TMP}, s{S_TMP}, 6144")
        a("s_waitcnt lgkmcnt(0)")
        a("s_barrier")
        self.masks(vMe, None, vt0, four=False)
        self.get_tag(vT)
        DU = W0 + 8
        BB = W0 + 16
        ACC = W0
        a("s_waitcnt vmcnt(32)")
        for i in range(4):
            a(f"v_lshlrev_b32 v{DU+2*i}, 16, v{vCc+i}")
            a(f"v_and_b32 v{DU+2*i+1}, s{S_HI16}, v{vCc+i}")
        for i in range(8):
            a(f"v_mul_f32 v{BB+i}, 0xbfb8aa3b, v{DU+i}")
        for i in range(8):
            a(f"v_exp_f32 v{BB+i}, v{BB+i}")
        self.nop(1)
        for i in range(8):
            a(f"v_add_f32 v{BB+i}, 1.0, v{BB+i}")
        for i in range(8):
            a(f"v_rcp_f32 v{BB+i}, v{BB+i}")
        self.nop(1)
        for i in range(8):
            a(f"v_mul_f32 v{DU+i}, v{DU+i}, v{BB+i}")
        for i in range(8):
            a(f"v_cvt_pk_bf16_f32 v{DU+i}, v{DU+i}, v{DU+i}")
        self.nop(1)
        for T in range(8):
            us = T//2
            bb = BB + 4*(T & 1)
            for j in range(4):
                a(f"v_and_b32_dpp v{bb+j}, v{DU+4*(T%2)+j}, v{vMe} quad_perm:[{us},{us},{us},{us}] row_mask:0xf bank_mask:0xf")
            a(f"s_waitcnt vmcnt({28 - 4*T})")
            self.nop(1)
            c = "0" if T == 0 else f"v[{ACC}:{ACC+3}]"
            a(f"v_mfma_f32_16x16x32_bf16 v[{ACC}:{ACC+3}], v[{WC+4*T}:{WC+4*T+3}], v[{bb}:{bb+3}], {c}")
        self.nop(8)
        a(f"s_lshl_b32 s{S_TMP}, s{v}, 10")
        a(f"v_add_u32 v{vt0}, s{S_TMP}, v{vL16}")
        a(f"ds_write_b128 v{vt0}, v[{ACC}:{ACC+3}] offset:{L_F1P}")
        self.lds_bar(0, 4, vt0, vt1)
        a(f"s_lshl_b32 s{S_TMP}, s{v}, 2")
        a(f"v_add_u32 v{vt0}, s{S_TMP}, v{vL16}")
        for i in range(4):
            a(f"ds_read_b32 v{DU+i}, v{vt0} offset:{L_F1P+1024*i}")
        a("s_waitcnt lgkmcnt(0)")
        a(f"v_add_f32 v{DU}, v{DU}, v{DU+1}")
        a(f"v_add_f32 v{DU+2}, v{DU+2}, v{DU+3}")
        a(f"v_add_f32 v{DU}, v{DU}, v{DU+2}")
        a(f"v_cvt_pk_bf16_f32 v{DU}, v{DU}, v{DU}")
        a(f"v_lshl_or_b32 v{DU}, v{DU}, 16, v{vT}")
        a(f"v_mul_u32_u24 v{vt0}, {3072*4}, v{vB}")
        a(f"v_lshl_add_u32 v{vt0}, v{vG}, 5, v{vt0}")
        a(f"v_and_b32 v{vt1}, 1, v0")
        a(f"v_lshl_add_u32 v{vt0}, v{vt1}, 2, v{vt0}")
        a(f"s_lshl_b32 s{S_TMP}, s{STILE}, 7")
        a(f"s_lshl_b32 s{S_TMP2}, s{v}, 3")
        a(f"s_add_u32 s{S_TMP}, s{S_TMP}, s{S_TMP2}")
        a(f"s_add_u32 s{S_TMP}, s{S_TMP}, {WS_MOD}")
        a("s_mov_b32 exec_lo, 0x33333333")
        a("s_mov_b32 exec_hi, 0x33333333")
        a(f"buffer_store_dword v{DU}, v{vt0}, s[{S_WS}:{S_WS+3}], s{S_TMP} offen sc1")
        a("s_mov_b64 exec, -1")
        a("s_branch L_s_nf2")
        a("L_s_nf1c:")
        a("s_waitcnt lgkmcnt(0)")
        a("s_barrier")
        self.get_tag(vT)
        a("L_s_nf2:")
        self.masks(vM0, vM1, vt0)
        self.masks(vMe, None, vt0, four=False)
        self.stamp(0, W0+8)
        a("L_s_join:")
        QD = W0
        a(f"v_lshrrev_b32 v{vt2}, 5, v0")
        a(f"v_lshlrev_b32 v{vt2}, 16, v{vt2}")
        a(f"v_bfe_u32 v{vt3}, v0, 4, 1")
        a(f"v_lshl_add_u32 v{vt2}, v{vt3}, 10, v{vt2}")
        a(f"v_lshl_add_u32 v{vt2}, v{vB}, 8, v{vt2}")
        a(f"v_lshl_add_u32 v{vt2}, v{vU}, 4, v{vt2}")
        a(f"s_bfe_u32 s{S_TMP}, s2, 0x30003")
        a(f"s_lshl_b32 s{S_TMP}, s{S_TMP}, 2")
        a(f"s_add_u32 s{S_TMP}, s{S_TMP}, s{v}")
        a(f"s_lshl_b32 s{S_TMP}, s{S_TMP}, 11")
        a(f"s_lshr_b32 s{S_TMP2}, s2, 6")
        a(f"s_lshl_b32 s{S_TMP2}, s{S_TMP2}, 6")
        a(f"s_add_u32 s{S_TMP}, s{S_TMP}, s{S_TMP2}")
        a(f"s_add_u32 s{S_SO}, s{S_TMP}, {WS_QP}")
        a(f"s_add_u32 s97, s{S_SO}, {1 << 17}")
        a(f"s_add_u32 s98, s{S_SO}, {2 << 17}")
        a(f"s_add_u32 s99, s{S_SO}, {3 << 17}")

        def iss():
            for q, sreg in enumerate([S_SO, 97, 98, 99]):
                a(f"buffer_load_dwordx4 v[{QD+4*q}:{QD+4*q+3}], v{vt2}, s[{S_WS}:{S_WS+3}], s{sreg} offen sc1")
        self.poll(iss, list(range(QD, QD+16)), vA, vO, vT)
        for r in range(4):
            a(f"v_add_f32 v{QD+r}, v{QD+r}, v{QD+4+r}")
            a(f"v_add_f32 v{QD+8+r}, v{QD+8+r}, v{QD+12+r}")
        for r in range(4):
            a(f"v_add_f32 v{QD+r}, v{QD+r}, v{QD+8+r}")
        self.nop(2)
        a(f"v_permlane32_swap_b32 v{QD}, v{QD+2}")
        a(f"v_permlane32_swap_b32 v{QD+1}, v{QD+3}")
        a(f"v_add_f32 v{QD}, v{QD}, v{QD+2}")
        a(f"v_add_f32 v{QD+1}, v{QD+1}, v{QD+3}")
        a(f"v_cvt_pk_bf16_f32 v{QD}, v{QD}, v{QD+1}")
        a(f"v_lshlrev_b32 v{vt0}, 6, v{vB}")
        a(f"v_lshrrev_b32 v{vt1}, 5, v0")
        a(f"v_lshl_add_u32 v{vt0}, v{vt1}, 5, v{vt0}")
        a(f"v_lshl_add_u32 v{vt0}, v{vt3}, 3, v{vt0}")
        a(f"v_lshl_add_u32 v{vt0}, v{vU}, 1, v{vt0}")
        a(f"s_lshl_b32 s{S_TMP}, s{v}, 8")
        a(f"v_add_u32 v{vt0}, s{S_TMP}, v{vt0}")
        a(f"ds_write_b16 v{vt0}, v{QD} offset:{L_QL}")
        a(f"ds_write_b16_d16_hi v{vt0}, v{QD} offset:{L_QL+16}")
        a("s_waitcnt lgkmcnt(0)")
        a(f"v_mov_b32 v{vt0}, {L_CNT+8}")
        a(f"v_mov_b32 v{vt1}, 1")
        a("s_mov_b64 exec, 1")
        a(f"ds_add_u32 v{vt0}, v{vt1}")
        a("s_mov_b64 exec, -1")
        self.stamp(4, W0+20)
        SBC = WA
        a(f"s_cmp_ge_u32 s2, {NFRONT}")
        a("s_cbranch_scc1 L_s_prep_nf")
        t1_loads()
        a(f"s_cmp_lt_u32 s2, {R_0}")
        a("s_cbranch_scc1 L_s_prep_done")
        a(f"s_cmp_ge_u32 s2, {R_0+32}")
        a("s_cbranch_scc1 L_s_prep_done")
        a(f"s_cmp_lg_u32 s{v}, 2")
        a("s_cbranch_scc1 L_s_prep_done")
        SCOL = 100
        a(f"s_sub_u32 s{S_TMP}, s2, {R_0}")
        a(f"s_lshr_b32 s{SCOL}, s{S_TMP}, 1")
        a(f"s_lshl_b32 s{SCOL}, s{SCOL}, 5")
        a(f"s_and_b32 s{S_TMP}, s{S_TMP}, 1")
        a(f"s_lshl_b32 s{S_TMP}, s{S_TMP}, 2")
        a(f"s_add_u32 s{SCOL}, s{SCOL}, s{S_TMP}")
        vCol = SBC + 3
        a(f"v_lshl_add_u32 v{vCol}, v{vG}, 3, v{vU}")
        a(f"v_add_u32 v{vCol}, s{SCOL}, v{vCol}")
        a(f"v_lshl_add_u32 v{vt0}, v{vB}, 9, v{vCol}")
        a(f"v_lshlrev_b32 v{vt0}, 1, v{vt0}")
        a(f"buffer_load_ushort v{SBC+2}, v{vt0}, s[{S_X}:{S_X+3}], 0 offen")
        a(f"v_mul_u32_u24 v{vt2}, 3072, v{vB}")
        a(f"v_add_u32 v{vt2}, v{vt2}, v{vCol}")
        a(f"v_lshlrev_b32 v{vt2}, 2, v{vt2}")
        a(f"s_mov_b32 s{S_SO}, {WS_MOD + 1024*4}")
        a(f"s_mov_b32 s97, {WS_MOD + 2560*4}")

        def iss():
            a(f"buffer_load_dword v{SBC}, v{vt2}, s[{S_WS}:{S_WS+3}], s{S_SO} offen sc1")
            a(f"buffer_load_dword v{SBC+1}, v{vt2}, s[{S_WS}:{S_WS+3}], s97 offen sc1")
        self.poll(iss, [SBC, SBC+1, SBC+1], vA, vO, vT)
        a("s_branch L_s_prep_done")
        a("L_s_prep_nf:")
        a(f"s_cmp_ge_u32 s2, {T2_0+T2_N}")
        a("s_cbranch_scc1 L_s_prep_done")
        a(f"v_mul_u32_u24 v{vt2}, {3072*4}, v{vB}")
        a(f"v_lshl_add_u32 v{vt2}, v{vG}, 7, v{vt2}")
        a(f"v_lshl_add_u32 v{vt2}, v{vU}, 5, v{vt2}")
        a(f"s_lshl_b32 s{S_SO}, s{v}, 9")
        a(f"s_add_u32 s{S_SO}, s{S_SO}, {WS_MOD + 1536*4}")

        def iss():
            a(f"buffer_load_dwordx4 v[{SBC}:{SBC+3}], v{vt2}, s[{S_WS}:{S_WS+3}], s{S_SO} offen sc1")
            a(f"buffer_load_dwordx4 v[{SBC+4}:{SBC+7}], v{vt2}, s[{S_WS}:{S_WS+3}], s{S_SO} offen offset:16 sc1")
            a(f"buffer_load_dwordx4 v[{SBC+8}:{SBC+11}], v{vt2}, s[{S_WS}:{S_WS+3}], s{S_SO} offen offset:2048 sc1")
            a(f"buffer_load_dwordx4 v[{SBC+12}:{SBC+15}], v{vt2}, s[{S_WS}:{S_WS+3}], s{S_SO} offen offset:2064 sc1")
        self.poll(iss, list(range(SBC, SBC+16)), vA, vO, vT)
        a("L_s_prep_done:")
        self.lds_wait(3, 8, vt0, vt1)
        self.stamp(5, W0+20)
        OA, OB, MLr = W0, W0+4, W0+8
        a(f"v_lshlrev_b32 v{vt2}, 17, v{vB}")
        a(f"v_lshl_add_u32 v{vt2}, v{vU}, 11, v{vt2}")
        a(f"v_lshl_add_u32 v{vt2}, v{vG}, 4, v{vt2}")
        a(f"s_lshr_b32 s{S_TMP}, s2, 5")
        a(f"s_lshl_b32 s{S_SO}, s{S_TMP}, 14")
        a(f"s_and_b32 s{S_TMP}, s{v}, 1")
        a(f"s_lshl_b32 s{S_TMP}, s{S_TMP}, 10")
        a(f"s_add_u32 s{S_SO}, s{S_SO}, s{S_TMP}")
        a(f"s_bfe_u32 s{S_TMP}, s2, 0x10002")
        a(f"s_lshl_b32 s{S_TMP}, s{S_TMP}, 1")
        a(f"s_lshr_b32 s{S_TMP2}, s{v}, 1")
        a(f"s_add_u32 s{S_TMP}, s{S_TMP}, s{S_TMP2}")
        a(f"s_lshl_b32 s{S_TMP}, s{S_TMP}, 8")
        a(f"s_add_u32 s{S_SO}, s{S_SO}, s{S_TMP}")
        a(f"s_bfe_u32 s{S_TMP}, s2, 0x20003")
        a(f"s_lshl_b32 s{S_TMP2}, s{S_TMP}, 6")
        a(f"s_add_u32 s{S_SO}, s{S_SO}, s{S_TMP2}")
        a(f"s_add_u32 s{S_SO}, s{S_SO}, {WS_OPP}")
        a(f"s_add_u32 s97, s{S_SO}, 8192")
        a(f"v_lshlrev_b32 v{vt3}, 11, v{vB}")
        a(f"v_lshl_add_u32 v{vt3}, v{vU}, 4, v{vt3}")
        a(f"s_lshr_b32 s98, s2, 3")
        a(f"s_lshl_b32 s98, s98, 6")
        a(f"s_add_u32 s98, s98, {WS_ML}")

        def iss():
            a(f"buffer_load_dwordx4 v[{OA}:{OA+3}], v{vt2}, s[{S_WS}:{S_WS+3}], s{S_SO} offen sc1")
            a(f"buffer_load_dwordx4 v[{OB}:{OB+3}], v{vt2}, s[{S_WS}:{S_WS+3}], s97 offen sc1")
            a(f"buffer_load_dwordx4 v[{MLr}:{MLr+3}], v{vt3}, s[{S_WS}:{S_WS+3}], s98 offen sc1")
        self.poll(iss, list(range(OA, OA+12)), vA, vO, vT)
        self.stamp(6, W0+20)
        m0, l0, m1, l1 = MLr, MLr+1, MLr+2, MLr+3
        a(f"v_and_b32 v{m0}, s{S_HI16}, v{m0}")
        a(f"v_and_b32 v{m1}, s{S_HI16}, v{m1}")
        a(f"v_max_f32 v{vt0}, v{m0}, v{m1}")
        self.allreduce(vt0, vt1, "v_max_f32", rows=False)
        a(f"v_sub_f32 v{m0}, v{m0}, v{vt0}")
        a(f"v_sub_f32 v{m1}, v{m1}, v{vt0}")
        a(f"v_mul_f32 v{m0}, 0x3fb8aa3b, v{m0}")
        a(f"v_mul_f32 v{m1}, 0x3fb8aa3b, v{m1}")
        a(f"v_exp_f32 v{m0}, v{m0}")
        a(f"v_exp_f32 v{m1}, v{m1}")
        self.nop(1)
        a(f"v_mul_f32 v{l0}, v{m0}, v{l0}")
        a(f"v_fmac_f32 v{l0}, v{m1}, v{l1}")
        for r in range(4):
            a(f"v_mul_f32 v{OA+r}, v{m0}, v{OA+r}")
        for r in range(4):
            a(f"v_fmac_f32 v{OA+r}, v{m1}, v{OB+r}")
        self.nop(2)
        for x in [l0] + [OA+r for r in range(4)]:
            a(f"v_add_f32_dpp v{x}, v{x}, v{x} quad_perm:[1,0,3,2] row_mask:0xf bank_mask:0xf")
        for x in [l0] + [OA+r for r in range(4)]:
            a(f"v_add_f32_dpp v{x}, v{x}, v{x} quad_perm:[2,3,0,1] row_mask:0xf bank_mask:0xf")
        a(f"v_rcp_f32 v{l0}, v{l0}")
        self.nop(1)
        for r in range(4):
            a(f"v_mul_f32 v{OA+r}, v{OA+r}, v{l0}")
        for r in range(4):
            a(f"v_cvt_pk_bf16_f32 v{OA+r}, v{OA+r}, v{OA+r}")
        D1, D2 = W0+4, W0+8
        XB = W0 + 12
        self.gemv_x4(OA, WB, 4, XB, D1, D2, vM0, vM1)

        def ap_addr():
            a(f"s_lshl_b32 s{S_TMP}, s2, 11")
            a(f"s_add_u32 s{S_TMP}, s{S_TMP}, {WS_AP}")
        self.cu_reduce([(D1, D2)], None, L_RP, ap_addr, vt0, vt1, vT, vL16, W0+8)
        self.stamp(7, W0+20)
        a(f"s_cmp_lt_u32 s2, {T2_0}")
        a("s_cbranch_scc1 L_s_r")
        a(f"s_cmp_ge_u32 s2, {T2_0+T2_N}")
        a("s_cbranch_scc1 L_end")
        X1r = W0
        a(f"v_lshlrev_b32 v{vt2}, 11, v{vB}")
        a(f"v_lshl_add_u32 v{vt2}, v{vG}, 7, v{vt2}")
        a(f"v_lshl_add_u32 v{vt2}, v{vU}, 5, v{vt2}")
        a(f"s_lshl_b32 s{S_SO}, s{v}, 9")
        a(f"s_add_u32 s{S_SO}, s{S_SO}, {WS_X1}")

        def iss():
            a(f"buffer_load_dwordx4 v[{X1r}:{X1r+3}], v{vt2}, s[{S_WS}:{S_WS+3}], s{S_SO} offen sc1")
            a(f"buffer_load_dwordx4 v[{X1r+4}:{X1r+7}], v{vt2}, s[{S_WS}:{S_WS+3}], s{S_SO} offen offset:16 sc1")
        self.poll(iss, list(range(X1r, X1r+8)), vA, vO, vT)
        self.stamp(10, W0+20)
        for i in range(8):
            a(f"v_and_b32 v{X1r+i}, s{S_HI16}, v{X1r+i}")
        s1, s2_ = W0+8, W0+9
        self.ln_sum(X1r, 8, s1, vt0)
        a(f"v_mul_f32 v{s2_}, v{X1r}, v{X1r}")
        for i in range(1, 8):
            a(f"v_fmac_f32 v{s2_}, v{X1r+i}, v{X1r+i}")
        self.allreduce(s1, vt0, "v_add_f32")
        self.allreduce(s2_, vt0, "v_add_f32")
        a(f"v_lshlrev_b32 v{vt0}, 5, v{vB}")
        a(f"s_lshl_b32 s{S_TMP}, s{v}, 3")
        a(f"v_add_u32 v{vt1}, s{S_TMP}, v{vt0}")
        a("s_mov_b64 exec, 0x1111")
        a(f"ds_write_b64 v{vt1}, v[{s1}:{s2_}] offset:{L_ST}")
        a("s_mov_b64 exec, -1")
        a("s_waitcnt lgkmcnt(0)")
        a("s_barrier")
        ST = WB
        a(f"ds_read_b128 v[{ST}:{ST+3}], v{vt0} offset:{L_ST}")
        a(f"ds_read_b128 v[{ST+4}:{ST+7}], v{vt0} offset:{L_ST+16}")
        a("s_waitcnt lgkmcnt(0)")
        a(f"v_add_f32 v{s1}, v{ST}, v{ST+2}")
        a(f"v_add_f32 v{vt0}, v{ST+4}, v{ST+6}")
        a(f"v_add_f32 v{s1}, v{s1}, v{vt0}")
        a(f"v_add_f32 v{s2_}, v{ST+1}, v{ST+3}")
        a(f"v_add_f32 v{vt0}, v{ST+5}, v{ST+7}")
        a(f"v_add_f32 v{s2_}, v{s2_}, v{vt0}")
        a(f"v_mul_f32 v{s1}, 0x3b000000, v{s1}")
        a(f"v_mul_f32 v{s2_}, 0x3b000000, v{s2_}")
        a(f"v_fma_f32 v{s2_}, -v{s1}, v{s1}, v{s2_}")
        a(f"v_max_f32 v{s2_}, 0, v{s2_}")
        self.ln_fin(s1, s2_, vt0)
        self.ln_norm(X1r, 8, s1, s2_, vt0, vt1)
        self.modulate(X1r, 8, SBC, SBC+8, vt0, vt1)
        self.nop(1)
        BB = WB
        AG, AU = W0+8, W0+12
        a("s_waitcnt vmcnt(0)")
        for T in range(8):
            us = T//2
            bb = BB + 4*(T & 1)
            for j in range(4):
                a(f"v_and_b32_dpp v{bb+j}, v{X1r+4*(T%2)+j}, v{vMe} quad_perm:[{us},{us},{us},{us}] row_mask:0xf bank_mask:0xf")
            self.nop(2)
            c = "0" if T == 0 else f"v[{AG}:{AG+3}]"
            a(f"v_mfma_f32_16x16x32_bf16 v[{AG}:{AG+3}], v[{WC+4*T}:{WC+4*T+3}], v[{bb}:{bb+3}], {c}")
            c = "0" if T == 0 else f"v[{AU}:{AU+3}]"
            a(f"v_mfma_f32_16x16x32_bf16 v[{AU}:{AU+3}], v[{WC+32+4*T}:{WC+32+4*T+3}], v[{bb}:{bb+3}], {c}")
        self.nop(8)
        a(f"v_lshlrev_b32 v{vt0}, 9, v{vB}")
        a(f"v_lshl_add_u32 v{vt0}, v{vG}, 7, v{vt0}")
        a(f"v_and_b32 v{vt1}, 1, v0")
        a(f"v_lshl_add_u32 v{vt0}, v{vt1}, 4, v{vt0}")
        a(f"s_lshl_b32 s{S_TMP}, s{v}, 2")
        a(f"v_add_u32 v{vt0}, s{S_TMP}, v{vt0}")
        a("s_mov_b32 exec_lo, 0x33333333")
        a("s_mov_b32 exec_hi, 0x33333333")
        for r in range(4):
            a(f"ds_write_b32 v{vt0}, v{AG+r} offset:{L_GU + 32*r}")
            a(f"ds_write_b32 v{vt0}, v{AU+r} offset:{L_GU + 2048 + 32*r}")
        a("s_mov_b64 exec, -1")
        a("s_waitcnt lgkmcnt(0)")
        a("s_barrier")
        a(f"v_lshlrev_b32 v{vt0}, 9, v{vB}")
        a(f"v_lshl_add_u32 v{vt0}, v{vG}, 7, v{vt0}")
        a(f"v_lshl_add_u32 v{vt0}, v{vU}, 5, v{vt0}")
        GR = WB
        a(f"ds_read_b128 v[{GR}:{GR+3}], v{vt0} offset:{L_GU}")
        a(f"ds_read_b128 v[{GR+4}:{GR+7}], v{vt0} offset:{L_GU+16}")
        a(f"ds_read_b128 v[{GR+8}:{GR+11}], v{vt0} offset:{L_GU+2048}")
        a(f"ds_read_b128 v[{GR+12}:{GR+15}], v{vt0} offset:{L_GU+2048+16}")
        a("s_waitcnt lgkmcnt(0)")
        for i in range(4):
            g = GR + 4*i
            a(f"v_add_f32 v{g}, v{g}, v{g+1}")
            a(f"v_add_f32 v{g+2}, v{g+2}, v{g+3}")
            a(f"v_add_f32 v{g}, v{g}, v{g+2}")
        g0, g1, u0, u1 = GR, GR+4, GR+8, GR+12
        self.round2(g0, g1, vt0)
        self.round2(u0, u1, vt1)
        a(f"v_mul_f32 v{g0+1}, 0xbfb8aa3b, v{g0}")
        a(f"v_mul_f32 v{g1+1}, 0xbfb8aa3b, v{g1}")
        a(f"v_exp_f32 v{g0+1}, v{g0+1}")
        a(f"v_exp_f32 v{g1+1}, v{g1+1}")
        self.nop(1)
        a(f"v_add_f32 v{g0+1}, 1.0, v{g0+1}")
        a(f"v_add_f32 v{g1+1}, 1.0, v{g1+1}")
        a(f"v_rcp_f32 v{g0+1}, v{g0+1}")
        a(f"v_rcp_f32 v{g1+1}, v{g1+1}")
        self.nop(1)
        a(f"v_mul_f32 v{g0}, v{g0}, v{g0+1}")
        a(f"v_mul_f32 v{g1}, v{g1}, v{g1+1}")
        self.round2(g0, g1, vt0)
        a(f"v_mul_f32 v{g0}, v{g0}, v{u0}")
        a(f"v_mul_f32 v{g1}, v{g1}, v{u1}")
        AD = W0
        a(f"v_cvt_pk_bf16_f32 v{AD}, v{g0}, v{g0}")
        a(f"v_cvt_pk_bf16_f32 v{AD+1}, v{g1}, v{g1}")
        self.nop(1)
        XB = WB
        for j in range(8):
            us = j//2
            a(f"v_and_b32_dpp v{XB+2*j}, v{AD+(j%2)}, v{vM0} quad_perm:[{us},{us},{us},{us}] row_mask:0xf bank_mask:0xf")
            a(f"v_and_b32_dpp v{XB+2*j+1}, v{AD+(j%2)}, v{vM1} quad_perm:[{us},{us},{us},{us}] row_mask:0xf bank_mask:0xf")
        self.nop(2)
        D1, D2 = W0+4, W0+8
        for j in range(8):
            w = WC + 64 + 4*j
            c1 = "0" if j == 0 else f"v[{D1}:{D1+3}]"
            c2 = "0" if j == 0 else f"v[{D2}:{D2+3}]"
            a(f"v_mfma_f32_16x16x16_bf16 v[{D1}:{D1+3}], v[{w}:{w+1}], v[{XB+2*j}:{XB+2*j+1}], {c1}")
            a(f"v_mfma_f32_16x16x16_bf16 v[{D2}:{D2+3}], v[{w+2}:{w+3}], v[{XB+2*j}:{XB+2*j+1}], {c2}")
        self.nop(8)
        for r in range(8):
            self.tag32(D1+r, vT)
        a(f"s_lshl_b32 s{S_TMP}, s{STILE}, 2")
        a(f"s_add_u32 s{S_TMP}, s{S_TMP}, s{v}")
        a(f"s_lshl_b32 s{S_TMP}, s{S_TMP}, 11")
        a(f"s_add_u32 s{S_TMP}, s{S_TMP}, {WS_DP}")
        a(f"buffer_store_dwordx4 v[{D1}:{D1+3}], v{vL16}, s[{S_WS}:{S_WS+3}], s{S_TMP} offen sc1")
        a(f"buffer_store_dwordx4 v[{D2}:{D2+3}], v{vL16}, s[{S_WS}:{S_WS+3}], s{S_TMP} offen offset:1024 sc1")
        self.stamp(11, W0+20)
        a("s_endpgm")
        a("L_s_r:")
        a(f"s_cmp_lt_u32 s2, {R_0}")
        a("s_cbranch_scc1 L_end")
        a(f"s_cmp_ge_u32 s2, {R_0+32}")
        a("s_cbranch_scc1 L_end")
        a(f"s_cmp_lg_u32 s{v}, 2")
        a("s_cbranch_scc1 L_end")
        RD = WC
        SRB = 101
        a(f"s_sub_u32 s{S_TMP}, s2, {R_0}")
        a(f"s_lshr_b32 s{SRB}, s{S_TMP}, 3")
        a(f"s_lshl_b32 s{SRB}, s{SRB}, 11")
        a(f"s_and_b32 s{S_TMP2}, s{S_TMP}, 1")
        a(f"s_lshl_b32 s{S_TMP2}, s{S_TMP2}, 10")
        a(f"s_add_u32 s{SRB}, s{SRB}, s{S_TMP2}")
        a(f"s_bfe_u32 s{S_TMP2}, s{S_TMP}, 0x20001")
        a(f"s_lshl_b32 s{S_TMP2}, s{S_TMP2}, 8")
        a(f"s_add_u32 s{SRB}, s{SRB}, s{S_TMP2}")
        a(f"v_lshl_add_u32 v{vt2}, v{vG}, 13, v{vC16}")

        def iss():
            a(f"s_add_u32 s{S_SO}, s{SRB}, {WS_AP}")
            for q in range(16):
                a(f"buffer_load_dwordx4 v[{RD+4*q}:{RD+4*q+3}], v{vt2}, s[{S_WS}:{S_WS+3}], s{S_SO} offen sc1")
                if q < 15:
                    a(f"s_add_u32 s{S_SO}, s{S_SO}, 32768")
        self.poll(iss, list(range(RD, RD+64)), vA, vO, vT)
        self.stamp(12, W0+20)
        self.reduce_q(RD, 16)
        vga, vgb, vx = SBC, SBC+1, SBC+2
        self.round1(RD)
        a(f"v_and_b32 v{vga}, s{S_HI16}, v{vga}")
        a(f"v_and_b32 v{vgb}, s{S_HI16}, v{vgb}")
        a(f"v_lshlrev_b32 v{vx}, 16, v{vx}")
        a(f"v_mul_f32 v{RD}, v{vga}, v{RD}")
        self.round1(RD)
        a(f"v_add_f32 v{vx}, v{vx}, v{RD}")
        a(f"v_cvt_pk_bf16_f32 v{vx}, v{vx}, v{vx}")
        a(f"v_lshl_or_b32 v{RD}, v{vx}, 16, v{vT}")
        a(f"v_and_b32 v{vx}, s{S_HI16}, v{vx}")
        a(f"v_lshl_add_u32 v{vt0}, v{vB}, 9, v{vCol}")
        a(f"v_lshlrev_b32 v{vt1}, 2, v{vt0}")
        a(f"s_mov_b32 s{S_TMP}, {WS_X1}")
        a(f"buffer_store_dword v{RD}, v{vt1}, s[{S_WS}:{S_WS+3}], s{S_TMP} offen sc1")
        a(f"v_lshlrev_b32 v{vCol}, 1, v{vt0}")
        self.stamp(13, W0+20)

        def iss():
            a(f"s_add_u32 s{S_SO}, s{SRB}, {WS_DP}")
            for q in range(14):
                a(f"buffer_load_dwordx4 v[{RD+4*q}:{RD+4*q+3}], v{vt2}, s[{S_WS}:{S_WS+3}], s{S_SO} offen sc1")
                if q < 13:
                    a(f"s_add_u32 s{S_SO}, s{S_SO}, 32768")
        self.poll(iss, list(range(RD, RD+56)), vA, vO, vT)
        self.reduce_q(RD, 14)
        self.round1(RD)
        a(f"v_mul_f32 v{RD}, v{vgb}, v{RD}")
        self.round1(RD)
        a(f"v_add_f32 v{RD}, v{vx}, v{RD}")
        a(f"v_cvt_pk_bf16_f32 v{RD}, v{RD}, v{RD}")
        a(f"buffer_store_short v{RD}, v{vCol}, s[{S_OUT}:{S_OUT+3}], 0 offen")
        self.stamp(14, W0+20)
        a(f"s_cmp_lg_u32 s2, {R_0}")
        a("s_cbranch_scc1 L_end")
        a(f"v_mov_b32 v{vt0}, s{S_E}")
        a(f"v_mov_b32 v{vt1}, {WS_E}")
        a("s_mov_b64 exec, 1")
        a(f"buffer_store_dword v{vt0}, v{vt1}, s[{S_WS}:{S_WS+3}], 0 offen sc1")
        a("s_endpgm")

    def reduce_q(self, RD, n):
        a = self.a
        idx = list(range(n))
        while len(idx) > 1:
            nxt = []
            for i in range(0, len(idx)-1, 2):
                for r in range(4):
                    a(f"v_add_f32 v{RD+4*idx[i]+r}, v{RD+4*idx[i]+r}, v{RD+4*idx[i+1]+r}")
                nxt.append(idx[i])
            if len(idx) % 2:
                nxt.append(idx[-1])
            idx = nxt
        self.nop(2)
        a(f"v_permlane32_swap_b32 v{RD}, v{RD+2}")
        a(f"v_permlane32_swap_b32 v{RD+1}, v{RD+3}")
        a(f"v_add_f32 v{RD}, v{RD}, v{RD+2}")
        a(f"v_add_f32 v{RD+1}, v{RD+1}, v{RD+3}")
        self.nop(2)
        a(f"v_permlane16_swap_b32 v{RD}, v{RD+1}")
        a(f"v_add_f32 v{RD}, v{RD}, v{RD+1}")

    def ln_sum(self, R, n, dst, t):
        a = self.a
        a(f"v_add_f32 v{dst}, v{R}, v{R+1}")
        a(f"v_add_f32 v{t}, v{R+2}, v{R+3}")
        for i in range(4, n, 2):
            a(f"v_add_f32 v{dst}, v{dst}, v{R+i}")
            a(f"v_add_f32 v{t}, v{t}, v{R+i+1}")
        a(f"v_add_f32 v{dst}, v{dst}, v{t}")

    def ln_fin(self, vMean, vVar, t):
        a = self.a
        self.round2(vMean, vVar, t)
        a(f"v_add_f32 v{vVar}, 0x3727c5ac, v{vVar}")
        self.round1(vVar)
        a(f"v_sqrt_f32 v{vVar}, v{vVar}")
        self.nop(1)
        self.round1(vVar)
        a(f"v_rcp_f32 v{vVar}, v{vVar}")
        self.nop(1)

    def ln_norm(self, Y, n, vMean, vRcp, t0, t1):
        a = self.a
        for i in range(n):
            a(f"v_sub_f32 v{Y+i}, v{Y+i}, v{vMean}")
        for i in range(0, n, 2):
            self.round2(Y+i, Y+i+1, t0 if (i//2) % 2 == 0 else t1)
        for i in range(n):
            a(f"v_mul_f32 v{Y+i}, v{Y+i}, v{vRcp}")
        for i in range(0, n, 2):
            self.round2(Y+i, Y+i+1, t0 if (i//2) % 2 == 0 else t1)

    def modulate(self, Y, n, SH, SCL, t0, t1, clean=False):
        a = self.a
        if not clean:
            for i in range(n):
                a(f"v_and_b32 v{SH+i}, s{S_HI16}, v{SH+i}")
                a(f"v_and_b32 v{SCL+i}, s{S_HI16}, v{SCL+i}")
        for i in range(n):
            a(f"v_add_f32 v{SCL+i}, 1.0, v{SCL+i}")
        for i in range(0, n, 2):
            self.round2(SCL+i, SCL+i+1, t0 if (i//2) % 2 == 0 else t1)
        for i in range(n):
            a(f"v_mul_f32 v{Y+i}, v{Y+i}, v{SCL+i}")
        for i in range(0, n, 2):
            self.round2(Y+i, Y+i+1, t0 if (i//2) % 2 == 0 else t1)
        for i in range(n):
            a(f"v_add_f32 v{Y+i}, v{Y+i}, v{SH+i}")
        for i in range(n):
            a(f"v_cvt_pk_bf16_f32 v{Y+i}, v{Y+i}, v{Y+i}")

    def gemv_x4(self, DU, W, n, XB, D1, D2, vM0, vM1):
        a = self.a
        for j in range(n):
            a(f"v_and_b32 v{XB+2*j}, v{DU+j}, v{vM0}")
            a(f"v_and_b32 v{XB+2*j+1}, v{DU+j}, v{vM1}")
        self.nop(2)
        for j in range(n):
            w = W + 4*j
            c1 = "0" if j == 0 else f"v[{D1}:{D1+3}]"
            c2 = "0" if j == 0 else f"v[{D2}:{D2+3}]"
            a(f"v_mfma_f32_16x16x16_bf16 v[{D1}:{D1+3}], v[{w}:{w+1}], v[{XB+2*j}:{XB+2*j+1}], {c1}")
            a(f"v_mfma_f32_16x16x16_bf16 v[{D2}:{D2+3}], v[{w+2}:{w+3}], v[{XB+2*j}:{XB+2*j+1}], {c2}")
        self.nop(8)

    def gemv_x_build(self, DU, n, XB, vM0, vM1):
        a = self.a
        for j in range(n):
            a(f"v_and_b32 v{XB+2*j}, v{DU+j}, v{vM0}")
            a(f"v_and_b32 v{XB+2*j+1}, v{DU+j}, v{vM1}")
        self.nop(2)

    def gemv_mfma(self, W, n, XB, D1, D2):
        a = self.a
        for j in range(n):
            w = W + 4*j
            c1 = "0" if j == 0 else f"v[{D1}:{D1+3}]"
            c2 = "0" if j == 0 else f"v[{D2}:{D2+3}]"
            a(f"v_mfma_f32_16x16x16_bf16 v[{D1}:{D1+3}], v[{w}:{w+1}], v[{XB+2*j}:{XB+2*j+1}], {c1}")
            a(f"v_mfma_f32_16x16x16_bf16 v[{D2}:{D2+3}], v[{w+2}:{w+3}], v[{XB+2*j}:{XB+2*j+1}], {c2}")

    def cu_reduce(self, tiles, cnt, lbase, addr_fn, vt0, vt1, vT, vL16, R):
        a = self.a
        v = S_WID
        nt = len(tiles)
        a(f"s_lshl_b32 s{S_TMP}, s{v}, 11")
        a(f"v_add_u32 v{vt0}, s{S_TMP}, v{vL16}")
        for t, (D1, D2) in enumerate(tiles):
            a(f"ds_write_b128 v{vt0}, v[{D1}:{D1+3}] offset:{lbase+8192*t}")
            a(f"ds_write_b128 v{vt0}, v[{D2}:{D2+3}] offset:{lbase+8192*t+1024}")
        if cnt is not None:
            self.lds_bar(cnt, 4, vt0, vt1)
        else:
            a("s_waitcnt lgkmcnt(0)")
            a("s_barrier")
        skip = self.label("crs")
        if nt == 1:
            a(f"s_cmp_ge_u32 s{v}, 2")
            a(f"s_cbranch_scc1 {skip}")
        a(f"s_and_b32 s{S_TMP}, s{v}, 1")
        a(f"s_lshl_b32 s{S_TMP}, s{S_TMP}, 10")
        a(f"v_add_u32 v{vt0}, s{S_TMP}, v{vL16}")
        if nt == 2:
            a(f"s_lshr_b32 s{S_TMP}, s{v}, 1")
            a(f"s_lshl_b32 s{S_TMP}, s{S_TMP}, 13")
            a(f"v_add_u32 v{vt1}, s{S_TMP}, v{vt0}")
            rd = vt1
        else:
            rd = vt0
        assert R % 4 == 0
        for i in range(4):
            a(f"ds_read_b128 v[{R+4*i}:{R+4*i+3}], v{rd} offset:{lbase+2048*i}")
        addr_fn()
        a("s_waitcnt lgkmcnt(0)")
        for r in range(4):
            a(f"v_add_f32 v{R+r}, v{R+r}, v{R+4+r}")
            a(f"v_add_f32 v{R+8+r}, v{R+8+r}, v{R+12+r}")
        for r in range(4):
            a(f"v_add_f32 v{R+r}, v{R+r}, v{R+8+r}")
        for r in range(4):
            self.tag32(R+r, vT)
        a(f"buffer_store_dwordx4 v[{R}:{R+3}], v{vt0}, s[{S_WS}:{S_WS+3}], s{S_TMP} offen sc1")
        a(f"{skip}:")

    def build(self):
        self.prologue()
        self.svc()
        self.kv()
        self.a("L_end:")
        body = "\n".join(self.L)
        return f"""; @launch grid=(256,1,1) block=(768,1,1) lds={LDS_SIZE}
.amdgcn_target "amdgcn-amd-amdhsa--gfx950"
.text
.globl {KN}
.p2align 8
.type {KN},@function
{KN}:
{body}
s_endpgm
.section .rodata,"a"
.p2align 6
.amdhsa_kernel {KN}
  .amdhsa_next_free_vgpr 168
  .amdhsa_next_free_sgpr 102
  .amdhsa_accum_offset 168
  .amdhsa_group_segment_fixed_size 0
  .amdhsa_kernarg_size 112
  .amdhsa_user_sgpr_count 2
  .amdhsa_user_sgpr_kernarg_segment_ptr 1
  .amdhsa_system_sgpr_workgroup_id_x 1
.end_amdhsa_kernel
"""


if __name__ == "__main__":
    import argparse
    ap = argparse.ArgumentParser()
    ap.add_argument("-o", default="k1.s")
    ap.add_argument("--dbg", action="store_true")
    ap.add_argument("--kv-first", type=int, default=4)
    ap.add_argument("--prio", type=int, default=3)
    ap.add_argument("--pace", type=int, default=4)
    ap.add_argument("--nv", type=int, default=8)
    ap.add_argument("--pace-v", type=int, default=4)
    ap.add_argument("--trickle", type=int, default=0)
    ap.add_argument("--rel", type=int, default=4)
    args = ap.parse_args()
    g = Gen(dbg=args.dbg, kv_first=args.kv_first, prio=args.prio, pace=args.pace, nv=args.nv, pace_v=args.pace_v, trickle=args.trickle, rel=args.rel)
    open(args.o, "w").write(g.build())
```

```python
import sys,re
src=open(sys.argv[1]).read().split("\n")
out=[]
WS_DBG=0x3C0000
first=True
i=0
while i<len(src):
    l=src[i]
    if l.startswith("buffer_store_dwordx2 v[") and l.endswith("s[12:15], 0 offen") :
        l=l+" sc1"
    out.append(l)
    if first and l=="s_nop 1" and "exec, -1" in out[-2] and "buffer_store_dwordx2" in out[-3]:
        first=False
        out += ["s_memtime s[92:93]","s_waitcnt lgkmcnt(0)","v_mov_b32 v24, s92","v_mov_b32 v25, s93",
                "s_lshl_b32 s58, s2, 7", f"s_add_u32 s58, s58, {WS_DBG+8*11}","v_mov_b32 v26, s58","s_mov_b64 exec, 1",
                "buffer_store_dwordx2 v[24:25], v26, s[12:15], 0 offen sc1","s_mov_b64 exec, -1","s_nop 1"]
    if l=="s_cmp_lg_u32 s2, 64" and src[i+1]=="s_cbranch_scc1 L_end":
        out.append(src[i+1]); i+=1
        out += ["s_memtime s[92:93]","s_waitcnt lgkmcnt(0)","v_mov_b32 v24, s92","v_mov_b32 v25, s93",
                "s_lshl_b32 s58, s2, 7", f"s_add_u32 s58, s58, {WS_DBG+8*10}","v_mov_b32 v26, s58","s_mov_b64 exec, 1",
                "buffer_store_dwordx2 v[24:25], v26, s[12:15], 0 offen sc1","s_mov_b64 exec, -1","s_waitcnt vmcnt(0)"]
        items=[(64,0),(64,2),(64,3),(64,4),(64,15),(64,6),(64,12),(64,14),(64,11),(64,10),(128,4),(128,15),(128,10),(128,11),(0,0),(250,0)]
        for k,(w,s) in enumerate(items):
            out += [f"v_mov_b32 v26, {WS_DBG+w*128+s*8}", f"buffer_load_dword v{50+k}, v26, s[12:15], 0 offen sc1"]
        out += ["s_load_dwordx2 s[64:65], s[0:1], 96","s_waitcnt lgkmcnt(0)",
                "s_mov_b32 s68, s64","s_mov_b32 s69, s65","s_mov_b32 s70, 256","s_mov_b32 s71, 0x00020000",
                "s_waitcnt vmcnt(0)","s_mov_b64 exec, 1"]
        for k in range(16):
            out += [f"v_mov_b32 v26, {4*k}", f"buffer_store_dword v{50+k}, v26, s[68:71], 0 offen"]
        out += ["s_mov_b64 exec, -1"]
    i+=1
open(sys.argv[2],"w").write("\n".join(out))
```

```python
import sys
KN = "adaLN_cond__gqa_block_cached__swiglu_ffn__decode_kernel"

WS_E = 0
WS_MOD = 0x1000
WS_QP = 0x10000
WS_MODP = 0xA0000
WS_OPP = 0x100000
WS_ML = 0x180000
WS_AP = 0x200000
WS_X1 = 0x280000
WS_DP = 0x300000
WS_DBG = 0x3C0000
WS_SIZE = 0x400000
L_F1P = 0
L_RP = 4096
L_QL = 20480
L_OW = 24576
L_MLW = 40960
L_ST = 41216
L_CNT = 41344
L_GU = 41472
LDS_SIZE = 49152

NFRONT = 128
F1A_N = 64
T2_0 = 128
T2_N = 56
F1B_0 = 184
F1B_N = 64
R_0 = 0
R_N = 128
LIMIT = 4000

S_K, S_V, S_WS, S_WQ, S_WO, S_WM, S_WG, S_WU, S_WD, S_X, S_C, S_OUT = 4, 8, 12, 16, 20, 24, 28, 32, 36, 40, 44, 48
S_WID, S_T, S_SO, S_IT, S_V4, S_TMP, S_TMP2, S_E = 52, 53, 54, 55, 56, 57, 58, 59
S_B0, S_B1 = 60, 62
S_FF00 = 90
S_HI16 = 91
S_TS = 92
S_R = 96
S_BK, S_SP = 84, 85
S_T3 = 94
TAGB = 4


class Gen:
    def __init__(self, dbg=False, prio=3, na_front=2, p_front=1, na_nf=16, p_nf=2, psleep2=8, psleep3=5, nsets=1, kf=512, km=384, kh=640, wearly=0, b0first=0):
        self.L = []
        self.dbg = dbg
        self.prio = prio
        self.na_front = na_front
        self.wearly, self.b0first = wearly, b0first
        self.kf, self.km, self.kh = kf, km, kh
        self.psleep2 = psleep2
        self.psleep3 = psleep3
        self.nsets = nsets
        self.p_front = p_front
        self.na_nf = na_nf
        self.p_nf = p_nf
        self.lbl = 0

    def a(self, s):
        self.L.append(s)

    def label(self, p):
        self.lbl += 1
        return f"L_{p}_{self.lbl}"

    def nop(self, n):
        while n > 0:
            k = min(n, 16)
            self.a(f"s_nop {k-1}")
            n -= k

    def srd(self, s, plo, size):
        self.a(f"s_mov_b32 s{s}, s{plo}")
        self.a(f"s_mov_b32 s{s+1}, s{plo+1}")
        self.a(f"s_mov_b32 s{s+2}, {size}")
        self.a(f"s_mov_b32 s{s+3}, 0x00020000")

    def stamp(self, slot, vtmp):
        if not self.dbg:
            return
        a = self.a
        a(f"s_memrealtime s[{S_TS}:{S_TS+1}]")
        a("s_waitcnt lgkmcnt(0)")
        a(f"v_mov_b32 v{vtmp}, s{S_TS}")
        a(f"v_mov_b32 v{vtmp+1}, s{S_IT}")
        a(f"s_lshl_b32 s{S_TMP2}, s2, 7")
        a(f"s_add_u32 s{S_TMP2}, s{S_TMP2}, {WS_DBG + slot*8}")
        a(f"v_mov_b32 v{vtmp+2}, s{S_TMP2}")
        a("s_mov_b64 exec, 1")
        a(f"buffer_store_dwordx2 v[{vtmp}:{vtmp+1}], v{vtmp+2}, s[{S_WS}:{S_WS+3}], 0 offen")
        a("s_mov_b64 exec, -1")
        a("s_nop 1")

    def allreduce(self, r, t, op, quad=True, rows=True):
        a = self.a
        if quad:
            self.nop(2)
            a(f"{op}_dpp v{r}, v{r}, v{r} quad_perm:[1,0,3,2] row_mask:0xf bank_mask:0xf")
            self.nop(2)
            a(f"{op}_dpp v{r}, v{r}, v{r} quad_perm:[2,3,0,1] row_mask:0xf bank_mask:0xf")
        if rows:
            a(f"v_mov_b32 v{t}, v{r}")
            self.nop(2)
            a(f"v_permlane16_swap_b32 v{r}, v{t}")
            a(f"{op} v{r}, v{r}, v{t}")
            a(f"v_mov_b32 v{t}, v{r}")
            self.nop(2)
            a(f"v_permlane32_swap_b32 v{r}, v{t}")
            a(f"{op} v{r}, v{r}, v{t}")

    def round2(self, x0, x1, t):
        a = self.a
        a(f"v_cvt_pk_bf16_f32 v{t}, v{x0}, v{x1}")
        a(f"v_lshlrev_b32 v{x0}, 16, v{t}")
        a(f"v_and_b32 v{x1}, s{S_HI16}, v{t}")

    def round1(self, x, t=None):
        a = self.a
        a(f"v_cvt_pk_bf16_f32 v{x}, v{x}, v{x}")
        a(f"v_and_b32 v{x}, s{S_HI16}, v{x}")

    def poll(self, issue, regs, vA, vO, vT, mask=(1 << TAGB) - 1):
        a = self.a
        lp = self.label("poll")
        ld = self.label("pd")
        a(f"s_mov_b32 s{S_IT}, 0")
        a(f"{lp}:")
        issue()
        a("s_waitcnt vmcnt(0)")
        rs = list(regs)
        assert len(rs) >= 3
        a(f"v_bitop3_b32 v{vA}, v{rs[0]}, v{rs[1]}, v{rs[2]} bitop3:0x80")
        a(f"v_or3_b32 v{vO}, v{rs[0]}, v{rs[1]}, v{rs[2]}")
        i = 3
        while i < len(rs):
            r1 = rs[i]
            r2 = rs[i+1] if i+1 < len(rs) else rs[i]
            a(f"v_bitop3_b32 v{vA}, v{vA}, v{r1}, v{r2} bitop3:0x80")
            a(f"v_or3_b32 v{vO}, v{vO}, v{r1}, v{r2}")
            i += 2
        a(f"v_xor_b32 v{vA}, v{vA}, v{vT}")
        a(f"v_xor_b32 v{vO}, v{vO}, v{vT}")
        a(f"v_or_b32 v{vA}, v{vA}, v{vO}")
        a(f"v_and_b32 v{vA}, {mask:#x}, v{vA}")
        a(f"v_cmp_ne_u32 vcc, 0, v{vA}")
        a(f"s_add_u32 s{S_IT}, s{S_IT}, 1")
        a(f"s_cmp_lt_u32 s{S_IT}, {LIMIT}")
        a(f"s_cbranch_scc0 {ld}")
        a(f"s_cbranch_vccnz {lp}")
        a(f"{ld}:")

    def tagcheck(self, rs, vA, vO, vT, mask):
        a = self.a
        rs = list(rs)
        assert len(rs) >= 3
        a(f"v_bitop3_b32 v{vA}, v{rs[0]}, v{rs[1]}, v{rs[2]} bitop3:0x80")
        a(f"v_or3_b32 v{vO}, v{rs[0]}, v{rs[1]}, v{rs[2]}")
        i = 3
        while i < len(rs):
            r1 = rs[i]
            r2 = rs[i+1] if i+1 < len(rs) else rs[i]
            a(f"v_bitop3_b32 v{vA}, v{vA}, v{r1}, v{r2} bitop3:0x80")
            a(f"v_or3_b32 v{vO}, v{vO}, v{r1}, v{r2}")
            i += 2
        a(f"v_xor_b32 v{vA}, v{vA}, v{vT}")
        a(f"v_xor_b32 v{vO}, v{vO}, v{vT}")
        a(f"v_or_b32 v{vA}, v{vA}, v{vO}")
        a(f"v_and_b32 v{vA}, {mask:#x}, v{vA}")
        a(f"v_cmp_ne_u32 vcc, 0, v{vA}")

    def poll2(self, issue, nl, nreg, sets, F, vA, vO, vT, mask=(1 << TAGB) - 1, sleep=None):
        a = self.a
        ns = len(sets)
        if sleep is None:
            sleep = self.psleep3 if ns >= 3 else self.psleep2
        lp = self.label("pp")
        ld = self.label("ppd")
        a(f"s_mov_b32 s{S_IT}, 0")
        if ns == 1:
            a(f"{lp}:")
            issue(F)
            a("s_waitcnt vmcnt(0)")
            self.tagcheck(range(F, F+nreg), vA, vO, vT, mask)
            a("s_mov_b64 exec, vcc")
            a(f"s_cbranch_execz {ld}")
            a(f"s_add_u32 s{S_IT}, s{S_IT}, 1")
            a(f"s_cmp_lt_u32 s{S_IT}, {LIMIT}")
            a(f"s_cbranch_scc1 {lp}")
            a(f"{ld}:")
            a("s_mov_b64 exec, -1")
            return
        for i, S in enumerate(sets):
            issue(S)
            if i < ns - 1 and sleep:
                a(f"s_sleep {sleep}")
        a(f"{lp}:")
        for S in sets:
            a(f"s_waitcnt vmcnt({nl*(ns-1)})")
            self.tagcheck(range(S, S+nreg), vA, vO, vT, mask)
            a("s_andn2_b64 exec, exec, vcc")
            sk = self.label("pps")
            a(f"s_cbranch_execz {sk}")
            for i in range(nreg):
                a(f"v_mov_b32 v{F+i}, v{S+i}")
            a(f"{sk}:")
            a("s_mov_b64 exec, vcc")
            a(f"s_cbranch_execz {ld}")
            issue(S)
            if sleep:
                a(f"s_sleep {sleep}")
        a(f"s_add_u32 s{S_IT}, s{S_IT}, 1")
        a(f"s_cmp_lt_u32 s{S_IT}, {LIMIT}")
        a(f"s_cbranch_scc1 {lp}")
        a(f"{ld}:")
        a("s_mov_b64 exec, -1")

    def lds_bar(self, k, n, vA, vB):
        a = self.a
        lp = self.label("lb")
        ld = self.label("lbd")
        a("s_waitcnt lgkmcnt(0)")
        a(f"v_mov_b32 v{vA}, {L_CNT + 4*k}")
        a(f"v_mov_b32 v{vB}, 1")
        a("s_mov_b64 exec, 1")
        a(f"ds_add_u32 v{vA}, v{vB}")
        a("s_mov_b64 exec, -1")
        self.lds_wait(k, n, vA, vB, sleep=False)

    def lds_wait(self, k, n, vA, vB, sleep=True):
        a = self.a
        lp = self.label("lw")
        ld = self.label("lwd")
        a(f"v_mov_b32 v{vA}, {L_CNT + 4*k}")
        a(f"s_mov_b32 s{S_IT}, 0")
        a(f"{lp}:")
        a(f"ds_read_b32 v{vB}, v{vA}")
        a("s_waitcnt lgkmcnt(0)")
        a(f"v_readfirstlane_b32 s{S_TMP}, v{vB}")
        a(f"s_add_u32 s{S_IT}, s{S_IT}, 1")
        a(f"s_cmp_ge_u32 s{S_TMP}, {n}")
        a(f"s_cbranch_scc1 {ld}")
        if sleep:
            a("s_sleep 1")
        a(f"s_cmp_lt_u32 s{S_IT}, 400000")
        a(f"s_cbranch_scc1 {lp}")
        a(f"{ld}:")

    def tag32(self, r, vT):
        self.a(f"v_and_or_b32 v{r}, v{r}, {-(1 << TAGB)}, s{S_T3}")

    def masks(self, vM0, vM1, vt, four=True):
        a = self.a
        a(f"v_mov_b32 v{vt}, 0xffff")
        a(f"v_mov_b32 v{vM0}, s{S_HI16}")
        a(f"v_cndmask_b32 v{vM0}, v{vt}, v{vM0}, s[{S_B0}:{S_B0+1}]")
        if four:
            a(f"v_mov_b32 v{vt}, 0")
            a(f"v_cndmask_b32 v{vM1}, v{vt}, v{vM0}, s[{S_B1}:{S_B1+1}]")
            a(f"v_cndmask_b32 v{vM0}, v{vM0}, v{vt}, s[{S_B1}:{S_B1+1}]")

    def prologue(self):
        a = self.a
        a("s_cmp_ge_u32 s2, 256")
        a("s_cbranch_scc1 L_end")
        a("s_load_dwordx16 s[64:79], s[0:1], 0")
        a("s_load_dwordx8 s[80:87], s[0:1], 64")
        a("s_load_dwordx2 s[88:89], s[0:1], 104")
        a("v_lshrrev_b32 v1, 6, v0")
        a("v_and_b32 v0, 63, v0")
        a(f"s_mov_b32 s{S_B0}, 0xaaaaaaaa")
        a(f"s_mov_b32 s{S_B0+1}, 0xaaaaaaaa")
        a(f"v_readfirstlane_b32 s{S_WID}, v1")
        a(f"s_mov_b32 s{S_B1}, 0xcccccccc")
        a(f"s_mov_b32 s{S_B1+1}, 0xcccccccc")
        a(f"s_mov_b32 s{S_HI16}, 0xffff0000")
        a("s_waitcnt lgkmcnt(0)")
        a(f"s_load_dword s{S_E}, s[88:89], {WS_E}")
        self.srd(S_WS, 88, WS_SIZE)
        a(f"s_cmp_ge_u32 s{S_WID}, 4")
        a("s_cbranch_scc1 L_kv")

    def get_tag(self, vT):
        a = self.a
        a("s_waitcnt lgkmcnt(0)")
        a(f"s_add_u32 s{S_E}, s{S_E}, 1")
        a(f"s_and_b32 s{S_T}, s{S_E}, 0xff")
        a(f"s_and_b32 s{S_T3}, s{S_E}, {(1 << TAGB) - 1}")
        a(f"v_mov_b32 v{vT}, s{S_T}")

    def kv(self):
        a = self.a
        a("L_kv:")
        vKa, vVa, vT, vM0, vM1, vt0, vt1, vt2 = 1, 2, 3, 4, 5, 6, 7, 8
        self.srd(S_K, 66, 0x2000000)
        self.srd(S_V, 68, 0x2000000)
        a(f"s_sub_u32 s{S_V4}, s{S_WID}, 4")
        a(f"s_and_b32 s{S_BK}, s2, 7")
        a(f"s_lshl_b32 s{S_BK}, s{S_BK}, 2")
        a(f"s_bfe_u32 s{S_TMP}, s2, 0x20003")
        a(f"s_add_u32 s{S_BK}, s{S_BK}, s{S_TMP}")
        a(f"s_lshr_b32 s{S_SP}, s2, 5")
        a(f"v_and_b32 v{vt0}, 3, v0")
        a(f"v_lshlrev_b32 v{vt0}, 4, v{vt0}")
        a(f"v_bfe_u32 v{vt1}, v0, 2, 2")
        a(f"v_lshl_add_u32 v{vt0}, v{vt1}, 8, v{vt0}")
        a(f"v_lshrrev_b32 v{vt1}, 4, v0")
        a(f"v_lshl_add_u32 v{vt0}, v{vt1}, 6, v{vt0}")
        a(f"v_lshlrev_b32 v{vt2}, 4, v0")
        for i in range(1, 5):
            a(f"s_mov_b32 s{79+i}, {4096*i}")
        a(f"s_lshl_b32 s{S_TMP}, s{S_BK}, 20")
        KF, KM, KH = self.kf, self.km, self.kh
        assert 4*KF + 2*KM + 2*KH == 4096
        classes = [("f", KF, 0, 0, True), ("m", KM, 4*KF, 4, False), ("h", KH, 4*KF + 2*KM, 6, False)]
        used = []
        a(f"s_cmp_ge_u32 s{S_SP}, 6")
        a("s_cbranch_scc1 L_kvc_h")
        a(f"s_cmp_ge_u32 s{S_SP}, 4")
        a("s_cbranch_scc1 L_kvc_m")
        for (nm, K, key0, s0, front) in classes:
            a(f"L_kvc_{nm}:")
            gs = K // 16
            glo, nhi = gs // 8, gs % 8
            assert K % 16 == 0 and 3 <= glo and glo + (1 if nhi else 0) <= 5
            a(f"s_mul_i32 s{S_TMP2}, s{S_SP}, {K}")
            off = key0 - s0*K
            if off > 0:
                a(f"s_add_u32 s{S_TMP2}, s{S_TMP2}, {off}")
            elif off < 0:
                a(f"s_sub_u32 s{S_TMP2}, s{S_TMP2}, {-off}")
            a(f"s_lshl_b32 s{S_TMP2}, s{S_TMP2}, 8")
            a(f"s_add_u32 s{S_TMP}, s{S_TMP}, s{S_TMP2}")
            lo = f"L_kvp_{'f' if front else 'n'}{glo}"
            hi = f"L_kvp_{'f' if front else 'n'}{glo+1}"
            if nhi:
                a(f"s_mul_i32 s{S_TMP2}, s{S_V4}, {16*(glo+1)*256}")
                a(f"s_cmp_lt_u32 s{S_V4}, {nhi}")
                l2 = self.label("kvl")
                a(f"s_cbranch_scc0 {l2}")
                a(f"s_add_u32 s{S_TMP}, s{S_TMP}, s{S_TMP2}")
                a(f"s_branch {hi}")
                a(f"{l2}:")
                if (glo+1, front) not in used:
                    used.append((glo+1, front))
            a(f"s_mul_i32 s{S_TMP2}, s{S_V4}, {16*glo*256}")
            a(f"s_add_u32 s{S_TMP}, s{S_TMP}, s{S_TMP2}")
            if nhi:
                a(f"s_add_u32 s{S_TMP}, s{S_TMP}, {nhi*16*256}")
            a(f"s_branch {lo}")
            if (glo, front) not in used:
                used.append((glo, front))
        for k, (G, front) in enumerate(used):
            a(f"L_kvp_{'f' if front else 'n'}{G}:")
            if front:
                self.kv_path(G, self.na_front, self.p_front, k == len(used) - 1)
            else:
                self.kv_path(G, self.na_nf, self.p_nf, k == len(used) - 1, self.b0first)

    def kv_path(self, G, nA, P, last, b0first=False):
        a = self.a
        vKa, vVa, vT, vM0, vM1, vt0, vt1, vt2 = 1, 2, 3, 4, 5, 6, 7, 8
        vQ = 12
        vD = 16
        vS = 32
        vm, vl = 38, 39
        KR = 40
        nL = 4*G
        if G <= 4:
            kreg = [KR + 4*j for j in range(nL)]
            vreg = [104 + 4*j for j in range(nL)]
            pre = [("K", j) for j in range(nL)] + [("V", j) for j in range(nL)]
            post = []
            XR, AC, nch = KR, KR + 32, 2
        else:
            kreg = [KR + 4*j for j in range(nL)]
            vreg = [120 + 4*j for j in range(12)] + [KR + 4*j for j in range(8)]
            pre = [("K", j) for j in range(nL)] + [("V", j) for j in range(12)]
            post = [("V", j) for j in range(12, 20)]
            XR, AC, nch = 72, 112, 1
        so = ["0", "s80", "s81", "s82", "s83"]
        issued = []

        def ld(item):
            t, j = item
            srd, va, reg = (S_K, vKa, kreg[j]) if t == "K" else (S_V, vVa, vreg[j])
            a(f"buffer_load_dwordx4 v[{reg}:{reg+3}], v{va}, s[{srd}:{srd+3}], {so[j//4]} offen offset:{(j%4)*1024} nt")
        a(f"v_add_u32 v{vKa}, s{S_TMP}, v{vt0}")
        a(f"v_add_u32 v{vVa}, s{S_TMP}, v{vt2}")
        nA = min(nA, len(pre))
        if b0first:
            a("s_barrier")
        for it in pre[:nA]:
            ld(it)
        if not b0first:
            a("s_barrier")
        lall = self.label("kvall")
        if nA < len(pre):
            lf = [self.label("kvf") for _ in pre]
            a(f"v_mov_b32 v{vt0}, {L_CNT + 8}")
            for idx in range(nA, len(pre)):
                a(f"s_waitcnt vmcnt({P-1})")
                a(f"ds_read_b32 v{vt1}, v{vt0}")
                a("s_waitcnt lgkmcnt(0)")
                a(f"v_readfirstlane_b32 s{S_TMP}, v{vt1}")
                a(f"s_cmp_ge_u32 s{S_TMP}, 4")
                a(f"s_cbranch_scc1 {lf[idx]}")
                ld(pre[idx])
            a(f"s_branch {lall}")
            for idx in range(nA, len(pre)):
                a(f"{lf[idx]}:")
                ld(pre[idx])
        a(f"{lall}:")
        issued = list(pre)
        self.masks(vM0, vM1, vt0)
        self.get_tag(vT)
        self.lds_wait(2, 4, vt0, vt1)
        self.stamp(8, 8)
        a(f"v_bfe_u32 v{vt0}, v0, 2, 2")
        a(f"v_lshlrev_b32 v{vt0}, 8, v{vt0}")
        a(f"v_lshrrev_b32 v{vt1}, 4, v0")
        a(f"v_lshl_add_u32 v{vt0}, v{vt1}, 6, v{vt0}")
        a(f"v_and_b32 v{vt1}, 3, v0")
        a(f"v_lshl_add_u32 v{vt0}, v{vt1}, 4, v{vt0}")
        a(f"ds_read_b128 v[{vQ}:{vQ+3}], v{vt0} offset:{L_QL}")
        a("s_waitcnt lgkmcnt(0)")

        def wait_for(item):
            n = len(issued) - 1 - issued.index(item)
            a(f"s_waitcnt vmcnt({n})")
        for J in range(G):
            wait_for(("K", 4*J+3))
            for jj in range(4):
                k = kreg[4*J+jj]
                d = vD + 4*jj
                a(f"v_mfma_f32_16x16x32_bf16 v[{d}:{d+3}], v[{k}:{k+3}], v[{vQ}:{vQ+3}], 0")
            self.nop(8)
            for jj in range(4):
                d = vD + 4*jj
                a(f"v_cndmask_b32 v{d}, v{d}, v{d+1}, s[{S_B0}:{S_B0+1}]")
                a(f"v_cndmask_b32 v{d+2}, v{d+2}, v{d+3}, s[{S_B0}:{S_B0+1}]")
                a(f"v_cndmask_b32 v{d}, v{d}, v{d+2}, s[{S_B1}:{S_B1+1}]")
            if post and J < 2:
                for it in post[4*J:4*J+4]:
                    ld(it)
                    issued.append(it)
            v0_, v1_, v2_, v3_ = vD, vD+4, vD+8, vD+12
            a(f"v_cndmask_b32 v{v0_+1}, v{v0_}, v{v1_}, s[{S_B0}:{S_B0+1}]")
            a(f"v_cndmask_b32 v{v0_+2}, v{v1_}, v{v0_}, s[{S_B0}:{S_B0+1}]")
            a(f"v_cndmask_b32 v{v2_+1}, v{v2_}, v{v3_}, s[{S_B0}:{S_B0+1}]")
            a(f"v_cndmask_b32 v{v2_+2}, v{v3_}, v{v2_}, s[{S_B0}:{S_B0+1}]")
            self.nop(1)
            a(f"v_add_f32_dpp v{v0_}, v{v0_+2}, v{v0_+1} quad_perm:[1,0,3,2] row_mask:0xf bank_mask:0xf")
            a(f"v_add_f32_dpp v{v2_}, v{v2_+2}, v{v2_+1} quad_perm:[1,0,3,2] row_mask:0xf bank_mask:0xf")
            a(f"v_cndmask_b32 v{v0_+1}, v{v0_}, v{v2_}, s[{S_B1}:{S_B1+1}]")
            a(f"v_cndmask_b32 v{v0_+2}, v{v2_}, v{v0_}, s[{S_B1}:{S_B1+1}]")
            self.nop(2)
            a(f"v_add_f32_dpp v{vS+J}, v{v0_+2}, v{v0_+1} quad_perm:[2,3,0,1] row_mask:0xf bank_mask:0xf")
        def rnd():
            for J in range(0, G - 1, 2):
                self.round2(vS+J, vS+J+1, vt0 if J % 4 == 0 else vt1)
            if G % 2:
                self.round1(vS+G-1)
        rnd()
        for J in range(G):
            a(f"v_mul_f32 v{vS+J}, 0x3db504f3, v{vS+J}")
        rnd()
        a(f"v_max3_f32 v{vm}, v{vS}, v{vS+1}, v{vS+2}")
        if G == 4:
            a(f"v_max_f32 v{vm}, v{vm}, v{vS+3}")
        elif G == 5:
            a(f"v_max3_f32 v{vm}, v{vm}, v{vS+3}, v{vS+4}")
        self.allreduce(vm, vt0, "v_max_f32")
        for J in range(G):
            a(f"v_sub_f32 v{vS+J}, v{vS+J}, v{vm}")
        for J in range(G):
            a(f"v_mul_f32 v{vS+J}, 0x3fb8aa3b, v{vS+J}")
        for J in range(G):
            a(f"v_exp_f32 v{vS+J}, v{vS+J}")
        self.nop(1)
        a(f"v_add_f32 v{vl}, v{vS}, v{vS+1}")
        for J in range(2, G):
            a(f"v_add_f32 v{vl}, v{vl}, v{vS+J}")
        for J in range(G):
            a(f"v_cvt_pk_bf16_f32 v{vS+J}, v{vS+J}, v{vS+J}")
        self.nop(1)
        for j in range(nL):
            J, jj = j//4, j % 4
            a(f"v_and_b32_dpp v{XR+2*j}, v{vS+J}, v{vM0} quad_perm:[{jj},{jj},{jj},{jj}] row_mask:0xf bank_mask:0xf")
            a(f"v_and_b32_dpp v{XR+2*j+1}, v{vS+J}, v{vM1} quad_perm:[{jj},{jj},{jj},{jj}] row_mask:0xf bank_mask:0xf")
        self.allreduce(vl, vt0, "v_add_f32")
        a(f"v_bfe_u32 v{vt0}, v0, 2, 2")
        a(f"v_lshlrev_b32 v{vt0}, 6, v{vt0}")
        a(f"s_lshl_b32 s{S_TMP}, s{S_V4}, 3")
        a(f"v_add_u32 v{vt0}, s{S_TMP}, v{vt0}")
        a("s_mov_b64 exec, 0x1111")
        a(f"ds_write_b32 v{vt0}, v{vm} offset:{L_MLW}")
        a(f"ds_write_b32 v{vt0}, v{vl} offset:{L_MLW+4}")
        a("s_mov_b64 exec, -1")
        for j in range(nL):
            wait_for(("V", j))
            v = vreg[j]
            p = (j & 1) if nch == 2 else 0
            d1 = AC + 8*p
            d2 = d1 + 4
            first = j < nch
            c1 = "0" if first else f"v[{d1}:{d1+3}]"
            c2 = "0" if first else f"v[{d2}:{d2+3}]"
            a(f"v_mfma_f32_16x16x16_bf16 v[{d1}:{d1+3}], v[{v}:{v+1}], v[{XR+2*j}:{XR+2*j+1}], {c1}")
            a(f"v_mfma_f32_16x16x16_bf16 v[{d2}:{d2+3}], v[{v+2}:{v+3}], v[{XR+2*j}:{XR+2*j+1}], {c2}")
        self.nop(8)
        if nch == 2:
            for r in range(8):
                a(f"v_add_f32 v{AC+r}, v{AC+r}, v{AC+8+r}")
        self.stamp(15, 8)
        a(f"s_lshl_b32 s{S_TMP}, s{S_V4}, 11")
        a(f"v_lshlrev_b32 v{vt0}, 4, v0")
        a(f"v_add_u32 v{vt0}, s{S_TMP}, v{vt0}")
        a(f"ds_write_b128 v{vt0}, v[{AC}:{AC+3}] offset:{L_OW}")
        a(f"ds_write_b128 v{vt0}, v[{AC+4}:{AC+7}] offset:{L_OW+1024}")
        a("s_waitcnt lgkmcnt(0)")
        a(f"v_mov_b32 v{vt1}, {L_CNT + 12}")
        a(f"v_mov_b32 v{vt2}, 1")
        a("s_mov_b64 exec, 1")
        a(f"ds_add_u32 v{vt1}, v{vt2}")
        a("s_mov_b64 exec, -1")
        a(f"s_cmp_ge_u32 s{S_V4}, 2")
        a("s_cbranch_scc1 L_end")
        if not last:
            a("s_branch L_kv_comb")
            return
        a("L_kv_comb:")
        self.lds_wait(3, 8, vt0, vt1, sleep=False)
        OW = 104
        MLr = 136
        a(f"s_lshl_b32 s{S_TMP}, s{S_V4}, 10")
        a(f"v_lshlrev_b32 v{vt0}, 4, v0")
        a(f"v_add_u32 v{vt0}, s{S_TMP}, v{vt0}")
        a(f"v_bfe_u32 v{vt1}, v0, 2, 2")
        a(f"v_lshlrev_b32 v{vt1}, 6, v{vt1}")
        for i in range(4):
            a(f"ds_read_b128 v[{MLr+4*i}:{MLr+4*i+3}], v{vt1} offset:{L_MLW+16*i}")
        for w in range(8):
            a(f"ds_read_b128 v[{OW+4*w}:{OW+4*w+3}], v{vt0} offset:{L_OW+2048*w}")
        a("s_waitcnt lgkmcnt(8)")
        a(f"v_max3_f32 v{vm}, v{MLr}, v{MLr+2}, v{MLr+4}")
        a(f"v_max3_f32 v{vm}, v{vm}, v{MLr+6}, v{MLr+8}")
        a(f"v_max3_f32 v{vm}, v{vm}, v{MLr+10}, v{MLr+12}")
        a(f"v_max_f32 v{vm}, v{vm}, v{MLr+14}")
        for w in range(8):
            a(f"v_sub_f32 v{MLr+2*w}, v{MLr+2*w}, v{vm}")
        for w in range(8):
            a(f"v_mul_f32 v{MLr+2*w}, 0x3fb8aa3b, v{MLr+2*w}")
        for w in range(8):
            a(f"v_exp_f32 v{MLr+2*w}, v{MLr+2*w}")
        self.nop(1)
        a(f"v_mul_f32 v{vl}, v{MLr}, v{MLr+1}")
        for w in range(1, 8):
            a(f"v_fmac_f32 v{vl}, v{MLr+2*w}, v{MLr+2*w+1}")
        a("s_waitcnt lgkmcnt(0)")
        O = 152
        for r in range(4):
            a(f"v_mul_f32 v{O+r}, v{MLr}, v{OW+r}")
        for w in range(1, 8):
            for r in range(4):
                a(f"v_fmac_f32 v{O+r}, v{MLr+2*w}, v{OW+4*w+r}")
        for r in range(4):
            self.tag32(O+r, vT)
        a(f"s_lshl_b32 s{S_TMP}, s{S_BK}, 3")
        a(f"s_add_u32 s{S_TMP}, s{S_TMP}, s{S_SP}")
        a(f"s_lshl_b32 s{S_TMP}, s{S_TMP}, 11")
        a(f"s_add_u32 s{S_TMP}, s{S_TMP}, {WS_OPP}")
        a(f"buffer_store_dwordx4 v[{O}:{O+3}], v{vt0}, s[{S_WS}:{S_WS+3}], s{S_TMP} offen sc1")
        a(f"s_cmp_lg_u32 s{S_V4}, 0")
        a("s_cbranch_scc1 L_end")
        a(f"v_or_b32 v{vm}, v{vm}, v{vT}")
        self.tag32(vl, vT)
        a(f"s_lshl_b32 s{S_TMP}, s{S_BK}, 8")
        a(f"s_and_b32 s{S_TMP2}, s{S_SP}, 3")
        a(f"s_lshl_b32 s{S_TMP2}, s{S_TMP2}, 4")
        a(f"s_add_u32 s{S_TMP}, s{S_TMP}, s{S_TMP2}")
        a(f"s_lshr_b32 s{S_TMP2}, s{S_SP}, 2")
        a(f"s_lshl_b32 s{S_TMP2}, s{S_TMP2}, 3")
        a(f"s_add_u32 s{S_TMP}, s{S_TMP}, s{S_TMP2}")
        a(f"s_add_u32 s{S_TMP}, s{S_TMP}, {WS_ML}")
        a("s_mov_b64 exec, 0x1111")
        a(f"buffer_store_dwordx2 v[{vm}:{vl}], v{vt1}, s[{S_WS}:{S_WS+3}], s{S_TMP} offen sc1")
        a("s_mov_b64 exec, -1")
        self.stamp(9, 8)
        a("s_endpgm")

    def svc(self):
        a = self.a
        vT, vM0, vM1, vMe, vG, vB, vU = 1, 2, 3, 4, 5, 6, 7
        vA, vO, vt0, vt1, vt2, vt3 = 8, 9, 10, 11, 12, 13
        vC16 = 14
        vL16 = 15
        W0 = 16
        WA = 40
        WB = 56
        WC = 72
        SC = WC + 32
        if self.prio:
            a(f"s_setprio {self.prio}")
        self.srd(S_WQ, 70, 512*4096*2)
        self.srd(S_WO, 72, 512*4096*2)
        self.srd(S_WM, 84, 512*3072*2)
        self.srd(S_WG, 76, 512*1792*2)
        self.srd(S_WU, 78, 512*1792*2)
        self.srd(S_WD, 80, 512*1792*2)
        self.srd(S_X, 64, 4096)
        self.srd(S_C, 82, 4096)
        self.srd(S_OUT, 86, 4096)
        v = S_WID
        a(f"v_lshrrev_b32 v{vG}, 4, v0")
        a(f"v_bfe_u32 v{vB}, v0, 2, 2")
        a(f"v_and_b32 v{vU}, 3, v0")
        a(f"v_and_b32 v{vC16}, 15, v0")
        a(f"v_lshlrev_b32 v{vC16}, 4, v{vC16}")
        a(f"v_lshlrev_b32 v{vL16}, 4, v0")
        a(f"v_mov_b32 v{vt0}, 0")
        a(f"v_lshlrev_b32 v{vt1}, 2, v0")
        a(f"s_cmp_lg_u32 s{v}, 0")
        a("s_cbranch_scc1 L_s_nz")
        a("s_mov_b64 exec, 0xffff")
        a(f"ds_write_b32 v{vt1}, v{vt0} offset:{L_CNT}")
        a("s_mov_b64 exec, -1")
        a("L_s_nz:")

        def t1_loads():
            SROW = 101
            a(f"s_lshr_b32 s{S_TMP}, s2, 3")
            a(f"s_lshl_b32 s{SROW}, s{S_TMP}, 7")
            a(f"s_bfe_u32 s{S_TMP}, s2, 0x10002")
            a(f"s_lshl_b32 s{S_TMP}, s{S_TMP}, 6")
            a(f"s_add_u32 s{SROW}, s{SROW}, s{S_TMP}")
            a(f"s_lshr_b32 s{S_TMP}, s{v}, 1")
            a(f"s_lshl_b32 s{S_TMP}, s{S_TMP}, 5")
            a(f"s_add_u32 s{SROW}, s{SROW}, s{S_TMP}")
            a(f"s_and_b32 s{S_TMP}, s{v}, 1")
            a(f"s_lshl_b32 s{S_TMP}, s{S_TMP}, 2")
            a(f"s_add_u32 s{SROW}, s{SROW}, s{S_TMP}")
            a(f"s_lshl_b32 s{S_TMP}, s{SROW}, 10")
            a(f"s_and_b32 s{S_TMP2}, s2, 3")
            a(f"s_lshl_b32 s{S_TMP2}, s{S_TMP2}, 8")
            a(f"s_add_u32 s{S_TMP}, s{S_TMP}, s{S_TMP2}")
            a(f"v_lshl_add_u32 v{vt0}, v{vG}, 10, v{vC16}")
            for j in range(4):
                a(f"buffer_load_dwordx4 v[{WB+4*j}:{WB+4*j+3}], v{vt0}, s[{S_WO}:{S_WO+3}], s{S_TMP} offen nt")
                if j < 3:
                    a(f"s_add_u32 s{S_TMP}, s{S_TMP}, 8192")

        a(f"s_cmp_ge_u32 s2, {NFRONT}")
        a("s_cbranch_scc1 L_s_nf")
        SK0 = S_R
        a(f"s_and_b32 s{SK0}, s2, 7")
        a(f"s_lshl_b32 s{SK0}, s{SK0}, 6")
        a(f"s_cmp_ge_u32 s2, {F1A_N}")
        a("s_cbranch_scc1 L_s_nof1a")
        CC = W0
        a(f"s_lshl_b32 s{S_TMP}, s{v}, 4")
        a(f"s_add_u32 s{S_TMP}, s{S_TMP}, s{SK0}")
        a(f"v_lshlrev_b32 v{vt0}, 10, v{vB}")
        a(f"v_lshl_add_u32 v{vt0}, v{vG}, 3, v{vt0}")
        a(f"s_lshl_b32 s{S_TMP2}, s{S_TMP}, 1")
        a(f"buffer_load_dwordx2 v[{CC}:{CC+1}], v{vt0}, s[{S_C}:{S_C+3}], s{S_TMP2} offen")
        a(f"v_mul_u32_u24 v{vt0}, {4*6144}, v{vG}")
        a(f"v_add_u32 v{vt0}, v{vt0}, v{vC16}")
        a(f"s_mul_i32 s{S_TMP}, s{S_TMP}, 6144")
        a(f"s_lshr_b32 s{S_TMP2}, s2, 3")
        a(f"s_lshl_b32 s{S_TMP2}, s{S_TMP2}, 8")
        a(f"s_add_u32 s{S_TMP}, s{S_TMP}, s{S_TMP2}")
        for j in range(4):
            a(f"buffer_load_dwordx4 v[{WC+4*j}:{WC+4*j+3}], v{vt0}, s[{S_WM}:{S_WM+3}], s{S_TMP} offen nt")
            if j < 3:
                a(f"s_add_u32 s{S_TMP}, s{S_TMP}, 6144")
        a("L_s_nof1a:")
        XS = SC
        XO = W0 + 4
        a(f"v_lshlrev_b32 v{vt0}, 10, v{vB}")
        a(f"v_lshl_add_u32 v{vt0}, v{vG}, 8, v{vt0}")
        a(f"v_lshl_add_u32 v{vt0}, v{vU}, 6, v{vt0}")
        for i in range(4):
            a(f"buffer_load_dwordx4 v[{XS+4*i}:{XS+4*i+3}], v{vt0}, s[{S_X}:{S_X+3}], 0 offen offset:{16*i}")
        SRB0 = 97
        a(f"s_lshr_b32 s{S_TMP}, s{v}, 1")
        a(f"s_lshl_b32 s{S_TMP}, s{S_TMP}, 5")
        a(f"s_add_u32 s{SRB0}, s{SK0}, s{S_TMP}")
        a(f"s_and_b32 s{S_TMP}, s{v}, 1")
        a(f"s_lshl_b32 s{S_TMP}, s{S_TMP}, 2")
        a(f"s_add_u32 s{SRB0}, s{SRB0}, s{S_TMP}")
        a(f"v_lshlrev_b32 v{vt0}, 10, v{vB}")
        a(f"v_lshl_add_u32 v{vt0}, v{vG}, 1, v{vt0}")
        a(f"s_lshl_b32 s{S_TMP}, s{SRB0}, 1")
        for j in range(4):
            a(f"buffer_load_ushort v{XO+j}, v{vt0}, s[{S_X}:{S_X+3}], s{S_TMP} offen offset:{16*j}")
        a(f"v_lshl_add_u32 v{vt0}, v{vG}, 13, v{vC16}")
        a(f"s_lshl_b32 s{S_TMP}, s{SRB0}, 13")
        a(f"s_lshr_b32 s{S_TMP2}, s2, 3")
        a(f"s_lshl_b32 s{S_TMP2}, s{S_TMP2}, 9")
        a(f"s_add_u32 s{S_TMP}, s{S_TMP}, s{S_TMP2}")
        for j in range(4):
            a(f"buffer_load_dwordx4 v[{WA+4*j}:{WA+4*j+3}], v{vt0}, s[{S_WQ}:{S_WQ+3}], s{S_TMP} offen nt")
            a(f"buffer_load_dwordx4 v[{WB+4*j}:{WB+4*j+3}], v{vt0}, s[{S_WQ}:{S_WQ+3}], s{S_TMP} offen offset:256 nt")
            if j < 3:
                a(f"s_add_u32 s{S_TMP}, s{S_TMP}, {8*8192}")
        a("s_waitcnt lgkmcnt(0)")
        a("s_barrier")
        self.masks(vM0, vM1, vt0)
        self.get_tag(vT)
        self.stamp(0, W0+8)
        a(f"s_cmp_ge_u32 s2, {F1A_N}")
        a("s_cbranch_scc1 L_s_nof1b")
        DU = W0 + 8
        BB = W0 + 12
        a("s_waitcnt vmcnt(20)")
        for i in range(2):
            a(f"v_lshlrev_b32 v{DU+2*i}, 16, v{CC+i}")
            a(f"v_and_b32 v{DU+2*i+1}, s{S_HI16}, v{CC+i}")
        for i in range(4):
            a(f"v_mul_f32 v{BB+i}, 0xbfb8aa3b, v{DU+i}")
        for i in range(4):
            a(f"v_exp_f32 v{BB+i}, v{BB+i}")
        self.nop(1)
        for i in range(4):
            a(f"v_add_f32 v{BB+i}, 1.0, v{BB+i}")
        for i in range(4):
            a(f"v_rcp_f32 v{BB+i}, v{BB+i}")
        self.nop(1)
        for i in range(4):
            a(f"v_mul_f32 v{DU+i}, v{DU+i}, v{BB+i}")
        for i in range(4):
            a(f"v_cvt_pk_bf16_f32 v{DU+i}, v{DU+i}, v{DU+i}")
        XB = W0 + 12
        D1, D2 = WC+16, WC+20
        self.gemv_x_build(DU, 4, XB, vM0, vM1)
        a("s_waitcnt vmcnt(16)")
        self.gemv_mfma(WC, 4, XB, D1, D2)
        self.nop(8)

        def modp_addr():
            a(f"s_and_b32 s{S_TMP}, s2, 7")
            a(f"s_lshl_b32 s{S_TMP}, s{S_TMP}, 3")
            a(f"s_lshr_b32 s{S_TMP2}, s2, 3")
            a(f"s_add_u32 s{S_TMP}, s{S_TMP}, s{S_TMP2}")
            a(f"s_lshl_b32 s{S_TMP}, s{S_TMP}, 11")
            a(f"s_add_u32 s{S_TMP}, s{S_TMP}, {WS_MODP}")
        self.cu_reduce([(D1, D2)], 0, L_OW, modp_addr, vt0, vt1, vT, vL16, WC)
        self.stamp(1, W0+8)
        a("L_s_nof1b:")
        XF = SC + 16
        a("s_waitcnt vmcnt(8)")
        for i in range(16):
            a(f"v_lshlrev_b32 v{XF+2*i}, 16, v{XS+i}")
            a(f"v_and_b32 v{XF+2*i+1}, s{S_HI16}, v{XS+i}")
        vMean, vVar = W0, W0+1
        Y = W0 + 8
        self.ln_sum(XF, 32, vMean, vt0)
        self.allreduce(vMean, vt0, "v_add_f32")
        a(f"v_mul_f32 v{vMean}, 0x3b000000, v{vMean}")
        for i in range(32):
            a(f"v_sub_f32 v{XF+i}, v{XF+i}, v{vMean}")
        a(f"v_mul_f32 v{vVar}, v{XF}, v{XF}")
        a(f"v_mul_f32 v{vt0}, v{XF+1}, v{XF+1}")
        for i in range(2, 32, 2):
            a(f"v_fmac_f32 v{vVar}, v{XF+i}, v{XF+i}")
            a(f"v_fmac_f32 v{vt0}, v{XF+i+1}, v{XF+i+1}")
        a(f"v_add_f32 v{vVar}, v{vVar}, v{vt0}")
        self.allreduce(vVar, vt0, "v_add_f32")
        a(f"v_mul_f32 v{vVar}, 0x3b000000, v{vVar}")
        self.ln_fin(vMean, vVar, vt0)
        for j in range(4):
            a(f"v_lshlrev_b32 v{Y+j}, 16, v{XO+j}")
        self.ln_norm(Y, 4, vMean, vVar, vt0, vt1)
        P0 = WC
        a(f"v_lshlrev_b32 v{vt2}, 14, v{vU}")
        a(f"v_lshl_add_u32 v{vt2}, v{vB}, 6, v{vt2}")
        a(f"v_lshl_add_u32 v{vt2}, v{vG}, 4, v{vt2}")
        a(f"s_bfe_u32 s{S_TMP}, s2, 0x20001")
        a(f"s_lshl_b32 s{S_SO}, s{S_TMP}, 11")
        a(f"s_and_b32 s{S_TMP}, s{v}, 1")
        a(f"s_lshl_b32 s{S_TMP}, s{S_TMP}, 10")
        a(f"s_add_u32 s{S_SO}, s{S_SO}, s{S_TMP}")
        a(f"s_and_b32 s{S_TMP}, s2, 1")
        a(f"s_lshl_b32 s{S_TMP}, s{S_TMP}, 1")
        a(f"s_lshr_b32 s{S_TMP2}, s{v}, 1")
        a(f"s_add_u32 s{S_TMP}, s{S_TMP}, s{S_TMP2}")
        a(f"s_lshl_b32 s{S_TMP}, s{S_TMP}, 8")
        a(f"s_add_u32 s{S_SO}, s{S_SO}, s{S_TMP}")
        a(f"s_add_u32 s{S_SO}, s{S_SO}, {WS_MODP}")
        a(f"s_add_u32 s97, s{S_SO}, {4*8*2048}")
        a(f"s_add_u32 s98, s{S_SO}, {4*2048}")
        a(f"s_add_u32 s99, s{S_SO}, {4*8*2048 + 4*2048}")

        def iss():
            for q, sreg in enumerate([S_SO, 97, 98, 99]):
                a(f"buffer_load_dwordx4 v[{P0+4*q}:{P0+4*q+3}], v{vt2}, s[{S_WS}:{S_WS+3}], s{sreg} offen sc1")
        self.poll(iss, list(range(P0, P0+16)), vA, vO, vT)
        self.stamp(2, W0+20)
        SA, CA = P0, P0+8
        for r in range(4):
            a(f"v_add_f32 v{SA+r}, v{SA+r}, v{SA+4+r}")
            a(f"v_add_f32 v{CA+r}, v{CA+r}, v{CA+4+r}")
        xs = [SA+r for r in range(4)] + [CA+r for r in range(4)]
        self.nop(1)
        for x in xs:
            a(f"v_add_f32_dpp v{x}, v{x}, v{x} quad_perm:[1,0,3,2] row_mask:0xf bank_mask:0xf")
        for x in xs:
            a(f"v_add_f32_dpp v{x}, v{x}, v{x} quad_perm:[2,3,0,1] row_mask:0xf bank_mask:0xf")
        self.round2(SA, SA+1, vt0)
        self.round2(SA+2, SA+3, vt1)
        self.round2(CA, CA+1, vt0)
        self.round2(CA+2, CA+3, vt1)
        self.modulate(Y, 4, SA, CA, vt0, vt1, clean=True)
        XB = W0 + 12
        D1, D2, D3, D4 = W0, W0+4, WC+16, WC+20
        self.gemv_x_build(Y, 4, XB, vM0, vM1)
        self.nop(2)
        self.gemv_mfma(WA, 4, XB, D1, D2)
        self.gemv_mfma(WB, 4, XB, D3, D4)
        self.nop(8)

        def qp_addr():
            a(f"s_and_b32 s{S_TMP}, s2, 7")
            a(f"s_lshl_b32 s{S_TMP}, s{S_TMP}, 5")
            a(f"s_lshr_b32 s{S_TMP2}, s2, 3")
            a(f"s_lshl_b32 s{S_TMP2}, s{S_TMP2}, 1")
            a(f"s_add_u32 s{S_TMP}, s{S_TMP}, s{S_TMP2}")
            a(f"s_lshr_b32 s{S_TMP2}, s{v}, 1")
            a(f"s_add_u32 s{S_TMP}, s{S_TMP}, s{S_TMP2}")
            a(f"s_lshl_b32 s{S_TMP}, s{S_TMP}, 11")
            a(f"s_add_u32 s{S_TMP}, s{S_TMP}, {WS_QP}")
        self.cu_reduce([(D1, D2), (D3, D4)], 1, L_RP, qp_addr, vt0, vt1, vT, vL16, WC+24)
        a(f"v_mov_b32 v{vt0}, {L_CNT+16}")
        a(f"v_mov_b32 v{vt1}, 1")
        a("s_mov_b64 exec, 1")
        a(f"ds_add_u32 v{vt0}, v{vt1}")
        a("s_mov_b64 exec, -1")
        self.stamp(3, W0+20)
        a("s_branch L_s_join")
        STILE = 100
        vCc = W0

        def t2_wloads():
            a(f"s_sub_u32 s{S_TMP}, s2, {T2_0}")
            a(f"s_and_b32 s{STILE}, s{S_TMP}, 7")
            a(f"s_mul_i32 s{STILE}, s{STILE}, 7")
            a(f"s_lshr_b32 s{S_TMP}, s{S_TMP}, 3")
            a(f"s_add_u32 s{STILE}, s{STILE}, s{S_TMP}")
            a(f"v_mul_u32_u24 v{vt0}, {32*3584}, v{vG}")
            a(f"v_and_b32 v{vt1}, 15, v0")
            a(f"v_lshl_add_u32 v{vt0}, v{vt1}, 2, v{vt0}")
            a(f"s_mul_i32 s{S_TMP}, s{v}, {128*3584}")
            a(f"s_lshl_b32 s{S_TMP2}, s{STILE}, 6")
            a(f"s_add_u32 s{S_TMP}, s{S_TMP}, s{S_TMP2}")
            for t in range(32):
                a(f"buffer_load_dword v{WC+t}, v{vt0}, s[{S_WG}:{S_WG+3}], s{S_TMP} offen nt")
                a(f"buffer_load_dword v{WC+32+t}, v{vt0}, s[{S_WU}:{S_WU+3}], s{S_TMP} offen nt")
                if t < 31:
                    a(f"s_add_u32 s{S_TMP}, s{S_TMP}, 3584")

        def f1b_loads():
            a(f"s_sub_u32 s{S_TMP}, s2, {F1B_0}")
            a(f"s_and_b32 s{STILE}, s{S_TMP}, 7")
            a(f"s_lshl_b32 s{STILE}, s{STILE}, 3")
            a(f"s_lshr_b32 s{S_TMP}, s{S_TMP}, 3")
            a(f"s_add_u32 s{STILE}, s{STILE}, s{S_TMP}")
            a(f"s_add_u32 s{STILE}, s{STILE}, 32")
            a(f"v_lshlrev_b32 v{vt0}, 10, v{vB}")
            a(f"v_lshl_add_u32 v{vt0}, v{vG}, 6, v{vt0}")
            a(f"v_lshl_add_u32 v{vt0}, v{vU}, 4, v{vt0}")
            a(f"s_lshl_b32 s{S_TMP}, s{v}, 8")
            a(f"buffer_load_dwordx4 v[{vCc}:{vCc+3}], v{vt0}, s[{S_C}:{S_C+3}], s{S_TMP} offen")
            a(f"v_mul_u32_u24 v{vt0}, {32*6144}, v{vG}")
            a(f"v_and_b32 v{vt1}, 15, v0")
            a(f"v_lshl_add_u32 v{vt0}, v{vt1}, 2, v{vt0}")
            a(f"s_mul_i32 s{S_TMP}, s{v}, {128*6144}")
            a(f"s_lshl_b32 s{S_TMP2}, s{STILE}, 6")
            a(f"s_add_u32 s{S_TMP}, s{S_TMP}, s{S_TMP2}")
            for t in range(32):
                a(f"buffer_load_dword v{WC+t}, v{vt0}, s[{S_WM}:{S_WM+3}], s{S_TMP} offen nt")
                if t < 31:
                    a(f"s_add_u32 s{S_TMP}, s{S_TMP}, 6144")

        def f1b_compute():
            DU = W0 + 8
            BB = W0 + 16
            ACC = W0
            a("s_waitcnt vmcnt(32)")
            for i in range(4):
                a(f"v_lshlrev_b32 v{DU+2*i}, 16, v{vCc+i}")
                a(f"v_and_b32 v{DU+2*i+1}, s{S_HI16}, v{vCc+i}")
            for i in range(8):
                a(f"v_mul_f32 v{BB+i}, 0xbfb8aa3b, v{DU+i}")
            for i in range(8):
                a(f"v_exp_f32 v{BB+i}, v{BB+i}")
            self.nop(1)
            for i in range(8):
                a(f"v_add_f32 v{BB+i}, 1.0, v{BB+i}")
            for i in range(8):
                a(f"v_rcp_f32 v{BB+i}, v{BB+i}")
            self.nop(1)
            for i in range(8):
                a(f"v_mul_f32 v{DU+i}, v{DU+i}, v{BB+i}")
            for i in range(8):
                a(f"v_cvt_pk_bf16_f32 v{DU+i}, v{DU+i}, v{DU+i}")
            self.nop(1)
            for T in range(8):
                us = T//2
                bb = BB + 4*(T & 1)
                for j in range(4):
                    a(f"v_and_b32_dpp v{bb+j}, v{DU+4*(T%2)+j}, v{vMe} quad_perm:[{us},{us},{us},{us}] row_mask:0xf bank_mask:0xf")
                a(f"s_waitcnt vmcnt({28 - 4*T})")
                self.nop(1)
                c = "0" if T == 0 else f"v[{ACC}:{ACC+3}]"
                a(f"v_mfma_f32_16x16x32_bf16 v[{ACC}:{ACC+3}], v[{WC+4*T}:{WC+4*T+3}], v[{bb}:{bb+3}], {c}")
            self.nop(8)
            a(f"s_lshl_b32 s{S_TMP}, s{v}, 10")
            a(f"v_add_u32 v{vt0}, s{S_TMP}, v{vL16}")
            a(f"ds_write_b128 v{vt0}, v[{ACC}:{ACC+3}] offset:{L_F1P}")
            self.lds_bar(0, 4, vt0, vt1)
            a(f"s_lshl_b32 s{S_TMP}, s{v}, 2")
            a(f"v_add_u32 v{vt0}, s{S_TMP}, v{vL16}")
            for i in range(4):
                a(f"ds_read_b32 v{DU+i}, v{vt0} offset:{L_F1P+1024*i}")
            a("s_waitcnt lgkmcnt(0)")
            a(f"v_add_f32 v{DU}, v{DU}, v{DU+1}")
            a(f"v_add_f32 v{DU+2}, v{DU+2}, v{DU+3}")
            a(f"v_add_f32 v{DU}, v{DU}, v{DU+2}")
            a(f"v_cvt_pk_bf16_f32 v{DU}, v{DU}, v{DU}")
            a(f"v_lshl_or_b32 v{DU}, v{DU}, 16, v{vT}")
            a(f"v_mul_u32_u24 v{vt0}, {3072*4}, v{vB}")
            a(f"v_lshl_add_u32 v{vt0}, v{vG}, 5, v{vt0}")
            a(f"v_and_b32 v{vt1}, 1, v0")
            a(f"v_lshl_add_u32 v{vt0}, v{vt1}, 2, v{vt0}")
            a(f"s_lshl_b32 s{S_TMP}, s{STILE}, 7")
            a(f"s_lshl_b32 s{S_TMP2}, s{v}, 3")
            a(f"s_add_u32 s{S_TMP}, s{S_TMP}, s{S_TMP2}")
            a(f"s_add_u32 s{S_TMP}, s{S_TMP}, {WS_MOD}")
            a("s_mov_b32 exec_lo, 0x33333333")
            a("s_mov_b32 exec_hi, 0x33333333")
            a(f"buffer_store_dword v{DU}, v{vt0}, s[{S_WS}:{S_WS+3}], s{S_TMP} offen sc1")
            a("s_mov_b64 exec, -1")

        a("L_s_nf:")
        if self.wearly:
            t1_loads()
            a(f"s_cmp_ge_u32 s2, {F1B_0}")
            a("s_cbranch_scc1 L_s_nf1b")
            t2_wloads()
            a("s_branch L_s_nf1c")
            a("L_s_nf1b:")
            a(f"s_cmp_ge_u32 s2, {F1B_0 + F1B_N}")
            a("s_cbranch_scc1 L_s_nf1c")
            f1b_loads()
            a("L_s_nf1c:")
        a("s_waitcnt lgkmcnt(0)")
        a("s_barrier")
        self.get_tag(vT)
        self.masks(vM0, vM1, vt0)
        self.masks(vMe, None, vt0, four=False)
        self.stamp(0, W0+8)
        if self.wearly:
            a(f"s_cmp_lt_u32 s2, {F1B_0}")
            a("s_cbranch_scc1 L_s_join")
            a(f"s_cmp_ge_u32 s2, {F1B_0 + F1B_N}")
            a("s_cbranch_scc1 L_s_join")
            f1b_compute()
        a("L_s_join:")
        QD = W0
        a(f"v_lshrrev_b32 v{vt2}, 5, v0")
        a(f"v_lshlrev_b32 v{vt2}, 16, v{vt2}")
        a(f"v_bfe_u32 v{vt3}, v0, 4, 1")
        a(f"v_lshl_add_u32 v{vt2}, v{vt3}, 10, v{vt2}")
        a(f"v_lshl_add_u32 v{vt2}, v{vB}, 8, v{vt2}")
        a(f"v_lshl_add_u32 v{vt2}, v{vU}, 4, v{vt2}")
        a(f"s_bfe_u32 s{S_TMP}, s2, 0x20003")
        a(f"s_and_b32 s{S_TMP2}, s2, 1")
        a(f"s_lshl_b32 s{S_TMP2}, s{S_TMP2}, 2")
        a(f"s_add_u32 s{S_TMP}, s{S_TMP}, s{S_TMP2}")
        a(f"s_lshl_b32 s{S_TMP}, s{S_TMP}, 2")
        a(f"s_add_u32 s{S_TMP}, s{S_TMP}, s{v}")
        a(f"s_lshl_b32 s{S_TMP}, s{S_TMP}, 11")
        a(f"s_bfe_u32 s{S_TMP2}, s2, 0x20001")
        a(f"s_lshl_b32 s{S_TMP2}, s{S_TMP2}, 6")
        a(f"s_add_u32 s{S_TMP}, s{S_TMP}, s{S_TMP2}")
        a(f"s_add_u32 s{S_SO}, s{S_TMP}, {WS_QP}")
        a(f"s_add_u32 s97, s{S_SO}, {1 << 17}")
        a(f"s_add_u32 s98, s{S_SO}, {2 << 17}")
        a(f"s_add_u32 s99, s{S_SO}, {3 << 17}")

        def iss():
            for q, sreg in enumerate([S_SO, 97, 98, 99]):
                a(f"buffer_load_dwordx4 v[{QD+4*q}:{QD+4*q+3}], v{vt2}, s[{S_WS}:{S_WS+3}], s{sreg} offen sc1")
        self.poll(iss, list(range(QD, QD+16)), vA, vO, vT)
        for r in range(4):
            a(f"v_add_f32 v{QD+r}, v{QD+r}, v{QD+4+r}")
            a(f"v_add_f32 v{QD+8+r}, v{QD+8+r}, v{QD+12+r}")
        for r in range(4):
            a(f"v_add_f32 v{QD+r}, v{QD+r}, v{QD+8+r}")
        self.nop(2)
        a(f"v_permlane32_swap_b32 v{QD}, v{QD+2}")
        a(f"v_permlane32_swap_b32 v{QD+1}, v{QD+3}")
        a(f"v_add_f32 v{QD}, v{QD}, v{QD+2}")
        a(f"v_add_f32 v{QD+1}, v{QD+1}, v{QD+3}")
        a(f"v_cvt_pk_bf16_f32 v{QD}, v{QD}, v{QD+1}")
        a(f"v_lshlrev_b32 v{vt0}, 6, v{vB}")
        a(f"v_lshrrev_b32 v{vt1}, 5, v0")
        a(f"v_lshl_add_u32 v{vt0}, v{vt1}, 5, v{vt0}")
        a(f"v_lshl_add_u32 v{vt0}, v{vt3}, 3, v{vt0}")
        a(f"v_lshl_add_u32 v{vt0}, v{vU}, 1, v{vt0}")
        a(f"s_lshl_b32 s{S_TMP}, s{v}, 8")
        a(f"v_add_u32 v{vt0}, s{S_TMP}, v{vt0}")
        a(f"ds_write_b16 v{vt0}, v{QD} offset:{L_QL}")
        a(f"ds_write_b16_d16_hi v{vt0}, v{QD} offset:{L_QL+16}")
        a("s_waitcnt lgkmcnt(0)")
        a(f"v_mov_b32 v{vt0}, {L_CNT+8}")
        a(f"v_mov_b32 v{vt1}, 1")
        a("s_mov_b64 exec, 1")
        a(f"ds_add_u32 v{vt0}, v{vt1}")
        a("s_mov_b64 exec, -1")
        self.stamp(4, W0+20)
        SBC = WA
        if self.wearly:
            a(f"s_cmp_ge_u32 s2, {NFRONT}")
            a("s_cbranch_scc1 L_s_prep_done")
            t1_loads()
        else:
            t1_loads()
            a(f"s_cmp_lt_u32 s2, {NFRONT}")
            a("s_cbranch_scc1 L_s_prep_done")
            a(f"s_cmp_ge_u32 s2, {F1B_0}")
            a("s_cbranch_scc1 L_s_nf1b")
            t2_wloads()
            a("s_branch L_s_prep_done")
            a("L_s_nf1b:")
            a(f"s_cmp_ge_u32 s2, {F1B_0 + F1B_N}")
            a("s_cbranch_scc1 L_s_prep_done")
            f1b_loads()
            f1b_compute()
        a("L_s_prep_done:")
        OA, OB, MLr = W0, W0+4, W0+8
        a(f"v_lshlrev_b32 v{vt2}, 17, v{vB}")
        a(f"v_lshl_add_u32 v{vt2}, v{vU}, 11, v{vt2}")
        a(f"v_lshl_add_u32 v{vt2}, v{vG}, 4, v{vt2}")
        a(f"s_lshr_b32 s{S_TMP}, s2, 5")
        a(f"s_lshl_b32 s{S_SO}, s{S_TMP}, 14")
        a(f"s_and_b32 s{S_TMP}, s{v}, 1")
        a(f"s_lshl_b32 s{S_TMP}, s{S_TMP}, 10")
        a(f"s_add_u32 s{S_SO}, s{S_SO}, s{S_TMP}")
        a(f"s_bfe_u32 s{S_TMP}, s2, 0x10002")
        a(f"s_lshl_b32 s{S_TMP}, s{S_TMP}, 1")
        a(f"s_lshr_b32 s{S_TMP2}, s{v}, 1")
        a(f"s_add_u32 s{S_TMP}, s{S_TMP}, s{S_TMP2}")
        a(f"s_lshl_b32 s{S_TMP}, s{S_TMP}, 8")
        a(f"s_add_u32 s{S_SO}, s{S_SO}, s{S_TMP}")
        a(f"s_bfe_u32 s{S_TMP}, s2, 0x20003")
        a(f"s_lshl_b32 s{S_TMP2}, s{S_TMP}, 6")
        a(f"s_add_u32 s{S_SO}, s{S_SO}, s{S_TMP2}")
        a(f"s_add_u32 s{S_SO}, s{S_SO}, {WS_OPP}")
        a(f"s_add_u32 s97, s{S_SO}, 8192")
        a(f"v_lshlrev_b32 v{vt3}, 11, v{vB}")
        a(f"v_lshl_add_u32 v{vt3}, v{vU}, 4, v{vt3}")
        a(f"s_lshr_b32 s98, s2, 3")
        a(f"s_lshl_b32 s98, s98, 6")
        a(f"s_add_u32 s98, s98, {WS_ML}")
        self.lds_wait(3, 8, vt0, vt1)
        self.stamp(5, W0+20)

        def iss(S):
            a(f"buffer_load_dwordx4 v[{S}:{S+3}], v{vt2}, s[{S_WS}:{S_WS+3}], s{S_SO} offen sc1")
            a(f"buffer_load_dwordx4 v[{S+4}:{S+7}], v{vt2}, s[{S_WS}:{S_WS+3}], s97 offen sc1")
            a(f"buffer_load_dwordx4 v[{S+8}:{S+11}], v{vt3}, s[{S_WS}:{S_WS+3}], s98 offen sc1")
        self.poll2(iss, 3, 12, [WC+64, WC+76, W0+12][:self.nsets], OA, vA, vO, vT)
        self.stamp(6, 8)
        m0, l0, m1, l1 = MLr, MLr+1, MLr+2, MLr+3
        a(f"v_and_b32 v{m0}, s{S_HI16}, v{m0}")
        a(f"v_and_b32 v{m1}, s{S_HI16}, v{m1}")
        a(f"v_max_f32 v{vt0}, v{m0}, v{m1}")
        self.allreduce(vt0, vt1, "v_max_f32", rows=False)
        a(f"v_sub_f32 v{m0}, v{m0}, v{vt0}")
        a(f"v_sub_f32 v{m1}, v{m1}, v{vt0}")
        a(f"v_mul_f32 v{m0}, 0x3fb8aa3b, v{m0}")
        a(f"v_mul_f32 v{m1}, 0x3fb8aa3b, v{m1}")
        a(f"v_exp_f32 v{m0}, v{m0}")
        a(f"v_exp_f32 v{m1}, v{m1}")
        self.nop(1)
        a(f"v_mul_f32 v{l0}, v{m0}, v{l0}")
        a(f"v_fmac_f32 v{l0}, v{m1}, v{l1}")
        for r in range(4):
            a(f"v_mul_f32 v{OA+r}, v{m0}, v{OA+r}")
        for r in range(4):
            a(f"v_fmac_f32 v{OA+r}, v{m1}, v{OB+r}")
        self.nop(2)
        for x in [l0] + [OA+r for r in range(4)]:
            a(f"v_add_f32_dpp v{x}, v{x}, v{x} quad_perm:[1,0,3,2] row_mask:0xf bank_mask:0xf")
        for x in [l0] + [OA+r for r in range(4)]:
            a(f"v_add_f32_dpp v{x}, v{x}, v{x} quad_perm:[2,3,0,1] row_mask:0xf bank_mask:0xf")
        a(f"v_rcp_f32 v{l0}, v{l0}")
        self.nop(1)
        for r in range(4):
            a(f"v_mul_f32 v{OA+r}, v{OA+r}, v{l0}")
        for r in range(4):
            a(f"v_cvt_pk_bf16_f32 v{OA+r}, v{OA+r}, v{OA+r}")
        D1, D2 = W0+4, W0+8
        XB = WC + 88
        self.gemv_x4(OA, WB, 4, XB, D1, D2, vM0, vM1)

        def ap_addr():
            a(f"s_lshl_b32 s{S_TMP}, s2, 11")
            a(f"s_add_u32 s{S_TMP}, s{S_TMP}, {WS_AP}")
        self.cu_reduce([(D1, D2)], None, L_RP, ap_addr, vt0, vt1, vT, vL16, WB)
        self.stamp(7, 8)
        a(f"s_cmp_lt_u32 s2, {T2_0}")
        a("s_cbranch_scc1 L_s_r")
        a(f"s_cmp_ge_u32 s2, {T2_0+T2_N}")
        a("s_cbranch_scc1 L_end")
        a(f"v_lshl_add_u32 v{vt0}, v{vG}, 13, v{vC16}")
        a(f"s_lshl_b32 s{S_TMP}, s{STILE}, 15")
        a(f"s_lshl_b32 s{S_TMP2}, s{v}, 8")
        a(f"s_add_u32 s{S_TMP}, s{S_TMP}, s{S_TMP2}")
        for j in range(8):
            a(f"buffer_load_dwordx4 v[{WC+64+4*j}:{WC+64+4*j+3}], v{vt0}, s[{S_WD}:{S_WD+3}], s{S_TMP} offen nt")
            if j < 7:
                a(f"s_add_u32 s{S_TMP}, s{S_TMP}, 1024")
        a(f"v_mul_u32_u24 v{vt2}, {3072*4}, v{vB}")
        a(f"v_lshl_add_u32 v{vt2}, v{vG}, 7, v{vt2}")
        a(f"v_lshl_add_u32 v{vt2}, v{vU}, 5, v{vt2}")
        a(f"s_lshl_b32 s{S_SO}, s{v}, 9")
        a(f"s_add_u32 s{S_SO}, s{S_SO}, {WS_MOD + 1536*4}")
        SB0 = W0

        def iss():
            a(f"buffer_load_dwordx4 v[{SB0}:{SB0+3}], v{vt2}, s[{S_WS}:{S_WS+3}], s{S_SO} offen sc1")
            a(f"buffer_load_dwordx4 v[{SB0+4}:{SB0+7}], v{vt2}, s[{S_WS}:{S_WS+3}], s{S_SO} offen offset:16 sc1")
            a(f"buffer_load_dwordx4 v[{SB0+8}:{SB0+11}], v{vt2}, s[{S_WS}:{S_WS+3}], s{S_SO} offen offset:2048 sc1")
            a(f"buffer_load_dwordx4 v[{SB0+12}:{SB0+15}], v{vt2}, s[{S_WS}:{S_WS+3}], s{S_SO} offen offset:2064 sc1")
        self.poll(iss, list(range(SB0, SB0+16)), vA, vO, vT, mask=0xff)
        for i in range(8):
            a(f"v_and_b32 v{SBC+i}, s{S_HI16}, v{SB0+i}")
            a(f"v_and_b32 v{SB0+8+i}, s{S_HI16}, v{SB0+8+i}")
        for i in range(8):
            a(f"v_add_f32 v{SBC+8+i}, 1.0, v{SB0+8+i}")
        for i in range(0, 8, 2):
            self.round2(SBC+8+i, SBC+8+i+1, vt0 if (i//2) % 2 == 0 else vt1)
        X1r = W0
        a(f"v_lshlrev_b32 v{vt2}, 11, v{vB}")
        a(f"v_lshl_add_u32 v{vt2}, v{vG}, 7, v{vt2}")
        a(f"v_lshl_add_u32 v{vt2}, v{vU}, 5, v{vt2}")
        a(f"s_lshl_b32 s{S_SO}, s{v}, 9")
        a(f"s_add_u32 s{S_SO}, s{S_SO}, {WS_X1}")
        a(f"v_lshlrev_b32 v{vt3}, 5, v{vB}")
        a(f"s_lshl_b32 s{S_TMP}, s{v}, 3")
        a(f"v_add_u32 v{vt1}, s{S_TMP}, v{vt3}")

        def iss(S):
            a(f"buffer_load_dwordx4 v[{S}:{S+3}], v{vt2}, s[{S_WS}:{S_WS+3}], s{S_SO} offen sc1")
            a(f"buffer_load_dwordx4 v[{S+4}:{S+7}], v{vt2}, s[{S_WS}:{S_WS+3}], s{S_SO} offen offset:16 sc1")
        self.poll2(iss, 2, 8, [WB, WB+8, W0+16][:self.nsets], X1r, vA, vO, vT, mask=0xff)
        self.stamp(10, 8)
        for i in range(8):
            a(f"v_and_b32 v{X1r+i}, s{S_HI16}, v{X1r+i}")
        s1, s2_ = vA, vO
        self.ln_sum(X1r, 8, s1, vt0)
        a(f"v_mul_f32 v{s2_}, v{X1r}, v{X1r}")
        a(f"v_mul_f32 v{vt2}, v{X1r+1}, v{X1r+1}")
        for i in range(2, 8, 2):
            a(f"v_fmac_f32 v{s2_}, v{X1r+i}, v{X1r+i}")
            a(f"v_fmac_f32 v{vt2}, v{X1r+i+1}, v{X1r+i+1}")
        a(f"v_add_f32 v{s2_}, v{s2_}, v{vt2}")
        self.allreduce2(s1, s2_, vt0, vt2)
        a("s_mov_b64 exec, 0x1111")
        a(f"ds_write_b64 v{vt1}, v[{s1}:{s2_}] offset:{L_ST}")
        a("s_mov_b64 exec, -1")
        a("s_waitcnt lgkmcnt(0)")
        a("s_barrier")
        ST = W0+8
        a(f"ds_read_b128 v[{ST}:{ST+3}], v{vt3} offset:{L_ST}")
        a(f"ds_read_b128 v[{ST+4}:{ST+7}], v{vt3} offset:{L_ST+16}")
        a("s_waitcnt lgkmcnt(0)")
        a(f"v_add_f32 v{s1}, v{ST}, v{ST+2}")
        a(f"v_add_f32 v{vt0}, v{ST+4}, v{ST+6}")
        a(f"v_add_f32 v{s2_}, v{ST+1}, v{ST+3}")
        a(f"v_add_f32 v{vt1}, v{ST+5}, v{ST+7}")
        a(f"v_add_f32 v{s1}, v{s1}, v{vt0}")
        a(f"v_add_f32 v{s2_}, v{s2_}, v{vt1}")
        a(f"v_mul_f32 v{s1}, 0x3b000000, v{s1}")
        a(f"v_mul_f32 v{s2_}, 0x3b000000, v{s2_}")
        a(f"v_fma_f32 v{s2_}, -v{s1}, v{s1}, v{s2_}")
        a(f"v_max_f32 v{s2_}, 0, v{s2_}")
        self.ln_fin(s1, s2_, vt0)
        self.ln_norm(X1r, 8, s1, s2_, vt0, vt1)
        for i in range(8):
            a(f"v_mul_f32 v{X1r+i}, v{X1r+i}, v{SBC+8+i}")
        for i in range(0, 8, 2):
            self.round2(X1r+i, X1r+i+1, vt0 if (i//2) % 2 == 0 else vt1)
        for i in range(8):
            a(f"v_add_f32 v{X1r+i}, v{X1r+i}, v{SBC+i}")
        for i in range(8):
            a(f"v_cvt_pk_bf16_f32 v{X1r+i}, v{X1r+i}, v{X1r+i}")
        BB = WB
        AG, AU = W0+8, W0+12
        a("s_waitcnt vmcnt(0)")
        for T in range(8):
            us = T//2
            bb = BB + 4*(T & 1)
            for j in range(4):
                a(f"v_and_b32_dpp v{bb+j}, v{X1r+4*(T%2)+j}, v{vMe} quad_perm:[{us},{us},{us},{us}] row_mask:0xf bank_mask:0xf")
            self.nop(2)
            c = "0" if T == 0 else f"v[{AG}:{AG+3}]"
            a(f"v_mfma_f32_16x16x32_bf16 v[{AG}:{AG+3}], v[{WC+4*T}:{WC+4*T+3}], v[{bb}:{bb+3}], {c}")
            c = "0" if T == 0 else f"v[{AU}:{AU+3}]"
            a(f"v_mfma_f32_16x16x32_bf16 v[{AU}:{AU+3}], v[{WC+32+4*T}:{WC+32+4*T+3}], v[{bb}:{bb+3}], {c}")
        a(f"v_lshlrev_b32 v{vt0}, 9, v{vB}")
        a(f"v_lshl_add_u32 v{vt0}, v{vG}, 7, v{vt0}")
        a(f"v_lshl_add_u32 v{vt2}, v{vU}, 5, v{vt0}")
        a(f"v_and_b32 v{vt1}, 1, v0")
        a(f"v_lshl_add_u32 v{vt0}, v{vt1}, 4, v{vt0}")
        a(f"s_lshl_b32 s{S_TMP}, s{v}, 2")
        a(f"v_add_u32 v{vt0}, s{S_TMP}, v{vt0}")
        self.nop(4)
        a("s_mov_b32 exec_lo, 0x33333333")
        a("s_mov_b32 exec_hi, 0x33333333")
        for r in range(4):
            a(f"ds_write_b32 v{vt0}, v{AG+r} offset:{L_GU + 32*r}")
            a(f"ds_write_b32 v{vt0}, v{AU+r} offset:{L_GU + 2048 + 32*r}")
        a("s_mov_b64 exec, -1")
        a("s_waitcnt lgkmcnt(0)")
        a("s_barrier")
        GR = WB
        a(f"ds_read_b128 v[{GR}:{GR+3}], v{vt2} offset:{L_GU}")
        a(f"ds_read_b128 v[{GR+4}:{GR+7}], v{vt2} offset:{L_GU+16}")
        a(f"ds_read_b128 v[{GR+8}:{GR+11}], v{vt2} offset:{L_GU+2048}")
        a(f"ds_read_b128 v[{GR+12}:{GR+15}], v{vt2} offset:{L_GU+2048+16}")
        a(f"s_lshl_b32 s{S_TMP}, s{STILE}, 2")
        a(f"s_add_u32 s{S_TMP}, s{S_TMP}, s{v}")
        a(f"s_lshl_b32 s{S_TMP}, s{S_TMP}, 11")
        a(f"s_add_u32 s{S_TMP}, s{S_TMP}, {WS_DP}")
        a("s_waitcnt lgkmcnt(0)")
        for i in range(4):
            g = GR + 4*i
            a(f"v_add_f32 v{g}, v{g}, v{g+1}")
            a(f"v_add_f32 v{g+2}, v{g+2}, v{g+3}")
        for i in range(4):
            g = GR + 4*i
            a(f"v_add_f32 v{g}, v{g}, v{g+2}")
        g0, g1, u0, u1 = GR, GR+4, GR+8, GR+12
        self.round2(g0, g1, vt0)
        self.round2(u0, u1, vt1)
        a(f"v_mul_f32 v{g0+1}, 0xbfb8aa3b, v{g0}")
        a(f"v_mul_f32 v{g1+1}, 0xbfb8aa3b, v{g1}")
        a(f"v_exp_f32 v{g0+1}, v{g0+1}")
        a(f"v_exp_f32 v{g1+1}, v{g1+1}")
        self.nop(1)
        a(f"v_add_f32 v{g0+1}, 1.0, v{g0+1}")
        a(f"v_add_f32 v{g1+1}, 1.0, v{g1+1}")
        a(f"v_rcp_f32 v{g0+1}, v{g0+1}")
        a(f"v_rcp_f32 v{g1+1}, v{g1+1}")
        self.nop(1)
        a(f"v_mul_f32 v{g0}, v{g0}, v{g0+1}")
        a(f"v_mul_f32 v{g1}, v{g1}, v{g1+1}")
        self.round2(g0, g1, vt0)
        a(f"v_mul_f32 v{g0}, v{g0}, v{u0}")
        a(f"v_mul_f32 v{g1}, v{g1}, v{u1}")
        AD = W0
        a(f"v_cvt_pk_bf16_f32 v{AD}, v{g0}, v{g0}")
        a(f"v_cvt_pk_bf16_f32 v{AD+1}, v{g1}, v{g1}")
        self.nop(1)
        XB = WB
        for j in range(8):
            us = j//2
            a(f"v_and_b32_dpp v{XB+2*j}, v{AD+(j%2)}, v{vM0} quad_perm:[{us},{us},{us},{us}] row_mask:0xf bank_mask:0xf")
            a(f"v_and_b32_dpp v{XB+2*j+1}, v{AD+(j%2)}, v{vM1} quad_perm:[{us},{us},{us},{us}] row_mask:0xf bank_mask:0xf")
        self.nop(2)
        D1, D2, D3, D4 = W0+4, W0+8, W0+12, W0+16
        for j in range(8):
            w = WC + 64 + 4*j
            da, db = (D1, D2) if j % 2 == 0 else (D3, D4)
            c1 = "0" if j < 2 else f"v[{da}:{da+3}]"
            c2 = "0" if j < 2 else f"v[{db}:{db+3}]"
            a(f"v_mfma_f32_16x16x16_bf16 v[{da}:{da+3}], v[{w}:{w+1}], v[{XB+2*j}:{XB+2*j+1}], {c1}")
            a(f"v_mfma_f32_16x16x16_bf16 v[{db}:{db+3}], v[{w+2}:{w+3}], v[{XB+2*j}:{XB+2*j+1}], {c2}")
        self.nop(8)
        for r in range(4):
            a(f"v_add_f32 v{D1+r}, v{D1+r}, v{D3+r}")
        for r in range(4):
            a(f"v_add_f32 v{D2+r}, v{D2+r}, v{D4+r}")
        for r in range(4):
            self.tag32(D1+r, vT)
        a(f"buffer_store_dwordx4 v[{D1}:{D1+3}], v{vL16}, s[{S_WS}:{S_WS+3}], s{S_TMP} offen sc1")
        for r in range(4):
            self.tag32(D2+r, vT)
        a(f"buffer_store_dwordx4 v[{D2}:{D2+3}], v{vL16}, s[{S_WS}:{S_WS+3}], s{S_TMP} offen offset:1024 sc1")
        self.stamp(11, 8)
        a("s_endpgm")
        a("L_s_r:")
        a(f"s_cmp_lg_u32 s{v}, 2")
        a("s_cbranch_scc1 L_end")
        SCOL = 100
        a(f"s_lshr_b32 s{SCOL}, s2, 3")
        a(f"s_lshl_b32 s{SCOL}, s{SCOL}, 5")
        a(f"s_bfe_u32 s{S_TMP}, s2, 0x10002")
        a(f"s_lshl_b32 s{S_TMP}, s{S_TMP}, 2")
        a(f"s_add_u32 s{SCOL}, s{SCOL}, s{S_TMP}")
        a(f"s_and_b32 s{S_TMP}, s2, 3")
        a(f"s_lshl_b32 s{S_TMP2}, s{S_TMP}, 9")
        a(f"s_add_u32 s{S_TMP2}, s{S_TMP2}, s{SCOL}")
        a(f"s_mul_i32 s{S_TMP}, s{S_TMP}, 3072")
        a(f"s_add_u32 s{SCOL}, s{SCOL}, s{S_TMP}")
        vCol = SBC + 3
        a(f"v_lshl_add_u32 v{vt1}, v{vG}, 3, v{vU}")
        a(f"v_add_u32 v{vCol}, s{S_TMP2}, v{vt1}")
        a(f"v_lshlrev_b32 v{vt0}, 1, v{vCol}")
        a(f"buffer_load_ushort v{SBC+2}, v{vt0}, s[{S_X}:{S_X+3}], 0 offen")
        a(f"v_add_u32 v{vt2}, s{SCOL}, v{vt1}")
        a(f"v_lshlrev_b32 v{vt2}, 2, v{vt2}")
        a(f"s_mov_b32 s{S_SO}, {WS_MOD + 1024*4}")
        a(f"s_mov_b32 s97, {WS_MOD + 2560*4}")

        def iss():
            a(f"buffer_load_dword v{SBC}, v{vt2}, s[{S_WS}:{S_WS+3}], s{S_SO} offen sc1")
            a(f"buffer_load_dword v{SBC+1}, v{vt2}, s[{S_WS}:{S_WS+3}], s97 offen sc1")
        self.poll(iss, [SBC, SBC+1, SBC+1], vA, vO, vT, mask=0xff)
        a(f"v_and_b32 v{SBC}, s{S_HI16}, v{SBC}")
        a(f"v_and_b32 v{SBC+1}, s{S_HI16}, v{SBC+1}")
        a(f"v_lshlrev_b32 v{SBC+2}, 16, v{SBC+2}")
        RD = WC
        RS = [WC+16, WC+32, WC+48][:self.nsets]
        SRB = 101
        a(f"s_lshr_b32 s{SRB}, s2, 5")
        a(f"s_lshl_b32 s{SRB}, s{SRB}, 11")
        a(f"s_bfe_u32 s{S_TMP}, s2, 0x10002")
        a(f"s_lshl_b32 s{S_TMP}, s{S_TMP}, 10")
        a(f"s_add_u32 s{SRB}, s{SRB}, s{S_TMP}")
        a(f"s_bfe_u32 s{S_TMP}, s2, 0x20003")
        a(f"s_lshl_b32 s{S_TMP}, s{S_TMP}, 8")
        a(f"s_add_u32 s{SRB}, s{SRB}, s{S_TMP}")
        a(f"s_and_b32 s{S_TMP}, s2, 3")
        a(f"s_lshl_b32 s{S_TMP}, s{S_TMP}, 6")
        a(f"s_add_u32 s{SRB}, s{SRB}, s{S_TMP}")
        a(f"v_lshrrev_b32 v{vt2}, 2, v0")
        a(f"v_lshlrev_b32 v{vt2}, 13, v{vt2}")
        a(f"v_lshl_add_u32 v{vt2}, v{vU}, 4, v{vt2}")
        a(f"v_and_b32 v{vt3}, 0xffff, v{vt2}")
        QS = [S_SO, 97, 98, 99]
        for q in range(4):
            a(f"s_add_u32 s{QS[q]}, s{SRB}, {WS_AP + q*131072}")

        def iss(S):
            for q in range(4):
                a(f"buffer_load_dwordx4 v[{S+4*q}:{S+4*q+3}], v{vt2}, s[{S_WS}:{S_WS+3}], s{QS[q]} offen sc1")
        self.poll2(iss, 4, 16, RS, RD, vA, vO, vT)
        self.stamp(12, 8)
        self.reduce_r(RD, False)
        vga, vgb, vx = SBC, SBC+1, SBC+2
        self.round1(RD)
        a(f"v_mul_f32 v{RD}, v{vga}, v{RD}")
        self.round1(RD)
        a(f"v_add_f32 v{vx}, v{vx}, v{RD}")
        a(f"v_cvt_pk_bf16_f32 v{vx}, v{vx}, v{vx}")
        a(f"v_lshl_or_b32 v{RD}, v{vx}, 16, v{vT}")
        a(f"v_lshlrev_b32 v{vt1}, 2, v{vCol}")
        a(f"s_mov_b32 s{S_TMP}, {WS_X1}")
        a("s_mov_b32 exec_lo, 0x000f000f")
        a("s_mov_b32 exec_hi, 0x000f000f")
        a(f"buffer_store_dword v{RD}, v{vt1}, s[{S_WS}:{S_WS+3}], s{S_TMP} offen sc1")
        a("s_mov_b64 exec, -1")
        a(f"v_and_b32 v{vx}, s{S_HI16}, v{vx}")
        a(f"v_lshlrev_b32 v{vCol}, 1, v{vCol}")
        self.stamp(13, 8)
        for q in range(4):
            a(f"s_add_u32 s{QS[q]}, s{SRB}, {WS_DP + q*131072}")

        def iss(S):
            for q in range(4):
                va = vt2 if q < 3 else vt3
                a(f"buffer_load_dwordx4 v[{S+4*q}:{S+4*q+3}], v{va}, s[{S_WS}:{S_WS+3}], s{QS[q]} offen sc1")
        self.poll2(iss, 4, 16, RS, RD, vA, vO, vT)
        self.reduce_r(RD, True)
        self.round1(RD)
        a(f"v_mul_f32 v{RD}, v{vgb}, v{RD}")
        self.round1(RD)
        a(f"v_add_f32 v{RD}, v{vx}, v{RD}")
        a(f"v_cvt_pk_bf16_f32 v{RD}, v{RD}, v{RD}")
        a("s_mov_b32 exec_lo, 0x000f000f")
        a("s_mov_b32 exec_hi, 0x000f000f")
        a(f"buffer_store_short v{RD}, v{vCol}, s[{S_OUT}:{S_OUT+3}], 0 offen")
        a("s_mov_b64 exec, -1")
        self.stamp(14, 8)
        a(f"s_cmp_lg_u32 s2, {R_0}")
        a("s_cbranch_scc1 L_end")
        a(f"v_mov_b32 v{vt0}, s{S_E}")
        a(f"v_mov_b32 v{vt1}, {WS_E}")
        a("s_mov_b64 exec, 1")
        a(f"buffer_store_dword v{vt0}, v{vt1}, s[{S_WS}:{S_WS+3}], 0 offen sc1")
        a("s_endpgm")

    def reduce_r(self, RD, half_last):
        a = self.a
        for r in range(4):
            a(f"v_add_f32 v{RD+r}, v{RD+r}, v{RD+4+r}")
        if half_last:
            a("s_mov_b32 exec_hi, 0")
        for r in range(4):
            a(f"v_add_f32 v{RD+8+r}, v{RD+8+r}, v{RD+12+r}")
        if half_last:
            a("s_mov_b32 exec_hi, -1")
        for r in range(4):
            a(f"v_add_f32 v{RD+r}, v{RD+r}, v{RD+8+r}")
        self.nop(2)
        a(f"v_permlane32_swap_b32 v{RD}, v{RD+2}")
        a(f"v_permlane32_swap_b32 v{RD+1}, v{RD+3}")
        a(f"v_add_f32 v{RD}, v{RD}, v{RD+2}")
        a(f"v_add_f32 v{RD+1}, v{RD+1}, v{RD+3}")
        self.nop(2)
        a(f"v_permlane16_swap_b32 v{RD}, v{RD+1}")
        a(f"v_add_f32 v{RD}, v{RD}, v{RD+1}")
        self.nop(2)
        a(f"v_add_f32_dpp v{RD}, v{RD}, v{RD} row_ror:8 row_mask:0xf bank_mask:0xf")
        self.nop(2)
        a(f"v_add_f32_dpp v{RD}, v{RD}, v{RD} row_ror:4 row_mask:0xf bank_mask:0xf")

    def allreduce2(self, r1, r2, t1, t2):
        a = self.a
        self.nop(1)
        for qp in ("[1,0,3,2]", "[2,3,0,1]"):
            a(f"v_add_f32_dpp v{r1}, v{r1}, v{r1} quad_perm:{qp} row_mask:0xf bank_mask:0xf")
            a(f"v_add_f32_dpp v{r2}, v{r2}, v{r2} quad_perm:{qp} row_mask:0xf bank_mask:0xf")
            self.nop(1)
        for sw in ("v_permlane16_swap_b32", "v_permlane32_swap_b32"):
            a(f"v_mov_b32 v{t1}, v{r1}")
            a(f"v_mov_b32 v{t2}, v{r2}")
            self.nop(1)
            a(f"{sw} v{r1}, v{t1}")
            a(f"{sw} v{r2}, v{t2}")
            a(f"v_add_f32 v{r1}, v{r1}, v{t1}")
            a(f"v_add_f32 v{r2}, v{r2}, v{t2}")

    def reduce_q(self, RD, n):
        a = self.a
        idx = list(range(n))
        while len(idx) > 1:
            nxt = []
            for i in range(0, len(idx)-1, 2):
                for r in range(4):
                    a(f"v_add_f32 v{RD+4*idx[i]+r}, v{RD+4*idx[i]+r}, v{RD+4*idx[i+1]+r}")
                nxt.append(idx[i])
            if len(idx) % 2:
                nxt.append(idx[-1])
            idx = nxt
        self.nop(2)
        a(f"v_permlane32_swap_b32 v{RD}, v{RD+2}")
        a(f"v_permlane32_swap_b32 v{RD+1}, v{RD+3}")
        a(f"v_add_f32 v{RD}, v{RD}, v{RD+2}")
        a(f"v_add_f32 v{RD+1}, v{RD+1}, v{RD+3}")
        self.nop(2)
        a(f"v_permlane16_swap_b32 v{RD}, v{RD+1}")
        a(f"v_add_f32 v{RD}, v{RD}, v{RD+1}")

    def ln_sum(self, R, n, dst, t):
        a = self.a
        a(f"v_add_f32 v{dst}, v{R}, v{R+1}")
        a(f"v_add_f32 v{t}, v{R+2}, v{R+3}")
        for i in range(4, n, 2):
            a(f"v_add_f32 v{dst}, v{dst}, v{R+i}")
            a(f"v_add_f32 v{t}, v{t}, v{R+i+1}")
        a(f"v_add_f32 v{dst}, v{dst}, v{t}")

    def ln_fin(self, vMean, vVar, t):
        a = self.a
        self.round2(vMean, vVar, t)
        a(f"v_add_f32 v{vVar}, 0x3727c5ac, v{vVar}")
        self.round1(vVar)
        a(f"v_sqrt_f32 v{vVar}, v{vVar}")
        self.nop(1)
        self.round1(vVar)
        a(f"v_rcp_f32 v{vVar}, v{vVar}")
        self.nop(1)

    def ln_norm(self, Y, n, vMean, vRcp, t0, t1):
        a = self.a
        for i in range(n):
            a(f"v_sub_f32 v{Y+i}, v{Y+i}, v{vMean}")
        for i in range(0, n, 2):
            self.round2(Y+i, Y+i+1, t0 if (i//2) % 2 == 0 else t1)
        for i in range(n):
            a(f"v_mul_f32 v{Y+i}, v{Y+i}, v{vRcp}")
        for i in range(0, n, 2):
            self.round2(Y+i, Y+i+1, t0 if (i//2) % 2 == 0 else t1)

    def modulate(self, Y, n, SH, SCL, t0, t1, clean=False):
        a = self.a
        if not clean:
            for i in range(n):
                a(f"v_and_b32 v{SH+i}, s{S_HI16}, v{SH+i}")
                a(f"v_and_b32 v{SCL+i}, s{S_HI16}, v{SCL+i}")
        for i in range(n):
            a(f"v_add_f32 v{SCL+i}, 1.0, v{SCL+i}")
        for i in range(0, n, 2):
            self.round2(SCL+i, SCL+i+1, t0 if (i//2) % 2 == 0 else t1)
        for i in range(n):
            a(f"v_mul_f32 v{Y+i}, v{Y+i}, v{SCL+i}")
        for i in range(0, n, 2):
            self.round2(Y+i, Y+i+1, t0 if (i//2) % 2 == 0 else t1)
        for i in range(n):
            a(f"v_add_f32 v{Y+i}, v{Y+i}, v{SH+i}")
        for i in range(n):
            a(f"v_cvt_pk_bf16_f32 v{Y+i}, v{Y+i}, v{Y+i}")

    def gemv_x4(self, DU, W, n, XB, D1, D2, vM0, vM1):
        a = self.a
        for j in range(n):
            a(f"v_and_b32 v{XB+2*j}, v{DU+j}, v{vM0}")
            a(f"v_and_b32 v{XB+2*j+1}, v{DU+j}, v{vM1}")
        self.nop(2)
        for j in range(n):
            w = W + 4*j
            c1 = "0" if j == 0 else f"v[{D1}:{D1+3}]"
            c2 = "0" if j == 0 else f"v[{D2}:{D2+3}]"
            a(f"v_mfma_f32_16x16x16_bf16 v[{D1}:{D1+3}], v[{w}:{w+1}], v[{XB+2*j}:{XB+2*j+1}], {c1}")
            a(f"v_mfma_f32_16x16x16_bf16 v[{D2}:{D2+3}], v[{w+2}:{w+3}], v[{XB+2*j}:{XB+2*j+1}], {c2}")
        self.nop(8)

    def gemv_x_build(self, DU, n, XB, vM0, vM1):
        a = self.a
        for j in range(n):
            a(f"v_and_b32 v{XB+2*j}, v{DU+j}, v{vM0}")
            a(f"v_and_b32 v{XB+2*j+1}, v{DU+j}, v{vM1}")
        self.nop(2)

    def gemv_mfma(self, W, n, XB, D1, D2):
        a = self.a
        for j in range(n):
            w = W + 4*j
            c1 = "0" if j == 0 else f"v[{D1}:{D1+3}]"
            c2 = "0" if j == 0 else f"v[{D2}:{D2+3}]"
            a(f"v_mfma_f32_16x16x16_bf16 v[{D1}:{D1+3}], v[{w}:{w+1}], v[{XB+2*j}:{XB+2*j+1}], {c1}")
            a(f"v_mfma_f32_16x16x16_bf16 v[{D2}:{D2+3}], v[{w+2}:{w+3}], v[{XB+2*j}:{XB+2*j+1}], {c2}")

    def cu_reduce(self, tiles, cnt, lbase, addr_fn, vt0, vt1, vT, vL16, R):
        a = self.a
        v = S_WID
        nt = len(tiles)
        a(f"s_lshl_b32 s{S_TMP}, s{v}, 11")
        a(f"v_add_u32 v{vt0}, s{S_TMP}, v{vL16}")
        for t, (D1, D2) in enumerate(tiles):
            a(f"ds_write_b128 v{vt0}, v[{D1}:{D1+3}] offset:{lbase+8192*t}")
            a(f"ds_write_b128 v{vt0}, v[{D2}:{D2+3}] offset:{lbase+8192*t+1024}")
        if cnt is not None:
            self.lds_bar(cnt, 4, vt0, vt1)
        else:
            a("s_waitcnt lgkmcnt(0)")
            a("s_barrier")
        skip = self.label("crs")
        if nt == 1:
            a(f"s_cmp_ge_u32 s{v}, 2")
            a(f"s_cbranch_scc1 {skip}")
        a(f"s_and_b32 s{S_TMP}, s{v}, 1")
        a(f"s_lshl_b32 s{S_TMP}, s{S_TMP}, 10")
        a(f"v_add_u32 v{vt0}, s{S_TMP}, v{vL16}")
        if nt == 2:
            a(f"s_lshr_b32 s{S_TMP}, s{v}, 1")
            a(f"s_lshl_b32 s{S_TMP}, s{S_TMP}, 13")
            a(f"v_add_u32 v{vt1}, s{S_TMP}, v{vt0}")
            rd = vt1
        else:
            rd = vt0
        assert R % 4 == 0
        for i in range(4):
            a(f"ds_read_b128 v[{R+4*i}:{R+4*i+3}], v{rd} offset:{lbase+2048*i}")
        addr_fn()
        a("s_waitcnt lgkmcnt(0)")
        for r in range(4):
            a(f"v_add_f32 v{R+r}, v{R+r}, v{R+4+r}")
            a(f"v_add_f32 v{R+8+r}, v{R+8+r}, v{R+12+r}")
        for r in range(4):
            a(f"v_add_f32 v{R+r}, v{R+r}, v{R+8+r}")
        for r in range(4):
            self.tag32(R+r, vT)
        a(f"buffer_store_dwordx4 v[{R}:{R+3}], v{vt0}, s[{S_WS}:{S_WS+3}], s{S_TMP} offen sc1")
        a(f"{skip}:")

    def build(self):
        self.prologue()
        self.svc()
        self.kv()
        self.a("L_end:")
        body = "\n".join(self.L)
        return f"""; @launch grid=(256,1,1) block=(768,1,1) lds={LDS_SIZE}
.amdgcn_target "amdgcn-amd-amdhsa--gfx950"
.text
.globl {KN}
.p2align 8
.type {KN},@function
{KN}:
{body}
s_endpgm
.section .rodata,"a"
.p2align 6
.amdhsa_kernel {KN}
  .amdhsa_next_free_vgpr 168
  .amdhsa_next_free_sgpr 102
  .amdhsa_accum_offset 168
  .amdhsa_group_segment_fixed_size 0
  .amdhsa_kernarg_size 112
  .amdhsa_user_sgpr_count 2
  .amdhsa_user_sgpr_kernarg_segment_ptr 1
  .amdhsa_system_sgpr_workgroup_id_x 1
.end_amdhsa_kernel
"""


if __name__ == "__main__":
    import argparse
    ap = argparse.ArgumentParser()
    ap.add_argument("-o", default="k1.s")
    ap.add_argument("--dbg", action="store_true")
    ap.add_argument("--prio", type=int, default=3)
    ap.add_argument("--na-front", type=int, default=2)
    ap.add_argument("--p-front", type=int, default=1)
    ap.add_argument("--na-nf", type=int, default=16)
    ap.add_argument("--p-nf", type=int, default=2)
    ap.add_argument("--psleep2", type=int, default=8)
    ap.add_argument("--psleep3", type=int, default=5)
    ap.add_argument("--nsets", type=int, default=1)
    ap.add_argument("--kf", type=int, default=512)
    ap.add_argument("--km", type=int, default=384)
    ap.add_argument("--kh", type=int, default=640)
    ap.add_argument("--wearly", type=int, default=0)
    ap.add_argument("--b0first", type=int, default=0)
    args = ap.parse_args()
    g = Gen(dbg=args.dbg, prio=args.prio, na_front=args.na_front, p_front=args.p_front, na_nf=args.na_nf, p_nf=args.p_nf,
            psleep2=args.psleep2, psleep3=args.psleep3, nsets=args.nsets, kf=args.kf, km=args.km, kh=args.kh, wearly=args.wearly, b0first=args.b0first)
    open(args.o, "w").write(g.build())
```

```python
import sys
KN = "adaLN_cond__gqa_block_cached__swiglu_ffn__decode_kernel"

WS_E = 0
WS_MOD = 0x1000
WS_QP = 0x10000
WS_MODP = 0xA0000
WS_OPP = 0x100000
WS_ML = 0x180000
WS_AP = 0x200000
WS_X1 = 0x280000
WS_DP = 0x300000
WS_DBG = 0x3C0000
WS_SIZE = 0x400000
L_F1P = 0
L_RP = 4096
L_QL = 20480
L_OW = 24576
L_MLW = 40960
L_ST = 41216
L_CNT = 41344
L_GU = 41472
LDS_SIZE = 49152

NFRONT = 128
F1A_N = 64
T2_0 = 128
T2_N = 56
F1B_0 = 184
F1B_N = 64
R_0 = 0
R_N = 128
LIMIT = 4000

S_K, S_V, S_WS, S_WQ, S_WO, S_WM, S_WG, S_WU, S_WD, S_X, S_C, S_OUT = 4, 8, 12, 16, 20, 24, 28, 32, 36, 40, 44, 48
S_WID, S_T, S_SO, S_IT, S_V4, S_TMP, S_TMP2, S_E = 52, 53, 54, 55, 56, 57, 58, 59
S_B0, S_B1 = 60, 62
S_FF00 = 90
S_HI16 = 91
S_TS = 92
S_R = 96
S_BK, S_SP = 84, 85
S_T3 = 94
TAGB = 4


class Gen:
    def __init__(self, dbg=False, prio=3, na_front=2, p_front=1, na_nf=16, p_nf=2, psleep2=8, psleep3=5, nsets=1, kf=512, km=384, kh=640, wearly=0, b0first=0, g_opp='g16', g_x1='lane', g_r='quad'):
        self.g_opp, self.g_x1, self.g_r = g_opp, g_x1, g_r
        self.L = []
        self.dbg = dbg
        self.prio = prio
        self.na_front = na_front
        self.wearly, self.b0first = wearly, b0first
        self.kf, self.km, self.kh = kf, km, kh
        self.psleep2 = psleep2
        self.psleep3 = psleep3
        self.nsets = nsets
        self.p_front = p_front
        self.na_nf = na_nf
        self.p_nf = p_nf
        self.lbl = 0

    def a(self, s):
        self.L.append(s)

    def label(self, p):
        self.lbl += 1
        return f"L_{p}_{self.lbl}"

    def nop(self, n):
        while n > 0:
            k = min(n, 16)
            self.a(f"s_nop {k-1}")
            n -= k

    def srd(self, s, plo, size):
        self.a(f"s_mov_b32 s{s}, s{plo}")
        self.a(f"s_mov_b32 s{s+1}, s{plo+1}")
        self.a(f"s_mov_b32 s{s+2}, {size}")
        self.a(f"s_mov_b32 s{s+3}, 0x00020000")

    def stamp(self, slot, vtmp):
        if not self.dbg:
            return
        a = self.a
        a(f"s_memrealtime s[{S_TS}:{S_TS+1}]")
        a("s_waitcnt lgkmcnt(0)")
        a(f"v_mov_b32 v{vtmp}, s{S_TS}")
        a(f"v_mov_b32 v{vtmp+1}, s{S_IT}")
        a(f"s_lshl_b32 s{S_TMP2}, s2, 7")
        a(f"s_add_u32 s{S_TMP2}, s{S_TMP2}, {WS_DBG + slot*8}")
        a(f"v_mov_b32 v{vtmp+2}, s{S_TMP2}")
        a("s_mov_b64 exec, 1")
        a(f"buffer_store_dwordx2 v[{vtmp}:{vtmp+1}], v{vtmp+2}, s[{S_WS}:{S_WS+3}], 0 offen")
        a("s_mov_b64 exec, -1")
        a("s_nop 1")

    def allreduce(self, r, t, op, quad=True, rows=True):
        a = self.a
        if quad:
            self.nop(2)
            a(f"{op}_dpp v{r}, v{r}, v{r} quad_perm:[1,0,3,2] row_mask:0xf bank_mask:0xf")
            self.nop(2)
            a(f"{op}_dpp v{r}, v{r}, v{r} quad_perm:[2,3,0,1] row_mask:0xf bank_mask:0xf")
        if rows:
            a(f"v_mov_b32 v{t}, v{r}")
            self.nop(2)
            a(f"v_permlane16_swap_b32 v{r}, v{t}")
            a(f"{op} v{r}, v{r}, v{t}")
            a(f"v_mov_b32 v{t}, v{r}")
            self.nop(2)
            a(f"v_permlane32_swap_b32 v{r}, v{t}")
            a(f"{op} v{r}, v{r}, v{t}")

    def round2(self, x0, x1, t):
        a = self.a
        a(f"v_cvt_pk_bf16_f32 v{t}, v{x0}, v{x1}")
        a(f"v_lshlrev_b32 v{x0}, 16, v{t}")
        a(f"v_and_b32 v{x1}, s{S_HI16}, v{t}")

    def round1(self, x, t=None):
        a = self.a
        a(f"v_cvt_pk_bf16_f32 v{x}, v{x}, v{x}")
        a(f"v_and_b32 v{x}, s{S_HI16}, v{x}")

    def poll(self, issue, regs, vA, vO, vT, mask=(1 << TAGB) - 1):
        a = self.a
        lp = self.label("poll")
        ld = self.label("pd")
        a(f"s_mov_b32 s{S_IT}, 0")
        a(f"{lp}:")
        issue()
        a("s_waitcnt vmcnt(0)")
        rs = list(regs)
        assert len(rs) >= 3
        a(f"v_bitop3_b32 v{vA}, v{rs[0]}, v{rs[1]}, v{rs[2]} bitop3:0x80")
        a(f"v_or3_b32 v{vO}, v{rs[0]}, v{rs[1]}, v{rs[2]}")
        i = 3
        while i < len(rs):
            r1 = rs[i]
            r2 = rs[i+1] if i+1 < len(rs) else rs[i]
            a(f"v_bitop3_b32 v{vA}, v{vA}, v{r1}, v{r2} bitop3:0x80")
            a(f"v_or3_b32 v{vO}, v{vO}, v{r1}, v{r2}")
            i += 2
        a(f"v_xor_b32 v{vA}, v{vA}, v{vT}")
        a(f"v_xor_b32 v{vO}, v{vO}, v{vT}")
        a(f"v_or_b32 v{vA}, v{vA}, v{vO}")
        a(f"v_and_b32 v{vA}, {mask:#x}, v{vA}")
        a(f"v_cmp_ne_u32 vcc, 0, v{vA}")
        a(f"s_add_u32 s{S_IT}, s{S_IT}, 1")
        a(f"s_cmp_lt_u32 s{S_IT}, {LIMIT}")
        a(f"s_cbranch_scc0 {ld}")
        a(f"s_cbranch_vccnz {lp}")
        a(f"{ld}:")

    def tagcheck(self, rs, vA, vO, vT, mask):
        a = self.a
        rs = list(rs)
        assert len(rs) >= 3
        a(f"v_bitop3_b32 v{vA}, v{rs[0]}, v{rs[1]}, v{rs[2]} bitop3:0x80")
        a(f"v_or3_b32 v{vO}, v{rs[0]}, v{rs[1]}, v{rs[2]}")
        i = 3
        while i < len(rs):
            r1 = rs[i]
            r2 = rs[i+1] if i+1 < len(rs) else rs[i]
            a(f"v_bitop3_b32 v{vA}, v{vA}, v{r1}, v{r2} bitop3:0x80")
            a(f"v_or3_b32 v{vO}, v{vO}, v{r1}, v{r2}")
            i += 2
        a(f"v_xor_b32 v{vA}, v{vA}, v{vT}")
        a(f"v_xor_b32 v{vO}, v{vO}, v{vT}")
        a(f"v_or_b32 v{vA}, v{vA}, v{vO}")
        a(f"v_and_b32 v{vA}, {mask:#x}, v{vA}")
        a(f"v_cmp_ne_u32 vcc, 0, v{vA}")

    def poll2(self, issue, nl, nreg, sets, F, vA, vO, vT, mask=(1 << TAGB) - 1, sleep=None):
        a = self.a
        ns = len(sets)
        if sleep is None:
            sleep = self.psleep3 if ns >= 3 else self.psleep2
        lp = self.label("pp")
        ld = self.label("ppd")
        a(f"s_mov_b32 s{S_IT}, 0")
        if ns == 1:
            a(f"{lp}:")
            issue(F)
            a("s_waitcnt vmcnt(0)")
            self.tagcheck(range(F, F+nreg), vA, vO, vT, mask)
            a("s_mov_b64 exec, vcc")
            a(f"s_cbranch_execz {ld}")
            a(f"s_add_u32 s{S_IT}, s{S_IT}, 1")
            a(f"s_cmp_lt_u32 s{S_IT}, {LIMIT}")
            a(f"s_cbranch_scc1 {lp}")
            a(f"{ld}:")
            a("s_mov_b64 exec, -1")
            return
        for i, S in enumerate(sets):
            issue(S)
            if i < ns - 1 and sleep:
                a(f"s_sleep {sleep}")
        a(f"{lp}:")
        for S in sets:
            a(f"s_waitcnt vmcnt({nl*(ns-1)})")
            self.tagcheck(range(S, S+nreg), vA, vO, vT, mask)
            a("s_andn2_b64 exec, exec, vcc")
            sk = self.label("pps")
            a(f"s_cbranch_execz {sk}")
            for i in range(nreg):
                a(f"v_mov_b32 v{F+i}, v{S+i}")
            a(f"{sk}:")
            a("s_mov_b64 exec, vcc")
            a(f"s_cbranch_execz {ld}")
            issue(S)
            if sleep:
                a(f"s_sleep {sleep}")
        a(f"s_add_u32 s{S_IT}, s{S_IT}, 1")
        a(f"s_cmp_lt_u32 s{S_IT}, {LIMIT}")
        a(f"s_cbranch_scc1 {lp}")
        a(f"{ld}:")
        a("s_mov_b64 exec, -1")

    def mismatch(self, rs, vA, vO, vT):
        a = self.a
        rs = list(rs)
        assert len(rs) >= 3
        a(f"v_bitop3_b32 v{vA}, v{rs[0]}, v{rs[1]}, v{rs[2]} bitop3:0x80")
        a(f"v_or3_b32 v{vO}, v{rs[0]}, v{rs[1]}, v{rs[2]}")
        i = 3
        while i < len(rs):
            r1 = rs[i]
            r2 = rs[i+1] if i+1 < len(rs) else rs[i]
            a(f"v_bitop3_b32 v{vA}, v{vA}, v{r1}, v{r2} bitop3:0x80")
            a(f"v_or3_b32 v{vO}, v{vO}, v{r1}, v{r2}")
            i += 2
        a(f"v_bitop3_b32 v{vA}, v{vA}, v{vO}, v{vT} bitop3:0x7e")

    def poll3(self, issue, r4, r16, vA, vO, vA2, vO2, vT, group):
        a = self.a
        lp = self.label("p3")
        ld = self.label("p3d")
        a(f"s_mov_b32 s{S_IT}, 0")
        a(f"{lp}:")
        issue()
        a("s_waitcnt vmcnt(0)")
        if r4:
            self.mismatch(r4, vA, vO, vT)
        if r16:
            self.mismatch(r16, vA2, vO2, vT)
        if r4 and r16:
            a(f"v_lshlrev_b32 v{vA}, {32-TAGB}, v{vA}")
            a(f"v_lshl_or_b32 v{vA}, v{vA2}, 16, v{vA}")
        elif r4:
            a(f"v_lshlrev_b32 v{vA}, {32-TAGB}, v{vA}")
        else:
            a(f"v_lshlrev_b32 v{vA}, 16, v{vA2}")
        if group == "quad":
            self.nop(2)
            a(f"v_or_b32_dpp v{vA}, v{vA}, v{vA} quad_perm:[1,0,3,2] row_mask:0xf bank_mask:0xf")
            self.nop(2)
            a(f"v_or_b32_dpp v{vA}, v{vA}, v{vA} quad_perm:[2,3,0,1] row_mask:0xf bank_mask:0xf")
        a(f"v_cmp_ne_u32 vcc, 0, v{vA}")
        a(f"s_add_u32 s{S_IT}, s{S_IT}, 1")
        if group == "wave":
            a(f"s_cmp_lt_u32 s{S_IT}, {LIMIT}")
            a(f"s_cbranch_scc0 {ld}")
            a(f"s_cbranch_vccnz {lp}")
            a(f"{ld}:")
            return
        if group == "g16":
            a(f"s_or_b32 s{S_TMP}, vcc_lo, vcc_hi")
            a(f"s_lshr_b32 s{S_TMP2}, s{S_TMP}, 16")
            a(f"s_or_b32 s{S_TMP}, s{S_TMP}, s{S_TMP2}")
            a(f"s_and_b32 s{S_TMP}, s{S_TMP}, 0xffff")
            a(f"s_mul_i32 s{S_TMP}, s{S_TMP}, 0x10001")
            a(f"s_mov_b32 exec_lo, s{S_TMP}")
            a(f"s_mov_b32 exec_hi, s{S_TMP}")
        else:
            a("s_mov_b64 exec, vcc")
        a(f"s_cbranch_execz {ld}")
        a(f"s_cmp_lt_u32 s{S_IT}, {LIMIT}")
        a(f"s_cbranch_scc1 {lp}")
        a(f"{ld}:")
        a("s_mov_b64 exec, -1")

    def lds_bar(self, k, n, vA, vB):
        a = self.a
        lp = self.label("lb")
        ld = self.label("lbd")
        a("s_waitcnt lgkmcnt(0)")
        a(f"v_mov_b32 v{vA}, {L_CNT + 4*k}")
        a(f"v_mov_b32 v{vB}, 1")
        a("s_mov_b64 exec, 1")
        a(f"ds_add_u32 v{vA}, v{vB}")
        a("s_mov_b64 exec, -1")
        self.lds_wait(k, n, vA, vB, sleep=False)

    def lds_wait(self, k, n, vA, vB, sleep=True):
        a = self.a
        lp = self.label("lw")
        ld = self.label("lwd")
        a(f"v_mov_b32 v{vA}, {L_CNT + 4*k}")
        a(f"s_mov_b32 s{S_IT}, 0")
        a(f"{lp}:")
        a(f"ds_read_b32 v{vB}, v{vA}")
        a("s_waitcnt lgkmcnt(0)")
        a(f"v_readfirstlane_b32 s{S_TMP}, v{vB}")
        a(f"s_add_u32 s{S_IT}, s{S_IT}, 1")
        a(f"s_cmp_ge_u32 s{S_TMP}, {n}")
        a(f"s_cbranch_scc1 {ld}")
        if sleep:
            a("s_sleep 1")
        a(f"s_cmp_lt_u32 s{S_IT}, 400000")
        a(f"s_cbranch_scc1 {lp}")
        a(f"{ld}:")

    def tag32(self, r, vT):
        self.a(f"v_and_or_b32 v{r}, v{r}, {-(1 << TAGB)}, s{S_T3}")

    def masks(self, vM0, vM1, vt, four=True):
        a = self.a
        a(f"v_mov_b32 v{vt}, 0xffff")
        a(f"v_mov_b32 v{vM0}, s{S_HI16}")
        a(f"v_cndmask_b32 v{vM0}, v{vt}, v{vM0}, s[{S_B0}:{S_B0+1}]")
        if four:
            a(f"v_mov_b32 v{vt}, 0")
            a(f"v_cndmask_b32 v{vM1}, v{vt}, v{vM0}, s[{S_B1}:{S_B1+1}]")
            a(f"v_cndmask_b32 v{vM0}, v{vM0}, v{vt}, s[{S_B1}:{S_B1+1}]")

    def prologue(self):
        a = self.a
        a("s_cmp_ge_u32 s2, 256")
        a("s_cbranch_scc1 L_end")
        a("s_load_dwordx16 s[64:79], s[0:1], 0")
        a("s_load_dwordx8 s[80:87], s[0:1], 64")
        a("s_load_dwordx2 s[88:89], s[0:1], 104")
        a("v_lshrrev_b32 v1, 6, v0")
        a("v_and_b32 v0, 63, v0")
        a(f"s_mov_b32 s{S_B0}, 0xaaaaaaaa")
        a(f"s_mov_b32 s{S_B0+1}, 0xaaaaaaaa")
        a(f"v_readfirstlane_b32 s{S_WID}, v1")
        a(f"s_mov_b32 s{S_B1}, 0xcccccccc")
        a(f"s_mov_b32 s{S_B1+1}, 0xcccccccc")
        a(f"s_mov_b32 s{S_HI16}, 0xffff0000")
        a("s_waitcnt lgkmcnt(0)")
        a(f"s_load_dword s{S_E}, s[88:89], {WS_E}")
        self.srd(S_WS, 88, WS_SIZE)
        a(f"s_cmp_ge_u32 s{S_WID}, 4")
        a("s_cbranch_scc1 L_kv")

    def get_tag(self, vT):
        a = self.a
        a("s_waitcnt lgkmcnt(0)")
        a(f"s_add_u32 s{S_E}, s{S_E}, 1")
        a(f"s_and_b32 s{S_T}, s{S_E}, 0xffff")
        a(f"s_and_b32 s{S_T3}, s{S_E}, {(1 << TAGB) - 1}")
        a(f"v_mov_b32 v{vT}, s{S_T}")

    def kv(self):
        a = self.a
        a("L_kv:")
        vKa, vVa, vT, vM0, vM1, vt0, vt1, vt2 = 1, 2, 3, 4, 5, 6, 7, 8
        self.srd(S_K, 66, 0x2000000)
        self.srd(S_V, 68, 0x2000000)
        a(f"s_sub_u32 s{S_V4}, s{S_WID}, 4")
        a(f"s_and_b32 s{S_BK}, s2, 7")
        a(f"s_lshl_b32 s{S_BK}, s{S_BK}, 2")
        a(f"s_bfe_u32 s{S_TMP}, s2, 0x20003")
        a(f"s_add_u32 s{S_BK}, s{S_BK}, s{S_TMP}")
        a(f"s_lshr_b32 s{S_SP}, s2, 5")
        a(f"v_and_b32 v{vt0}, 3, v0")
        a(f"v_lshlrev_b32 v{vt0}, 4, v{vt0}")
        a(f"v_bfe_u32 v{vt1}, v0, 2, 2")
        a(f"v_lshl_add_u32 v{vt0}, v{vt1}, 8, v{vt0}")
        a(f"v_lshrrev_b32 v{vt1}, 4, v0")
        a(f"v_lshl_add_u32 v{vt0}, v{vt1}, 6, v{vt0}")
        a(f"v_lshlrev_b32 v{vt2}, 4, v0")
        for i in range(1, 5):
            a(f"s_mov_b32 s{79+i}, {4096*i}")
        a(f"s_lshl_b32 s{S_TMP}, s{S_BK}, 20")
        KF, KM, KH = self.kf, self.km, self.kh
        assert 4*KF + 2*KM + 2*KH == 4096
        classes = [("f", KF, 0, 0, True), ("m", KM, 4*KF, 4, False), ("h", KH, 4*KF + 2*KM, 6, False)]
        used = []
        a(f"s_cmp_ge_u32 s{S_SP}, 6")
        a("s_cbranch_scc1 L_kvc_h")
        a(f"s_cmp_ge_u32 s{S_SP}, 4")
        a("s_cbranch_scc1 L_kvc_m")
        for (nm, K, key0, s0, front) in classes:
            a(f"L_kvc_{nm}:")
            gs = K // 16
            glo, nhi = gs // 8, gs % 8
            assert K % 16 == 0 and 3 <= glo and glo + (1 if nhi else 0) <= 5
            a(f"s_mul_i32 s{S_TMP2}, s{S_SP}, {K}")
            off = key0 - s0*K
            if off > 0:
                a(f"s_add_u32 s{S_TMP2}, s{S_TMP2}, {off}")
            elif off < 0:
                a(f"s_sub_u32 s{S_TMP2}, s{S_TMP2}, {-off}")
            a(f"s_lshl_b32 s{S_TMP2}, s{S_TMP2}, 8")
            a(f"s_add_u32 s{S_TMP}, s{S_TMP}, s{S_TMP2}")
            lo = f"L_kvp_{'f' if front else 'n'}{glo}"
            hi = f"L_kvp_{'f' if front else 'n'}{glo+1}"
            if nhi:
                a(f"s_mul_i32 s{S_TMP2}, s{S_V4}, {16*(glo+1)*256}")
                a(f"s_cmp_lt_u32 s{S_V4}, {nhi}")
                l2 = self.label("kvl")
                a(f"s_cbranch_scc0 {l2}")
                a(f"s_add_u32 s{S_TMP}, s{S_TMP}, s{S_TMP2}")
                a(f"s_branch {hi}")
                a(f"{l2}:")
                if (glo+1, front) not in used:
                    used.append((glo+1, front))
            a(f"s_mul_i32 s{S_TMP2}, s{S_V4}, {16*glo*256}")
            a(f"s_add_u32 s{S_TMP}, s{S_TMP}, s{S_TMP2}")
            if nhi:
                a(f"s_add_u32 s{S_TMP}, s{S_TMP}, {nhi*16*256}")
            a(f"s_branch {lo}")
            if (glo, front) not in used:
                used.append((glo, front))
        for k, (G, front) in enumerate(used):
            a(f"L_kvp_{'f' if front else 'n'}{G}:")
            if front:
                self.kv_path(G, self.na_front, self.p_front, k == len(used) - 1)
            else:
                self.kv_path(G, self.na_nf, self.p_nf, k == len(used) - 1, self.b0first)

    def kv_path(self, G, nA, P, last, b0first=False):
        a = self.a
        vKa, vVa, vT, vM0, vM1, vt0, vt1, vt2 = 1, 2, 3, 4, 5, 6, 7, 8
        vQ = 12
        vD = 16
        vS = 32
        vm, vl = 38, 39
        KR = 40
        nL = 4*G
        if G <= 4:
            kreg = [KR + 4*j for j in range(nL)]
            vreg = [104 + 4*j for j in range(nL)]
            pre = [("K", j) for j in range(nL)] + [("V", j) for j in range(nL)]
            post = []
            XR, AC, nch = KR, KR + 32, 2
        else:
            kreg = [KR + 4*j for j in range(nL)]
            vreg = [120 + 4*j for j in range(12)] + [KR + 4*j for j in range(8)]
            pre = [("K", j) for j in range(nL)] + [("V", j) for j in range(12)]
            post = [("V", j) for j in range(12, 20)]
            XR, AC, nch = 72, 112, 1
        so = ["0", "s80", "s81", "s82", "s83"]
        issued = []

        def ld(item):
            t, j = item
            srd, va, reg = (S_K, vKa, kreg[j]) if t == "K" else (S_V, vVa, vreg[j])
            a(f"buffer_load_dwordx4 v[{reg}:{reg+3}], v{va}, s[{srd}:{srd+3}], {so[j//4]} offen offset:{(j%4)*1024} nt")
        a(f"v_add_u32 v{vKa}, s{S_TMP}, v{vt0}")
        a(f"v_add_u32 v{vVa}, s{S_TMP}, v{vt2}")
        nA = min(nA, len(pre))
        if b0first:
            a("s_barrier")
        for it in pre[:nA]:
            ld(it)
        if not b0first:
            a("s_barrier")
        lall = self.label("kvall")
        if nA < len(pre):
            lf = [self.label("kvf") for _ in pre]
            a(f"v_mov_b32 v{vt0}, {L_CNT + 8}")
            for idx in range(nA, len(pre)):
                a(f"s_waitcnt vmcnt({P-1})")
                a(f"ds_read_b32 v{vt1}, v{vt0}")
                a("s_waitcnt lgkmcnt(0)")
                a(f"v_readfirstlane_b32 s{S_TMP}, v{vt1}")
                a(f"s_cmp_ge_u32 s{S_TMP}, 4")
                a(f"s_cbranch_scc1 {lf[idx]}")
                ld(pre[idx])
            a(f"s_branch {lall}")
            for idx in range(nA, len(pre)):
                a(f"{lf[idx]}:")
                ld(pre[idx])
        a(f"{lall}:")
        issued = list(pre)
        self.masks(vM0, vM1, vt0)
        self.get_tag(vT)
        self.lds_wait(2, 4, vt0, vt1)
        self.stamp(8, 8)
        a(f"v_bfe_u32 v{vt0}, v0, 2, 2")
        a(f"v_lshlrev_b32 v{vt0}, 8, v{vt0}")
        a(f"v_lshrrev_b32 v{vt1}, 4, v0")
        a(f"v_lshl_add_u32 v{vt0}, v{vt1}, 6, v{vt0}")
        a(f"v_and_b32 v{vt1}, 3, v0")
        a(f"v_lshl_add_u32 v{vt0}, v{vt1}, 4, v{vt0}")
        a(f"ds_read_b128 v[{vQ}:{vQ+3}], v{vt0} offset:{L_QL}")
        a("s_waitcnt lgkmcnt(0)")

        def wait_for(item):
            n = len(issued) - 1 - issued.index(item)
            a(f"s_waitcnt vmcnt({n})")
        for J in range(G):
            wait_for(("K", 4*J+3))
            for jj in range(4):
                k = kreg[4*J+jj]
                d = vD + 4*jj
                a(f"v_mfma_f32_16x16x32_bf16 v[{d}:{d+3}], v[{k}:{k+3}], v[{vQ}:{vQ+3}], 0")
            self.nop(8)
            for jj in range(4):
                d = vD + 4*jj
                a(f"v_cndmask_b32 v{d}, v{d}, v{d+1}, s[{S_B0}:{S_B0+1}]")
                a(f"v_cndmask_b32 v{d+2}, v{d+2}, v{d+3}, s[{S_B0}:{S_B0+1}]")
                a(f"v_cndmask_b32 v{d}, v{d}, v{d+2}, s[{S_B1}:{S_B1+1}]")
            if post and J < 2:
                for it in post[4*J:4*J+4]:
                    ld(it)
                    issued.append(it)
            v0_, v1_, v2_, v3_ = vD, vD+4, vD+8, vD+12
            a(f"v_cndmask_b32 v{v0_+1}, v{v0_}, v{v1_}, s[{S_B0}:{S_B0+1}]")
            a(f"v_cndmask_b32 v{v0_+2}, v{v1_}, v{v0_}, s[{S_B0}:{S_B0+1}]")
            a(f"v_cndmask_b32 v{v2_+1}, v{v2_}, v{v3_}, s[{S_B0}:{S_B0+1}]")
            a(f"v_cndmask_b32 v{v2_+2}, v{v3_}, v{v2_}, s[{S_B0}:{S_B0+1}]")
            self.nop(1)
            a(f"v_add_f32_dpp v{v0_}, v{v0_+2}, v{v0_+1} quad_perm:[1,0,3,2] row_mask:0xf bank_mask:0xf")
            a(f"v_add_f32_dpp v{v2_}, v{v2_+2}, v{v2_+1} quad_perm:[1,0,3,2] row_mask:0xf bank_mask:0xf")
            a(f"v_cndmask_b32 v{v0_+1}, v{v0_}, v{v2_}, s[{S_B1}:{S_B1+1}]")
            a(f"v_cndmask_b32 v{v0_+2}, v{v2_}, v{v0_}, s[{S_B1}:{S_B1+1}]")
            self.nop(2)
            a(f"v_add_f32_dpp v{vS+J}, v{v0_+2}, v{v0_+1} quad_perm:[2,3,0,1] row_mask:0xf bank_mask:0xf")
        def rnd():
            for J in range(0, G - 1, 2):
                self.round2(vS+J, vS+J+1, vt0 if J % 4 == 0 else vt1)
            if G % 2:
                self.round1(vS+G-1)
        rnd()
        for J in range(G):
            a(f"v_mul_f32 v{vS+J}, 0x3db504f3, v{vS+J}")
        rnd()
        a(f"v_max3_f32 v{vm}, v{vS}, v{vS+1}, v{vS+2}")
        if G == 4:
            a(f"v_max_f32 v{vm}, v{vm}, v{vS+3}")
        elif G == 5:
            a(f"v_max3_f32 v{vm}, v{vm}, v{vS+3}, v{vS+4}")
        self.allreduce(vm, vt0, "v_max_f32")
        for J in range(G):
            a(f"v_sub_f32 v{vS+J}, v{vS+J}, v{vm}")
        for J in range(G):
            a(f"v_mul_f32 v{vS+J}, 0x3fb8aa3b, v{vS+J}")
        for J in range(G):
            a(f"v_exp_f32 v{vS+J}, v{vS+J}")
        self.nop(1)
        a(f"v_add_f32 v{vl}, v{vS}, v{vS+1}")
        for J in range(2, G):
            a(f"v_add_f32 v{vl}, v{vl}, v{vS+J}")
        for J in range(G):
            a(f"v_cvt_pk_bf16_f32 v{vS+J}, v{vS+J}, v{vS+J}")
        self.nop(1)
        for j in range(nL):
            J, jj = j//4, j % 4
            a(f"v_and_b32_dpp v{XR+2*j}, v{vS+J}, v{vM0} quad_perm:[{jj},{jj},{jj},{jj}] row_mask:0xf bank_mask:0xf")
            a(f"v_and_b32_dpp v{XR+2*j+1}, v{vS+J}, v{vM1} quad_perm:[{jj},{jj},{jj},{jj}] row_mask:0xf bank_mask:0xf")
        self.allreduce(vl, vt0, "v_add_f32")
        a(f"v_bfe_u32 v{vt0}, v0, 2, 2")
        a(f"v_lshlrev_b32 v{vt0}, 6, v{vt0}")
        a(f"s_lshl_b32 s{S_TMP}, s{S_V4}, 3")
        a(f"v_add_u32 v{vt0}, s{S_TMP}, v{vt0}")
        a("s_mov_b64 exec, 0x1111")
        a(f"ds_write_b32 v{vt0}, v{vm} offset:{L_MLW}")
        a(f"ds_write_b32 v{vt0}, v{vl} offset:{L_MLW+4}")
        a("s_mov_b64 exec, -1")
        for j in range(nL):
            wait_for(("V", j))
            v = vreg[j]
            p = (j & 1) if nch == 2 else 0
            d1 = AC + 8*p
            d2 = d1 + 4
            first = j < nch
            c1 = "0" if first else f"v[{d1}:{d1+3}]"
            c2 = "0" if first else f"v[{d2}:{d2+3}]"
            a(f"v_mfma_f32_16x16x16_bf16 v[{d1}:{d1+3}], v[{v}:{v+1}], v[{XR+2*j}:{XR+2*j+1}], {c1}")
            a(f"v_mfma_f32_16x16x16_bf16 v[{d2}:{d2+3}], v[{v+2}:{v+3}], v[{XR+2*j}:{XR+2*j+1}], {c2}")
        self.nop(8)
        if nch == 2:
            for r in range(8):
                a(f"v_add_f32 v{AC+r}, v{AC+r}, v{AC+8+r}")
        self.stamp(15, 8)
        a(f"s_lshl_b32 s{S_TMP}, s{S_V4}, 11")
        a(f"v_lshlrev_b32 v{vt0}, 4, v0")
        a(f"v_add_u32 v{vt0}, s{S_TMP}, v{vt0}")
        a(f"ds_write_b128 v{vt0}, v[{AC}:{AC+3}] offset:{L_OW}")
        a(f"ds_write_b128 v{vt0}, v[{AC+4}:{AC+7}] offset:{L_OW+1024}")
        a("s_waitcnt lgkmcnt(0)")
        a(f"v_mov_b32 v{vt1}, {L_CNT + 12}")
        a(f"v_mov_b32 v{vt2}, 1")
        a("s_mov_b64 exec, 1")
        a(f"ds_add_u32 v{vt1}, v{vt2}")
        a("s_mov_b64 exec, -1")
        a(f"s_cmp_ge_u32 s{S_V4}, 2")
        a("s_cbranch_scc1 L_end")
        if not last:
            a("s_branch L_kv_comb")
            return
        a("L_kv_comb:")
        self.lds_wait(3, 8, vt0, vt1, sleep=False)
        OW = 104
        MLr = 136
        a(f"s_lshl_b32 s{S_TMP}, s{S_V4}, 10")
        a(f"v_lshlrev_b32 v{vt0}, 4, v0")
        a(f"v_add_u32 v{vt0}, s{S_TMP}, v{vt0}")
        a(f"v_bfe_u32 v{vt1}, v0, 2, 2")
        a(f"v_lshlrev_b32 v{vt1}, 6, v{vt1}")
        for i in range(4):
            a(f"ds_read_b128 v[{MLr+4*i}:{MLr+4*i+3}], v{vt1} offset:{L_MLW+16*i}")
        for w in range(8):
            a(f"ds_read_b128 v[{OW+4*w}:{OW+4*w+3}], v{vt0} offset:{L_OW+2048*w}")
        a("s_waitcnt lgkmcnt(8)")
        a(f"v_max3_f32 v{vm}, v{MLr}, v{MLr+2}, v{MLr+4}")
        a(f"v_max3_f32 v{vm}, v{vm}, v{MLr+6}, v{MLr+8}")
        a(f"v_max3_f32 v{vm}, v{vm}, v{MLr+10}, v{MLr+12}")
        a(f"v_max_f32 v{vm}, v{vm}, v{MLr+14}")
        for w in range(8):
            a(f"v_sub_f32 v{MLr+2*w}, v{MLr+2*w}, v{vm}")
        for w in range(8):
            a(f"v_mul_f32 v{MLr+2*w}, 0x3fb8aa3b, v{MLr+2*w}")
        for w in range(8):
            a(f"v_exp_f32 v{MLr+2*w}, v{MLr+2*w}")
        self.nop(1)
        a(f"v_mul_f32 v{vl}, v{MLr}, v{MLr+1}")
        for w in range(1, 8):
            a(f"v_fmac_f32 v{vl}, v{MLr+2*w}, v{MLr+2*w+1}")
        a("s_waitcnt lgkmcnt(0)")
        O = 152
        for r in range(4):
            a(f"v_mul_f32 v{O+r}, v{MLr}, v{OW+r}")
        for w in range(1, 8):
            for r in range(4):
                a(f"v_fmac_f32 v{O+r}, v{MLr+2*w}, v{OW+4*w+r}")
        for r in range(4):
            self.tag32(O+r, vT)
        a(f"s_lshl_b32 s{S_TMP}, s{S_BK}, 3")
        a(f"s_add_u32 s{S_TMP}, s{S_TMP}, s{S_SP}")
        a(f"s_lshl_b32 s{S_TMP}, s{S_TMP}, 11")
        a(f"s_add_u32 s{S_TMP}, s{S_TMP}, {WS_OPP}")
        a(f"buffer_store_dwordx4 v[{O}:{O+3}], v{vt0}, s[{S_WS}:{S_WS+3}], s{S_TMP} offen sc1")
        a(f"s_cmp_lg_u32 s{S_V4}, 0")
        a("s_cbranch_scc1 L_end")
        M4 = O + 4
        a(f"v_or_b32 v{M4}, v{vm}, v{vT}")
        a(f"v_and_or_b32 v{M4+1}, v{vl}, s{S_HI16}, v{vT}")
        a(f"v_lshl_or_b32 v{M4+2}, v{vl}, 16, v{vT}")
        a(f"v_mov_b32 v{M4+3}, v{vT}")
        a(f"v_lshlrev_b32 v{vt1}, 1, v{vt1}")
        a(f"s_lshl_b32 s{S_TMP}, s{S_BK}, 9")
        a(f"s_lshl_b32 s{S_TMP2}, s{S_SP}, 4")
        a(f"s_add_u32 s{S_TMP}, s{S_TMP}, s{S_TMP2}")
        a(f"s_add_u32 s{S_TMP}, s{S_TMP}, {WS_ML}")
        a("s_mov_b64 exec, 0x1111")
        a(f"buffer_store_dwordx4 v[{M4}:{M4+3}], v{vt1}, s[{S_WS}:{S_WS+3}], s{S_TMP} offen sc1")
        a("s_mov_b64 exec, -1")
        self.stamp(9, 8)
        a("s_endpgm")

    def svc(self):
        a = self.a
        vT, vM0, vM1, vMe, vG, vB, vU = 1, 2, 3, 4, 5, 6, 7
        vA, vO, vt0, vt1, vt2, vt3 = 8, 9, 10, 11, 12, 13
        vC16 = 14
        vL16 = 15
        W0 = 16
        WA = 40
        WB = 56
        WC = 72
        SC = WC + 32
        if self.prio:
            a(f"s_setprio {self.prio}")
        self.srd(S_WQ, 70, 512*4096*2)
        self.srd(S_WO, 72, 512*4096*2)
        self.srd(S_WM, 84, 512*3072*2)
        self.srd(S_WG, 76, 512*1792*2)
        self.srd(S_WU, 78, 512*1792*2)
        self.srd(S_WD, 80, 512*1792*2)
        self.srd(S_X, 64, 4096)
        self.srd(S_C, 82, 4096)
        self.srd(S_OUT, 86, 4096)
        v = S_WID
        a(f"v_lshrrev_b32 v{vG}, 4, v0")
        a(f"v_bfe_u32 v{vB}, v0, 2, 2")
        a(f"v_and_b32 v{vU}, 3, v0")
        a(f"v_and_b32 v{vC16}, 15, v0")
        a(f"v_lshlrev_b32 v{vC16}, 4, v{vC16}")
        a(f"v_lshlrev_b32 v{vL16}, 4, v0")
        a(f"v_mov_b32 v{vt0}, 0")
        a(f"v_lshlrev_b32 v{vt1}, 2, v0")
        a(f"s_cmp_lg_u32 s{v}, 0")
        a("s_cbranch_scc1 L_s_nz")
        a("s_mov_b64 exec, 0xffff")
        a(f"ds_write_b32 v{vt1}, v{vt0} offset:{L_CNT}")
        a("s_mov_b64 exec, -1")
        a("L_s_nz:")

        def t1_loads():
            SROW = 101
            a(f"s_lshr_b32 s{S_TMP}, s2, 3")
            a(f"s_lshl_b32 s{SROW}, s{S_TMP}, 7")
            a(f"s_bfe_u32 s{S_TMP}, s2, 0x10002")
            a(f"s_lshl_b32 s{S_TMP}, s{S_TMP}, 6")
            a(f"s_add_u32 s{SROW}, s{SROW}, s{S_TMP}")
            a(f"s_lshr_b32 s{S_TMP}, s{v}, 1")
            a(f"s_lshl_b32 s{S_TMP}, s{S_TMP}, 5")
            a(f"s_add_u32 s{SROW}, s{SROW}, s{S_TMP}")
            a(f"s_and_b32 s{S_TMP}, s{v}, 1")
            a(f"s_lshl_b32 s{S_TMP}, s{S_TMP}, 2")
            a(f"s_add_u32 s{SROW}, s{SROW}, s{S_TMP}")
            a(f"s_lshl_b32 s{S_TMP}, s{SROW}, 10")
            a(f"s_and_b32 s{S_TMP2}, s2, 3")
            a(f"s_lshl_b32 s{S_TMP2}, s{S_TMP2}, 8")
            a(f"s_add_u32 s{S_TMP}, s{S_TMP}, s{S_TMP2}")
            a(f"v_lshl_add_u32 v{vt0}, v{vG}, 10, v{vC16}")
            for j in range(4):
                a(f"buffer_load_dwordx4 v[{WB+4*j}:{WB+4*j+3}], v{vt0}, s[{S_WO}:{S_WO+3}], s{S_TMP} offen nt")
                if j < 3:
                    a(f"s_add_u32 s{S_TMP}, s{S_TMP}, 8192")

        a(f"s_cmp_ge_u32 s2, {NFRONT}")
        a("s_cbranch_scc1 L_s_nf")
        SK0 = S_R
        a(f"s_and_b32 s{SK0}, s2, 7")
        a(f"s_lshl_b32 s{SK0}, s{SK0}, 6")
        a(f"s_cmp_ge_u32 s2, {F1A_N}")
        a("s_cbranch_scc1 L_s_nof1a")
        CC = W0
        a(f"s_lshl_b32 s{S_TMP}, s{v}, 4")
        a(f"s_add_u32 s{S_TMP}, s{S_TMP}, s{SK0}")
        a(f"v_lshlrev_b32 v{vt0}, 10, v{vB}")
        a(f"v_lshl_add_u32 v{vt0}, v{vG}, 3, v{vt0}")
        a(f"s_lshl_b32 s{S_TMP2}, s{S_TMP}, 1")
        a(f"buffer_load_dwordx2 v[{CC}:{CC+1}], v{vt0}, s[{S_C}:{S_C+3}], s{S_TMP2} offen")
        a(f"v_mul_u32_u24 v{vt0}, {4*6144}, v{vG}")
        a(f"v_add_u32 v{vt0}, v{vt0}, v{vC16}")
        a(f"s_mul_i32 s{S_TMP}, s{S_TMP}, 6144")
        a(f"s_lshr_b32 s{S_TMP2}, s2, 3")
        a(f"s_lshl_b32 s{S_TMP2}, s{S_TMP2}, 8")
        a(f"s_add_u32 s{S_TMP}, s{S_TMP}, s{S_TMP2}")
        for j in range(4):
            a(f"buffer_load_dwordx4 v[{WC+4*j}:{WC+4*j+3}], v{vt0}, s[{S_WM}:{S_WM+3}], s{S_TMP} offen nt")
            if j < 3:
                a(f"s_add_u32 s{S_TMP}, s{S_TMP}, 6144")
        a("L_s_nof1a:")
        XS = SC
        XO = W0 + 4
        a(f"v_lshlrev_b32 v{vt0}, 10, v{vB}")
        a(f"v_lshl_add_u32 v{vt0}, v{vG}, 8, v{vt0}")
        a(f"v_lshl_add_u32 v{vt0}, v{vU}, 6, v{vt0}")
        for i in range(4):
            a(f"buffer_load_dwordx4 v[{XS+4*i}:{XS+4*i+3}], v{vt0}, s[{S_X}:{S_X+3}], 0 offen offset:{16*i}")
        SRB0 = 97
        a(f"s_lshr_b32 s{S_TMP}, s{v}, 1")
        a(f"s_lshl_b32 s{S_TMP}, s{S_TMP}, 5")
        a(f"s_add_u32 s{SRB0}, s{SK0}, s{S_TMP}")
        a(f"s_and_b32 s{S_TMP}, s{v}, 1")
        a(f"s_lshl_b32 s{S_TMP}, s{S_TMP}, 2")
        a(f"s_add_u32 s{SRB0}, s{SRB0}, s{S_TMP}")
        a(f"v_lshlrev_b32 v{vt0}, 10, v{vB}")
        a(f"v_lshl_add_u32 v{vt0}, v{vG}, 1, v{vt0}")
        a(f"s_lshl_b32 s{S_TMP}, s{SRB0}, 1")
        for j in range(4):
            a(f"buffer_load_ushort v{XO+j}, v{vt0}, s[{S_X}:{S_X+3}], s{S_TMP} offen offset:{16*j}")
        a(f"v_lshl_add_u32 v{vt0}, v{vG}, 13, v{vC16}")
        a(f"s_lshl_b32 s{S_TMP}, s{SRB0}, 13")
        a(f"s_lshr_b32 s{S_TMP2}, s2, 3")
        a(f"s_lshl_b32 s{S_TMP2}, s{S_TMP2}, 9")
        a(f"s_add_u32 s{S_TMP}, s{S_TMP}, s{S_TMP2}")
        for j in range(4):
            a(f"buffer_load_dwordx4 v[{WA+4*j}:{WA+4*j+3}], v{vt0}, s[{S_WQ}:{S_WQ+3}], s{S_TMP} offen nt")
            a(f"buffer_load_dwordx4 v[{WB+4*j}:{WB+4*j+3}], v{vt0}, s[{S_WQ}:{S_WQ+3}], s{S_TMP} offen offset:256 nt")
            if j < 3:
                a(f"s_add_u32 s{S_TMP}, s{S_TMP}, {8*8192}")
        a("s_waitcnt lgkmcnt(0)")
        a("s_barrier")
        self.masks(vM0, vM1, vt0)
        self.get_tag(vT)
        self.stamp(0, W0+8)
        a(f"s_cmp_ge_u32 s2, {F1A_N}")
        a("s_cbranch_scc1 L_s_nof1b")
        DU = W0 + 8
        BB = W0 + 12
        a("s_waitcnt vmcnt(20)")
        for i in range(2):
            a(f"v_lshlrev_b32 v{DU+2*i}, 16, v{CC+i}")
            a(f"v_and_b32 v{DU+2*i+1}, s{S_HI16}, v{CC+i}")
        for i in range(4):
            a(f"v_mul_f32 v{BB+i}, 0xbfb8aa3b, v{DU+i}")
        for i in range(4):
            a(f"v_exp_f32 v{BB+i}, v{BB+i}")
        self.nop(1)
        for i in range(4):
            a(f"v_add_f32 v{BB+i}, 1.0, v{BB+i}")
        for i in range(4):
            a(f"v_rcp_f32 v{BB+i}, v{BB+i}")
        self.nop(1)
        for i in range(4):
            a(f"v_mul_f32 v{DU+i}, v{DU+i}, v{BB+i}")
        for i in range(4):
            a(f"v_cvt_pk_bf16_f32 v{DU+i}, v{DU+i}, v{DU+i}")
        XB = W0 + 12
        D1, D2 = WC+16, WC+20
        self.gemv_x_build(DU, 4, XB, vM0, vM1)
        a("s_waitcnt vmcnt(16)")
        self.gemv_mfma(WC, 4, XB, D1, D2)
        self.nop(8)

        def modp_addr():
            a(f"s_and_b32 s{S_TMP}, s2, 7")
            a(f"s_lshl_b32 s{S_TMP}, s{S_TMP}, 3")
            a(f"s_lshr_b32 s{S_TMP2}, s2, 3")
            a(f"s_add_u32 s{S_TMP}, s{S_TMP}, s{S_TMP2}")
            a(f"s_lshl_b32 s{S_TMP}, s{S_TMP}, 11")
            a(f"s_add_u32 s{S_TMP}, s{S_TMP}, {WS_MODP}")
        self.cu_reduce([(D1, D2)], 0, L_OW, modp_addr, vt0, vt1, vT, vL16, WC)
        self.stamp(1, W0+8)
        a("L_s_nof1b:")
        XF = SC + 16
        a("s_waitcnt vmcnt(8)")
        for i in range(16):
            a(f"v_lshlrev_b32 v{XF+2*i}, 16, v{XS+i}")
            a(f"v_and_b32 v{XF+2*i+1}, s{S_HI16}, v{XS+i}")
        vMean, vVar = W0, W0+1
        Y = W0 + 8
        self.ln_sum(XF, 32, vMean, vt0)
        self.allreduce(vMean, vt0, "v_add_f32")
        a(f"v_mul_f32 v{vMean}, 0x3b000000, v{vMean}")
        for i in range(32):
            a(f"v_sub_f32 v{XF+i}, v{XF+i}, v{vMean}")
        a(f"v_mul_f32 v{vVar}, v{XF}, v{XF}")
        a(f"v_mul_f32 v{vt0}, v{XF+1}, v{XF+1}")
        for i in range(2, 32, 2):
            a(f"v_fmac_f32 v{vVar}, v{XF+i}, v{XF+i}")
            a(f"v_fmac_f32 v{vt0}, v{XF+i+1}, v{XF+i+1}")
        a(f"v_add_f32 v{vVar}, v{vVar}, v{vt0}")
        self.allreduce(vVar, vt0, "v_add_f32")
        a(f"v_mul_f32 v{vVar}, 0x3b000000, v{vVar}")
        self.ln_fin(vMean, vVar, vt0)
        for j in range(4):
            a(f"v_lshlrev_b32 v{Y+j}, 16, v{XO+j}")
        self.ln_norm(Y, 4, vMean, vVar, vt0, vt1)
        P0 = WC
        a(f"v_lshlrev_b32 v{vt2}, 14, v{vU}")
        a(f"v_lshl_add_u32 v{vt2}, v{vB}, 6, v{vt2}")
        a(f"v_lshl_add_u32 v{vt2}, v{vG}, 4, v{vt2}")
        a(f"s_bfe_u32 s{S_TMP}, s2, 0x20001")
        a(f"s_lshl_b32 s{S_SO}, s{S_TMP}, 11")
        a(f"s_and_b32 s{S_TMP}, s{v}, 1")
        a(f"s_lshl_b32 s{S_TMP}, s{S_TMP}, 10")
        a(f"s_add_u32 s{S_SO}, s{S_SO}, s{S_TMP}")
        a(f"s_and_b32 s{S_TMP}, s2, 1")
        a(f"s_lshl_b32 s{S_TMP}, s{S_TMP}, 1")
        a(f"s_lshr_b32 s{S_TMP2}, s{v}, 1")
        a(f"s_add_u32 s{S_TMP}, s{S_TMP}, s{S_TMP2}")
        a(f"s_lshl_b32 s{S_TMP}, s{S_TMP}, 8")
        a(f"s_add_u32 s{S_SO}, s{S_SO}, s{S_TMP}")
        a(f"s_add_u32 s{S_SO}, s{S_SO}, {WS_MODP}")
        a(f"s_add_u32 s97, s{S_SO}, {4*8*2048}")
        a(f"s_add_u32 s98, s{S_SO}, {4*2048}")
        a(f"s_add_u32 s99, s{S_SO}, {4*8*2048 + 4*2048}")

        def iss():
            for q, sreg in enumerate([S_SO, 97, 98, 99]):
                a(f"buffer_load_dwordx4 v[{P0+4*q}:{P0+4*q+3}], v{vt2}, s[{S_WS}:{S_WS+3}], s{sreg} offen sc1")
        self.poll(iss, list(range(P0, P0+16)), vA, vO, vT)
        self.stamp(2, W0+20)
        SA, CA = P0, P0+8
        for r in range(4):
            a(f"v_add_f32 v{SA+r}, v{SA+r}, v{SA+4+r}")
            a(f"v_add_f32 v{CA+r}, v{CA+r}, v{CA+4+r}")
        xs = [SA+r for r in range(4)] + [CA+r for r in range(4)]
        self.nop(1)
        for x in xs:
            a(f"v_add_f32_dpp v{x}, v{x}, v{x} quad_perm:[1,0,3,2] row_mask:0xf bank_mask:0xf")
        for x in xs:
            a(f"v_add_f32_dpp v{x}, v{x}, v{x} quad_perm:[2,3,0,1] row_mask:0xf bank_mask:0xf")
        self.round2(SA, SA+1, vt0)
        self.round2(SA+2, SA+3, vt1)
        self.round2(CA, CA+1, vt0)
        self.round2(CA+2, CA+3, vt1)
        self.modulate(Y, 4, SA, CA, vt0, vt1, clean=True)
        XB = W0 + 12
        D1, D2, D3, D4 = W0, W0+4, WC+16, WC+20
        self.gemv_x_build(Y, 4, XB, vM0, vM1)
        self.nop(2)
        self.gemv_mfma(WA, 4, XB, D1, D2)
        self.gemv_mfma(WB, 4, XB, D3, D4)
        self.nop(8)

        def qp_addr():
            a(f"s_and_b32 s{S_TMP}, s2, 7")
            a(f"s_lshl_b32 s{S_TMP}, s{S_TMP}, 5")
            a(f"s_lshr_b32 s{S_TMP2}, s2, 3")
            a(f"s_lshl_b32 s{S_TMP2}, s{S_TMP2}, 1")
            a(f"s_add_u32 s{S_TMP}, s{S_TMP}, s{S_TMP2}")
            a(f"s_lshr_b32 s{S_TMP2}, s{v}, 1")
            a(f"s_add_u32 s{S_TMP}, s{S_TMP}, s{S_TMP2}")
            a(f"s_lshl_b32 s{S_TMP}, s{S_TMP}, 11")
            a(f"s_add_u32 s{S_TMP}, s{S_TMP}, {WS_QP}")
        self.cu_reduce([(D1, D2), (D3, D4)], 1, L_RP, qp_addr, vt0, vt1, vT, vL16, WC+24)
        a(f"v_mov_b32 v{vt0}, {L_CNT+16}")
        a(f"v_mov_b32 v{vt1}, 1")
        a("s_mov_b64 exec, 1")
        a(f"ds_add_u32 v{vt0}, v{vt1}")
        a("s_mov_b64 exec, -1")
        self.stamp(3, W0+20)
        a("s_branch L_s_join")
        STILE = 100
        vCc = W0

        def t2_wloads():
            a(f"s_sub_u32 s{S_TMP}, s2, {T2_0}")
            a(f"s_and_b32 s{STILE}, s{S_TMP}, 7")
            a(f"s_mul_i32 s{STILE}, s{STILE}, 7")
            a(f"s_lshr_b32 s{S_TMP}, s{S_TMP}, 3")
            a(f"s_add_u32 s{STILE}, s{STILE}, s{S_TMP}")
            a(f"v_mul_u32_u24 v{vt0}, {32*3584}, v{vG}")
            a(f"v_and_b32 v{vt1}, 15, v0")
            a(f"v_lshl_add_u32 v{vt0}, v{vt1}, 2, v{vt0}")
            a(f"s_mul_i32 s{S_TMP}, s{v}, {128*3584}")
            a(f"s_lshl_b32 s{S_TMP2}, s{STILE}, 6")
            a(f"s_add_u32 s{S_TMP}, s{S_TMP}, s{S_TMP2}")
            for t in range(32):
                a(f"buffer_load_dword v{WC+t}, v{vt0}, s[{S_WG}:{S_WG+3}], s{S_TMP} offen nt")
                a(f"buffer_load_dword v{WC+32+t}, v{vt0}, s[{S_WU}:{S_WU+3}], s{S_TMP} offen nt")
                if t < 31:
                    a(f"s_add_u32 s{S_TMP}, s{S_TMP}, 3584")

        def f1b_loads():
            a(f"s_sub_u32 s{S_TMP}, s2, {F1B_0}")
            a(f"s_and_b32 s{STILE}, s{S_TMP}, 7")
            a(f"s_lshl_b32 s{STILE}, s{STILE}, 3")
            a(f"s_lshr_b32 s{S_TMP}, s{S_TMP}, 3")
            a(f"s_add_u32 s{STILE}, s{STILE}, s{S_TMP}")
            a(f"s_add_u32 s{STILE}, s{STILE}, 32")
            a(f"v_lshlrev_b32 v{vt0}, 10, v{vB}")
            a(f"v_lshl_add_u32 v{vt0}, v{vG}, 6, v{vt0}")
            a(f"v_lshl_add_u32 v{vt0}, v{vU}, 4, v{vt0}")
            a(f"s_lshl_b32 s{S_TMP}, s{v}, 8")
            a(f"buffer_load_dwordx4 v[{vCc}:{vCc+3}], v{vt0}, s[{S_C}:{S_C+3}], s{S_TMP} offen")
            a(f"v_mul_u32_u24 v{vt0}, {32*6144}, v{vG}")
            a(f"v_and_b32 v{vt1}, 15, v0")
            a(f"v_lshl_add_u32 v{vt0}, v{vt1}, 2, v{vt0}")
            a(f"s_mul_i32 s{S_TMP}, s{v}, {128*6144}")
            a(f"s_lshl_b32 s{S_TMP2}, s{STILE}, 6")
            a(f"s_add_u32 s{S_TMP}, s{S_TMP}, s{S_TMP2}")
            for t in range(32):
                a(f"buffer_load_dword v{WC+t}, v{vt0}, s[{S_WM}:{S_WM+3}], s{S_TMP} offen nt")
                if t < 31:
                    a(f"s_add_u32 s{S_TMP}, s{S_TMP}, 6144")

        def f1b_compute():
            DU = W0 + 8
            BB = W0 + 16
            ACC = W0
            a("s_waitcnt vmcnt(32)")
            for i in range(4):
                a(f"v_lshlrev_b32 v{DU+2*i}, 16, v{vCc+i}")
                a(f"v_and_b32 v{DU+2*i+1}, s{S_HI16}, v{vCc+i}")
            for i in range(8):
                a(f"v_mul_f32 v{BB+i}, 0xbfb8aa3b, v{DU+i}")
            for i in range(8):
                a(f"v_exp_f32 v{BB+i}, v{BB+i}")
            self.nop(1)
            for i in range(8):
                a(f"v_add_f32 v{BB+i}, 1.0, v{BB+i}")
            for i in range(8):
                a(f"v_rcp_f32 v{BB+i}, v{BB+i}")
            self.nop(1)
            for i in range(8):
                a(f"v_mul_f32 v{DU+i}, v{DU+i}, v{BB+i}")
            for i in range(8):
                a(f"v_cvt_pk_bf16_f32 v{DU+i}, v{DU+i}, v{DU+i}")
            self.nop(1)
            for T in range(8):
                us = T//2
                bb = BB + 4*(T & 1)
                for j in range(4):
                    a(f"v_and_b32_dpp v{bb+j}, v{DU+4*(T%2)+j}, v{vMe} quad_perm:[{us},{us},{us},{us}] row_mask:0xf bank_mask:0xf")
                a(f"s_waitcnt vmcnt({28 - 4*T})")
                self.nop(1)
                c = "0" if T == 0 else f"v[{ACC}:{ACC+3}]"
                a(f"v_mfma_f32_16x16x32_bf16 v[{ACC}:{ACC+3}], v[{WC+4*T}:{WC+4*T+3}], v[{bb}:{bb+3}], {c}")
            self.nop(8)
            a(f"s_lshl_b32 s{S_TMP}, s{v}, 10")
            a(f"v_add_u32 v{vt0}, s{S_TMP}, v{vL16}")
            a(f"ds_write_b128 v{vt0}, v[{ACC}:{ACC+3}] offset:{L_F1P}")
            self.lds_bar(0, 4, vt0, vt1)
            a(f"s_lshl_b32 s{S_TMP}, s{v}, 2")
            a(f"v_add_u32 v{vt0}, s{S_TMP}, v{vL16}")
            for i in range(4):
                a(f"ds_read_b32 v{DU+i}, v{vt0} offset:{L_F1P+1024*i}")
            a("s_waitcnt lgkmcnt(0)")
            a(f"v_add_f32 v{DU}, v{DU}, v{DU+1}")
            a(f"v_add_f32 v{DU+2}, v{DU+2}, v{DU+3}")
            a(f"v_add_f32 v{DU}, v{DU}, v{DU+2}")
            a(f"v_cvt_pk_bf16_f32 v{DU}, v{DU}, v{DU}")
            a(f"v_lshl_or_b32 v{DU}, v{DU}, 16, v{vT}")
            a(f"v_mul_u32_u24 v{vt0}, {3072*4}, v{vB}")
            a(f"v_lshl_add_u32 v{vt0}, v{vG}, 5, v{vt0}")
            a(f"v_and_b32 v{vt1}, 1, v0")
            a(f"v_lshl_add_u32 v{vt0}, v{vt1}, 2, v{vt0}")
            a(f"s_lshl_b32 s{S_TMP}, s{STILE}, 7")
            a(f"s_lshl_b32 s{S_TMP2}, s{v}, 3")
            a(f"s_add_u32 s{S_TMP}, s{S_TMP}, s{S_TMP2}")
            a(f"s_add_u32 s{S_TMP}, s{S_TMP}, {WS_MOD}")
            a("s_mov_b32 exec_lo, 0x33333333")
            a("s_mov_b32 exec_hi, 0x33333333")
            a(f"buffer_store_dword v{DU}, v{vt0}, s[{S_WS}:{S_WS+3}], s{S_TMP} offen sc1")
            a("s_mov_b64 exec, -1")

        a("L_s_nf:")
        if self.wearly:
            t1_loads()
            a(f"s_cmp_ge_u32 s2, {F1B_0}")
            a("s_cbranch_scc1 L_s_nf1b")
            t2_wloads()
            a("s_branch L_s_nf1c")
            a("L_s_nf1b:")
            a(f"s_cmp_ge_u32 s2, {F1B_0 + F1B_N}")
            a("s_cbranch_scc1 L_s_nf1c")
            f1b_loads()
            a("L_s_nf1c:")
        a("s_waitcnt lgkmcnt(0)")
        a("s_barrier")
        self.get_tag(vT)
        self.masks(vM0, vM1, vt0)
        self.masks(vMe, None, vt0, four=False)
        self.stamp(0, W0+8)
        if self.wearly:
            a(f"s_cmp_lt_u32 s2, {F1B_0}")
            a("s_cbranch_scc1 L_s_join")
            a(f"s_cmp_ge_u32 s2, {F1B_0 + F1B_N}")
            a("s_cbranch_scc1 L_s_join")
            f1b_compute()
        a("L_s_join:")
        QD = W0
        a(f"v_lshrrev_b32 v{vt2}, 5, v0")
        a(f"v_lshlrev_b32 v{vt2}, 16, v{vt2}")
        a(f"v_bfe_u32 v{vt3}, v0, 4, 1")
        a(f"v_lshl_add_u32 v{vt2}, v{vt3}, 10, v{vt2}")
        a(f"v_lshl_add_u32 v{vt2}, v{vB}, 8, v{vt2}")
        a(f"v_lshl_add_u32 v{vt2}, v{vU}, 4, v{vt2}")
        a(f"s_bfe_u32 s{S_TMP}, s2, 0x20003")
        a(f"s_and_b32 s{S_TMP2}, s2, 1")
        a(f"s_lshl_b32 s{S_TMP2}, s{S_TMP2}, 2")
        a(f"s_add_u32 s{S_TMP}, s{S_TMP}, s{S_TMP2}")
        a(f"s_lshl_b32 s{S_TMP}, s{S_TMP}, 2")
        a(f"s_add_u32 s{S_TMP}, s{S_TMP}, s{v}")
        a(f"s_lshl_b32 s{S_TMP}, s{S_TMP}, 11")
        a(f"s_bfe_u32 s{S_TMP2}, s2, 0x20001")
        a(f"s_lshl_b32 s{S_TMP2}, s{S_TMP2}, 6")
        a(f"s_add_u32 s{S_TMP}, s{S_TMP}, s{S_TMP2}")
        a(f"s_add_u32 s{S_SO}, s{S_TMP}, {WS_QP}")
        a(f"s_add_u32 s97, s{S_SO}, {1 << 17}")
        a(f"s_add_u32 s98, s{S_SO}, {2 << 17}")
        a(f"s_add_u32 s99, s{S_SO}, {3 << 17}")

        def iss():
            for q, sreg in enumerate([S_SO, 97, 98, 99]):
                a(f"buffer_load_dwordx4 v[{QD+4*q}:{QD+4*q+3}], v{vt2}, s[{S_WS}:{S_WS+3}], s{sreg} offen sc1")
        self.poll(iss, list(range(QD, QD+16)), vA, vO, vT)
        for r in range(4):
            a(f"v_add_f32 v{QD+r}, v{QD+r}, v{QD+4+r}")
            a(f"v_add_f32 v{QD+8+r}, v{QD+8+r}, v{QD+12+r}")
        for r in range(4):
            a(f"v_add_f32 v{QD+r}, v{QD+r}, v{QD+8+r}")
        self.nop(2)
        a(f"v_permlane32_swap_b32 v{QD}, v{QD+2}")
        a(f"v_permlane32_swap_b32 v{QD+1}, v{QD+3}")
        a(f"v_add_f32 v{QD}, v{QD}, v{QD+2}")
        a(f"v_add_f32 v{QD+1}, v{QD+1}, v{QD+3}")
        a(f"v_cvt_pk_bf16_f32 v{QD}, v{QD}, v{QD+1}")
        a(f"v_lshlrev_b32 v{vt0}, 6, v{vB}")
        a(f"v_lshrrev_b32 v{vt1}, 5, v0")
        a(f"v_lshl_add_u32 v{vt0}, v{vt1}, 5, v{vt0}")
        a(f"v_lshl_add_u32 v{vt0}, v{vt3}, 3, v{vt0}")
        a(f"v_lshl_add_u32 v{vt0}, v{vU}, 1, v{vt0}")
        a(f"s_lshl_b32 s{S_TMP}, s{v}, 8")
        a(f"v_add_u32 v{vt0}, s{S_TMP}, v{vt0}")
        a(f"ds_write_b16 v{vt0}, v{QD} offset:{L_QL}")
        a(f"ds_write_b16_d16_hi v{vt0}, v{QD} offset:{L_QL+16}")
        a("s_waitcnt lgkmcnt(0)")
        a(f"v_mov_b32 v{vt0}, {L_CNT+8}")
        a(f"v_mov_b32 v{vt1}, 1")
        a("s_mov_b64 exec, 1")
        a(f"ds_add_u32 v{vt0}, v{vt1}")
        a("s_mov_b64 exec, -1")
        self.stamp(4, W0+20)
        SBC = WA
        if self.wearly:
            a(f"s_cmp_ge_u32 s2, {NFRONT}")
            a("s_cbranch_scc1 L_s_prep_done")
            t1_loads()
        else:
            t1_loads()
            a(f"s_cmp_lt_u32 s2, {NFRONT}")
            a("s_cbranch_scc1 L_s_prep_done")
            a(f"s_cmp_ge_u32 s2, {F1B_0}")
            a("s_cbranch_scc1 L_s_nf1b")
            t2_wloads()
            a("s_branch L_s_prep_done")
            a("L_s_nf1b:")
            a(f"s_cmp_ge_u32 s2, {F1B_0 + F1B_N}")
            a("s_cbranch_scc1 L_s_prep_done")
            f1b_loads()
            f1b_compute()
        a("L_s_prep_done:")
        OA, OB, MLr = W0, W0+4, W0+8
        a(f"v_lshlrev_b32 v{vt2}, 17, v{vB}")
        a(f"v_lshl_add_u32 v{vt2}, v{vU}, 11, v{vt2}")
        a(f"v_lshl_add_u32 v{vt2}, v{vG}, 4, v{vt2}")
        a(f"s_lshr_b32 s{S_TMP}, s2, 5")
        a(f"s_lshl_b32 s{S_SO}, s{S_TMP}, 14")
        a(f"s_and_b32 s{S_TMP}, s{v}, 1")
        a(f"s_lshl_b32 s{S_TMP}, s{S_TMP}, 10")
        a(f"s_add_u32 s{S_SO}, s{S_SO}, s{S_TMP}")
        a(f"s_bfe_u32 s{S_TMP}, s2, 0x10002")
        a(f"s_lshl_b32 s{S_TMP}, s{S_TMP}, 1")
        a(f"s_lshr_b32 s{S_TMP2}, s{v}, 1")
        a(f"s_add_u32 s{S_TMP}, s{S_TMP}, s{S_TMP2}")
        a(f"s_lshl_b32 s{S_TMP}, s{S_TMP}, 8")
        a(f"s_add_u32 s{S_SO}, s{S_SO}, s{S_TMP}")
        a(f"s_bfe_u32 s{S_TMP}, s2, 0x20003")
        a(f"s_lshl_b32 s{S_TMP2}, s{S_TMP}, 6")
        a(f"s_add_u32 s{S_SO}, s{S_SO}, s{S_TMP2}")
        a(f"s_add_u32 s{S_SO}, s{S_SO}, {WS_OPP}")
        a(f"s_add_u32 s97, s{S_SO}, 8192")
        a(f"v_lshlrev_b32 v{vt3}, 12, v{vB}")
        a(f"v_lshl_add_u32 v{vt3}, v{vU}, 4, v{vt3}")
        a(f"s_lshr_b32 s98, s2, 3")
        a(f"s_lshl_b32 s98, s98, 7")
        a(f"s_add_u32 s98, s98, {WS_ML}")
        self.lds_wait(3, 8, vt0, vt1)
        self.stamp(5, W0+20)

        def iss():
            a(f"buffer_load_dwordx4 v[{OA}:{OA+3}], v{vt2}, s[{S_WS}:{S_WS+3}], s{S_SO} offen sc1")
            a(f"buffer_load_dwordx4 v[{OB}:{OB+3}], v{vt2}, s[{S_WS}:{S_WS+3}], s97 offen sc1")
            a(f"buffer_load_dwordx4 v[{MLr}:{MLr+3}], v{vt3}, s[{S_WS}:{S_WS+3}], s98 offen sc1")
            a(f"buffer_load_dwordx4 v[{MLr+4}:{MLr+7}], v{vt3}, s[{S_WS}:{S_WS+3}], s98 offen offset:64 sc1")
        self.poll3(iss, range(OA, OA+8), range(MLr, MLr+8), vA, vO, vt0, vt1, vT, self.g_opp)
        self.stamp(6, 8)
        m0, l0, m1, l1 = MLr, MLr+1, MLr+4, MLr+5
        a(f"v_and_b32 v{m0}, s{S_HI16}, v{m0}")
        a(f"v_and_b32 v{m1}, s{S_HI16}, v{m1}")
        a(f"v_lshrrev_b32 v{MLr+2}, 16, v{MLr+2}")
        a(f"v_lshrrev_b32 v{MLr+6}, 16, v{MLr+6}")
        a(f"v_and_or_b32 v{l0}, v{l0}, s{S_HI16}, v{MLr+2}")
        a(f"v_and_or_b32 v{l1}, v{l1}, s{S_HI16}, v{MLr+6}")
        a(f"v_max_f32 v{vt0}, v{m0}, v{m1}")
        self.allreduce(vt0, vt1, "v_max_f32", rows=False)
        a(f"v_sub_f32 v{m0}, v{m0}, v{vt0}")
        a(f"v_sub_f32 v{m1}, v{m1}, v{vt0}")
        a(f"v_mul_f32 v{m0}, 0x3fb8aa3b, v{m0}")
        a(f"v_mul_f32 v{m1}, 0x3fb8aa3b, v{m1}")
        a(f"v_exp_f32 v{m0}, v{m0}")
        a(f"v_exp_f32 v{m1}, v{m1}")
        self.nop(1)
        a(f"v_mul_f32 v{l0}, v{m0}, v{l0}")
        a(f"v_fmac_f32 v{l0}, v{m1}, v{l1}")
        for r in range(4):
            a(f"v_mul_f32 v{OA+r}, v{m0}, v{OA+r}")
        for r in range(4):
            a(f"v_fmac_f32 v{OA+r}, v{m1}, v{OB+r}")
        self.nop(2)
        for x in [l0] + [OA+r for r in range(4)]:
            a(f"v_add_f32_dpp v{x}, v{x}, v{x} quad_perm:[1,0,3,2] row_mask:0xf bank_mask:0xf")
        for x in [l0] + [OA+r for r in range(4)]:
            a(f"v_add_f32_dpp v{x}, v{x}, v{x} quad_perm:[2,3,0,1] row_mask:0xf bank_mask:0xf")
        a(f"v_rcp_f32 v{l0}, v{l0}")
        self.nop(1)
        for r in range(4):
            a(f"v_mul_f32 v{OA+r}, v{OA+r}, v{l0}")
        for r in range(4):
            a(f"v_cvt_pk_bf16_f32 v{OA+r}, v{OA+r}, v{OA+r}")
        D1, D2 = W0+4, W0+8
        XB = WC + 88
        self.gemv_x4(OA, WB, 4, XB, D1, D2, vM0, vM1)

        def ap_addr():
            a(f"s_lshl_b32 s{S_TMP}, s2, 11")
            a(f"s_add_u32 s{S_TMP}, s{S_TMP}, {WS_AP}")
        self.cu_reduce([(D1, D2)], None, L_RP, ap_addr, vt0, vt1, vT, vL16, WB)
        self.stamp(7, 8)
        a(f"s_cmp_lt_u32 s2, {T2_0}")
        a("s_cbranch_scc1 L_s_r")
        a(f"s_cmp_ge_u32 s2, {T2_0+T2_N}")
        a("s_cbranch_scc1 L_end")
        a(f"v_lshl_add_u32 v{vt0}, v{vG}, 13, v{vC16}")
        a(f"s_lshl_b32 s{S_TMP}, s{STILE}, 15")
        a(f"s_lshl_b32 s{S_TMP2}, s{v}, 8")
        a(f"s_add_u32 s{S_TMP}, s{S_TMP}, s{S_TMP2}")
        for j in range(8):
            a(f"buffer_load_dwordx4 v[{WC+64+4*j}:{WC+64+4*j+3}], v{vt0}, s[{S_WD}:{S_WD+3}], s{S_TMP} offen nt")
            if j < 7:
                a(f"s_add_u32 s{S_TMP}, s{S_TMP}, 1024")
        a(f"v_mul_u32_u24 v{vt2}, {3072*4}, v{vB}")
        a(f"v_lshl_add_u32 v{vt2}, v{vG}, 7, v{vt2}")
        a(f"v_lshl_add_u32 v{vt2}, v{vU}, 5, v{vt2}")
        a(f"s_lshl_b32 s{S_SO}, s{v}, 9")
        a(f"s_add_u32 s{S_SO}, s{S_SO}, {WS_MOD + 1536*4}")
        SB0 = W0

        def iss():
            a(f"buffer_load_dwordx4 v[{SB0}:{SB0+3}], v{vt2}, s[{S_WS}:{S_WS+3}], s{S_SO} offen sc1")
            a(f"buffer_load_dwordx4 v[{SB0+4}:{SB0+7}], v{vt2}, s[{S_WS}:{S_WS+3}], s{S_SO} offen offset:16 sc1")
            a(f"buffer_load_dwordx4 v[{SB0+8}:{SB0+11}], v{vt2}, s[{S_WS}:{S_WS+3}], s{S_SO} offen offset:2048 sc1")
            a(f"buffer_load_dwordx4 v[{SB0+12}:{SB0+15}], v{vt2}, s[{S_WS}:{S_WS+3}], s{S_SO} offen offset:2064 sc1")
        self.poll(iss, list(range(SB0, SB0+16)), vA, vO, vT, mask=0xffff)
        for i in range(8):
            a(f"v_and_b32 v{SBC+i}, s{S_HI16}, v{SB0+i}")
            a(f"v_and_b32 v{SB0+8+i}, s{S_HI16}, v{SB0+8+i}")
        for i in range(8):
            a(f"v_add_f32 v{SBC+8+i}, 1.0, v{SB0+8+i}")
        for i in range(0, 8, 2):
            self.round2(SBC+8+i, SBC+8+i+1, vt0 if (i//2) % 2 == 0 else vt1)
        X1r = W0
        a(f"v_lshlrev_b32 v{vt2}, 11, v{vB}")
        a(f"v_lshl_add_u32 v{vt2}, v{vG}, 7, v{vt2}")
        a(f"v_lshl_add_u32 v{vt2}, v{vU}, 5, v{vt2}")
        a(f"s_lshl_b32 s{S_SO}, s{v}, 9")
        a(f"s_add_u32 s{S_SO}, s{S_SO}, {WS_X1}")
        a(f"v_lshlrev_b32 v{vt3}, 5, v{vB}")
        a(f"s_lshl_b32 s{S_TMP}, s{v}, 3")
        a(f"v_add_u32 v{vt1}, s{S_TMP}, v{vt3}")

        def iss():
            a(f"buffer_load_dwordx4 v[{X1r}:{X1r+3}], v{vt2}, s[{S_WS}:{S_WS+3}], s{S_SO} offen sc1")
            a(f"buffer_load_dwordx4 v[{X1r+4}:{X1r+7}], v{vt2}, s[{S_WS}:{S_WS+3}], s{S_SO} offen offset:16 sc1")
        self.poll3(iss, None, range(X1r, X1r+8), vA, vO, vA, vO, vT, self.g_x1)
        self.stamp(10, 8)
        for i in range(8):
            a(f"v_and_b32 v{X1r+i}, s{S_HI16}, v{X1r+i}")
        s1, s2_ = vA, vO
        self.ln_sum(X1r, 8, s1, vt0)
        a(f"v_mul_f32 v{s2_}, v{X1r}, v{X1r}")
        a(f"v_mul_f32 v{vt2}, v{X1r+1}, v{X1r+1}")
        for i in range(2, 8, 2):
            a(f"v_fmac_f32 v{s2_}, v{X1r+i}, v{X1r+i}")
            a(f"v_fmac_f32 v{vt2}, v{X1r+i+1}, v{X1r+i+1}")
        a(f"v_add_f32 v{s2_}, v{s2_}, v{vt2}")
        self.allreduce2(s1, s2_, vt0, vt2)
        a("s_mov_b64 exec, 0x1111")
        a(f"ds_write_b64 v{vt1}, v[{s1}:{s2_}] offset:{L_ST}")
        a("s_mov_b64 exec, -1")
        a("s_waitcnt lgkmcnt(0)")
        a("s_barrier")
        ST = W0+8
        a(f"ds_read_b128 v[{ST}:{ST+3}], v{vt3} offset:{L_ST}")
        a(f"ds_read_b128 v[{ST+4}:{ST+7}], v{vt3} offset:{L_ST+16}")
        a("s_waitcnt lgkmcnt(0)")
        a(f"v_add_f32 v{s1}, v{ST}, v{ST+2}")
        a(f"v_add_f32 v{vt0}, v{ST+4}, v{ST+6}")
        a(f"v_add_f32 v{s2_}, v{ST+1}, v{ST+3}")
        a(f"v_add_f32 v{vt1}, v{ST+5}, v{ST+7}")
        a(f"v_add_f32 v{s1}, v{s1}, v{vt0}")
        a(f"v_add_f32 v{s2_}, v{s2_}, v{vt1}")
        a(f"v_mul_f32 v{s1}, 0x3b000000, v{s1}")
        a(f"v_mul_f32 v{s2_}, 0x3b000000, v{s2_}")
        a(f"v_fma_f32 v{s2_}, -v{s1}, v{s1}, v{s2_}")
        a(f"v_max_f32 v{s2_}, 0, v{s2_}")
        self.ln_fin(s1, s2_, vt0)
        self.ln_norm(X1r, 8, s1, s2_, vt0, vt1)
        for i in range(8):
            a(f"v_mul_f32 v{X1r+i}, v{X1r+i}, v{SBC+8+i}")
        for i in range(0, 8, 2):
            self.round2(X1r+i, X1r+i+1, vt0 if (i//2) % 2 == 0 else vt1)
        for i in range(8):
            a(f"v_add_f32 v{X1r+i}, v{X1r+i}, v{SBC+i}")
        for i in range(8):
            a(f"v_cvt_pk_bf16_f32 v{X1r+i}, v{X1r+i}, v{X1r+i}")
        BB = WB
        AG, AU = W0+8, W0+12
        a("s_waitcnt vmcnt(0)")
        for T in range(8):
            us = T//2
            bb = BB + 4*(T & 1)
            for j in range(4):
                a(f"v_and_b32_dpp v{bb+j}, v{X1r+4*(T%2)+j}, v{vMe} quad_perm:[{us},{us},{us},{us}] row_mask:0xf bank_mask:0xf")
            self.nop(2)
            c = "0" if T == 0 else f"v[{AG}:{AG+3}]"
            a(f"v_mfma_f32_16x16x32_bf16 v[{AG}:{AG+3}], v[{WC+4*T}:{WC+4*T+3}], v[{bb}:{bb+3}], {c}")
            c = "0" if T == 0 else f"v[{AU}:{AU+3}]"
            a(f"v_mfma_f32_16x16x32_bf16 v[{AU}:{AU+3}], v[{WC+32+4*T}:{WC+32+4*T+3}], v[{bb}:{bb+3}], {c}")
        a(f"v_lshlrev_b32 v{vt0}, 9, v{vB}")
        a(f"v_lshl_add_u32 v{vt0}, v{vG}, 7, v{vt0}")
        a(f"v_lshl_add_u32 v{vt2}, v{vU}, 5, v{vt0}")
        a(f"v_and_b32 v{vt1}, 1, v0")
        a(f"v_lshl_add_u32 v{vt0}, v{vt1}, 4, v{vt0}")
        a(f"s_lshl_b32 s{S_TMP}, s{v}, 2")
        a(f"v_add_u32 v{vt0}, s{S_TMP}, v{vt0}")
        self.nop(4)
        a("s_mov_b32 exec_lo, 0x33333333")
        a("s_mov_b32 exec_hi, 0x33333333")
        for r in range(4):
            a(f"ds_write_b32 v{vt0}, v{AG+r} offset:{L_GU + 32*r}")
            a(f"ds_write_b32 v{vt0}, v{AU+r} offset:{L_GU + 2048 + 32*r}")
        a("s_mov_b64 exec, -1")
        a("s_waitcnt lgkmcnt(0)")
        a("s_barrier")
        GR = WB
        a(f"ds_read_b128 v[{GR}:{GR+3}], v{vt2} offset:{L_GU}")
        a(f"ds_read_b128 v[{GR+4}:{GR+7}], v{vt2} offset:{L_GU+16}")
        a(f"ds_read_b128 v[{GR+8}:{GR+11}], v{vt2} offset:{L_GU+2048}")
        a(f"ds_read_b128 v[{GR+12}:{GR+15}], v{vt2} offset:{L_GU+2048+16}")
        a(f"s_lshl_b32 s{S_TMP}, s{STILE}, 2")
        a(f"s_add_u32 s{S_TMP}, s{S_TMP}, s{v}")
        a(f"s_lshl_b32 s{S_TMP}, s{S_TMP}, 11")
        a(f"s_add_u32 s{S_TMP}, s{S_TMP}, {WS_DP}")
        a("s_waitcnt lgkmcnt(0)")
        for i in range(4):
            g = GR + 4*i
            a(f"v_add_f32 v{g}, v{g}, v{g+1}")
            a(f"v_add_f32 v{g+2}, v{g+2}, v{g+3}")
        for i in range(4):
            g = GR + 4*i
            a(f"v_add_f32 v{g}, v{g}, v{g+2}")
        g0, g1, u0, u1 = GR, GR+4, GR+8, GR+12
        self.round2(g0, g1, vt0)
        self.round2(u0, u1, vt1)
        a(f"v_mul_f32 v{g0+1}, 0xbfb8aa3b, v{g0}")
        a(f"v_mul_f32 v{g1+1}, 0xbfb8aa3b, v{g1}")
        a(f"v_exp_f32 v{g0+1}, v{g0+1}")
        a(f"v_exp_f32 v{g1+1}, v{g1+1}")
        self.nop(1)
        a(f"v_add_f32 v{g0+1}, 1.0, v{g0+1}")
        a(f"v_add_f32 v{g1+1}, 1.0, v{g1+1}")
        a(f"v_rcp_f32 v{g0+1}, v{g0+1}")
        a(f"v_rcp_f32 v{g1+1}, v{g1+1}")
        self.nop(1)
        a(f"v_mul_f32 v{g0}, v{g0}, v{g0+1}")
        a(f"v_mul_f32 v{g1}, v{g1}, v{g1+1}")
        self.round2(g0, g1, vt0)
        a(f"v_mul_f32 v{g0}, v{g0}, v{u0}")
        a(f"v_mul_f32 v{g1}, v{g1}, v{u1}")
        AD = W0
        a(f"v_cvt_pk_bf16_f32 v{AD}, v{g0}, v{g0}")
        a(f"v_cvt_pk_bf16_f32 v{AD+1}, v{g1}, v{g1}")
        self.nop(1)
        XB = WB
        for j in range(8):
            us = j//2
            a(f"v_and_b32_dpp v{XB+2*j}, v{AD+(j%2)}, v{vM0} quad_perm:[{us},{us},{us},{us}] row_mask:0xf bank_mask:0xf")
            a(f"v_and_b32_dpp v{XB+2*j+1}, v{AD+(j%2)}, v{vM1} quad_perm:[{us},{us},{us},{us}] row_mask:0xf bank_mask:0xf")
        self.nop(2)
        D1, D2, D3, D4 = W0+4, W0+8, W0+12, W0+16
        for j in range(8):
            w = WC + 64 + 4*j
            da, db = (D1, D2) if j % 2 == 0 else (D3, D4)
            c1 = "0" if j < 2 else f"v[{da}:{da+3}]"
            c2 = "0" if j < 2 else f"v[{db}:{db+3}]"
            a(f"v_mfma_f32_16x16x16_bf16 v[{da}:{da+3}], v[{w}:{w+1}], v[{XB+2*j}:{XB+2*j+1}], {c1}")
            a(f"v_mfma_f32_16x16x16_bf16 v[{db}:{db+3}], v[{w+2}:{w+3}], v[{XB+2*j}:{XB+2*j+1}], {c2}")
        self.nop(8)
        for r in range(4):
            a(f"v_add_f32 v{D1+r}, v{D1+r}, v{D3+r}")
        for r in range(4):
            a(f"v_add_f32 v{D2+r}, v{D2+r}, v{D4+r}")
        for r in range(4):
            self.tag32(D1+r, vT)
        a(f"buffer_store_dwordx4 v[{D1}:{D1+3}], v{vL16}, s[{S_WS}:{S_WS+3}], s{S_TMP} offen sc1")
        for r in range(4):
            self.tag32(D2+r, vT)
        a(f"buffer_store_dwordx4 v[{D2}:{D2+3}], v{vL16}, s[{S_WS}:{S_WS+3}], s{S_TMP} offen offset:1024 sc1")
        self.stamp(11, 8)
        a("s_endpgm")
        a("L_s_r:")
        a(f"s_cmp_lg_u32 s{v}, 2")
        a("s_cbranch_scc1 L_end")
        SCOL = 100
        a(f"s_lshr_b32 s{SCOL}, s2, 3")
        a(f"s_lshl_b32 s{SCOL}, s{SCOL}, 5")
        a(f"s_bfe_u32 s{S_TMP}, s2, 0x10002")
        a(f"s_lshl_b32 s{S_TMP}, s{S_TMP}, 2")
        a(f"s_add_u32 s{SCOL}, s{SCOL}, s{S_TMP}")
        a(f"s_and_b32 s{S_TMP}, s2, 3")
        a(f"s_lshl_b32 s{S_TMP2}, s{S_TMP}, 9")
        a(f"s_add_u32 s{S_TMP2}, s{S_TMP2}, s{SCOL}")
        a(f"s_mul_i32 s{S_TMP}, s{S_TMP}, 3072")
        a(f"s_add_u32 s{SCOL}, s{SCOL}, s{S_TMP}")
        vCol = SBC + 3
        a(f"v_lshl_add_u32 v{vt1}, v{vG}, 3, v{vU}")
        a(f"v_add_u32 v{vCol}, s{S_TMP2}, v{vt1}")
        a(f"v_lshlrev_b32 v{vt0}, 1, v{vCol}")
        a(f"buffer_load_ushort v{SBC+2}, v{vt0}, s[{S_X}:{S_X+3}], 0 offen")
        a(f"v_add_u32 v{vt2}, s{SCOL}, v{vt1}")
        a(f"v_lshlrev_b32 v{vt2}, 2, v{vt2}")
        a(f"s_mov_b32 s{S_SO}, {WS_MOD + 1024*4}")
        a(f"s_mov_b32 s97, {WS_MOD + 2560*4}")

        def iss():
            a(f"buffer_load_dword v{SBC}, v{vt2}, s[{S_WS}:{S_WS+3}], s{S_SO} offen sc1")
            a(f"buffer_load_dword v{SBC+1}, v{vt2}, s[{S_WS}:{S_WS+3}], s97 offen sc1")
        self.poll(iss, [SBC, SBC+1, SBC+1], vA, vO, vT, mask=0xffff)
        a(f"v_and_b32 v{SBC}, s{S_HI16}, v{SBC}")
        a(f"v_and_b32 v{SBC+1}, s{S_HI16}, v{SBC+1}")
        a(f"v_lshlrev_b32 v{SBC+2}, 16, v{SBC+2}")
        RD = WC
        RS = [WC+16, WC+32, WC+48][:self.nsets]
        SRB = 101
        a(f"s_lshr_b32 s{SRB}, s2, 5")
        a(f"s_lshl_b32 s{SRB}, s{SRB}, 11")
        a(f"s_bfe_u32 s{S_TMP}, s2, 0x10002")
        a(f"s_lshl_b32 s{S_TMP}, s{S_TMP}, 10")
        a(f"s_add_u32 s{SRB}, s{SRB}, s{S_TMP}")
        a(f"s_bfe_u32 s{S_TMP}, s2, 0x20003")
        a(f"s_lshl_b32 s{S_TMP}, s{S_TMP}, 8")
        a(f"s_add_u32 s{SRB}, s{SRB}, s{S_TMP}")
        a(f"s_and_b32 s{S_TMP}, s2, 3")
        a(f"s_lshl_b32 s{S_TMP}, s{S_TMP}, 6")
        a(f"s_add_u32 s{SRB}, s{SRB}, s{S_TMP}")
        a(f"v_lshrrev_b32 v{vt2}, 2, v0")
        a(f"v_lshlrev_b32 v{vt2}, 13, v{vt2}")
        a(f"v_lshl_add_u32 v{vt2}, v{vU}, 4, v{vt2}")
        a(f"v_and_b32 v{vt3}, 0xffff, v{vt2}")
        QS = [S_SO, 97, 98, 99]
        for q in range(4):
            a(f"s_add_u32 s{QS[q]}, s{SRB}, {WS_AP + q*131072}")

        def iss():
            for q in range(4):
                a(f"buffer_load_dwordx4 v[{RD+4*q}:{RD+4*q+3}], v{vt2}, s[{S_WS}:{S_WS+3}], s{QS[q]} offen sc1")
        self.poll3(iss, range(RD, RD+16), None, vA, vO, vA, vO, vT, self.g_r)
        self.stamp(12, 8)
        self.reduce_r(RD, False)
        vga, vgb, vx = SBC, SBC+1, SBC+2
        self.round1(RD)
        a(f"v_mul_f32 v{RD}, v{vga}, v{RD}")
        self.round1(RD)
        a(f"v_add_f32 v{vx}, v{vx}, v{RD}")
        a(f"v_cvt_pk_bf16_f32 v{vx}, v{vx}, v{vx}")
        a(f"v_lshl_or_b32 v{RD}, v{vx}, 16, v{vT}")
        a(f"v_lshlrev_b32 v{vt1}, 2, v{vCol}")
        a(f"s_mov_b32 s{S_TMP}, {WS_X1}")
        a("s_mov_b32 exec_lo, 0x000f000f")
        a("s_mov_b32 exec_hi, 0x000f000f")
        a(f"buffer_store_dword v{RD}, v{vt1}, s[{S_WS}:{S_WS+3}], s{S_TMP} offen sc1")
        a("s_mov_b64 exec, -1")
        a(f"v_and_b32 v{vx}, s{S_HI16}, v{vx}")
        a(f"v_lshlrev_b32 v{vCol}, 1, v{vCol}")
        self.stamp(13, 8)
        for q in range(4):
            a(f"s_add_u32 s{QS[q]}, s{SRB}, {WS_DP + q*131072}")

        def iss():
            for q in range(4):
                va = vt2 if q < 3 else vt3
                a(f"buffer_load_dwordx4 v[{RD+4*q}:{RD+4*q+3}], v{va}, s[{S_WS}:{S_WS+3}], s{QS[q]} offen sc1")
        self.poll3(iss, range(RD, RD+16), None, vA, vO, vA, vO, vT, self.g_r)
        self.reduce_r(RD, True)
        self.round1(RD)
        a(f"v_mul_f32 v{RD}, v{vgb}, v{RD}")
        self.round1(RD)
        a(f"v_add_f32 v{RD}, v{vx}, v{RD}")
        a(f"v_cvt_pk_bf16_f32 v{RD}, v{RD}, v{RD}")
        a("s_mov_b32 exec_lo, 0x000f000f")
        a("s_mov_b32 exec_hi, 0x000f000f")
        a(f"buffer_store_short v{RD}, v{vCol}, s[{S_OUT}:{S_OUT+3}], 0 offen")
        a("s_mov_b64 exec, -1")
        self.stamp(14, 8)
        a(f"s_cmp_lg_u32 s2, {R_0}")
        a("s_cbranch_scc1 L_end")
        a(f"v_mov_b32 v{vt0}, s{S_E}")
        a(f"v_mov_b32 v{vt1}, {WS_E}")
        a("s_mov_b64 exec, 1")
        a(f"buffer_store_dword v{vt0}, v{vt1}, s[{S_WS}:{S_WS+3}], 0 offen sc1")
        a("s_endpgm")

    def reduce_r(self, RD, half_last):
        a = self.a
        for r in range(4):
            a(f"v_add_f32 v{RD+r}, v{RD+r}, v{RD+4+r}")
        if half_last:
            a("s_mov_b32 exec_hi, 0")
        for r in range(4):
            a(f"v_add_f32 v{RD+8+r}, v{RD+8+r}, v{RD+12+r}")
        if half_last:
            a("s_mov_b32 exec_hi, -1")
        for r in range(4):
            a(f"v_add_f32 v{RD+r}, v{RD+r}, v{RD+8+r}")
        self.nop(2)
        a(f"v_permlane32_swap_b32 v{RD}, v{RD+2}")
        a(f"v_permlane32_swap_b32 v{RD+1}, v{RD+3}")
        a(f"v_add_f32 v{RD}, v{RD}, v{RD+2}")
        a(f"v_add_f32 v{RD+1}, v{RD+1}, v{RD+3}")
        self.nop(2)
        a(f"v_permlane16_swap_b32 v{RD}, v{RD+1}")
        a(f"v_add_f32 v{RD}, v{RD}, v{RD+1}")
        self.nop(2)
        a(f"v_add_f32_dpp v{RD}, v{RD}, v{RD} row_ror:8 row_mask:0xf bank_mask:0xf")
        self.nop(2)
        a(f"v_add_f32_dpp v{RD}, v{RD}, v{RD} row_ror:4 row_mask:0xf bank_mask:0xf")

    def allreduce2(self, r1, r2, t1, t2):
        a = self.a
        self.nop(1)
        for qp in ("[1,0,3,2]", "[2,3,0,1]"):
            a(f"v_add_f32_dpp v{r1}, v{r1}, v{r1} quad_perm:{qp} row_mask:0xf bank_mask:0xf")
            a(f"v_add_f32_dpp v{r2}, v{r2}, v{r2} quad_perm:{qp} row_mask:0xf bank_mask:0xf")
            self.nop(1)
        for sw in ("v_permlane16_swap_b32", "v_permlane32_swap_b32"):
            a(f"v_mov_b32 v{t1}, v{r1}")
            a(f"v_mov_b32 v{t2}, v{r2}")
            self.nop(1)
            a(f"{sw} v{r1}, v{t1}")
            a(f"{sw} v{r2}, v{t2}")
            a(f"v_add_f32 v{r1}, v{r1}, v{t1}")
            a(f"v_add_f32 v{r2}, v{r2}, v{t2}")

    def reduce_q(self, RD, n):
        a = self.a
        idx = list(range(n))
        while len(idx) > 1:
            nxt = []
            for i in range(0, len(idx)-1, 2):
                for r in range(4):
                    a(f"v_add_f32 v{RD+4*idx[i]+r}, v{RD+4*idx[i]+r}, v{RD+4*idx[i+1]+r}")
                nxt.append(idx[i])
            if len(idx) % 2:
                nxt.append(idx[-1])
            idx = nxt
        self.nop(2)
        a(f"v_permlane32_swap_b32 v{RD}, v{RD+2}")
        a(f"v_permlane32_swap_b32 v{RD+1}, v{RD+3}")
        a(f"v_add_f32 v{RD}, v{RD}, v{RD+2}")
        a(f"v_add_f32 v{RD+1}, v{RD+1}, v{RD+3}")
        self.nop(2)
        a(f"v_permlane16_swap_b32 v{RD}, v{RD+1}")
        a(f"v_add_f32 v{RD}, v{RD}, v{RD+1}")

    def ln_sum(self, R, n, dst, t):
        a = self.a
        a(f"v_add_f32 v{dst}, v{R}, v{R+1}")
        a(f"v_add_f32 v{t}, v{R+2}, v{R+3}")
        for i in range(4, n, 2):
            a(f"v_add_f32 v{dst}, v{dst}, v{R+i}")
            a(f"v_add_f32 v{t}, v{t}, v{R+i+1}")
        a(f"v_add_f32 v{dst}, v{dst}, v{t}")

    def ln_fin(self, vMean, vVar, t):
        a = self.a
        self.round2(vMean, vVar, t)
        a(f"v_add_f32 v{vVar}, 0x3727c5ac, v{vVar}")
        self.round1(vVar)
        a(f"v_sqrt_f32 v{vVar}, v{vVar}")
        self.nop(1)
        self.round1(vVar)
        a(f"v_rcp_f32 v{vVar}, v{vVar}")
        self.nop(1)

    def ln_norm(self, Y, n, vMean, vRcp, t0, t1):
        a = self.a
        for i in range(n):
            a(f"v_sub_f32 v{Y+i}, v{Y+i}, v{vMean}")
        for i in range(0, n, 2):
            self.round2(Y+i, Y+i+1, t0 if (i//2) % 2 == 0 else t1)
        for i in range(n):
            a(f"v_mul_f32 v{Y+i}, v{Y+i}, v{vRcp}")
        for i in range(0, n, 2):
            self.round2(Y+i, Y+i+1, t0 if (i//2) % 2 == 0 else t1)

    def modulate(self, Y, n, SH, SCL, t0, t1, clean=False):
        a = self.a
        if not clean:
            for i in range(n):
                a(f"v_and_b32 v{SH+i}, s{S_HI16}, v{SH+i}")
                a(f"v_and_b32 v{SCL+i}, s{S_HI16}, v{SCL+i}")
        for i in range(n):
            a(f"v_add_f32 v{SCL+i}, 1.0, v{SCL+i}")
        for i in range(0, n, 2):
            self.round2(SCL+i, SCL+i+1, t0 if (i//2) % 2 == 0 else t1)
        for i in range(n):
            a(f"v_mul_f32 v{Y+i}, v{Y+i}, v{SCL+i}")
        for i in range(0, n, 2):
            self.round2(Y+i, Y+i+1, t0 if (i//2) % 2 == 0 else t1)
        for i in range(n):
            a(f"v_add_f32 v{Y+i}, v{Y+i}, v{SH+i}")
        for i in range(n):
            a(f"v_cvt_pk_bf16_f32 v{Y+i}, v{Y+i}, v{Y+i}")

    def gemv_x4(self, DU, W, n, XB, D1, D2, vM0, vM1):
        a = self.a
        for j in range(n):
            a(f"v_and_b32 v{XB+2*j}, v{DU+j}, v{vM0}")
            a(f"v_and_b32 v{XB+2*j+1}, v{DU+j}, v{vM1}")
        self.nop(2)
        for j in range(n):
            w = W + 4*j
            c1 = "0" if j == 0 else f"v[{D1}:{D1+3}]"
            c2 = "0" if j == 0 else f"v[{D2}:{D2+3}]"
            a(f"v_mfma_f32_16x16x16_bf16 v[{D1}:{D1+3}], v[{w}:{w+1}], v[{XB+2*j}:{XB+2*j+1}], {c1}")
            a(f"v_mfma_f32_16x16x16_bf16 v[{D2}:{D2+3}], v[{w+2}:{w+3}], v[{XB+2*j}:{XB+2*j+1}], {c2}")
        self.nop(8)

    def gemv_x_build(self, DU, n, XB, vM0, vM1):
        a = self.a
        for j in range(n):
            a(f"v_and_b32 v{XB+2*j}, v{DU+j}, v{vM0}")
            a(f"v_and_b32 v{XB+2*j+1}, v{DU+j}, v{vM1}")
        self.nop(2)

    def gemv_mfma(self, W, n, XB, D1, D2):
        a = self.a
        for j in range(n):
            w = W + 4*j
            c1 = "0" if j == 0 else f"v[{D1}:{D1+3}]"
            c2 = "0" if j == 0 else f"v[{D2}:{D2+3}]"
            a(f"v_mfma_f32_16x16x16_bf16 v[{D1}:{D1+3}], v[{w}:{w+1}], v[{XB+2*j}:{XB+2*j+1}], {c1}")
            a(f"v_mfma_f32_16x16x16_bf16 v[{D2}:{D2+3}], v[{w+2}:{w+3}], v[{XB+2*j}:{XB+2*j+1}], {c2}")

    def cu_reduce(self, tiles, cnt, lbase, addr_fn, vt0, vt1, vT, vL16, R):
        a = self.a
        v = S_WID
        nt = len(tiles)
        a(f"s_lshl_b32 s{S_TMP}, s{v}, 11")
        a(f"v_add_u32 v{vt0}, s{S_TMP}, v{vL16}")
        for t, (D1, D2) in enumerate(tiles):
            a(f"ds_write_b128 v{vt0}, v[{D1}:{D1+3}] offset:{lbase+8192*t}")
            a(f"ds_write_b128 v{vt0}, v[{D2}:{D2+3}] offset:{lbase+8192*t+1024}")
        if cnt is not None:
            self.lds_bar(cnt, 4, vt0, vt1)
        else:
            a("s_waitcnt lgkmcnt(0)")
            a("s_barrier")
        skip = self.label("crs")
        if nt == 1:
            a(f"s_cmp_ge_u32 s{v}, 2")
            a(f"s_cbranch_scc1 {skip}")
        a(f"s_and_b32 s{S_TMP}, s{v}, 1")
        a(f"s_lshl_b32 s{S_TMP}, s{S_TMP}, 10")
        a(f"v_add_u32 v{vt0}, s{S_TMP}, v{vL16}")
        if nt == 2:
            a(f"s_lshr_b32 s{S_TMP}, s{v}, 1")
            a(f"s_lshl_b32 s{S_TMP}, s{S_TMP}, 13")
            a(f"v_add_u32 v{vt1}, s{S_TMP}, v{vt0}")
            rd = vt1
        else:
            rd = vt0
        assert R % 4 == 0
        for i in range(4):
            a(f"ds_read_b128 v[{R+4*i}:{R+4*i+3}], v{rd} offset:{lbase+2048*i}")
        addr_fn()
        a("s_waitcnt lgkmcnt(0)")
        for r in range(4):
            a(f"v_add_f32 v{R+r}, v{R+r}, v{R+4+r}")
            a(f"v_add_f32 v{R+8+r}, v{R+8+r}, v{R+12+r}")
        for r in range(4):
            a(f"v_add_f32 v{R+r}, v{R+r}, v{R+8+r}")
        for r in range(4):
            self.tag32(R+r, vT)
        a(f"buffer_store_dwordx4 v[{R}:{R+3}], v{vt0}, s[{S_WS}:{S_WS+3}], s{S_TMP} offen sc1")
        a(f"{skip}:")

    def build(self):
        self.prologue()
        self.svc()
        self.kv()
        self.a("L_end:")
        body = "\n".join(self.L)
        return f"""; @launch grid=(256,1,1) block=(768,1,1) lds={LDS_SIZE}
.amdgcn_target "amdgcn-amd-amdhsa--gfx950"
.text
.globl {KN}
.p2align 8
.type {KN},@function
{KN}:
{body}
s_endpgm
.section .rodata,"a"
.p2align 6
.amdhsa_kernel {KN}
  .amdhsa_next_free_vgpr 168
  .amdhsa_next_free_sgpr 102
  .amdhsa_accum_offset 168
  .amdhsa_group_segment_fixed_size 0
  .amdhsa_kernarg_size 112
  .amdhsa_user_sgpr_count 2
  .amdhsa_user_sgpr_kernarg_segment_ptr 1
  .amdhsa_system_sgpr_workgroup_id_x 1
.end_amdhsa_kernel
"""


if __name__ == "__main__":
    import argparse
    ap = argparse.ArgumentParser()
    ap.add_argument("-o", default="k1.s")
    ap.add_argument("--dbg", action="store_true")
    ap.add_argument("--prio", type=int, default=3)
    ap.add_argument("--na-front", type=int, default=2)
    ap.add_argument("--p-front", type=int, default=1)
    ap.add_argument("--na-nf", type=int, default=16)
    ap.add_argument("--p-nf", type=int, default=2)
    ap.add_argument("--psleep2", type=int, default=8)
    ap.add_argument("--psleep3", type=int, default=5)
    ap.add_argument("--nsets", type=int, default=1)
    ap.add_argument("--kf", type=int, default=512)
    ap.add_argument("--km", type=int, default=384)
    ap.add_argument("--kh", type=int, default=640)
    ap.add_argument("--wearly", type=int, default=0)
    ap.add_argument("--b0first", type=int, default=0)
    ap.add_argument("--g-opp", default="g16")
    ap.add_argument("--g-x1", default="lane")
    ap.add_argument("--g-r", default="quad")
    args = ap.parse_args()
    g = Gen(dbg=args.dbg, prio=args.prio, na_front=args.na_front, p_front=args.p_front, na_nf=args.na_nf, p_nf=args.p_nf,
            psleep2=args.psleep2, psleep3=args.psleep3, nsets=args.nsets, kf=args.kf, km=args.km, kh=args.kh, wearly=args.wearly, b0first=args.b0first,
            g_opp=args.g_opp, g_x1=args.g_x1, g_r=args.g_r)
    open(args.o, "w").write(g.build())
```

```python
import sys
KN = "adaLN_cond__gqa_block_cached__swiglu_ffn__decode_kernel"

WS_E = 0
WS_MOD = 0x1000
WS_QP = 0x10000
WS_MODP = 0xA0000
WS_OPP = 0x100000
WS_ML = 0x180000
WS_AP = 0x200000
WS_X1 = 0x280000
WS_DP = 0x300000
WS_DBG = 0x3C0000
WS_SIZE = 0x400000
L_F1P = 0
L_RP = 4096
L_QL = 20480
L_OW = 24576
L_MLW = 40960
L_ST = 41216
L_CNT = 41344
L_GU = 41472
LDS_SIZE = 49152

NFRONT = 128
F1A_N = 64
T2_0 = 128
T2_N = 56
F1B_0 = 184
F1B_N = 64
R_0 = 0
R_N = 128
LIMIT = 4000

S_K, S_V, S_WS, S_WQ, S_WO, S_WM, S_WG, S_WU, S_WD, S_X, S_C, S_OUT = 4, 8, 12, 16, 20, 24, 28, 32, 36, 40, 44, 48
S_WID, S_T, S_SO, S_IT, S_V4, S_TMP, S_TMP2, S_E = 52, 53, 54, 55, 56, 57, 58, 59
S_B0, S_B1 = 60, 62
S_FF00 = 90
S_HI16 = 91
S_TS = 92
S_R = 96
S_BK, S_SP = 84, 85
S_T3 = 94
TAGB = 4


class Gen:
    def __init__(self, dbg=False, prio=3, na_front=2, p_front=1, na_nf=16, p_nf=2, psleep2=8, psleep3=5, nsets=1, kf=512, km=384, kh=640, wearly=0, b0first=0, g_opp='g16', g_x1='lane', g_r='quad', t2late=0, pf=0, sl=(0,0,0,0)):
        self.sl = sl
        self.pf = pf
        self.t2late = t2late
        self.g_opp, self.g_x1, self.g_r = g_opp, g_x1, g_r
        self.L = []
        self.dbg = dbg
        self.prio = prio
        self.na_front = na_front
        self.wearly, self.b0first = wearly, b0first
        self.kf, self.km, self.kh = kf, km, kh
        self.psleep2 = psleep2
        self.psleep3 = psleep3
        self.nsets = nsets
        self.p_front = p_front
        self.na_nf = na_nf
        self.p_nf = p_nf
        self.lbl = 0

    def a(self, s):
        self.L.append(s)

    def label(self, p):
        self.lbl += 1
        return f"L_{p}_{self.lbl}"

    def nop(self, n):
        while n > 0:
            k = min(n, 16)
            self.a(f"s_nop {k-1}")
            n -= k

    def srd(self, s, plo, size):
        self.a(f"s_mov_b32 s{s}, s{plo}")
        self.a(f"s_mov_b32 s{s+1}, s{plo+1}")
        self.a(f"s_mov_b32 s{s+2}, {size}")
        self.a(f"s_mov_b32 s{s+3}, 0x00020000")

    def stamp(self, slot, vtmp):
        if not self.dbg:
            return
        a = self.a
        a(f"s_memrealtime s[{S_TS}:{S_TS+1}]")
        a("s_waitcnt lgkmcnt(0)")
        a(f"v_mov_b32 v{vtmp}, s{S_TS}")
        a(f"v_mov_b32 v{vtmp+1}, s{S_IT}")
        a(f"s_lshl_b32 s{S_TMP2}, s2, 7")
        a(f"s_add_u32 s{S_TMP2}, s{S_TMP2}, {WS_DBG + slot*8}")
        a(f"v_mov_b32 v{vtmp+2}, s{S_TMP2}")
        a("s_mov_b64 exec, 1")
        a(f"buffer_store_dwordx2 v[{vtmp}:{vtmp+1}], v{vtmp+2}, s[{S_WS}:{S_WS+3}], 0 offen")
        a("s_mov_b64 exec, -1")
        a("s_nop 1")

    def allreduce(self, r, t, op, quad=True, rows=True):
        a = self.a
        if quad:
            self.nop(2)
            a(f"{op}_dpp v{r}, v{r}, v{r} quad_perm:[1,0,3,2] row_mask:0xf bank_mask:0xf")
            self.nop(2)
            a(f"{op}_dpp v{r}, v{r}, v{r} quad_perm:[2,3,0,1] row_mask:0xf bank_mask:0xf")
        if rows:
            a(f"v_mov_b32 v{t}, v{r}")
            self.nop(2)
            a(f"v_permlane16_swap_b32 v{r}, v{t}")
            a(f"{op} v{r}, v{r}, v{t}")
            a(f"v_mov_b32 v{t}, v{r}")
            self.nop(2)
            a(f"v_permlane32_swap_b32 v{r}, v{t}")
            a(f"{op} v{r}, v{r}, v{t}")

    def round2(self, x0, x1, t):
        a = self.a
        a(f"v_cvt_pk_bf16_f32 v{t}, v{x0}, v{x1}")
        a(f"v_lshlrev_b32 v{x0}, 16, v{t}")
        a(f"v_and_b32 v{x1}, s{S_HI16}, v{t}")

    def round1(self, x, t=None):
        a = self.a
        a(f"v_cvt_pk_bf16_f32 v{x}, v{x}, v{x}")
        a(f"v_and_b32 v{x}, s{S_HI16}, v{x}")

    def poll(self, issue, regs, vA, vO, vT, mask=(1 << TAGB) - 1):
        a = self.a
        lp = self.label("poll")
        ld = self.label("pd")
        a(f"s_mov_b32 s{S_IT}, 0")
        a(f"{lp}:")
        issue()
        a("s_waitcnt vmcnt(0)")
        rs = list(regs)
        assert len(rs) >= 3
        a(f"v_bitop3_b32 v{vA}, v{rs[0]}, v{rs[1]}, v{rs[2]} bitop3:0x80")
        a(f"v_or3_b32 v{vO}, v{rs[0]}, v{rs[1]}, v{rs[2]}")
        i = 3
        while i < len(rs):
            r1 = rs[i]
            r2 = rs[i+1] if i+1 < len(rs) else rs[i]
            a(f"v_bitop3_b32 v{vA}, v{vA}, v{r1}, v{r2} bitop3:0x80")
            a(f"v_or3_b32 v{vO}, v{vO}, v{r1}, v{r2}")
            i += 2
        a(f"v_xor_b32 v{vA}, v{vA}, v{vT}")
        a(f"v_xor_b32 v{vO}, v{vO}, v{vT}")
        a(f"v_or_b32 v{vA}, v{vA}, v{vO}")
        a(f"v_and_b32 v{vA}, {mask:#x}, v{vA}")
        a(f"v_cmp_ne_u32 vcc, 0, v{vA}")
        a(f"s_add_u32 s{S_IT}, s{S_IT}, 1")
        a(f"s_cmp_lt_u32 s{S_IT}, {LIMIT}")
        a(f"s_cbranch_scc0 {ld}")
        a(f"s_cbranch_vccnz {lp}")
        a(f"{ld}:")

    def tagcheck(self, rs, vA, vO, vT, mask):
        a = self.a
        rs = list(rs)
        assert len(rs) >= 3
        a(f"v_bitop3_b32 v{vA}, v{rs[0]}, v{rs[1]}, v{rs[2]} bitop3:0x80")
        a(f"v_or3_b32 v{vO}, v{rs[0]}, v{rs[1]}, v{rs[2]}")
        i = 3
        while i < len(rs):
            r1 = rs[i]
            r2 = rs[i+1] if i+1 < len(rs) else rs[i]
            a(f"v_bitop3_b32 v{vA}, v{vA}, v{r1}, v{r2} bitop3:0x80")
            a(f"v_or3_b32 v{vO}, v{vO}, v{r1}, v{r2}")
            i += 2
        a(f"v_xor_b32 v{vA}, v{vA}, v{vT}")
        a(f"v_xor_b32 v{vO}, v{vO}, v{vT}")
        a(f"v_or_b32 v{vA}, v{vA}, v{vO}")
        a(f"v_and_b32 v{vA}, {mask:#x}, v{vA}")
        a(f"v_cmp_ne_u32 vcc, 0, v{vA}")

    def poll2(self, issue, nl, nreg, sets, F, vA, vO, vT, mask=(1 << TAGB) - 1, sleep=None):
        a = self.a
        ns = len(sets)
        if sleep is None:
            sleep = self.psleep3 if ns >= 3 else self.psleep2
        lp = self.label("pp")
        ld = self.label("ppd")
        a(f"s_mov_b32 s{S_IT}, 0")
        if ns == 1:
            a(f"{lp}:")
            issue(F)
            a("s_waitcnt vmcnt(0)")
            self.tagcheck(range(F, F+nreg), vA, vO, vT, mask)
            a("s_mov_b64 exec, vcc")
            a(f"s_cbranch_execz {ld}")
            a(f"s_add_u32 s{S_IT}, s{S_IT}, 1")
            a(f"s_cmp_lt_u32 s{S_IT}, {LIMIT}")
            a(f"s_cbranch_scc1 {lp}")
            a(f"{ld}:")
            a("s_mov_b64 exec, -1")
            return
        for i, S in enumerate(sets):
            issue(S)
            if i < ns - 1 and sleep:
                a(f"s_sleep {sleep}")
        a(f"{lp}:")
        for S in sets:
            a(f"s_waitcnt vmcnt({nl*(ns-1)})")
            self.tagcheck(range(S, S+nreg), vA, vO, vT, mask)
            a("s_andn2_b64 exec, exec, vcc")
            sk = self.label("pps")
            a(f"s_cbranch_execz {sk}")
            for i in range(nreg):
                a(f"v_mov_b32 v{F+i}, v{S+i}")
            a(f"{sk}:")
            a("s_mov_b64 exec, vcc")
            a(f"s_cbranch_execz {ld}")
            issue(S)
            if sleep:
                a(f"s_sleep {sleep}")
        a(f"s_add_u32 s{S_IT}, s{S_IT}, 1")
        a(f"s_cmp_lt_u32 s{S_IT}, {LIMIT}")
        a(f"s_cbranch_scc1 {lp}")
        a(f"{ld}:")
        a("s_mov_b64 exec, -1")

    def mismatch(self, rs, vA, vO, vT):
        a = self.a
        rs = list(rs)
        assert len(rs) >= 3
        a(f"v_bitop3_b32 v{vA}, v{rs[0]}, v{rs[1]}, v{rs[2]} bitop3:0x80")
        a(f"v_or3_b32 v{vO}, v{rs[0]}, v{rs[1]}, v{rs[2]}")
        i = 3
        while i < len(rs):
            r1 = rs[i]
            r2 = rs[i+1] if i+1 < len(rs) else rs[i]
            a(f"v_bitop3_b32 v{vA}, v{vA}, v{r1}, v{r2} bitop3:0x80")
            a(f"v_or3_b32 v{vO}, v{vO}, v{r1}, v{r2}")
            i += 2
        a(f"v_bitop3_b32 v{vA}, v{vA}, v{vO}, v{vT} bitop3:0x7e")

    def poll3(self, issue, r4, r16, vA, vO, vA2, vO2, vT, group, sleep=0):
        a = self.a
        lp = self.label("p3")
        ld = self.label("p3d")
        a(f"s_mov_b32 s{S_IT}, 0")
        a(f"{lp}:")
        issue()
        a("s_waitcnt vmcnt(0)")
        if r4:
            self.mismatch(r4, vA, vO, vT)
        if r16:
            self.mismatch(r16, vA2, vO2, vT)
        if r4 and r16:
            a(f"v_lshlrev_b32 v{vA}, {32-TAGB}, v{vA}")
            a(f"v_lshl_or_b32 v{vA}, v{vA2}, 16, v{vA}")
        elif r4:
            a(f"v_lshlrev_b32 v{vA}, {32-TAGB}, v{vA}")
        else:
            a(f"v_lshlrev_b32 v{vA}, 16, v{vA2}")
        if group == "quad":
            self.nop(2)
            a(f"v_or_b32_dpp v{vA}, v{vA}, v{vA} quad_perm:[1,0,3,2] row_mask:0xf bank_mask:0xf")
            self.nop(2)
            a(f"v_or_b32_dpp v{vA}, v{vA}, v{vA} quad_perm:[2,3,0,1] row_mask:0xf bank_mask:0xf")
        a(f"v_cmp_ne_u32 vcc, 0, v{vA}")
        a(f"s_add_u32 s{S_IT}, s{S_IT}, 1")
        if group == "wave":
            a(f"s_cmp_lt_u32 s{S_IT}, {LIMIT}")
            a(f"s_cbranch_scc0 {ld}")
            a(f"s_cbranch_vccnz {lp}")
            a(f"{ld}:")
            return
        if group == "g16":
            a(f"s_or_b32 s{S_TMP}, vcc_lo, vcc_hi")
            a(f"s_lshr_b32 s{S_TMP2}, s{S_TMP}, 16")
            a(f"s_or_b32 s{S_TMP}, s{S_TMP}, s{S_TMP2}")
            a(f"s_and_b32 s{S_TMP}, s{S_TMP}, 0xffff")
            a(f"s_mul_i32 s{S_TMP}, s{S_TMP}, 0x10001")
            a(f"s_mov_b32 exec_lo, s{S_TMP}")
            a(f"s_mov_b32 exec_hi, s{S_TMP}")
        else:
            a("s_mov_b64 exec, vcc")
        a(f"s_cbranch_execz {ld}")
        if sleep:
            a(f"s_sleep {sleep}")
        a(f"s_cmp_lt_u32 s{S_IT}, {LIMIT}")
        a(f"s_cbranch_scc1 {lp}")
        a(f"{ld}:")
        a("s_mov_b64 exec, -1")

    def lds_bar(self, k, n, vA, vB):
        a = self.a
        lp = self.label("lb")
        ld = self.label("lbd")
        a("s_waitcnt lgkmcnt(0)")
        a(f"v_mov_b32 v{vA}, {L_CNT + 4*k}")
        a(f"v_mov_b32 v{vB}, 1")
        a("s_mov_b64 exec, 1")
        a(f"ds_add_u32 v{vA}, v{vB}")
        a("s_mov_b64 exec, -1")
        self.lds_wait(k, n, vA, vB, sleep=False)

    def lds_wait(self, k, n, vA, vB, sleep=True):
        a = self.a
        lp = self.label("lw")
        ld = self.label("lwd")
        a(f"v_mov_b32 v{vA}, {L_CNT + 4*k}")
        a(f"s_mov_b32 s{S_IT}, 0")
        a(f"{lp}:")
        a(f"ds_read_b32 v{vB}, v{vA}")
        a("s_waitcnt lgkmcnt(0)")
        a(f"v_readfirstlane_b32 s{S_TMP}, v{vB}")
        a(f"s_add_u32 s{S_IT}, s{S_IT}, 1")
        a(f"s_cmp_ge_u32 s{S_TMP}, {n}")
        a(f"s_cbranch_scc1 {ld}")
        if sleep:
            a("s_sleep 1")
        a(f"s_cmp_lt_u32 s{S_IT}, 400000")
        a(f"s_cbranch_scc1 {lp}")
        a(f"{ld}:")

    def tag32(self, r, vT):
        self.a(f"v_and_or_b32 v{r}, v{r}, {-(1 << TAGB)}, s{S_T3}")

    def masks(self, vM0, vM1, vt, four=True):
        a = self.a
        a(f"v_mov_b32 v{vt}, 0xffff")
        a(f"v_mov_b32 v{vM0}, s{S_HI16}")
        a(f"v_cndmask_b32 v{vM0}, v{vt}, v{vM0}, s[{S_B0}:{S_B0+1}]")
        if four:
            a(f"v_mov_b32 v{vt}, 0")
            a(f"v_cndmask_b32 v{vM1}, v{vt}, v{vM0}, s[{S_B1}:{S_B1+1}]")
            a(f"v_cndmask_b32 v{vM0}, v{vM0}, v{vt}, s[{S_B1}:{S_B1+1}]")

    def prologue(self):
        a = self.a
        a("s_cmp_ge_u32 s2, 256")
        a("s_cbranch_scc1 L_end")
        a("s_load_dwordx16 s[64:79], s[0:1], 0")
        a("s_load_dwordx8 s[80:87], s[0:1], 64")
        a("s_load_dwordx2 s[88:89], s[0:1], 104")
        a("v_lshrrev_b32 v1, 6, v0")
        a("v_and_b32 v0, 63, v0")
        a(f"s_mov_b32 s{S_B0}, 0xaaaaaaaa")
        a(f"s_mov_b32 s{S_B0+1}, 0xaaaaaaaa")
        a(f"v_readfirstlane_b32 s{S_WID}, v1")
        a(f"s_mov_b32 s{S_B1}, 0xcccccccc")
        a(f"s_mov_b32 s{S_B1+1}, 0xcccccccc")
        a(f"s_mov_b32 s{S_HI16}, 0xffff0000")
        a("s_waitcnt lgkmcnt(0)")
        a(f"s_load_dword s{S_E}, s[88:89], {WS_E}")
        self.srd(S_WS, 88, WS_SIZE)
        a(f"s_cmp_ge_u32 s{S_WID}, 4")
        a("s_cbranch_scc1 L_kv")

    def get_tag(self, vT):
        a = self.a
        a("s_waitcnt lgkmcnt(0)")
        a(f"s_add_u32 s{S_E}, s{S_E}, 1")
        a(f"s_and_b32 s{S_T}, s{S_E}, 0xffff")
        a(f"s_and_b32 s{S_T3}, s{S_E}, {(1 << TAGB) - 1}")
        a(f"v_mov_b32 v{vT}, s{S_T}")

    def kv(self):
        a = self.a
        a("L_kv:")
        vKa, vVa, vT, vM0, vM1, vt0, vt1, vt2 = 1, 2, 3, 4, 5, 6, 7, 8
        self.srd(S_K, 66, 0x2000000)
        self.srd(S_V, 68, 0x2000000)
        a(f"s_sub_u32 s{S_V4}, s{S_WID}, 4")
        a(f"s_and_b32 s{S_BK}, s2, 7")
        a(f"s_lshl_b32 s{S_BK}, s{S_BK}, 2")
        a(f"s_bfe_u32 s{S_TMP}, s2, 0x20003")
        a(f"s_add_u32 s{S_BK}, s{S_BK}, s{S_TMP}")
        a(f"s_lshr_b32 s{S_SP}, s2, 5")
        a(f"v_and_b32 v{vt0}, 3, v0")
        a(f"v_lshlrev_b32 v{vt0}, 4, v{vt0}")
        a(f"v_bfe_u32 v{vt1}, v0, 2, 2")
        a(f"v_lshl_add_u32 v{vt0}, v{vt1}, 8, v{vt0}")
        a(f"v_lshrrev_b32 v{vt1}, 4, v0")
        a(f"v_lshl_add_u32 v{vt0}, v{vt1}, 6, v{vt0}")
        a(f"v_lshlrev_b32 v{vt2}, 4, v0")
        if self.pf:
            self.srd(S_WD, 80, 512*1792*2)
        for i in range(1, 5):
            a(f"s_mov_b32 s{79+i}, {4096*i}")
        a(f"s_lshl_b32 s{S_TMP}, s{S_BK}, 20")
        KF, KM, KH = self.kf, self.km, self.kh
        assert 4*KF + 2*KM + 2*KH == 4096
        classes = [("f", KF, 0, 0, True), ("m", KM, 4*KF, 4, False), ("h", KH, 4*KF + 2*KM, 6, False)]
        used = []
        a(f"s_cmp_ge_u32 s{S_SP}, 6")
        a("s_cbranch_scc1 L_kvc_h")
        a(f"s_cmp_ge_u32 s{S_SP}, 4")
        a("s_cbranch_scc1 L_kvc_m")
        for (nm, K, key0, s0, front) in classes:
            a(f"L_kvc_{nm}:")
            gs = K // 16
            glo, nhi = gs // 8, gs % 8
            assert K % 16 == 0 and 3 <= glo and glo + (1 if nhi else 0) <= 5
            a(f"s_mul_i32 s{S_TMP2}, s{S_SP}, {K}")
            off = key0 - s0*K
            if off > 0:
                a(f"s_add_u32 s{S_TMP2}, s{S_TMP2}, {off}")
            elif off < 0:
                a(f"s_sub_u32 s{S_TMP2}, s{S_TMP2}, {-off}")
            a(f"s_lshl_b32 s{S_TMP2}, s{S_TMP2}, 8")
            a(f"s_add_u32 s{S_TMP}, s{S_TMP}, s{S_TMP2}")
            lo = f"L_kvp_{'f' if front else 'n'}{glo}"
            hi = f"L_kvp_{'f' if front else 'n'}{glo+1}"
            if nhi:
                a(f"s_mul_i32 s{S_TMP2}, s{S_V4}, {16*(glo+1)*256}")
                a(f"s_cmp_lt_u32 s{S_V4}, {nhi}")
                l2 = self.label("kvl")
                a(f"s_cbranch_scc0 {l2}")
                a(f"s_add_u32 s{S_TMP}, s{S_TMP}, s{S_TMP2}")
                a(f"s_branch {hi}")
                a(f"{l2}:")
                if (glo+1, front) not in used:
                    used.append((glo+1, front))
            a(f"s_mul_i32 s{S_TMP2}, s{S_V4}, {16*glo*256}")
            a(f"s_add_u32 s{S_TMP}, s{S_TMP}, s{S_TMP2}")
            if nhi:
                a(f"s_add_u32 s{S_TMP}, s{S_TMP}, {nhi*16*256}")
            a(f"s_branch {lo}")
            if (glo, front) not in used:
                used.append((glo, front))
        for k, (G, front) in enumerate(used):
            a(f"L_kvp_{'f' if front else 'n'}{G}:")
            if front:
                self.kv_path(G, self.na_front, self.p_front, k == len(used) - 1)
            else:
                self.kv_path(G, self.na_nf, self.p_nf, k == len(used) - 1, self.b0first)

    def kv_path(self, G, nA, P, last, b0first=False):
        a = self.a
        vKa, vVa, vT, vM0, vM1, vt0, vt1, vt2 = 1, 2, 3, 4, 5, 6, 7, 8
        vQ = 12
        vD = 16
        vS = 32
        vm, vl = 38, 39
        KR = 40
        nL = 4*G
        if G <= 4:
            kreg = [KR + 4*j for j in range(nL)]
            vreg = [104 + 4*j for j in range(nL)]
            pre = [("K", j) for j in range(nL)] + [("V", j) for j in range(nL)]
            post = []
            XR, AC, nch = KR, KR + 32, 2
        else:
            kreg = [KR + 4*j for j in range(nL)]
            vreg = [120 + 4*j for j in range(12)] + [KR + 4*j for j in range(8)]
            pre = [("K", j) for j in range(nL)] + [("V", j) for j in range(12)]
            post = [("V", j) for j in range(12, 20)]
            XR, AC, nch = 72, 112, 1
        so = ["0", "s80", "s81", "s82", "s83"]
        issued = []

        def ld(item):
            t, j = item
            srd, va, reg = (S_K, vKa, kreg[j]) if t == "K" else (S_V, vVa, vreg[j])
            a(f"buffer_load_dwordx4 v[{reg}:{reg+3}], v{va}, s[{srd}:{srd+3}], {so[j//4]} offen offset:{(j%4)*1024} nt")
        a(f"v_add_u32 v{vKa}, s{S_TMP}, v{vt0}")
        a(f"v_add_u32 v{vVa}, s{S_TMP}, v{vt2}")
        nA = min(nA, len(pre))
        if b0first:
            a("s_barrier")
        for it in pre[:nA]:
            ld(it)
        if not b0first:
            a("s_barrier")
        lall = self.label("kvall")
        if nA < len(pre):
            lf = [self.label("kvf") for _ in pre]
            a(f"v_mov_b32 v{vt0}, {L_CNT + 8}")
            for idx in range(nA, len(pre)):
                a(f"s_waitcnt vmcnt({P-1})")
                a(f"ds_read_b32 v{vt1}, v{vt0}")
                a("s_waitcnt lgkmcnt(0)")
                a(f"v_readfirstlane_b32 s{S_TMP}, v{vt1}")
                a(f"s_cmp_ge_u32 s{S_TMP}, 4")
                a(f"s_cbranch_scc1 {lf[idx]}")
                ld(pre[idx])
            a(f"s_branch {lall}")
            for idx in range(nA, len(pre)):
                a(f"{lf[idx]}:")
                ld(pre[idx])
        a(f"{lall}:")
        issued = list(pre)
        self.masks(vM0, vM1, vt0)
        self.get_tag(vT)
        self.lds_wait(2, 4, vt0, vt1)
        self.stamp(8, 8)
        a(f"v_bfe_u32 v{vt0}, v0, 2, 2")
        a(f"v_lshlrev_b32 v{vt0}, 8, v{vt0}")
        a(f"v_lshrrev_b32 v{vt1}, 4, v0")
        a(f"v_lshl_add_u32 v{vt0}, v{vt1}, 6, v{vt0}")
        a(f"v_and_b32 v{vt1}, 3, v0")
        a(f"v_lshl_add_u32 v{vt0}, v{vt1}, 4, v{vt0}")
        a(f"ds_read_b128 v[{vQ}:{vQ+3}], v{vt0} offset:{L_QL}")
        a("s_waitcnt lgkmcnt(0)")

        def wait_for(item):
            n = len(issued) - 1 - issued.index(item)
            a(f"s_waitcnt vmcnt({n})")
        for J in range(G):
            wait_for(("K", 4*J+3))
            for jj in range(4):
                k = kreg[4*J+jj]
                d = vD + 4*jj
                a(f"v_mfma_f32_16x16x32_bf16 v[{d}:{d+3}], v[{k}:{k+3}], v[{vQ}:{vQ+3}], 0")
            self.nop(8)
            for jj in range(4):
                d = vD + 4*jj
                a(f"v_cndmask_b32 v{d}, v{d}, v{d+1}, s[{S_B0}:{S_B0+1}]")
                a(f"v_cndmask_b32 v{d+2}, v{d+2}, v{d+3}, s[{S_B0}:{S_B0+1}]")
                a(f"v_cndmask_b32 v{d}, v{d}, v{d+2}, s[{S_B1}:{S_B1+1}]")
            if post and J < 2:
                for it in post[4*J:4*J+4]:
                    ld(it)
                    issued.append(it)
            v0_, v1_, v2_, v3_ = vD, vD+4, vD+8, vD+12
            a(f"v_cndmask_b32 v{v0_+1}, v{v0_}, v{v1_}, s[{S_B0}:{S_B0+1}]")
            a(f"v_cndmask_b32 v{v0_+2}, v{v1_}, v{v0_}, s[{S_B0}:{S_B0+1}]")
            a(f"v_cndmask_b32 v{v2_+1}, v{v2_}, v{v3_}, s[{S_B0}:{S_B0+1}]")
            a(f"v_cndmask_b32 v{v2_+2}, v{v3_}, v{v2_}, s[{S_B0}:{S_B0+1}]")
            self.nop(1)
            a(f"v_add_f32_dpp v{v0_}, v{v0_+2}, v{v0_+1} quad_perm:[1,0,3,2] row_mask:0xf bank_mask:0xf")
            a(f"v_add_f32_dpp v{v2_}, v{v2_+2}, v{v2_+1} quad_perm:[1,0,3,2] row_mask:0xf bank_mask:0xf")
            a(f"v_cndmask_b32 v{v0_+1}, v{v0_}, v{v2_}, s[{S_B1}:{S_B1+1}]")
            a(f"v_cndmask_b32 v{v0_+2}, v{v2_}, v{v0_}, s[{S_B1}:{S_B1+1}]")
            self.nop(2)
            a(f"v_add_f32_dpp v{vS+J}, v{v0_+2}, v{v0_+1} quad_perm:[2,3,0,1] row_mask:0xf bank_mask:0xf")
        def rnd():
            for J in range(0, G - 1, 2):
                self.round2(vS+J, vS+J+1, vt0 if J % 4 == 0 else vt1)
            if G % 2:
                self.round1(vS+G-1)
        rnd()
        for J in range(G):
            a(f"v_mul_f32 v{vS+J}, 0x3db504f3, v{vS+J}")
        rnd()
        a(f"v_max3_f32 v{vm}, v{vS}, v{vS+1}, v{vS+2}")
        if G == 4:
            a(f"v_max_f32 v{vm}, v{vm}, v{vS+3}")
        elif G == 5:
            a(f"v_max3_f32 v{vm}, v{vm}, v{vS+3}, v{vS+4}")
        self.allreduce(vm, vt0, "v_max_f32")
        for J in range(G):
            a(f"v_sub_f32 v{vS+J}, v{vS+J}, v{vm}")
        for J in range(G):
            a(f"v_mul_f32 v{vS+J}, 0x3fb8aa3b, v{vS+J}")
        for J in range(G):
            a(f"v_exp_f32 v{vS+J}, v{vS+J}")
        self.nop(1)
        a(f"v_add_f32 v{vl}, v{vS}, v{vS+1}")
        for J in range(2, G):
            a(f"v_add_f32 v{vl}, v{vl}, v{vS+J}")
        for J in range(G):
            a(f"v_cvt_pk_bf16_f32 v{vS+J}, v{vS+J}, v{vS+J}")
        self.nop(1)
        for j in range(nL):
            J, jj = j//4, j % 4
            a(f"v_and_b32_dpp v{XR+2*j}, v{vS+J}, v{vM0} quad_perm:[{jj},{jj},{jj},{jj}] row_mask:0xf bank_mask:0xf")
            a(f"v_and_b32_dpp v{XR+2*j+1}, v{vS+J}, v{vM1} quad_perm:[{jj},{jj},{jj},{jj}] row_mask:0xf bank_mask:0xf")
        self.allreduce(vl, vt0, "v_add_f32")
        a(f"v_bfe_u32 v{vt0}, v0, 2, 2")
        a(f"v_lshlrev_b32 v{vt0}, 6, v{vt0}")
        a(f"s_lshl_b32 s{S_TMP}, s{S_V4}, 3")
        a(f"v_add_u32 v{vt0}, s{S_TMP}, v{vt0}")
        a("s_mov_b64 exec, 0x1111")
        a(f"ds_write_b32 v{vt0}, v{vm} offset:{L_MLW}")
        a(f"ds_write_b32 v{vt0}, v{vl} offset:{L_MLW+4}")
        a("s_mov_b64 exec, -1")
        for j in range(nL):
            wait_for(("V", j))
            v = vreg[j]
            p = (j & 1) if nch == 2 else 0
            d1 = AC + 8*p
            d2 = d1 + 4
            first = j < nch
            c1 = "0" if first else f"v[{d1}:{d1+3}]"
            c2 = "0" if first else f"v[{d2}:{d2+3}]"
            a(f"v_mfma_f32_16x16x16_bf16 v[{d1}:{d1+3}], v[{v}:{v+1}], v[{XR+2*j}:{XR+2*j+1}], {c1}")
            a(f"v_mfma_f32_16x16x16_bf16 v[{d2}:{d2+3}], v[{v+2}:{v+3}], v[{XR+2*j}:{XR+2*j+1}], {c2}")
        self.nop(8)
        if nch == 2:
            for r in range(8):
                a(f"v_add_f32 v{AC+r}, v{AC+r}, v{AC+8+r}")
        self.stamp(15, 8)
        a(f"s_lshl_b32 s{S_TMP}, s{S_V4}, 11")
        a(f"v_lshlrev_b32 v{vt0}, 4, v0")
        a(f"v_add_u32 v{vt0}, s{S_TMP}, v{vt0}")
        a(f"ds_write_b128 v{vt0}, v[{AC}:{AC+3}] offset:{L_OW}")
        a(f"ds_write_b128 v{vt0}, v[{AC+4}:{AC+7}] offset:{L_OW+1024}")
        a("s_waitcnt lgkmcnt(0)")
        a(f"v_mov_b32 v{vt1}, {L_CNT + 12}")
        a(f"v_mov_b32 v{vt2}, 1")
        a("s_mov_b64 exec, 1")
        a(f"ds_add_u32 v{vt1}, v{vt2}")
        a("s_mov_b64 exec, -1")
        a(f"s_cmp_ge_u32 s{S_V4}, 2")
        a("s_cbranch_scc1 L_kv_pf" if self.pf else "s_cbranch_scc1 L_end")
        if not last:
            a("s_branch L_kv_comb")
            return
        a("L_kv_comb:")
        self.lds_wait(3, 8, vt0, vt1, sleep=False)
        OW = 104
        MLr = 136
        a(f"s_lshl_b32 s{S_TMP}, s{S_V4}, 10")
        a(f"v_lshlrev_b32 v{vt0}, 4, v0")
        a(f"v_add_u32 v{vt0}, s{S_TMP}, v{vt0}")
        a(f"v_bfe_u32 v{vt1}, v0, 2, 2")
        a(f"v_lshlrev_b32 v{vt1}, 6, v{vt1}")
        for i in range(4):
            a(f"ds_read_b128 v[{MLr+4*i}:{MLr+4*i+3}], v{vt1} offset:{L_MLW+16*i}")
        for w in range(8):
            a(f"ds_read_b128 v[{OW+4*w}:{OW+4*w+3}], v{vt0} offset:{L_OW+2048*w}")
        a("s_waitcnt lgkmcnt(8)")
        a(f"v_max3_f32 v{vm}, v{MLr}, v{MLr+2}, v{MLr+4}")
        a(f"v_max3_f32 v{vm}, v{vm}, v{MLr+6}, v{MLr+8}")
        a(f"v_max3_f32 v{vm}, v{vm}, v{MLr+10}, v{MLr+12}")
        a(f"v_max_f32 v{vm}, v{vm}, v{MLr+14}")
        for w in range(8):
            a(f"v_sub_f32 v{MLr+2*w}, v{MLr+2*w}, v{vm}")
        for w in range(8):
            a(f"v_mul_f32 v{MLr+2*w}, 0x3fb8aa3b, v{MLr+2*w}")
        for w in range(8):
            a(f"v_exp_f32 v{MLr+2*w}, v{MLr+2*w}")
        self.nop(1)
        a(f"v_mul_f32 v{vl}, v{MLr}, v{MLr+1}")
        for w in range(1, 8):
            a(f"v_fmac_f32 v{vl}, v{MLr+2*w}, v{MLr+2*w+1}")
        a("s_waitcnt lgkmcnt(0)")
        O = 152
        for r in range(4):
            a(f"v_mul_f32 v{O+r}, v{MLr}, v{OW+r}")
        for w in range(1, 8):
            for r in range(4):
                a(f"v_fmac_f32 v{O+r}, v{MLr+2*w}, v{OW+4*w+r}")
        for r in range(4):
            self.tag32(O+r, vT)
        a(f"s_lshl_b32 s{S_TMP}, s{S_BK}, 3")
        a(f"s_add_u32 s{S_TMP}, s{S_TMP}, s{S_SP}")
        a(f"s_lshl_b32 s{S_TMP}, s{S_TMP}, 11")
        a(f"s_add_u32 s{S_TMP}, s{S_TMP}, {WS_OPP}")
        a(f"buffer_store_dwordx4 v[{O}:{O+3}], v{vt0}, s[{S_WS}:{S_WS+3}], s{S_TMP} offen sc1")
        a(f"s_cmp_lg_u32 s{S_V4}, 0")
        a("s_cbranch_scc1 L_kv_sig" if self.t2late == 2 else "s_cbranch_scc1 L_end")
        M4 = O + 4
        a(f"v_or_b32 v{M4}, v{vm}, v{vT}")
        a(f"v_and_or_b32 v{M4+1}, v{vl}, s{S_HI16}, v{vT}")
        a(f"v_lshl_or_b32 v{M4+2}, v{vl}, 16, v{vT}")
        a(f"v_mov_b32 v{M4+3}, v{vT}")
        a(f"v_lshlrev_b32 v{vt1}, 1, v{vt1}")
        a(f"s_lshl_b32 s{S_TMP}, s{S_BK}, 9")
        a(f"s_lshl_b32 s{S_TMP2}, s{S_SP}, 4")
        a(f"s_add_u32 s{S_TMP}, s{S_TMP}, s{S_TMP2}")
        a(f"s_add_u32 s{S_TMP}, s{S_TMP}, {WS_ML}")
        a("s_mov_b64 exec, 0x1111")
        a(f"buffer_store_dwordx4 v[{M4}:{M4+3}], v{vt1}, s[{S_WS}:{S_WS+3}], s{S_TMP} offen sc1")
        a("s_mov_b64 exec, -1")
        self.stamp(9, 8)
        if self.t2late == 2:
            a("L_kv_sig:")
            a(f"v_mov_b32 v{vt1}, {L_CNT + 20}")
            a(f"v_mov_b32 v{vt2}, 1")
            a("s_mov_b64 exec, 1")
            a(f"ds_add_u32 v{vt1}, v{vt2}")
            a("s_waitcnt lgkmcnt(0)")
        a("s_endpgm")
        if self.pf:
            a("L_kv_pf:")
            a(f"s_cmp_lt_u32 s{S_V4}, 4")
            a("s_cbranch_scc1 L_end")
            a(f"s_cmp_lt_u32 s2, {T2_0}")
            a("s_cbranch_scc1 L_end")
            a(f"s_cmp_ge_u32 s2, {T2_0+T2_N}")
            a("s_cbranch_scc1 L_end")
            self.srd(S_WG, 76, 512*1792*2)
            self.srd(S_WU, 78, 512*1792*2)
            ST = 100
            a(f"s_sub_u32 s{S_TMP}, s2, {T2_0}")
            a(f"s_and_b32 s{ST}, s{S_TMP}, 7")
            a(f"s_mul_i32 s{ST}, s{ST}, 7")
            a(f"s_lshr_b32 s{S_TMP}, s{S_TMP}, 3")
            a(f"s_add_u32 s{ST}, s{ST}, s{S_TMP}")
            a(f"s_sub_u32 s{S_V4}, s{S_V4}, 4")
            a(f"v_lshrrev_b32 v{vt0}, 2, v0")
            a(f"v_mul_u32_u24 v{vt0}, 3584, v{vt0}")
            a(f"v_and_b32 v{vt1}, 3, v0")
            a(f"v_lshl_add_u32 v{vt0}, v{vt1}, 4, v{vt0}")
            a(f"s_mul_i32 s{S_TMP}, s{S_V4}, {128*3584}")
            a(f"s_lshl_b32 s{S_TMP2}, s{ST}, 6")
            a(f"s_add_u32 s{S_TMP}, s{S_TMP}, s{S_TMP2}")
            for j in range(8):
                a(f"buffer_load_dwordx4 v[{40+8*j}:{43+8*j}], v{vt0}, s[{S_WG}:{S_WG+3}], s{S_TMP} offen")
                a(f"buffer_load_dwordx4 v[{44+8*j}:{47+8*j}], v{vt0}, s[{S_WU}:{S_WU+3}], s{S_TMP} offen")
                if j < 7:
                    a(f"s_add_u32 s{S_TMP}, s{S_TMP}, {16*3584}")
            if self.pf >= 2:
                a(f"v_lshlrev_b32 v{vt0}, 4, v0")
                a(f"s_lshl_b32 s{S_TMP}, s{ST}, 15")
                a(f"s_lshl_b32 s{S_TMP2}, s{S_V4}, 13")
                a(f"s_add_u32 s{S_TMP}, s{S_TMP}, s{S_TMP2}")
                for j in range(8):
                    a(f"buffer_load_dwordx4 v[{104+4*j}:{107+4*j}], v{vt0}, s[{S_WD}:{S_WD+3}], s{S_TMP} offen")
                    if j < 7:
                        a(f"s_add_u32 s{S_TMP}, s{S_TMP}, 1024")
            a("s_waitcnt vmcnt(0)")
            a("s_endpgm")

    def svc(self):
        a = self.a
        vT, vM0, vM1, vMe, vG, vB, vU = 1, 2, 3, 4, 5, 6, 7
        vA, vO, vt0, vt1, vt2, vt3 = 8, 9, 10, 11, 12, 13
        vC16 = 14
        vL16 = 15
        W0 = 16
        WA = 40
        WB = 56
        WC = 72
        SC = WC + 32
        if self.prio:
            a(f"s_setprio {self.prio}")
        self.srd(S_WQ, 70, 512*4096*2)
        self.srd(S_WO, 72, 512*4096*2)
        self.srd(S_WM, 84, 512*3072*2)
        self.srd(S_WG, 76, 512*1792*2)
        self.srd(S_WU, 78, 512*1792*2)
        self.srd(S_WD, 80, 512*1792*2)
        self.srd(S_X, 64, 4096)
        self.srd(S_C, 82, 4096)
        self.srd(S_OUT, 86, 4096)
        v = S_WID
        a(f"v_lshrrev_b32 v{vG}, 4, v0")
        a(f"v_bfe_u32 v{vB}, v0, 2, 2")
        a(f"v_and_b32 v{vU}, 3, v0")
        a(f"v_and_b32 v{vC16}, 15, v0")
        a(f"v_lshlrev_b32 v{vC16}, 4, v{vC16}")
        a(f"v_lshlrev_b32 v{vL16}, 4, v0")
        a(f"v_mov_b32 v{vt0}, 0")
        a(f"v_lshlrev_b32 v{vt1}, 2, v0")
        a(f"s_cmp_lg_u32 s{v}, 0")
        a("s_cbranch_scc1 L_s_nz")
        a("s_mov_b64 exec, 0xffff")
        a(f"ds_write_b32 v{vt1}, v{vt0} offset:{L_CNT}")
        a("s_mov_b64 exec, -1")
        a("L_s_nz:")

        def t1_loads():
            SROW = 101
            a(f"s_lshr_b32 s{S_TMP}, s2, 3")
            a(f"s_lshl_b32 s{SROW}, s{S_TMP}, 7")
            a(f"s_bfe_u32 s{S_TMP}, s2, 0x10002")
            a(f"s_lshl_b32 s{S_TMP}, s{S_TMP}, 6")
            a(f"s_add_u32 s{SROW}, s{SROW}, s{S_TMP}")
            a(f"s_lshr_b32 s{S_TMP}, s{v}, 1")
            a(f"s_lshl_b32 s{S_TMP}, s{S_TMP}, 5")
            a(f"s_add_u32 s{SROW}, s{SROW}, s{S_TMP}")
            a(f"s_and_b32 s{S_TMP}, s{v}, 1")
            a(f"s_lshl_b32 s{S_TMP}, s{S_TMP}, 2")
            a(f"s_add_u32 s{SROW}, s{SROW}, s{S_TMP}")
            a(f"s_lshl_b32 s{S_TMP}, s{SROW}, 10")
            a(f"s_and_b32 s{S_TMP2}, s2, 3")
            a(f"s_lshl_b32 s{S_TMP2}, s{S_TMP2}, 8")
            a(f"s_add_u32 s{S_TMP}, s{S_TMP}, s{S_TMP2}")
            a(f"v_lshl_add_u32 v{vt0}, v{vG}, 10, v{vC16}")
            for j in range(4):
                a(f"buffer_load_dwordx4 v[{WB+4*j}:{WB+4*j+3}], v{vt0}, s[{S_WO}:{S_WO+3}], s{S_TMP} offen nt")
                if j < 3:
                    a(f"s_add_u32 s{S_TMP}, s{S_TMP}, 8192")

        a(f"s_cmp_ge_u32 s2, {NFRONT}")
        a("s_cbranch_scc1 L_s_nf")
        SK0 = S_R
        a(f"s_and_b32 s{SK0}, s2, 7")
        a(f"s_lshl_b32 s{SK0}, s{SK0}, 6")
        a(f"s_cmp_ge_u32 s2, {F1A_N}")
        a("s_cbranch_scc1 L_s_nof1a")
        CC = W0
        a(f"s_lshl_b32 s{S_TMP}, s{v}, 4")
        a(f"s_add_u32 s{S_TMP}, s{S_TMP}, s{SK0}")
        a(f"v_lshlrev_b32 v{vt0}, 10, v{vB}")
        a(f"v_lshl_add_u32 v{vt0}, v{vG}, 3, v{vt0}")
        a(f"s_lshl_b32 s{S_TMP2}, s{S_TMP}, 1")
        a(f"buffer_load_dwordx2 v[{CC}:{CC+1}], v{vt0}, s[{S_C}:{S_C+3}], s{S_TMP2} offen")
        a(f"v_mul_u32_u24 v{vt0}, {4*6144}, v{vG}")
        a(f"v_add_u32 v{vt0}, v{vt0}, v{vC16}")
        a(f"s_mul_i32 s{S_TMP}, s{S_TMP}, 6144")
        a(f"s_lshr_b32 s{S_TMP2}, s2, 3")
        a(f"s_lshl_b32 s{S_TMP2}, s{S_TMP2}, 8")
        a(f"s_add_u32 s{S_TMP}, s{S_TMP}, s{S_TMP2}")
        for j in range(4):
            a(f"buffer_load_dwordx4 v[{WC+4*j}:{WC+4*j+3}], v{vt0}, s[{S_WM}:{S_WM+3}], s{S_TMP} offen nt")
            if j < 3:
                a(f"s_add_u32 s{S_TMP}, s{S_TMP}, 6144")
        a("L_s_nof1a:")
        XS = SC
        XO = W0 + 4
        a(f"v_lshlrev_b32 v{vt0}, 10, v{vB}")
        a(f"v_lshl_add_u32 v{vt0}, v{vG}, 8, v{vt0}")
        a(f"v_lshl_add_u32 v{vt0}, v{vU}, 6, v{vt0}")
        for i in range(4):
            a(f"buffer_load_dwordx4 v[{XS+4*i}:{XS+4*i+3}], v{vt0}, s[{S_X}:{S_X+3}], 0 offen offset:{16*i}")
        SRB0 = 97
        a(f"s_lshr_b32 s{S_TMP}, s{v}, 1")
        a(f"s_lshl_b32 s{S_TMP}, s{S_TMP}, 5")
        a(f"s_add_u32 s{SRB0}, s{SK0}, s{S_TMP}")
        a(f"s_and_b32 s{S_TMP}, s{v}, 1")
        a(f"s_lshl_b32 s{S_TMP}, s{S_TMP}, 2")
        a(f"s_add_u32 s{SRB0}, s{SRB0}, s{S_TMP}")
        a(f"v_lshlrev_b32 v{vt0}, 10, v{vB}")
        a(f"v_lshl_add_u32 v{vt0}, v{vG}, 1, v{vt0}")
        a(f"s_lshl_b32 s{S_TMP}, s{SRB0}, 1")
        for j in range(4):
            a(f"buffer_load_ushort v{XO+j}, v{vt0}, s[{S_X}:{S_X+3}], s{S_TMP} offen offset:{16*j}")
        a(f"v_lshl_add_u32 v{vt0}, v{vG}, 13, v{vC16}")
        a(f"s_lshl_b32 s{S_TMP}, s{SRB0}, 13")
        a(f"s_lshr_b32 s{S_TMP2}, s2, 3")
        a(f"s_lshl_b32 s{S_TMP2}, s{S_TMP2}, 9")
        a(f"s_add_u32 s{S_TMP}, s{S_TMP}, s{S_TMP2}")
        for j in range(4):
            a(f"buffer_load_dwordx4 v[{WA+4*j}:{WA+4*j+3}], v{vt0}, s[{S_WQ}:{S_WQ+3}], s{S_TMP} offen nt")
            a(f"buffer_load_dwordx4 v[{WB+4*j}:{WB+4*j+3}], v{vt0}, s[{S_WQ}:{S_WQ+3}], s{S_TMP} offen offset:256 nt")
            if j < 3:
                a(f"s_add_u32 s{S_TMP}, s{S_TMP}, {8*8192}")
        a("s_waitcnt lgkmcnt(0)")
        a("s_barrier")
        self.masks(vM0, vM1, vt0)
        self.get_tag(vT)
        self.stamp(0, W0+8)
        a(f"s_cmp_ge_u32 s2, {F1A_N}")
        a("s_cbranch_scc1 L_s_nof1b")
        DU = W0 + 8
        BB = W0 + 12
        a("s_waitcnt vmcnt(20)")
        for i in range(2):
            a(f"v_lshlrev_b32 v{DU+2*i}, 16, v{CC+i}")
            a(f"v_and_b32 v{DU+2*i+1}, s{S_HI16}, v{CC+i}")
        for i in range(4):
            a(f"v_mul_f32 v{BB+i}, 0xbfb8aa3b, v{DU+i}")
        for i in range(4):
            a(f"v_exp_f32 v{BB+i}, v{BB+i}")
        self.nop(1)
        for i in range(4):
            a(f"v_add_f32 v{BB+i}, 1.0, v{BB+i}")
        for i in range(4):
            a(f"v_rcp_f32 v{BB+i}, v{BB+i}")
        self.nop(1)
        for i in range(4):
            a(f"v_mul_f32 v{DU+i}, v{DU+i}, v{BB+i}")
        for i in range(4):
            a(f"v_cvt_pk_bf16_f32 v{DU+i}, v{DU+i}, v{DU+i}")
        XB = W0 + 12
        D1, D2 = WC+16, WC+20
        self.gemv_x_build(DU, 4, XB, vM0, vM1)
        a("s_waitcnt vmcnt(16)")
        self.gemv_mfma(WC, 4, XB, D1, D2)
        self.nop(8)

        def modp_addr():
            a(f"s_and_b32 s{S_TMP}, s2, 7")
            a(f"s_lshl_b32 s{S_TMP}, s{S_TMP}, 3")
            a(f"s_lshr_b32 s{S_TMP2}, s2, 3")
            a(f"s_add_u32 s{S_TMP}, s{S_TMP}, s{S_TMP2}")
            a(f"s_lshl_b32 s{S_TMP}, s{S_TMP}, 11")
            a(f"s_add_u32 s{S_TMP}, s{S_TMP}, {WS_MODP}")
        self.cu_reduce([(D1, D2)], 0, L_OW, modp_addr, vt0, vt1, vT, vL16, WC)
        self.stamp(1, W0+8)
        a("L_s_nof1b:")
        XF = SC + 16
        a("s_waitcnt vmcnt(8)")
        for i in range(16):
            a(f"v_lshlrev_b32 v{XF+2*i}, 16, v{XS+i}")
            a(f"v_and_b32 v{XF+2*i+1}, s{S_HI16}, v{XS+i}")
        vMean, vVar = W0, W0+1
        Y = W0 + 8
        self.ln_sum(XF, 32, vMean, vt0)
        self.allreduce(vMean, vt0, "v_add_f32")
        a(f"v_mul_f32 v{vMean}, 0x3b000000, v{vMean}")
        for i in range(32):
            a(f"v_sub_f32 v{XF+i}, v{XF+i}, v{vMean}")
        a(f"v_mul_f32 v{vVar}, v{XF}, v{XF}")
        a(f"v_mul_f32 v{vt0}, v{XF+1}, v{XF+1}")
        for i in range(2, 32, 2):
            a(f"v_fmac_f32 v{vVar}, v{XF+i}, v{XF+i}")
            a(f"v_fmac_f32 v{vt0}, v{XF+i+1}, v{XF+i+1}")
        a(f"v_add_f32 v{vVar}, v{vVar}, v{vt0}")
        self.allreduce(vVar, vt0, "v_add_f32")
        a(f"v_mul_f32 v{vVar}, 0x3b000000, v{vVar}")
        self.ln_fin(vMean, vVar, vt0)
        for j in range(4):
            a(f"v_lshlrev_b32 v{Y+j}, 16, v{XO+j}")
        self.ln_norm(Y, 4, vMean, vVar, vt0, vt1)
        P0 = WC
        a(f"v_lshlrev_b32 v{vt2}, 14, v{vU}")
        a(f"v_lshl_add_u32 v{vt2}, v{vB}, 6, v{vt2}")
        a(f"v_lshl_add_u32 v{vt2}, v{vG}, 4, v{vt2}")
        a(f"s_bfe_u32 s{S_TMP}, s2, 0x20001")
        a(f"s_lshl_b32 s{S_SO}, s{S_TMP}, 11")
        a(f"s_and_b32 s{S_TMP}, s{v}, 1")
        a(f"s_lshl_b32 s{S_TMP}, s{S_TMP}, 10")
        a(f"s_add_u32 s{S_SO}, s{S_SO}, s{S_TMP}")
        a(f"s_and_b32 s{S_TMP}, s2, 1")
        a(f"s_lshl_b32 s{S_TMP}, s{S_TMP}, 1")
        a(f"s_lshr_b32 s{S_TMP2}, s{v}, 1")
        a(f"s_add_u32 s{S_TMP}, s{S_TMP}, s{S_TMP2}")
        a(f"s_lshl_b32 s{S_TMP}, s{S_TMP}, 8")
        a(f"s_add_u32 s{S_SO}, s{S_SO}, s{S_TMP}")
        a(f"s_add_u32 s{S_SO}, s{S_SO}, {WS_MODP}")
        a(f"s_add_u32 s97, s{S_SO}, {4*8*2048}")
        a(f"s_add_u32 s98, s{S_SO}, {4*2048}")
        a(f"s_add_u32 s99, s{S_SO}, {4*8*2048 + 4*2048}")

        def iss():
            for q, sreg in enumerate([S_SO, 97, 98, 99]):
                a(f"buffer_load_dwordx4 v[{P0+4*q}:{P0+4*q+3}], v{vt2}, s[{S_WS}:{S_WS+3}], s{sreg} offen sc1")
        self.poll(iss, list(range(P0, P0+16)), vA, vO, vT)
        self.stamp(2, W0+20)
        SA, CA = P0, P0+8
        for r in range(4):
            a(f"v_add_f32 v{SA+r}, v{SA+r}, v{SA+4+r}")
            a(f"v_add_f32 v{CA+r}, v{CA+r}, v{CA+4+r}")
        xs = [SA+r for r in range(4)] + [CA+r for r in range(4)]
        self.nop(1)
        for x in xs:
            a(f"v_add_f32_dpp v{x}, v{x}, v{x} quad_perm:[1,0,3,2] row_mask:0xf bank_mask:0xf")
        for x in xs:
            a(f"v_add_f32_dpp v{x}, v{x}, v{x} quad_perm:[2,3,0,1] row_mask:0xf bank_mask:0xf")
        self.round2(SA, SA+1, vt0)
        self.round2(SA+2, SA+3, vt1)
        self.round2(CA, CA+1, vt0)
        self.round2(CA+2, CA+3, vt1)
        self.modulate(Y, 4, SA, CA, vt0, vt1, clean=True)
        XB = W0 + 12
        D1, D2, D3, D4 = W0, W0+4, WC+16, WC+20
        self.gemv_x_build(Y, 4, XB, vM0, vM1)
        self.nop(2)
        self.gemv_mfma(WA, 4, XB, D1, D2)
        self.gemv_mfma(WB, 4, XB, D3, D4)
        self.nop(8)

        def qp_addr():
            a(f"s_and_b32 s{S_TMP}, s2, 7")
            a(f"s_lshl_b32 s{S_TMP}, s{S_TMP}, 5")
            a(f"s_lshr_b32 s{S_TMP2}, s2, 3")
            a(f"s_lshl_b32 s{S_TMP2}, s{S_TMP2}, 1")
            a(f"s_add_u32 s{S_TMP}, s{S_TMP}, s{S_TMP2}")
            a(f"s_lshr_b32 s{S_TMP2}, s{v}, 1")
            a(f"s_add_u32 s{S_TMP}, s{S_TMP}, s{S_TMP2}")
            a(f"s_lshl_b32 s{S_TMP}, s{S_TMP}, 11")
            a(f"s_add_u32 s{S_TMP}, s{S_TMP}, {WS_QP}")
        self.cu_reduce([(D1, D2), (D3, D4)], 1, L_RP, qp_addr, vt0, vt1, vT, vL16, WC+24)
        a(f"v_mov_b32 v{vt0}, {L_CNT+16}")
        a(f"v_mov_b32 v{vt1}, 1")
        a("s_mov_b64 exec, 1")
        a(f"ds_add_u32 v{vt0}, v{vt1}")
        a("s_mov_b64 exec, -1")
        self.stamp(3, W0+20)
        a("s_branch L_s_join")
        STILE = 100
        vCc = W0

        def t2_wloads():
            a(f"s_sub_u32 s{S_TMP}, s2, {T2_0}")
            a(f"s_and_b32 s{STILE}, s{S_TMP}, 7")
            a(f"s_mul_i32 s{STILE}, s{STILE}, 7")
            a(f"s_lshr_b32 s{S_TMP}, s{S_TMP}, 3")
            a(f"s_add_u32 s{STILE}, s{STILE}, s{S_TMP}")
            a(f"v_mul_u32_u24 v{vt0}, {32*3584}, v{vG}")
            a(f"v_and_b32 v{vt1}, 15, v0")
            a(f"v_lshl_add_u32 v{vt0}, v{vt1}, 2, v{vt0}")
            a(f"s_mul_i32 s{S_TMP}, s{v}, {128*3584}")
            a(f"s_lshl_b32 s{S_TMP2}, s{STILE}, 6")
            a(f"s_add_u32 s{S_TMP}, s{S_TMP}, s{S_TMP2}")
            for t in range(32):
                a(f"buffer_load_dword v{WC+t}, v{vt0}, s[{S_WG}:{S_WG+3}], s{S_TMP} offen nt")
                a(f"buffer_load_dword v{WC+32+t}, v{vt0}, s[{S_WU}:{S_WU+3}], s{S_TMP} offen nt")
                if t < 31:
                    a(f"s_add_u32 s{S_TMP}, s{S_TMP}, 3584")

        def f1b_loads():
            a(f"s_sub_u32 s{S_TMP}, s2, {F1B_0}")
            a(f"s_and_b32 s{STILE}, s{S_TMP}, 7")
            a(f"s_lshl_b32 s{STILE}, s{STILE}, 3")
            a(f"s_lshr_b32 s{S_TMP}, s{S_TMP}, 3")
            a(f"s_add_u32 s{STILE}, s{STILE}, s{S_TMP}")
            a(f"s_add_u32 s{STILE}, s{STILE}, 32")
            a(f"v_lshlrev_b32 v{vt0}, 10, v{vB}")
            a(f"v_lshl_add_u32 v{vt0}, v{vG}, 6, v{vt0}")
            a(f"v_lshl_add_u32 v{vt0}, v{vU}, 4, v{vt0}")
            a(f"s_lshl_b32 s{S_TMP}, s{v}, 8")
            a(f"buffer_load_dwordx4 v[{vCc}:{vCc+3}], v{vt0}, s[{S_C}:{S_C+3}], s{S_TMP} offen")
            a(f"v_mul_u32_u24 v{vt0}, {32*6144}, v{vG}")
            a(f"v_and_b32 v{vt1}, 15, v0")
            a(f"v_lshl_add_u32 v{vt0}, v{vt1}, 2, v{vt0}")
            a(f"s_mul_i32 s{S_TMP}, s{v}, {128*6144}")
            a(f"s_lshl_b32 s{S_TMP2}, s{STILE}, 6")
            a(f"s_add_u32 s{S_TMP}, s{S_TMP}, s{S_TMP2}")
            for t in range(32):
                a(f"buffer_load_dword v{WC+t}, v{vt0}, s[{S_WM}:{S_WM+3}], s{S_TMP} offen nt")
                if t < 31:
                    a(f"s_add_u32 s{S_TMP}, s{S_TMP}, 6144")

        def f1b_compute():
            DU = W0 + 8
            BB = W0 + 16
            ACC = W0
            a("s_waitcnt vmcnt(32)")
            for i in range(4):
                a(f"v_lshlrev_b32 v{DU+2*i}, 16, v{vCc+i}")
                a(f"v_and_b32 v{DU+2*i+1}, s{S_HI16}, v{vCc+i}")
            for i in range(8):
                a(f"v_mul_f32 v{BB+i}, 0xbfb8aa3b, v{DU+i}")
            for i in range(8):
                a(f"v_exp_f32 v{BB+i}, v{BB+i}")
            self.nop(1)
            for i in range(8):
                a(f"v_add_f32 v{BB+i}, 1.0, v{BB+i}")
            for i in range(8):
                a(f"v_rcp_f32 v{BB+i}, v{BB+i}")
            self.nop(1)
            for i in range(8):
                a(f"v_mul_f32 v{DU+i}, v{DU+i}, v{BB+i}")
            for i in range(8):
                a(f"v_cvt_pk_bf16_f32 v{DU+i}, v{DU+i}, v{DU+i}")
            self.nop(1)
            for T in range(8):
                us = T//2
                bb = BB + 4*(T & 1)
                for j in range(4):
                    a(f"v_and_b32_dpp v{bb+j}, v{DU+4*(T%2)+j}, v{vMe} quad_perm:[{us},{us},{us},{us}] row_mask:0xf bank_mask:0xf")
                a(f"s_waitcnt vmcnt({28 - 4*T})")
                self.nop(1)
                c = "0" if T == 0 else f"v[{ACC}:{ACC+3}]"
                a(f"v_mfma_f32_16x16x32_bf16 v[{ACC}:{ACC+3}], v[{WC+4*T}:{WC+4*T+3}], v[{bb}:{bb+3}], {c}")
            self.nop(8)
            a(f"s_lshl_b32 s{S_TMP}, s{v}, 10")
            a(f"v_add_u32 v{vt0}, s{S_TMP}, v{vL16}")
            a(f"ds_write_b128 v{vt0}, v[{ACC}:{ACC+3}] offset:{L_F1P}")
            self.lds_bar(0, 4, vt0, vt1)
            a(f"s_lshl_b32 s{S_TMP}, s{v}, 2")
            a(f"v_add_u32 v{vt0}, s{S_TMP}, v{vL16}")
            for i in range(4):
                a(f"ds_read_b32 v{DU+i}, v{vt0} offset:{L_F1P+1024*i}")
            a("s_waitcnt lgkmcnt(0)")
            a(f"v_add_f32 v{DU}, v{DU}, v{DU+1}")
            a(f"v_add_f32 v{DU+2}, v{DU+2}, v{DU+3}")
            a(f"v_add_f32 v{DU}, v{DU}, v{DU+2}")
            a(f"v_cvt_pk_bf16_f32 v{DU}, v{DU}, v{DU}")
            a(f"v_lshl_or_b32 v{DU}, v{DU}, 16, v{vT}")
            a(f"v_mul_u32_u24 v{vt0}, {3072*4}, v{vB}")
            a(f"v_lshl_add_u32 v{vt0}, v{vG}, 5, v{vt0}")
            a(f"v_and_b32 v{vt1}, 1, v0")
            a(f"v_lshl_add_u32 v{vt0}, v{vt1}, 2, v{vt0}")
            a(f"s_lshl_b32 s{S_TMP}, s{STILE}, 7")
            a(f"s_lshl_b32 s{S_TMP2}, s{v}, 3")
            a(f"s_add_u32 s{S_TMP}, s{S_TMP}, s{S_TMP2}")
            a(f"s_add_u32 s{S_TMP}, s{S_TMP}, {WS_MOD}")
            a("s_mov_b32 exec_lo, 0x33333333")
            a("s_mov_b32 exec_hi, 0x33333333")
            a(f"buffer_store_dword v{DU}, v{vt0}, s[{S_WS}:{S_WS+3}], s{S_TMP} offen sc1")
            a("s_mov_b64 exec, -1")

        a("L_s_nf:")
        if self.wearly:
            t1_loads()
            a(f"s_cmp_ge_u32 s2, {F1B_0}")
            a("s_cbranch_scc1 L_s_nf1b")
            t2_wloads()
            a("s_branch L_s_nf1c")
            a("L_s_nf1b:")
            a(f"s_cmp_ge_u32 s2, {F1B_0 + F1B_N}")
            a("s_cbranch_scc1 L_s_nf1c")
            f1b_loads()
            a("L_s_nf1c:")
        a("s_waitcnt lgkmcnt(0)")
        a("s_barrier")
        self.get_tag(vT)
        self.masks(vM0, vM1, vt0)
        self.masks(vMe, None, vt0, four=False)
        self.stamp(0, W0+8)
        if self.wearly:
            a(f"s_cmp_lt_u32 s2, {F1B_0}")
            a("s_cbranch_scc1 L_s_join")
            a(f"s_cmp_ge_u32 s2, {F1B_0 + F1B_N}")
            a("s_cbranch_scc1 L_s_join")
            f1b_compute()
        a("L_s_join:")
        QD = W0
        a(f"v_lshrrev_b32 v{vt2}, 5, v0")
        a(f"v_lshlrev_b32 v{vt2}, 16, v{vt2}")
        a(f"v_bfe_u32 v{vt3}, v0, 4, 1")
        a(f"v_lshl_add_u32 v{vt2}, v{vt3}, 10, v{vt2}")
        a(f"v_lshl_add_u32 v{vt2}, v{vB}, 8, v{vt2}")
        a(f"v_lshl_add_u32 v{vt2}, v{vU}, 4, v{vt2}")
        a(f"s_bfe_u32 s{S_TMP}, s2, 0x20003")
        a(f"s_and_b32 s{S_TMP2}, s2, 1")
        a(f"s_lshl_b32 s{S_TMP2}, s{S_TMP2}, 2")
        a(f"s_add_u32 s{S_TMP}, s{S_TMP}, s{S_TMP2}")
        a(f"s_lshl_b32 s{S_TMP}, s{S_TMP}, 2")
        a(f"s_add_u32 s{S_TMP}, s{S_TMP}, s{v}")
        a(f"s_lshl_b32 s{S_TMP}, s{S_TMP}, 11")
        a(f"s_bfe_u32 s{S_TMP2}, s2, 0x20001")
        a(f"s_lshl_b32 s{S_TMP2}, s{S_TMP2}, 6")
        a(f"s_add_u32 s{S_TMP}, s{S_TMP}, s{S_TMP2}")
        a(f"s_add_u32 s{S_SO}, s{S_TMP}, {WS_QP}")
        a(f"s_add_u32 s97, s{S_SO}, {1 << 17}")
        a(f"s_add_u32 s98, s{S_SO}, {2 << 17}")
        a(f"s_add_u32 s99, s{S_SO}, {3 << 17}")

        def iss():
            for q, sreg in enumerate([S_SO, 97, 98, 99]):
                a(f"buffer_load_dwordx4 v[{QD+4*q}:{QD+4*q+3}], v{vt2}, s[{S_WS}:{S_WS+3}], s{sreg} offen sc1")
        self.poll(iss, list(range(QD, QD+16)), vA, vO, vT)
        for r in range(4):
            a(f"v_add_f32 v{QD+r}, v{QD+r}, v{QD+4+r}")
            a(f"v_add_f32 v{QD+8+r}, v{QD+8+r}, v{QD+12+r}")
        for r in range(4):
            a(f"v_add_f32 v{QD+r}, v{QD+r}, v{QD+8+r}")
        self.nop(2)
        a(f"v_permlane32_swap_b32 v{QD}, v{QD+2}")
        a(f"v_permlane32_swap_b32 v{QD+1}, v{QD+3}")
        a(f"v_add_f32 v{QD}, v{QD}, v{QD+2}")
        a(f"v_add_f32 v{QD+1}, v{QD+1}, v{QD+3}")
        a(f"v_cvt_pk_bf16_f32 v{QD}, v{QD}, v{QD+1}")
        a(f"v_lshlrev_b32 v{vt0}, 6, v{vB}")
        a(f"v_lshrrev_b32 v{vt1}, 5, v0")
        a(f"v_lshl_add_u32 v{vt0}, v{vt1}, 5, v{vt0}")
        a(f"v_lshl_add_u32 v{vt0}, v{vt3}, 3, v{vt0}")
        a(f"v_lshl_add_u32 v{vt0}, v{vU}, 1, v{vt0}")
        a(f"s_lshl_b32 s{S_TMP}, s{v}, 8")
        a(f"v_add_u32 v{vt0}, s{S_TMP}, v{vt0}")
        a(f"ds_write_b16 v{vt0}, v{QD} offset:{L_QL}")
        a(f"ds_write_b16_d16_hi v{vt0}, v{QD} offset:{L_QL+16}")
        a("s_waitcnt lgkmcnt(0)")
        a(f"v_mov_b32 v{vt0}, {L_CNT+8}")
        a(f"v_mov_b32 v{vt1}, 1")
        a("s_mov_b64 exec, 1")
        a(f"ds_add_u32 v{vt0}, v{vt1}")
        a("s_mov_b64 exec, -1")
        self.stamp(4, W0+20)
        SBC = WA
        if self.wearly:
            a(f"s_cmp_ge_u32 s2, {NFRONT}")
            a("s_cbranch_scc1 L_s_prep_done")
            t1_loads()
        else:
            t1_loads()
            a(f"s_cmp_lt_u32 s2, {NFRONT}")
            a("s_cbranch_scc1 L_s_prep_done")
            a(f"s_cmp_ge_u32 s2, {F1B_0}")
            a("s_cbranch_scc1 L_s_nf1b")
            if not self.t2late:
                t2_wloads()
            a("s_branch L_s_prep_done")
            a("L_s_nf1b:")
            a(f"s_cmp_ge_u32 s2, {F1B_0 + F1B_N}")
            a("s_cbranch_scc1 L_s_prep_done")
            f1b_loads()
            f1b_compute()
        a("L_s_prep_done:")
        OA, OB, MLr = W0, W0+4, W0+8
        a(f"v_lshlrev_b32 v{vt2}, 17, v{vB}")
        a(f"v_lshl_add_u32 v{vt2}, v{vU}, 11, v{vt2}")
        a(f"v_lshl_add_u32 v{vt2}, v{vG}, 4, v{vt2}")
        a(f"s_lshr_b32 s{S_TMP}, s2, 5")
        a(f"s_lshl_b32 s{S_SO}, s{S_TMP}, 14")
        a(f"s_and_b32 s{S_TMP}, s{v}, 1")
        a(f"s_lshl_b32 s{S_TMP}, s{S_TMP}, 10")
        a(f"s_add_u32 s{S_SO}, s{S_SO}, s{S_TMP}")
        a(f"s_bfe_u32 s{S_TMP}, s2, 0x10002")
        a(f"s_lshl_b32 s{S_TMP}, s{S_TMP}, 1")
        a(f"s_lshr_b32 s{S_TMP2}, s{v}, 1")
        a(f"s_add_u32 s{S_TMP}, s{S_TMP}, s{S_TMP2}")
        a(f"s_lshl_b32 s{S_TMP}, s{S_TMP}, 8")
        a(f"s_add_u32 s{S_SO}, s{S_SO}, s{S_TMP}")
        a(f"s_bfe_u32 s{S_TMP}, s2, 0x20003")
        a(f"s_lshl_b32 s{S_TMP2}, s{S_TMP}, 6")
        a(f"s_add_u32 s{S_SO}, s{S_SO}, s{S_TMP2}")
        a(f"s_add_u32 s{S_SO}, s{S_SO}, {WS_OPP}")
        a(f"s_add_u32 s97, s{S_SO}, 8192")
        a(f"v_lshlrev_b32 v{vt3}, 12, v{vB}")
        a(f"v_lshl_add_u32 v{vt3}, v{vU}, 4, v{vt3}")
        a(f"s_lshr_b32 s98, s2, 3")
        a(f"s_lshl_b32 s98, s98, 7")
        a(f"s_add_u32 s98, s98, {WS_ML}")
        self.lds_wait(3, 8, vt0, vt1)
        self.stamp(5, W0+20)
        if self.t2late == 2:
            a(f"s_cmp_lt_u32 s2, {T2_0}")
            a("s_cbranch_scc1 L_s_t2w_done")
            a(f"s_cmp_ge_u32 s2, {T2_0+T2_N}")
            a("s_cbranch_scc1 L_s_t2w_done")
            self.lds_wait(5, 2, vt0, vt1, sleep=False)
            t2_wloads()
            a("L_s_t2w_done:")

        def iss():
            a(f"buffer_load_dwordx4 v[{OA}:{OA+3}], v{vt2}, s[{S_WS}:{S_WS+3}], s{S_SO} offen sc1")
            a(f"buffer_load_dwordx4 v[{OB}:{OB+3}], v{vt2}, s[{S_WS}:{S_WS+3}], s97 offen sc1")
            a(f"buffer_load_dwordx4 v[{MLr}:{MLr+3}], v{vt3}, s[{S_WS}:{S_WS+3}], s98 offen sc1")
            a(f"buffer_load_dwordx4 v[{MLr+4}:{MLr+7}], v{vt3}, s[{S_WS}:{S_WS+3}], s98 offen offset:64 sc1")
        self.poll3(iss, range(OA, OA+8), range(MLr, MLr+8), vA, vO, vt0, vt1, vT, self.g_opp, self.sl[0])
        self.stamp(6, 8)
        m0, l0, m1, l1 = MLr, MLr+1, MLr+4, MLr+5
        a(f"v_and_b32 v{m0}, s{S_HI16}, v{m0}")
        a(f"v_and_b32 v{m1}, s{S_HI16}, v{m1}")
        a(f"v_lshrrev_b32 v{MLr+2}, 16, v{MLr+2}")
        a(f"v_lshrrev_b32 v{MLr+6}, 16, v{MLr+6}")
        a(f"v_and_or_b32 v{l0}, v{l0}, s{S_HI16}, v{MLr+2}")
        a(f"v_and_or_b32 v{l1}, v{l1}, s{S_HI16}, v{MLr+6}")
        a(f"v_max_f32 v{vt0}, v{m0}, v{m1}")
        self.allreduce(vt0, vt1, "v_max_f32", rows=False)
        a(f"v_sub_f32 v{m0}, v{m0}, v{vt0}")
        a(f"v_sub_f32 v{m1}, v{m1}, v{vt0}")
        a(f"v_mul_f32 v{m0}, 0x3fb8aa3b, v{m0}")
        a(f"v_mul_f32 v{m1}, 0x3fb8aa3b, v{m1}")
        a(f"v_exp_f32 v{m0}, v{m0}")
        a(f"v_exp_f32 v{m1}, v{m1}")
        self.nop(1)
        a(f"v_mul_f32 v{l0}, v{m0}, v{l0}")
        a(f"v_fmac_f32 v{l0}, v{m1}, v{l1}")
        for r in range(4):
            a(f"v_mul_f32 v{OA+r}, v{m0}, v{OA+r}")
        for r in range(4):
            a(f"v_fmac_f32 v{OA+r}, v{m1}, v{OB+r}")
        self.nop(2)
        for x in [l0] + [OA+r for r in range(4)]:
            a(f"v_add_f32_dpp v{x}, v{x}, v{x} quad_perm:[1,0,3,2] row_mask:0xf bank_mask:0xf")
        for x in [l0] + [OA+r for r in range(4)]:
            a(f"v_add_f32_dpp v{x}, v{x}, v{x} quad_perm:[2,3,0,1] row_mask:0xf bank_mask:0xf")
        a(f"v_rcp_f32 v{l0}, v{l0}")
        self.nop(1)
        for r in range(4):
            a(f"v_mul_f32 v{OA+r}, v{OA+r}, v{l0}")
        for r in range(4):
            a(f"v_cvt_pk_bf16_f32 v{OA+r}, v{OA+r}, v{OA+r}")
        D1, D2 = W0+4, W0+8
        XB = WC + 88
        self.gemv_x4(OA, WB, 4, XB, D1, D2, vM0, vM1)

        def ap_addr():
            a(f"s_lshl_b32 s{S_TMP}, s2, 11")
            a(f"s_add_u32 s{S_TMP}, s{S_TMP}, {WS_AP}")
        self.cu_reduce([(D1, D2)], None, L_RP, ap_addr, vt0, vt1, vT, vL16, WB)
        self.stamp(7, 8)
        a(f"s_cmp_lt_u32 s2, {T2_0}")
        a("s_cbranch_scc1 L_s_r")
        a(f"s_cmp_ge_u32 s2, {T2_0+T2_N}")
        a("s_cbranch_scc1 L_end")
        if self.t2late == 1:
            t2_wloads()
        a(f"v_lshl_add_u32 v{vt0}, v{vG}, 13, v{vC16}")
        a(f"s_lshl_b32 s{S_TMP}, s{STILE}, 15")
        a(f"s_lshl_b32 s{S_TMP2}, s{v}, 8")
        a(f"s_add_u32 s{S_TMP}, s{S_TMP}, s{S_TMP2}")
        for j in range(8):
            a(f"buffer_load_dwordx4 v[{WC+64+4*j}:{WC+64+4*j+3}], v{vt0}, s[{S_WD}:{S_WD+3}], s{S_TMP} offen nt")
            if j < 7:
                a(f"s_add_u32 s{S_TMP}, s{S_TMP}, 1024")
        a(f"v_mul_u32_u24 v{vt2}, {3072*4}, v{vB}")
        a(f"v_lshl_add_u32 v{vt2}, v{vG}, 7, v{vt2}")
        a(f"v_lshl_add_u32 v{vt2}, v{vU}, 5, v{vt2}")
        a(f"s_lshl_b32 s{S_SO}, s{v}, 9")
        a(f"s_add_u32 s{S_SO}, s{S_SO}, {WS_MOD + 1536*4}")
        SB0 = W0

        def iss():
            a(f"buffer_load_dwordx4 v[{SB0}:{SB0+3}], v{vt2}, s[{S_WS}:{S_WS+3}], s{S_SO} offen sc1")
            a(f"buffer_load_dwordx4 v[{SB0+4}:{SB0+7}], v{vt2}, s[{S_WS}:{S_WS+3}], s{S_SO} offen offset:16 sc1")
            a(f"buffer_load_dwordx4 v[{SB0+8}:{SB0+11}], v{vt2}, s[{S_WS}:{S_WS+3}], s{S_SO} offen offset:2048 sc1")
            a(f"buffer_load_dwordx4 v[{SB0+12}:{SB0+15}], v{vt2}, s[{S_WS}:{S_WS+3}], s{S_SO} offen offset:2064 sc1")
        self.poll(iss, list(range(SB0, SB0+16)), vA, vO, vT, mask=0xffff)
        for i in range(8):
            a(f"v_and_b32 v{SBC+i}, s{S_HI16}, v{SB0+i}")
            a(f"v_and_b32 v{SB0+8+i}, s{S_HI16}, v{SB0+8+i}")
        for i in range(8):
            a(f"v_add_f32 v{SBC+8+i}, 1.0, v{SB0+8+i}")
        for i in range(0, 8, 2):
            self.round2(SBC+8+i, SBC+8+i+1, vt0 if (i//2) % 2 == 0 else vt1)
        X1r = W0
        a(f"v_lshlrev_b32 v{vt2}, 11, v{vB}")
        a(f"v_lshl_add_u32 v{vt2}, v{vG}, 7, v{vt2}")
        a(f"v_lshl_add_u32 v{vt2}, v{vU}, 5, v{vt2}")
        a(f"s_lshl_b32 s{S_SO}, s{v}, 9")
        a(f"s_add_u32 s{S_SO}, s{S_SO}, {WS_X1}")
        a(f"v_lshlrev_b32 v{vt3}, 5, v{vB}")
        a(f"s_lshl_b32 s{S_TMP}, s{v}, 3")
        a(f"v_add_u32 v{vt1}, s{S_TMP}, v{vt3}")

        def iss():
            a(f"buffer_load_dwordx4 v[{X1r}:{X1r+3}], v{vt2}, s[{S_WS}:{S_WS+3}], s{S_SO} offen sc1")
            a(f"buffer_load_dwordx4 v[{X1r+4}:{X1r+7}], v{vt2}, s[{S_WS}:{S_WS+3}], s{S_SO} offen offset:16 sc1")
        self.poll3(iss, None, range(X1r, X1r+8), vA, vO, vA, vO, vT, self.g_x1, self.sl[2])
        self.stamp(10, 8)
        for i in range(8):
            a(f"v_and_b32 v{X1r+i}, s{S_HI16}, v{X1r+i}")
        s1, s2_ = vA, vO
        self.ln_sum(X1r, 8, s1, vt0)
        a(f"v_mul_f32 v{s2_}, v{X1r}, v{X1r}")
        a(f"v_mul_f32 v{vt2}, v{X1r+1}, v{X1r+1}")
        for i in range(2, 8, 2):
            a(f"v_fmac_f32 v{s2_}, v{X1r+i}, v{X1r+i}")
            a(f"v_fmac_f32 v{vt2}, v{X1r+i+1}, v{X1r+i+1}")
        a(f"v_add_f32 v{s2_}, v{s2_}, v{vt2}")
        self.allreduce2(s1, s2_, vt0, vt2)
        a("s_mov_b64 exec, 0x1111")
        a(f"ds_write_b64 v{vt1}, v[{s1}:{s2_}] offset:{L_ST}")
        a("s_mov_b64 exec, -1")
        a("s_waitcnt lgkmcnt(0)")
        a("s_barrier")
        ST = W0+8
        a(f"ds_read_b128 v[{ST}:{ST+3}], v{vt3} offset:{L_ST}")
        a(f"ds_read_b128 v[{ST+4}:{ST+7}], v{vt3} offset:{L_ST+16}")
        a("s_waitcnt lgkmcnt(0)")
        a(f"v_add_f32 v{s1}, v{ST}, v{ST+2}")
        a(f"v_add_f32 v{vt0}, v{ST+4}, v{ST+6}")
        a(f"v_add_f32 v{s2_}, v{ST+1}, v{ST+3}")
        a(f"v_add_f32 v{vt1}, v{ST+5}, v{ST+7}")
        a(f"v_add_f32 v{s1}, v{s1}, v{vt0}")
        a(f"v_add_f32 v{s2_}, v{s2_}, v{vt1}")
        a(f"v_mul_f32 v{s1}, 0x3b000000, v{s1}")
        a(f"v_mul_f32 v{s2_}, 0x3b000000, v{s2_}")
        a(f"v_fma_f32 v{s2_}, -v{s1}, v{s1}, v{s2_}")
        a(f"v_max_f32 v{s2_}, 0, v{s2_}")
        self.ln_fin(s1, s2_, vt0)
        self.ln_norm(X1r, 8, s1, s2_, vt0, vt1)
        for i in range(8):
            a(f"v_mul_f32 v{X1r+i}, v{X1r+i}, v{SBC+8+i}")
        for i in range(0, 8, 2):
            self.round2(X1r+i, X1r+i+1, vt0 if (i//2) % 2 == 0 else vt1)
        for i in range(8):
            a(f"v_add_f32 v{X1r+i}, v{X1r+i}, v{SBC+i}")
        for i in range(8):
            a(f"v_cvt_pk_bf16_f32 v{X1r+i}, v{X1r+i}, v{X1r+i}")
        BB = WB
        AG, AU = W0+8, W0+12
        a("s_waitcnt vmcnt(0)")
        for T in range(8):
            us = T//2
            bb = BB + 4*(T & 1)
            for j in range(4):
                a(f"v_and_b32_dpp v{bb+j}, v{X1r+4*(T%2)+j}, v{vMe} quad_perm:[{us},{us},{us},{us}] row_mask:0xf bank_mask:0xf")
            self.nop(2)
            c = "0" if T == 0 else f"v[{AG}:{AG+3}]"
            a(f"v_mfma_f32_16x16x32_bf16 v[{AG}:{AG+3}], v[{WC+4*T}:{WC+4*T+3}], v[{bb}:{bb+3}], {c}")
            c = "0" if T == 0 else f"v[{AU}:{AU+3}]"
            a(f"v_mfma_f32_16x16x32_bf16 v[{AU}:{AU+3}], v[{WC+32+4*T}:{WC+32+4*T+3}], v[{bb}:{bb+3}], {c}")
        a(f"v_lshlrev_b32 v{vt0}, 9, v{vB}")
        a(f"v_lshl_add_u32 v{vt0}, v{vG}, 7, v{vt0}")
        a(f"v_lshl_add_u32 v{vt2}, v{vU}, 5, v{vt0}")
        a(f"v_and_b32 v{vt1}, 1, v0")
        a(f"v_lshl_add_u32 v{vt0}, v{vt1}, 4, v{vt0}")
        a(f"s_lshl_b32 s{S_TMP}, s{v}, 2")
        a(f"v_add_u32 v{vt0}, s{S_TMP}, v{vt0}")
        self.nop(4)
        a("s_mov_b32 exec_lo, 0x33333333")
        a("s_mov_b32 exec_hi, 0x33333333")
        for r in range(4):
            a(f"ds_write_b32 v{vt0}, v{AG+r} offset:{L_GU + 32*r}")
            a(f"ds_write_b32 v{vt0}, v{AU+r} offset:{L_GU + 2048 + 32*r}")
        a("s_mov_b64 exec, -1")
        a("s_waitcnt lgkmcnt(0)")
        a("s_barrier")
        GR = WB
        a(f"ds_read_b128 v[{GR}:{GR+3}], v{vt2} offset:{L_GU}")
        a(f"ds_read_b128 v[{GR+4}:{GR+7}], v{vt2} offset:{L_GU+16}")
        a(f"ds_read_b128 v[{GR+8}:{GR+11}], v{vt2} offset:{L_GU+2048}")
        a(f"ds_read_b128 v[{GR+12}:{GR+15}], v{vt2} offset:{L_GU+2048+16}")
        a(f"s_lshl_b32 s{S_TMP}, s{STILE}, 2")
        a(f"s_add_u32 s{S_TMP}, s{S_TMP}, s{v}")
        a(f"s_lshl_b32 s{S_TMP}, s{S_TMP}, 11")
        a(f"s_add_u32 s{S_TMP}, s{S_TMP}, {WS_DP}")
        a("s_waitcnt lgkmcnt(0)")
        for i in range(4):
            g = GR + 4*i
            a(f"v_add_f32 v{g}, v{g}, v{g+1}")
            a(f"v_add_f32 v{g+2}, v{g+2}, v{g+3}")
        for i in range(4):
            g = GR + 4*i
            a(f"v_add_f32 v{g}, v{g}, v{g+2}")
        g0, g1, u0, u1 = GR, GR+4, GR+8, GR+12
        self.round2(g0, g1, vt0)
        self.round2(u0, u1, vt1)
        a(f"v_mul_f32 v{g0+1}, 0xbfb8aa3b, v{g0}")
        a(f"v_mul_f32 v{g1+1}, 0xbfb8aa3b, v{g1}")
        a(f"v_exp_f32 v{g0+1}, v{g0+1}")
        a(f"v_exp_f32 v{g1+1}, v{g1+1}")
        self.nop(1)
        a(f"v_add_f32 v{g0+1}, 1.0, v{g0+1}")
        a(f"v_add_f32 v{g1+1}, 1.0, v{g1+1}")
        a(f"v_rcp_f32 v{g0+1}, v{g0+1}")
        a(f"v_rcp_f32 v{g1+1}, v{g1+1}")
        self.nop(1)
        a(f"v_mul_f32 v{g0}, v{g0}, v{g0+1}")
        a(f"v_mul_f32 v{g1}, v{g1}, v{g1+1}")
        self.round2(g0, g1, vt0)
        a(f"v_mul_f32 v{g0}, v{g0}, v{u0}")
        a(f"v_mul_f32 v{g1}, v{g1}, v{u1}")
        AD = W0
        a(f"v_cvt_pk_bf16_f32 v{AD}, v{g0}, v{g0}")
        a(f"v_cvt_pk_bf16_f32 v{AD+1}, v{g1}, v{g1}")
        self.nop(1)
        XB = WB
        for j in range(8):
            us = j//2
            a(f"v_and_b32_dpp v{XB+2*j}, v{AD+(j%2)}, v{vM0} quad_perm:[{us},{us},{us},{us}] row_mask:0xf bank_mask:0xf")
            a(f"v_and_b32_dpp v{XB+2*j+1}, v{AD+(j%2)}, v{vM1} quad_perm:[{us},{us},{us},{us}] row_mask:0xf bank_mask:0xf")
        self.nop(2)
        D1, D2, D3, D4 = W0+4, W0+8, W0+12, W0+16
        for j in range(8):
            w = WC + 64 + 4*j
            da, db = (D1, D2) if j % 2 == 0 else (D3, D4)
            c1 = "0" if j < 2 else f"v[{da}:{da+3}]"
            c2 = "0" if j < 2 else f"v[{db}:{db+3}]"
            a(f"v_mfma_f32_16x16x16_bf16 v[{da}:{da+3}], v[{w}:{w+1}], v[{XB+2*j}:{XB+2*j+1}], {c1}")
            a(f"v_mfma_f32_16x16x16_bf16 v[{db}:{db+3}], v[{w+2}:{w+3}], v[{XB+2*j}:{XB+2*j+1}], {c2}")
        self.nop(8)
        for r in range(4):
            a(f"v_add_f32 v{D1+r}, v{D1+r}, v{D3+r}")
        for r in range(4):
            a(f"v_add_f32 v{D2+r}, v{D2+r}, v{D4+r}")
        for r in range(4):
            self.tag32(D1+r, vT)
        a(f"buffer_store_dwordx4 v[{D1}:{D1+3}], v{vL16}, s[{S_WS}:{S_WS+3}], s{S_TMP} offen sc1")
        for r in range(4):
            self.tag32(D2+r, vT)
        a(f"buffer_store_dwordx4 v[{D2}:{D2+3}], v{vL16}, s[{S_WS}:{S_WS+3}], s{S_TMP} offen offset:1024 sc1")
        self.stamp(11, 8)
        a("s_endpgm")
        a("L_s_r:")
        a(f"s_cmp_lg_u32 s{v}, 2")
        a("s_cbranch_scc1 L_end")
        SCOL = 100
        a(f"s_lshr_b32 s{SCOL}, s2, 3")
        a(f"s_lshl_b32 s{SCOL}, s{SCOL}, 5")
        a(f"s_bfe_u32 s{S_TMP}, s2, 0x10002")
        a(f"s_lshl_b32 s{S_TMP}, s{S_TMP}, 2")
        a(f"s_add_u32 s{SCOL}, s{SCOL}, s{S_TMP}")
        a(f"s_and_b32 s{S_TMP}, s2, 3")
        a(f"s_lshl_b32 s{S_TMP2}, s{S_TMP}, 9")
        a(f"s_add_u32 s{S_TMP2}, s{S_TMP2}, s{SCOL}")
        a(f"s_mul_i32 s{S_TMP}, s{S_TMP}, 3072")
        a(f"s_add_u32 s{SCOL}, s{SCOL}, s{S_TMP}")
        vCol = SBC + 3
        a(f"v_lshl_add_u32 v{vt1}, v{vG}, 3, v{vU}")
        a(f"v_add_u32 v{vCol}, s{S_TMP2}, v{vt1}")
        a(f"v_lshlrev_b32 v{vt0}, 1, v{vCol}")
        a(f"buffer_load_ushort v{SBC+2}, v{vt0}, s[{S_X}:{S_X+3}], 0 offen")
        a(f"v_add_u32 v{vt2}, s{SCOL}, v{vt1}")
        a(f"v_lshlrev_b32 v{vt2}, 2, v{vt2}")
        a(f"s_mov_b32 s{S_SO}, {WS_MOD + 1024*4}")
        a(f"s_mov_b32 s97, {WS_MOD + 2560*4}")

        def iss():
            a(f"buffer_load_dword v{SBC}, v{vt2}, s[{S_WS}:{S_WS+3}], s{S_SO} offen sc1")
            a(f"buffer_load_dword v{SBC+1}, v{vt2}, s[{S_WS}:{S_WS+3}], s97 offen sc1")
        self.poll(iss, [SBC, SBC+1, SBC+1], vA, vO, vT, mask=0xffff)
        a(f"v_and_b32 v{SBC}, s{S_HI16}, v{SBC}")
        a(f"v_and_b32 v{SBC+1}, s{S_HI16}, v{SBC+1}")
        a(f"v_lshlrev_b32 v{SBC+2}, 16, v{SBC+2}")
        RD = WC
        RS = [WC+16, WC+32, WC+48][:self.nsets]
        SRB = 101
        a(f"s_lshr_b32 s{SRB}, s2, 5")
        a(f"s_lshl_b32 s{SRB}, s{SRB}, 11")
        a(f"s_bfe_u32 s{S_TMP}, s2, 0x10002")
        a(f"s_lshl_b32 s{S_TMP}, s{S_TMP}, 10")
        a(f"s_add_u32 s{SRB}, s{SRB}, s{S_TMP}")
        a(f"s_bfe_u32 s{S_TMP}, s2, 0x20003")
        a(f"s_lshl_b32 s{S_TMP}, s{S_TMP}, 8")
        a(f"s_add_u32 s{SRB}, s{SRB}, s{S_TMP}")
        a(f"s_and_b32 s{S_TMP}, s2, 3")
        a(f"s_lshl_b32 s{S_TMP}, s{S_TMP}, 6")
        a(f"s_add_u32 s{SRB}, s{SRB}, s{S_TMP}")
        a(f"v_lshrrev_b32 v{vt2}, 2, v0")
        a(f"v_lshlrev_b32 v{vt2}, 13, v{vt2}")
        a(f"v_lshl_add_u32 v{vt2}, v{vU}, 4, v{vt2}")
        a(f"v_and_b32 v{vt3}, 0xffff, v{vt2}")
        QS = [S_SO, 97, 98, 99]
        for q in range(4):
            a(f"s_add_u32 s{QS[q]}, s{SRB}, {WS_AP + q*131072}")

        def iss():
            for q in range(4):
                a(f"buffer_load_dwordx4 v[{RD+4*q}:{RD+4*q+3}], v{vt2}, s[{S_WS}:{S_WS+3}], s{QS[q]} offen sc1")
        self.poll3(iss, range(RD, RD+16), None, vA, vO, vA, vO, vT, self.g_r, self.sl[1])
        self.stamp(12, 8)
        self.reduce_r(RD, False)
        vga, vgb, vx = SBC, SBC+1, SBC+2
        self.round1(RD)
        a(f"v_mul_f32 v{RD}, v{vga}, v{RD}")
        self.round1(RD)
        a(f"v_add_f32 v{vx}, v{vx}, v{RD}")
        a(f"v_cvt_pk_bf16_f32 v{vx}, v{vx}, v{vx}")
        a(f"v_lshl_or_b32 v{RD}, v{vx}, 16, v{vT}")
        a(f"v_lshlrev_b32 v{vt1}, 2, v{vCol}")
        a(f"s_mov_b32 s{S_TMP}, {WS_X1}")
        a("s_mov_b32 exec_lo, 0x000f000f")
        a("s_mov_b32 exec_hi, 0x000f000f")
        a(f"buffer_store_dword v{RD}, v{vt1}, s[{S_WS}:{S_WS+3}], s{S_TMP} offen sc1")
        a("s_mov_b64 exec, -1")
        a(f"v_and_b32 v{vx}, s{S_HI16}, v{vx}")
        a(f"v_lshlrev_b32 v{vCol}, 1, v{vCol}")
        self.stamp(13, 8)
        for q in range(4):
            a(f"s_add_u32 s{QS[q]}, s{SRB}, {WS_DP + q*131072}")

        def iss():
            for q in range(4):
                va = vt2 if q < 3 else vt3
                a(f"buffer_load_dwordx4 v[{RD+4*q}:{RD+4*q+3}], v{va}, s[{S_WS}:{S_WS+3}], s{QS[q]} offen sc1")
        self.poll3(iss, range(RD, RD+16), None, vA, vO, vA, vO, vT, self.g_r, self.sl[3])
        self.reduce_r(RD, True)
        self.round1(RD)
        a(f"v_mul_f32 v{RD}, v{vgb}, v{RD}")
        self.round1(RD)
        a(f"v_add_f32 v{RD}, v{vx}, v{RD}")
        a(f"v_cvt_pk_bf16_f32 v{RD}, v{RD}, v{RD}")
        a("s_mov_b32 exec_lo, 0x000f000f")
        a("s_mov_b32 exec_hi, 0x000f000f")
        a(f"buffer_store_short v{RD}, v{vCol}, s[{S_OUT}:{S_OUT+3}], 0 offen")
        a("s_mov_b64 exec, -1")
        self.stamp(14, 8)
        a(f"s_cmp_lg_u32 s2, {R_0}")
        a("s_cbranch_scc1 L_end")
        a(f"v_mov_b32 v{vt0}, s{S_E}")
        a(f"v_mov_b32 v{vt1}, {WS_E}")
        a("s_mov_b64 exec, 1")
        a(f"buffer_store_dword v{vt0}, v{vt1}, s[{S_WS}:{S_WS+3}], 0 offen sc1")
        a("s_endpgm")

    def reduce_r(self, RD, half_last):
        a = self.a
        for r in range(4):
            a(f"v_add_f32 v{RD+r}, v{RD+r}, v{RD+4+r}")
        if half_last:
            a("s_mov_b32 exec_hi, 0")
        for r in range(4):
            a(f"v_add_f32 v{RD+8+r}, v{RD+8+r}, v{RD+12+r}")
        if half_last:
            a("s_mov_b32 exec_hi, -1")
        for r in range(4):
            a(f"v_add_f32 v{RD+r}, v{RD+r}, v{RD+8+r}")
        self.nop(2)
        a(f"v_permlane32_swap_b32 v{RD}, v{RD+2}")
        a(f"v_permlane32_swap_b32 v{RD+1}, v{RD+3}")
        a(f"v_add_f32 v{RD}, v{RD}, v{RD+2}")
        a(f"v_add_f32 v{RD+1}, v{RD+1}, v{RD+3}")
        self.nop(2)
        a(f"v_permlane16_swap_b32 v{RD}, v{RD+1}")
        a(f"v_add_f32 v{RD}, v{RD}, v{RD+1}")
        self.nop(2)
        a(f"v_add_f32_dpp v{RD}, v{RD}, v{RD} row_ror:8 row_mask:0xf bank_mask:0xf")
        self.nop(2)
        a(f"v_add_f32_dpp v{RD}, v{RD}, v{RD} row_ror:4 row_mask:0xf bank_mask:0xf")

    def allreduce2(self, r1, r2, t1, t2):
        a = self.a
        self.nop(1)
        for qp in ("[1,0,3,2]", "[2,3,0,1]"):
            a(f"v_add_f32_dpp v{r1}, v{r1}, v{r1} quad_perm:{qp} row_mask:0xf bank_mask:0xf")
            a(f"v_add_f32_dpp v{r2}, v{r2}, v{r2} quad_perm:{qp} row_mask:0xf bank_mask:0xf")
            self.nop(1)
        for sw in ("v_permlane16_swap_b32", "v_permlane32_swap_b32"):
            a(f"v_mov_b32 v{t1}, v{r1}")
            a(f"v_mov_b32 v{t2}, v{r2}")
            self.nop(1)
            a(f"{sw} v{r1}, v{t1}")
            a(f"{sw} v{r2}, v{t2}")
            a(f"v_add_f32 v{r1}, v{r1}, v{t1}")
            a(f"v_add_f32 v{r2}, v{r2}, v{t2}")

    def reduce_q(self, RD, n):
        a = self.a
        idx = list(range(n))
        while len(idx) > 1:
            nxt = []
            for i in range(0, len(idx)-1, 2):
                for r in range(4):
                    a(f"v_add_f32 v{RD+4*idx[i]+r}, v{RD+4*idx[i]+r}, v{RD+4*idx[i+1]+r}")
                nxt.append(idx[i])
            if len(idx) % 2:
                nxt.append(idx[-1])
            idx = nxt
        self.nop(2)
        a(f"v_permlane32_swap_b32 v{RD}, v{RD+2}")
        a(f"v_permlane32_swap_b32 v{RD+1}, v{RD+3}")
        a(f"v_add_f32 v{RD}, v{RD}, v{RD+2}")
        a(f"v_add_f32 v{RD+1}, v{RD+1}, v{RD+3}")
        self.nop(2)
        a(f"v_permlane16_swap_b32 v{RD}, v{RD+1}")
        a(f"v_add_f32 v{RD}, v{RD}, v{RD+1}")

    def ln_sum(self, R, n, dst, t):
        a = self.a
        a(f"v_add_f32 v{dst}, v{R}, v{R+1}")
        a(f"v_add_f32 v{t}, v{R+2}, v{R+3}")
        for i in range(4, n, 2):
            a(f"v_add_f32 v{dst}, v{dst}, v{R+i}")
            a(f"v_add_f32 v{t}, v{t}, v{R+i+1}")
        a(f"v_add_f32 v{dst}, v{dst}, v{t}")

    def ln_fin(self, vMean, vVar, t):
        a = self.a
        self.round2(vMean, vVar, t)
        a(f"v_add_f32 v{vVar}, 0x3727c5ac, v{vVar}")
        self.round1(vVar)
        a(f"v_sqrt_f32 v{vVar}, v{vVar}")
        self.nop(1)
        self.round1(vVar)
        a(f"v_rcp_f32 v{vVar}, v{vVar}")
        self.nop(1)

    def ln_norm(self, Y, n, vMean, vRcp, t0, t1):
        a = self.a
        for i in range(n):
            a(f"v_sub_f32 v{Y+i}, v{Y+i}, v{vMean}")
        for i in range(0, n, 2):
            self.round2(Y+i, Y+i+1, t0 if (i//2) % 2 == 0 else t1)
        for i in range(n):
            a(f"v_mul_f32 v{Y+i}, v{Y+i}, v{vRcp}")
        for i in range(0, n, 2):
            self.round2(Y+i, Y+i+1, t0 if (i//2) % 2 == 0 else t1)

    def modulate(self, Y, n, SH, SCL, t0, t1, clean=False):
        a = self.a
        if not clean:
            for i in range(n):
                a(f"v_and_b32 v{SH+i}, s{S_HI16}, v{SH+i}")
                a(f"v_and_b32 v{SCL+i}, s{S_HI16}, v{SCL+i}")
        for i in range(n):
            a(f"v_add_f32 v{SCL+i}, 1.0, v{SCL+i}")
        for i in range(0, n, 2):
            self.round2(SCL+i, SCL+i+1, t0 if (i//2) % 2 == 0 else t1)
        for i in range(n):
            a(f"v_mul_f32 v{Y+i}, v{Y+i}, v{SCL+i}")
        for i in range(0, n, 2):
            self.round2(Y+i, Y+i+1, t0 if (i//2) % 2 == 0 else t1)
        for i in range(n):
            a(f"v_add_f32 v{Y+i}, v{Y+i}, v{SH+i}")
        for i in range(n):
            a(f"v_cvt_pk_bf16_f32 v{Y+i}, v{Y+i}, v{Y+i}")

    def gemv_x4(self, DU, W, n, XB, D1, D2, vM0, vM1):
        a = self.a
        for j in range(n):
            a(f"v_and_b32 v{XB+2*j}, v{DU+j}, v{vM0}")
            a(f"v_and_b32 v{XB+2*j+1}, v{DU+j}, v{vM1}")
        self.nop(2)
        for j in range(n):
            w = W + 4*j
            c1 = "0" if j == 0 else f"v[{D1}:{D1+3}]"
            c2 = "0" if j == 0 else f"v[{D2}:{D2+3}]"
            a(f"v_mfma_f32_16x16x16_bf16 v[{D1}:{D1+3}], v[{w}:{w+1}], v[{XB+2*j}:{XB+2*j+1}], {c1}")
            a(f"v_mfma_f32_16x16x16_bf16 v[{D2}:{D2+3}], v[{w+2}:{w+3}], v[{XB+2*j}:{XB+2*j+1}], {c2}")
        self.nop(8)

    def gemv_x_build(self, DU, n, XB, vM0, vM1):
        a = self.a
        for j in range(n):
            a(f"v_and_b32 v{XB+2*j}, v{DU+j}, v{vM0}")
            a(f"v_and_b32 v{XB+2*j+1}, v{DU+j}, v{vM1}")
        self.nop(2)

    def gemv_mfma(self, W, n, XB, D1, D2):
        a = self.a
        for j in range(n):
            w = W + 4*j
            c1 = "0" if j == 0 else f"v[{D1}:{D1+3}]"
            c2 = "0" if j == 0 else f"v[{D2}:{D2+3}]"
            a(f"v_mfma_f32_16x16x16_bf16 v[{D1}:{D1+3}], v[{w}:{w+1}], v[{XB+2*j}:{XB+2*j+1}], {c1}")
            a(f"v_mfma_f32_16x16x16_bf16 v[{D2}:{D2+3}], v[{w+2}:{w+3}], v[{XB+2*j}:{XB+2*j+1}], {c2}")

    def cu_reduce(self, tiles, cnt, lbase, addr_fn, vt0, vt1, vT, vL16, R):
        a = self.a
        v = S_WID
        nt = len(tiles)
        a(f"s_lshl_b32 s{S_TMP}, s{v}, 11")
        a(f"v_add_u32 v{vt0}, s{S_TMP}, v{vL16}")
        for t, (D1, D2) in enumerate(tiles):
            a(f"ds_write_b128 v{vt0}, v[{D1}:{D1+3}] offset:{lbase+8192*t}")
            a(f"ds_write_b128 v{vt0}, v[{D2}:{D2+3}] offset:{lbase+8192*t+1024}")
        if cnt is not None:
            self.lds_bar(cnt, 4, vt0, vt1)
        else:
            a("s_waitcnt lgkmcnt(0)")
            a("s_barrier")
        skip = self.label("crs")
        if nt == 1:
            a(f"s_cmp_ge_u32 s{v}, 2")
            a(f"s_cbranch_scc1 {skip}")
        a(f"s_and_b32 s{S_TMP}, s{v}, 1")
        a(f"s_lshl_b32 s{S_TMP}, s{S_TMP}, 10")
        a(f"v_add_u32 v{vt0}, s{S_TMP}, v{vL16}")
        if nt == 2:
            a(f"s_lshr_b32 s{S_TMP}, s{v}, 1")
            a(f"s_lshl_b32 s{S_TMP}, s{S_TMP}, 13")
            a(f"v_add_u32 v{vt1}, s{S_TMP}, v{vt0}")
            rd = vt1
        else:
            rd = vt0
        assert R % 4 == 0
        for i in range(4):
            a(f"ds_read_b128 v[{R+4*i}:{R+4*i+3}], v{rd} offset:{lbase+2048*i}")
        addr_fn()
        a("s_waitcnt lgkmcnt(0)")
        for r in range(4):
            a(f"v_add_f32 v{R+r}, v{R+r}, v{R+4+r}")
            a(f"v_add_f32 v{R+8+r}, v{R+8+r}, v{R+12+r}")
        for r in range(4):
            a(f"v_add_f32 v{R+r}, v{R+r}, v{R+8+r}")
        for r in range(4):
            self.tag32(R+r, vT)
        a(f"buffer_store_dwordx4 v[{R}:{R+3}], v{vt0}, s[{S_WS}:{S_WS+3}], s{S_TMP} offen sc1")
        a(f"{skip}:")

    def build(self):
        self.prologue()
        self.svc()
        self.kv()
        self.a("L_end:")
        body = "\n".join(self.L)
        return f"""; @launch grid=(256,1,1) block=(768,1,1) lds={LDS_SIZE}
.amdgcn_target "amdgcn-amd-amdhsa--gfx950"
.text
.globl {KN}
.p2align 8
.type {KN},@function
{KN}:
{body}
s_endpgm
.section .rodata,"a"
.p2align 6
.amdhsa_kernel {KN}
  .amdhsa_next_free_vgpr 168
  .amdhsa_next_free_sgpr 102
  .amdhsa_accum_offset 168
  .amdhsa_group_segment_fixed_size 0
  .amdhsa_kernarg_size 112
  .amdhsa_user_sgpr_count 2
  .amdhsa_user_sgpr_kernarg_segment_ptr 1
  .amdhsa_system_sgpr_workgroup_id_x 1
.end_amdhsa_kernel
"""


if __name__ == "__main__":
    import argparse
    ap = argparse.ArgumentParser()
    ap.add_argument("-o", default="k1.s")
    ap.add_argument("--dbg", action="store_true")
    ap.add_argument("--prio", type=int, default=3)
    ap.add_argument("--na-front", type=int, default=2)
    ap.add_argument("--p-front", type=int, default=1)
    ap.add_argument("--na-nf", type=int, default=16)
    ap.add_argument("--p-nf", type=int, default=2)
    ap.add_argument("--psleep2", type=int, default=8)
    ap.add_argument("--psleep3", type=int, default=5)
    ap.add_argument("--nsets", type=int, default=1)
    ap.add_argument("--kf", type=int, default=512)
    ap.add_argument("--km", type=int, default=384)
    ap.add_argument("--kh", type=int, default=640)
    ap.add_argument("--wearly", type=int, default=0)
    ap.add_argument("--b0first", type=int, default=0)
    ap.add_argument("--g-opp", default="g16")
    ap.add_argument("--g-x1", default="lane")
    ap.add_argument("--g-r", default="quad")
    ap.add_argument("--t2late", type=int, default=0)
    ap.add_argument("--pf", type=int, default=0)
    ap.add_argument("--sl", default="0,0,0,0")
    args = ap.parse_args()
    g = Gen(dbg=args.dbg, prio=args.prio, na_front=args.na_front, p_front=args.p_front, na_nf=args.na_nf, p_nf=args.p_nf,
            psleep2=args.psleep2, psleep3=args.psleep3, nsets=args.nsets, kf=args.kf, km=args.km, kh=args.kh, wearly=args.wearly, b0first=args.b0first,
            g_opp=args.g_opp, g_x1=args.g_x1, g_r=args.g_r, t2late=args.t2late, pf=args.pf, sl=tuple(int(x) for x in args.sl.split(',')))
    open(args.o, "w").write(g.build())
```

```python
import sys
KN = "adaLN_cond__gqa_block_cached__swiglu_ffn__decode_kernel"

WS_E = 0
WS_MOD = 0x1000
WS_QP = 0x10000
WS_MODP = 0xA0000
WS_OPP = 0x100000
WS_ML = 0x180000
WS_AP = 0x200000
WS_X1 = 0x280000
WS_DP = 0x300000
WS_DBG = 0x3C0000
WS_SIZE = 0x400000
L_F1P = 0
L_RP = 4096
L_QL = 20480
L_OW = 24576
L_MLW = 40960
L_ST = 41216
L_CNT = 41344
L_GU = 41472
LDS_SIZE = 49152

NFRONT = 128
F1A_N = 64
T2_0 = 128
T2_N = 56
F1B_0 = 184
F1B_N = 64
R_0 = 0
R_N = 128
LIMIT = 4000

S_K, S_V, S_WS, S_WQ, S_WO, S_WM, S_WG, S_WU, S_WD, S_X, S_C, S_OUT = 4, 8, 12, 16, 20, 24, 28, 32, 36, 40, 44, 48
S_WID, S_T, S_SO, S_IT, S_V4, S_TMP, S_TMP2, S_E = 52, 53, 54, 55, 56, 57, 58, 59
S_B0, S_B1 = 60, 62
S_FF00 = 90
S_HI16 = 91
S_TS = 92
S_R = 96
S_BK, S_SP = 84, 85
S_T3 = 94
TAGB = 4


class Gen:
    def __init__(self, dbg=False, prio=3, na_front=2, p_front=1, na_nf=16, p_nf=2, psleep2=8, psleep3=5, nsets=1, kf=512, km=384, kh=640, wearly=0, b0first=0, g_opp='g16', g_x1='lane', g_r='quad', t2late=0, pf=0, sl=(0,0,0,0), rel=2, x1p=0, gate=-1, pipe=(0,0,0), dbg2=0):
        self.pipe = pipe
        self.gate = gate
        self.x1p = x1p
        self.rel = rel
        self.sl = sl
        self.pf = pf
        self.t2late = t2late
        self.g_opp, self.g_x1, self.g_r = g_opp, g_x1, g_r
        self.L = []
        self.dbg = dbg
        self.dbg2 = dbg2
        self.prio = prio
        self.na_front = na_front
        self.wearly, self.b0first = wearly, b0first
        self.kf, self.km, self.kh = kf, km, kh
        self.psleep2 = psleep2
        self.psleep3 = psleep3
        self.nsets = nsets
        self.p_front = p_front
        self.na_nf = na_nf
        self.p_nf = p_nf
        self.lbl = 0

    def a(self, s):
        self.L.append(s)

    def label(self, p):
        self.lbl += 1
        return f"L_{p}_{self.lbl}"

    def nop(self, n):
        while n > 0:
            k = min(n, 16)
            self.a(f"s_nop {k-1}")
            n -= k

    def srd(self, s, plo, size):
        self.a(f"s_mov_b32 s{s}, s{plo}")
        self.a(f"s_mov_b32 s{s+1}, s{plo+1}")
        self.a(f"s_mov_b32 s{s+2}, {size}")
        self.a(f"s_mov_b32 s{s+3}, 0x00020000")

    def stamp(self, slot, vtmp, d2=None):
        if self.dbg2:
            a = self.a
            if d2 is None:
                d2 = [(slot, False)]
            if not d2:
                return
            assert vtmp % 2 == 0
            samp = True
            if samp:
                self.d2n = getattr(self, "d2n", 0) + 1
                a(f"s_and_b32 s{S_TMP2}, s2, 0x38")
                a(f"s_cbranch_scc1 L_d2s_{self.d2n}")
                if slot == 1:
                    a(f"s_cmp_lg_u32 s{S_WID}, 4")
                    a(f"s_cbranch_scc1 L_d2s_{self.d2n}")
            a(f"s_memrealtime s[{S_TS}:{S_TS+1}]")
            a("s_waitcnt lgkmcnt(0)")
            a(f"v_mov_b32 v{vtmp+2}, s{S_TS}")
            a(f"s_load_dwordx2 s[{S_TS}:{S_TS+1}], s[0:1], 96")
            a("s_waitcnt lgkmcnt(0)")
            a("s_mov_b64 exec, 1")
            a(f"v_mov_b32 v{vtmp}, s{S_TS}")
            a(f"v_mov_b32 v{vtmp+1}, s{S_TS+1}")
            for (idx, neg) in sorted(d2, key=lambda t: t[1]):
                if neg:
                    a("s_nop 2")
                    a(f"v_not_b32 v{vtmp+2}, v{vtmp+2}")
                a(f"global_atomic_umax v[{vtmp}:{vtmp+1}], v{vtmp+2}, off offset:{idx*4} sc1")
                a("s_nop 1")
            a("s_mov_b64 exec, -1")
            a("s_nop 1")
            if samp:
                a(f"L_d2s_{self.d2n}:")
            return
        if not self.dbg:
            return
        a = self.a
        a(f"s_memrealtime s[{S_TS}:{S_TS+1}]")
        a("s_waitcnt lgkmcnt(0)")
        a(f"v_mov_b32 v{vtmp}, s{S_TS}")
        a(f"v_mov_b32 v{vtmp+1}, s{S_IT}")
        a(f"s_lshl_b32 s{S_TMP2}, s2, 7")
        a(f"s_add_u32 s{S_TMP2}, s{S_TMP2}, {WS_DBG + slot*8}")
        a(f"v_mov_b32 v{vtmp+2}, s{S_TMP2}")
        a("s_mov_b64 exec, 1")
        a(f"buffer_store_dwordx2 v[{vtmp}:{vtmp+1}], v{vtmp+2}, s[{S_WS}:{S_WS+3}], 0 offen")
        a("s_mov_b64 exec, -1")
        a("s_nop 1")

    def allreduce(self, r, t, op, quad=True, rows=True):
        a = self.a
        if quad:
            self.nop(2)
            a(f"{op}_dpp v{r}, v{r}, v{r} quad_perm:[1,0,3,2] row_mask:0xf bank_mask:0xf")
            self.nop(2)
            a(f"{op}_dpp v{r}, v{r}, v{r} quad_perm:[2,3,0,1] row_mask:0xf bank_mask:0xf")
        if rows:
            a(f"v_mov_b32 v{t}, v{r}")
            self.nop(2)
            a(f"v_permlane16_swap_b32 v{r}, v{t}")
            a(f"{op} v{r}, v{r}, v{t}")
            a(f"v_mov_b32 v{t}, v{r}")
            self.nop(2)
            a(f"v_permlane32_swap_b32 v{r}, v{t}")
            a(f"{op} v{r}, v{r}, v{t}")

    def round2(self, x0, x1, t):
        a = self.a
        a(f"v_cvt_pk_bf16_f32 v{t}, v{x0}, v{x1}")
        a(f"v_lshlrev_b32 v{x0}, 16, v{t}")
        a(f"v_and_b32 v{x1}, s{S_HI16}, v{t}")

    def round1(self, x, t=None):
        a = self.a
        a(f"v_cvt_pk_bf16_f32 v{x}, v{x}, v{x}")
        a(f"v_and_b32 v{x}, s{S_HI16}, v{x}")

    def poll(self, issue, regs, vA, vO, vT, mask=(1 << TAGB) - 1):
        a = self.a
        lp = self.label("poll")
        ld = self.label("pd")
        a(f"s_mov_b32 s{S_IT}, 0")
        a(f"{lp}:")
        issue()
        a("s_waitcnt vmcnt(0)")
        rs = list(regs)
        assert len(rs) >= 3
        a(f"v_bitop3_b32 v{vA}, v{rs[0]}, v{rs[1]}, v{rs[2]} bitop3:0x80")
        a(f"v_or3_b32 v{vO}, v{rs[0]}, v{rs[1]}, v{rs[2]}")
        i = 3
        while i < len(rs):
            r1 = rs[i]
            r2 = rs[i+1] if i+1 < len(rs) else rs[i]
            a(f"v_bitop3_b32 v{vA}, v{vA}, v{r1}, v{r2} bitop3:0x80")
            a(f"v_or3_b32 v{vO}, v{vO}, v{r1}, v{r2}")
            i += 2
        a(f"v_xor_b32 v{vA}, v{vA}, v{vT}")
        a(f"v_xor_b32 v{vO}, v{vO}, v{vT}")
        a(f"v_or_b32 v{vA}, v{vA}, v{vO}")
        a(f"v_and_b32 v{vA}, {mask:#x}, v{vA}")
        a(f"v_cmp_ne_u32 vcc, 0, v{vA}")
        a(f"s_add_u32 s{S_IT}, s{S_IT}, 1")
        a(f"s_cmp_lt_u32 s{S_IT}, {LIMIT}")
        a(f"s_cbranch_scc0 {ld}")
        a(f"s_cbranch_vccnz {lp}")
        a(f"{ld}:")

    def tagcheck(self, rs, vA, vO, vT, mask):
        a = self.a
        rs = list(rs)
        assert len(rs) >= 3
        a(f"v_bitop3_b32 v{vA}, v{rs[0]}, v{rs[1]}, v{rs[2]} bitop3:0x80")
        a(f"v_or3_b32 v{vO}, v{rs[0]}, v{rs[1]}, v{rs[2]}")
        i = 3
        while i < len(rs):
            r1 = rs[i]
            r2 = rs[i+1] if i+1 < len(rs) else rs[i]
            a(f"v_bitop3_b32 v{vA}, v{vA}, v{r1}, v{r2} bitop3:0x80")
            a(f"v_or3_b32 v{vO}, v{vO}, v{r1}, v{r2}")
            i += 2
        a(f"v_xor_b32 v{vA}, v{vA}, v{vT}")
        a(f"v_xor_b32 v{vO}, v{vO}, v{vT}")
        a(f"v_or_b32 v{vA}, v{vA}, v{vO}")
        a(f"v_and_b32 v{vA}, {mask:#x}, v{vA}")
        a(f"v_cmp_ne_u32 vcc, 0, v{vA}")

    def poll2(self, issue, nl, nreg, sets, F, vA, vO, vT, mask=(1 << TAGB) - 1, sleep=None):
        a = self.a
        ns = len(sets)
        if sleep is None:
            sleep = self.psleep3 if ns >= 3 else self.psleep2
        lp = self.label("pp")
        ld = self.label("ppd")
        a(f"s_mov_b32 s{S_IT}, 0")
        if ns == 1:
            a(f"{lp}:")
            issue(F)
            a("s_waitcnt vmcnt(0)")
            self.tagcheck(range(F, F+nreg), vA, vO, vT, mask)
            a("s_mov_b64 exec, vcc")
            a(f"s_cbranch_execz {ld}")
            a(f"s_add_u32 s{S_IT}, s{S_IT}, 1")
            a(f"s_cmp_lt_u32 s{S_IT}, {LIMIT}")
            a(f"s_cbranch_scc1 {lp}")
            a(f"{ld}:")
            a("s_mov_b64 exec, -1")
            return
        for i, S in enumerate(sets):
            issue(S)
            if i < ns - 1 and sleep:
                a(f"s_sleep {sleep}")
        a(f"{lp}:")
        for S in sets:
            a(f"s_waitcnt vmcnt({nl*(ns-1)})")
            self.tagcheck(range(S, S+nreg), vA, vO, vT, mask)
            a("s_andn2_b64 exec, exec, vcc")
            sk = self.label("pps")
            a(f"s_cbranch_execz {sk}")
            for i in range(nreg):
                a(f"v_mov_b32 v{F+i}, v{S+i}")
            a(f"{sk}:")
            a("s_mov_b64 exec, vcc")
            a(f"s_cbranch_execz {ld}")
            issue(S)
            if sleep:
                a(f"s_sleep {sleep}")
        a(f"s_add_u32 s{S_IT}, s{S_IT}, 1")
        a(f"s_cmp_lt_u32 s{S_IT}, {LIMIT}")
        a(f"s_cbranch_scc1 {lp}")
        a(f"{ld}:")
        a("s_mov_b64 exec, -1")

    def mismatch(self, rs, vA, vO, vT):
        a = self.a
        rs = list(rs)
        assert len(rs) >= 3
        a(f"v_bitop3_b32 v{vA}, v{rs[0]}, v{rs[1]}, v{rs[2]} bitop3:0x80")
        a(f"v_or3_b32 v{vO}, v{rs[0]}, v{rs[1]}, v{rs[2]}")
        i = 3
        while i < len(rs):
            r1 = rs[i]
            r2 = rs[i+1] if i+1 < len(rs) else rs[i]
            a(f"v_bitop3_b32 v{vA}, v{vA}, v{r1}, v{r2} bitop3:0x80")
            a(f"v_or3_b32 v{vO}, v{vO}, v{r1}, v{r2}")
            i += 2
        a(f"v_bitop3_b32 v{vA}, v{vA}, v{vO}, v{vT} bitop3:0x7e")

    def poll3(self, issue, r4, r16, vA, vO, vA2, vO2, vT, group, sleep=0):
        a = self.a
        lp = self.label("p3")
        ld = self.label("p3d")
        a(f"s_mov_b32 s{S_IT}, 0")
        a(f"{lp}:")
        issue()
        a("s_waitcnt vmcnt(0)")
        if r4:
            self.mismatch(r4, vA, vO, vT)
        if r16:
            self.mismatch(r16, vA2, vO2, vT)
        if r4 and r16:
            a(f"v_lshlrev_b32 v{vA}, {32-TAGB}, v{vA}")
            a(f"v_lshl_or_b32 v{vA}, v{vA2}, 16, v{vA}")
        elif r4:
            a(f"v_lshlrev_b32 v{vA}, {32-TAGB}, v{vA}")
        else:
            a(f"v_lshlrev_b32 v{vA}, 16, v{vA2}")
        if group == "quad":
            self.nop(2)
            a(f"v_or_b32_dpp v{vA}, v{vA}, v{vA} quad_perm:[1,0,3,2] row_mask:0xf bank_mask:0xf")
            self.nop(2)
            a(f"v_or_b32_dpp v{vA}, v{vA}, v{vA} quad_perm:[2,3,0,1] row_mask:0xf bank_mask:0xf")
        a(f"v_cmp_ne_u32 vcc, 0, v{vA}")
        a(f"s_add_u32 s{S_IT}, s{S_IT}, 1")
        if group == "wave":
            a(f"s_cmp_lt_u32 s{S_IT}, {LIMIT}")
            a(f"s_cbranch_scc0 {ld}")
            a(f"s_cbranch_vccnz {lp}")
            a(f"{ld}:")
            return
        if group == "g16":
            a(f"s_or_b32 s{S_TMP}, vcc_lo, vcc_hi")
            a(f"s_lshr_b32 s{S_TMP2}, s{S_TMP}, 16")
            a(f"s_or_b32 s{S_TMP}, s{S_TMP}, s{S_TMP2}")
            a(f"s_and_b32 s{S_TMP}, s{S_TMP}, 0xffff")
            a(f"s_mul_i32 s{S_TMP}, s{S_TMP}, 0x10001")
            a(f"s_mov_b32 exec_lo, s{S_TMP}")
            a(f"s_mov_b32 exec_hi, s{S_TMP}")
        else:
            a("s_mov_b64 exec, vcc")
        a(f"s_cbranch_execz {ld}")
        if sleep:
            a(f"s_sleep {sleep}")
        a(f"s_cmp_lt_u32 s{S_IT}, {LIMIT}")
        a(f"s_cbranch_scc1 {lp}")
        a(f"{ld}:")
        a("s_mov_b64 exec, -1")

    def fold16(self, sd, st):
        a = self.a
        a(f"s_or_b32 s{sd}, vcc_lo, vcc_hi")
        a(f"s_lshr_b32 s{st}, s{sd}, 16")
        a(f"s_or_b32 s{sd}, s{sd}, s{st}")
        a(f"s_and_b32 s{sd}, s{sd}, 0xffff")

    def poll_gated(self, iss_opp, iss_ml, ro, rm, vA, vO, vA2, vO2, vT, thr):
        a = self.a
        sAct, sGate, sMl = 99, 101, 96
        lp = self.label("pg")
        ld = self.label("pgd")
        sk = self.label("pgs")
        sp = self.label("pgp")
        a(f"s_mov_b32 s{S_IT}, 0")
        a(f"s_mov_b32 s{sAct}, 0xffff")
        a(f"s_mov_b32 s{sGate}, 0xffff")
        a(f"{lp}:")
        a(f"s_mul_i32 s{S_TMP}, s{sGate}, 0x10001")
        a(f"s_mov_b32 exec_lo, s{S_TMP}")
        a(f"s_mov_b32 exec_hi, s{S_TMP}")
        a(f"s_cbranch_execz {sk}")
        iss_opp()
        a(f"{sk}:")
        a(f"s_mul_i32 s{S_TMP}, s{sAct}, 0x10001")
        a(f"s_mov_b32 exec_lo, s{S_TMP}")
        a(f"s_mov_b32 exec_hi, s{S_TMP}")
        iss_ml()
        a("s_waitcnt vmcnt(0)")
        self.mismatch(rm, vA2, vO2, vT)
        self.mismatch(ro, vA, vO, vT)
        a(f"v_lshlrev_b32 v{vA2}, 16, v{vA2}")
        a(f"v_lshlrev_b32 v{vA}, {32-TAGB}, v{vA}")
        a(f"v_cmp_ne_u32 vcc, 0, v{vA2}")
        self.fold16(sMl, S_TMP)
        a(f"v_cmp_ne_u32 vcc, 0, v{vA}")
        self.fold16(sAct, S_TMP)
        a(f"s_or_b32 s{sAct}, s{sAct}, s{sMl}")
        a(f"s_cmp_eq_u32 s{sAct}, 0")
        a(f"s_cbranch_scc1 {ld}")
        a(f"s_andn2_b32 s{sGate}, s{sAct}, s{sMl}")
        a(f"s_bcnt1_i32_b32 s{S_TMP}, s{sAct}")
        a(f"s_cmp_le_u32 s{S_TMP}, {thr}")
        a(f"s_cselect_b32 s{sGate}, s{sAct}, s{sGate}")
        a(f"s_add_u32 s{S_IT}, s{S_IT}, 1")
        a(f"s_cmp_lt_u32 s{S_IT}, {LIMIT}")
        a(f"s_cbranch_scc1 {lp}")
        a(f"{ld}:")
        a("s_mov_b64 exec, -1")

    def poll_pipe(self, issue, nl, nreg, sets, F, vA, vO, vT, bits, group, delay):
        a = self.a
        lp = self.label("pq")
        ld = self.label("pqd")
        a(f"s_mov_b32 s{S_IT}, 0")
        issue(sets[0])
        a(f"s_sleep {delay}")
        issue(sets[1])
        a(f"{lp}:")
        for S in sets:
            a(f"s_waitcnt vmcnt({nl})")
            self.mismatch(range(S, S+nreg), vA, vO, vT)
            a(f"v_lshlrev_b32 v{vA}, {32-bits}, v{vA}")
            if group == "quad":
                self.nop(2)
                a(f"v_or_b32_dpp v{vA}, v{vA}, v{vA} quad_perm:[1,0,3,2] row_mask:0xf bank_mask:0xf")
                self.nop(2)
                a(f"v_or_b32_dpp v{vA}, v{vA}, v{vA} quad_perm:[2,3,0,1] row_mask:0xf bank_mask:0xf")
            a(f"v_cmp_ne_u32 vcc, 0, v{vA}")
            a("s_andn2_b64 exec, exec, vcc")
            sk = self.label("pqs")
            a(f"s_cbranch_execz {sk}")
            for i in range(nreg):
                a(f"v_mov_b32 v{F+i}, v{S+i}")
            a(f"{sk}:")
            a("s_mov_b64 exec, vcc")
            a(f"s_cbranch_execz {ld}")
            issue(S)
        a(f"s_add_u32 s{S_IT}, s{S_IT}, 1")
        a(f"s_cmp_lt_u32 s{S_IT}, {LIMIT}")
        a(f"s_cbranch_scc1 {lp}")
        a(f"{ld}:")
        a("s_mov_b64 exec, -1")

    def lds_bar(self, k, n, vA, vB):
        a = self.a
        lp = self.label("lb")
        ld = self.label("lbd")
        a("s_waitcnt lgkmcnt(0)")
        a(f"v_mov_b32 v{vA}, {L_CNT + 4*k}")
        a(f"v_mov_b32 v{vB}, 1")
        a("s_mov_b64 exec, 1")
        a(f"ds_add_u32 v{vA}, v{vB}")
        a("s_mov_b64 exec, -1")
        self.lds_wait(k, n, vA, vB, sleep=False)

    def lds_wait(self, k, n, vA, vB, sleep=True):
        a = self.a
        lp = self.label("lw")
        ld = self.label("lwd")
        a(f"v_mov_b32 v{vA}, {L_CNT + 4*k}")
        a(f"s_mov_b32 s{S_IT}, 0")
        a(f"{lp}:")
        a(f"ds_read_b32 v{vB}, v{vA}")
        a("s_waitcnt lgkmcnt(0)")
        a(f"v_readfirstlane_b32 s{S_TMP}, v{vB}")
        a(f"s_add_u32 s{S_IT}, s{S_IT}, 1")
        a(f"s_cmp_ge_u32 s{S_TMP}, {n}")
        a(f"s_cbranch_scc1 {ld}")
        if sleep:
            a("s_sleep 1")
        a(f"s_cmp_lt_u32 s{S_IT}, 400000")
        a(f"s_cbranch_scc1 {lp}")
        a(f"{ld}:")

    def tag32(self, r, vT):
        self.a(f"v_and_or_b32 v{r}, v{r}, {-(1 << TAGB)}, s{S_T3}")

    def masks(self, vM0, vM1, vt, four=True):
        a = self.a
        a(f"v_mov_b32 v{vt}, 0xffff")
        a(f"v_mov_b32 v{vM0}, s{S_HI16}")
        a(f"v_cndmask_b32 v{vM0}, v{vt}, v{vM0}, s[{S_B0}:{S_B0+1}]")
        if four:
            a(f"v_mov_b32 v{vt}, 0")
            a(f"v_cndmask_b32 v{vM1}, v{vt}, v{vM0}, s[{S_B1}:{S_B1+1}]")
            a(f"v_cndmask_b32 v{vM0}, v{vM0}, v{vt}, s[{S_B1}:{S_B1+1}]")

    def prologue(self):
        a = self.a
        a("s_cmp_ge_u32 s2, 256")
        a("s_cbranch_scc1 L_end")
        a("s_load_dwordx16 s[64:79], s[0:1], 0")
        a("s_load_dwordx8 s[80:87], s[0:1], 64")
        a("s_load_dwordx2 s[88:89], s[0:1], 104")
        a("v_lshrrev_b32 v1, 6, v0")
        a("v_and_b32 v0, 63, v0")
        a(f"s_mov_b32 s{S_B0}, 0xaaaaaaaa")
        a(f"s_mov_b32 s{S_B0+1}, 0xaaaaaaaa")
        a(f"v_readfirstlane_b32 s{S_WID}, v1")
        a(f"s_mov_b32 s{S_B1}, 0xcccccccc")
        a(f"s_mov_b32 s{S_B1+1}, 0xcccccccc")
        a(f"s_mov_b32 s{S_HI16}, 0xffff0000")
        a("s_waitcnt lgkmcnt(0)")
        a(f"s_load_dword s{S_E}, s[88:89], {WS_E}")
        self.srd(S_WS, 88, WS_SIZE)
        a(f"s_cmp_ge_u32 s{S_WID}, 4")
        a("s_cbranch_scc1 L_kv")

    def get_tag(self, vT):
        a = self.a
        a("s_waitcnt lgkmcnt(0)")
        a(f"s_add_u32 s{S_E}, s{S_E}, 1")
        a(f"s_and_b32 s{S_T}, s{S_E}, 0xffff")
        a(f"s_and_b32 s{S_T3}, s{S_E}, {(1 << TAGB) - 1}")
        a(f"v_mov_b32 v{vT}, s{S_T}")

    def kv(self):
        a = self.a
        a("L_kv:")
        if self.dbg:
            a(f"s_mov_b32 s{S_IT}, 0")
            a("s_cmp_lt_u32 s2, 128")
            a("s_cbranch_scc1 L_kv_dbg1")
            self.stamp(1, 8)
            a("s_branch L_kv_dbg2")
            a("L_kv_dbg1:")
            self.stamp(10, 8)
            a("L_kv_dbg2:")
        if self.dbg2:
            self.stamp(1, 8, [(1, True), (2, False)])
        vKa, vVa, vT, vM0, vM1, vt0, vt1, vt2 = 1, 2, 3, 4, 5, 6, 7, 8
        self.srd(S_K, 66, 0x2000000)
        self.srd(S_V, 68, 0x2000000)
        a(f"s_sub_u32 s{S_V4}, s{S_WID}, 4")
        a(f"s_and_b32 s{S_BK}, s2, 7")
        a(f"s_lshl_b32 s{S_BK}, s{S_BK}, 2")
        a(f"s_bfe_u32 s{S_TMP}, s2, 0x20003")
        a(f"s_add_u32 s{S_BK}, s{S_BK}, s{S_TMP}")
        a(f"s_lshr_b32 s{S_SP}, s2, 5")
        a(f"v_and_b32 v{vt0}, 3, v0")
        a(f"v_lshlrev_b32 v{vt0}, 4, v{vt0}")
        a(f"v_bfe_u32 v{vt1}, v0, 2, 2")
        a(f"v_lshl_add_u32 v{vt0}, v{vt1}, 8, v{vt0}")
        a(f"v_lshrrev_b32 v{vt1}, 4, v0")
        a(f"v_lshl_add_u32 v{vt0}, v{vt1}, 6, v{vt0}")
        a(f"v_lshlrev_b32 v{vt2}, 4, v0")
        if self.pf:
            self.srd(S_WD, 80, 512*1792*2)
        for i in range(1, 5):
            a(f"s_mov_b32 s{79+i}, {4096*i}")
        a(f"s_lshl_b32 s{S_TMP}, s{S_BK}, 20")
        KF, KM, KH = self.kf, self.km, self.kh
        assert 4*KF + 2*KM + 2*KH == 4096
        classes = [("f", KF, 0, 0, True), ("m", KM, 4*KF, 4, False), ("h", KH, 4*KF + 2*KM, 6, False)]
        used = []
        a(f"s_cmp_ge_u32 s{S_SP}, 6")
        a("s_cbranch_scc1 L_kvc_h")
        a(f"s_cmp_ge_u32 s{S_SP}, 4")
        a("s_cbranch_scc1 L_kvc_m")
        for (nm, K, key0, s0, front) in classes:
            a(f"L_kvc_{nm}:")
            gs = K // 16
            glo, nhi = gs // 8, gs % 8
            assert K % 16 == 0 and 3 <= glo and glo + (1 if nhi else 0) <= 5
            a(f"s_mul_i32 s{S_TMP2}, s{S_SP}, {K}")
            off = key0 - s0*K
            if off > 0:
                a(f"s_add_u32 s{S_TMP2}, s{S_TMP2}, {off}")
            elif off < 0:
                a(f"s_sub_u32 s{S_TMP2}, s{S_TMP2}, {-off}")
            a(f"s_lshl_b32 s{S_TMP2}, s{S_TMP2}, 8")
            a(f"s_add_u32 s{S_TMP}, s{S_TMP}, s{S_TMP2}")
            lo = f"L_kvp_{'f' if front else 'n'}{glo}"
            hi = f"L_kvp_{'f' if front else 'n'}{glo+1}"
            if nhi:
                a(f"s_mul_i32 s{S_TMP2}, s{S_V4}, {16*(glo+1)*256}")
                a(f"s_cmp_lt_u32 s{S_V4}, {nhi}")
                l2 = self.label("kvl")
                a(f"s_cbranch_scc0 {l2}")
                a(f"s_add_u32 s{S_TMP}, s{S_TMP}, s{S_TMP2}")
                a(f"s_branch {hi}")
                a(f"{l2}:")
                if (glo+1, front) not in used:
                    used.append((glo+1, front))
            a(f"s_mul_i32 s{S_TMP2}, s{S_V4}, {16*glo*256}")
            a(f"s_add_u32 s{S_TMP}, s{S_TMP}, s{S_TMP2}")
            if nhi:
                a(f"s_add_u32 s{S_TMP}, s{S_TMP}, {nhi*16*256}")
            a(f"s_branch {lo}")
            if (glo, front) not in used:
                used.append((glo, front))
        for k, (G, front) in enumerate(used):
            a(f"L_kvp_{'f' if front else 'n'}{G}:")
            if front:
                self.kv_path(G, self.na_front, self.p_front, k == len(used) - 1, front=True)
            else:
                self.kv_path(G, self.na_nf, self.p_nf, k == len(used) - 1, self.b0first)

    def kv_path(self, G, nA, P, last, b0first=False, front=False):
        a = self.a
        vKa, vVa, vT, vM0, vM1, vt0, vt1, vt2 = 1, 2, 3, 4, 5, 6, 7, 8
        vQ = 12
        vD = 16
        vS = 32
        vm, vl = 38, 39
        KR = 40
        nL = 4*G
        if G <= 4:
            kreg = [KR + 4*j for j in range(nL)]
            vreg = [104 + 4*j for j in range(nL)]
            pre = [("K", j) for j in range(nL)] + [("V", j) for j in range(nL)]
            post = []
            XR, AC, nch = KR, KR + 32, 2
        else:
            kreg = [KR + 4*j for j in range(nL)]
            vreg = [120 + 4*j for j in range(12)] + [KR + 4*j for j in range(8)]
            pre = [("K", j) for j in range(nL)] + [("V", j) for j in range(12)]
            post = [("V", j) for j in range(12, 20)]
            XR, AC, nch = 72, 112, 1
        so = ["0", "s80", "s81", "s82", "s83"]
        issued = []

        def ld(item):
            t, j = item
            srd, va, reg = (S_K, vKa, kreg[j]) if t == "K" else (S_V, vVa, vreg[j])
            a(f"buffer_load_dwordx4 v[{reg}:{reg+3}], v{va}, s[{srd}:{srd+3}], {so[j//4]} offen offset:{(j%4)*1024} nt")
        a(f"v_add_u32 v{vKa}, s{S_TMP}, v{vt0}")
        a(f"v_add_u32 v{vVa}, s{S_TMP}, v{vt2}")
        nA = min(nA, len(pre))
        if b0first:
            a("s_barrier")
        for it in pre[:nA]:
            ld(it)
        if not b0first:
            a("s_barrier")
        lall = self.label("kvall")
        if nA < len(pre):
            lf = [self.label("kvf") for _ in pre]
            a(f"v_mov_b32 v{vt0}, {L_CNT + (4*self.rel if front else 8)}")
            for idx in range(nA, len(pre)):
                a(f"s_waitcnt vmcnt({P-1})")
                a(f"ds_read_b32 v{vt1}, v{vt0}")
                a("s_waitcnt lgkmcnt(0)")
                a(f"v_readfirstlane_b32 s{S_TMP}, v{vt1}")
                a(f"s_cmp_ge_u32 s{S_TMP}, 4")
                a(f"s_cbranch_scc1 {lf[idx]}")
                ld(pre[idx])
            a(f"s_branch {lall}")
            for idx in range(nA, len(pre)):
                a(f"{lf[idx]}:")
                ld(pre[idx])
        a(f"{lall}:")
        issued = list(pre)
        self.masks(vM0, vM1, vt0)
        self.get_tag(vT)
        self.lds_wait(2, 4, vt0, vt1)
        self.stamp(8, 8, [])
        a(f"v_bfe_u32 v{vt0}, v0, 2, 2")
        a(f"v_lshlrev_b32 v{vt0}, 8, v{vt0}")
        a(f"v_lshrrev_b32 v{vt1}, 4, v0")
        a(f"v_lshl_add_u32 v{vt0}, v{vt1}, 6, v{vt0}")
        a(f"v_and_b32 v{vt1}, 3, v0")
        a(f"v_lshl_add_u32 v{vt0}, v{vt1}, 4, v{vt0}")
        a(f"ds_read_b128 v[{vQ}:{vQ+3}], v{vt0} offset:{L_QL}")
        a("s_waitcnt lgkmcnt(0)")

        def wait_for(item):
            n = len(issued) - 1 - issued.index(item)
            a(f"s_waitcnt vmcnt({n})")
        for J in range(G):
            wait_for(("K", 4*J+3))
            for jj in range(4):
                k = kreg[4*J+jj]
                d = vD + 4*jj
                a(f"v_mfma_f32_16x16x32_bf16 v[{d}:{d+3}], v[{k}:{k+3}], v[{vQ}:{vQ+3}], 0")
            self.nop(8)
            for jj in range(4):
                d = vD + 4*jj
                a(f"v_cndmask_b32 v{d}, v{d}, v{d+1}, s[{S_B0}:{S_B0+1}]")
                a(f"v_cndmask_b32 v{d+2}, v{d+2}, v{d+3}, s[{S_B0}:{S_B0+1}]")
                a(f"v_cndmask_b32 v{d}, v{d}, v{d+2}, s[{S_B1}:{S_B1+1}]")
            if post and J < 2:
                for it in post[4*J:4*J+4]:
                    ld(it)
                    issued.append(it)
            v0_, v1_, v2_, v3_ = vD, vD+4, vD+8, vD+12
            a(f"v_cndmask_b32 v{v0_+1}, v{v0_}, v{v1_}, s[{S_B0}:{S_B0+1}]")
            a(f"v_cndmask_b32 v{v0_+2}, v{v1_}, v{v0_}, s[{S_B0}:{S_B0+1}]")
            a(f"v_cndmask_b32 v{v2_+1}, v{v2_}, v{v3_}, s[{S_B0}:{S_B0+1}]")
            a(f"v_cndmask_b32 v{v2_+2}, v{v3_}, v{v2_}, s[{S_B0}:{S_B0+1}]")
            self.nop(1)
            a(f"v_add_f32_dpp v{v0_}, v{v0_+2}, v{v0_+1} quad_perm:[1,0,3,2] row_mask:0xf bank_mask:0xf")
            a(f"v_add_f32_dpp v{v2_}, v{v2_+2}, v{v2_+1} quad_perm:[1,0,3,2] row_mask:0xf bank_mask:0xf")
            a(f"v_cndmask_b32 v{v0_+1}, v{v0_}, v{v2_}, s[{S_B1}:{S_B1+1}]")
            a(f"v_cndmask_b32 v{v0_+2}, v{v2_}, v{v0_}, s[{S_B1}:{S_B1+1}]")
            self.nop(2)
            a(f"v_add_f32_dpp v{vS+J}, v{v0_+2}, v{v0_+1} quad_perm:[2,3,0,1] row_mask:0xf bank_mask:0xf")
        def rnd():
            for J in range(0, G - 1, 2):
                self.round2(vS+J, vS+J+1, vt0 if J % 4 == 0 else vt1)
            if G % 2:
                self.round1(vS+G-1)
        rnd()
        for J in range(G):
            a(f"v_mul_f32 v{vS+J}, 0x3db504f3, v{vS+J}")
        rnd()
        a(f"v_max3_f32 v{vm}, v{vS}, v{vS+1}, v{vS+2}")
        if G == 4:
            a(f"v_max_f32 v{vm}, v{vm}, v{vS+3}")
        elif G == 5:
            a(f"v_max3_f32 v{vm}, v{vm}, v{vS+3}, v{vS+4}")
        self.allreduce(vm, vt0, "v_max_f32")
        for J in range(G):
            a(f"v_sub_f32 v{vS+J}, v{vS+J}, v{vm}")
        for J in range(G):
            a(f"v_mul_f32 v{vS+J}, 0x3fb8aa3b, v{vS+J}")
        for J in range(G):
            a(f"v_exp_f32 v{vS+J}, v{vS+J}")
        self.nop(1)
        a(f"v_add_f32 v{vl}, v{vS}, v{vS+1}")
        for J in range(2, G):
            a(f"v_add_f32 v{vl}, v{vl}, v{vS+J}")
        for J in range(G):
            a(f"v_cvt_pk_bf16_f32 v{vS+J}, v{vS+J}, v{vS+J}")
        self.nop(1)
        for j in range(nL):
            J, jj = j//4, j % 4
            a(f"v_and_b32_dpp v{XR+2*j}, v{vS+J}, v{vM0} quad_perm:[{jj},{jj},{jj},{jj}] row_mask:0xf bank_mask:0xf")
            a(f"v_and_b32_dpp v{XR+2*j+1}, v{vS+J}, v{vM1} quad_perm:[{jj},{jj},{jj},{jj}] row_mask:0xf bank_mask:0xf")
        self.allreduce(vl, vt0, "v_add_f32")
        a(f"v_bfe_u32 v{vt0}, v0, 2, 2")
        a(f"v_lshlrev_b32 v{vt0}, 6, v{vt0}")
        a(f"s_lshl_b32 s{S_TMP}, s{S_V4}, 3")
        a(f"v_add_u32 v{vt0}, s{S_TMP}, v{vt0}")
        a("s_mov_b64 exec, 0x1111")
        a(f"ds_write_b32 v{vt0}, v{vm} offset:{L_MLW}")
        a(f"ds_write_b32 v{vt0}, v{vl} offset:{L_MLW+4}")
        a("s_mov_b64 exec, -1")
        for j in range(nL):
            wait_for(("V", j))
            v = vreg[j]
            p = (j & 1) if nch == 2 else 0
            d1 = AC + 8*p
            d2 = d1 + 4
            first = j < nch
            c1 = "0" if first else f"v[{d1}:{d1+3}]"
            c2 = "0" if first else f"v[{d2}:{d2+3}]"
            a(f"v_mfma_f32_16x16x16_bf16 v[{d1}:{d1+3}], v[{v}:{v+1}], v[{XR+2*j}:{XR+2*j+1}], {c1}")
            a(f"v_mfma_f32_16x16x16_bf16 v[{d2}:{d2+3}], v[{v+2}:{v+3}], v[{XR+2*j}:{XR+2*j+1}], {c2}")
        self.nop(8)
        if nch == 2:
            for r in range(8):
                a(f"v_add_f32 v{AC+r}, v{AC+r}, v{AC+8+r}")
        self.stamp(15, 8, [(15, False), (0, True)])
        a(f"s_lshl_b32 s{S_TMP}, s{S_V4}, 11")
        a(f"v_lshlrev_b32 v{vt0}, 4, v0")
        a(f"v_add_u32 v{vt0}, s{S_TMP}, v{vt0}")
        a(f"ds_write_b128 v{vt0}, v[{AC}:{AC+3}] offset:{L_OW}")
        a(f"ds_write_b128 v{vt0}, v[{AC+4}:{AC+7}] offset:{L_OW+1024}")
        a("s_waitcnt lgkmcnt(0)")
        a(f"v_mov_b32 v{vt1}, {L_CNT + 12}")
        a(f"v_mov_b32 v{vt2}, 1")
        a("s_mov_b64 exec, 1")
        a(f"ds_add_u32 v{vt1}, v{vt2}")
        a("s_mov_b64 exec, -1")
        a(f"s_cmp_ge_u32 s{S_V4}, 2")
        a("s_cbranch_scc1 L_kv_pf" if self.pf else "s_cbranch_scc1 L_end")
        if not last:
            a("s_branch L_kv_comb")
            return
        a("L_kv_comb:")
        self.lds_wait(3, 8, vt0, vt1, sleep=False)
        OW = 104
        MLr = 136
        a(f"s_lshl_b32 s{S_TMP}, s{S_V4}, 10")
        a(f"v_lshlrev_b32 v{vt0}, 4, v0")
        a(f"v_add_u32 v{vt0}, s{S_TMP}, v{vt0}")
        a(f"v_bfe_u32 v{vt1}, v0, 2, 2")
        a(f"v_lshlrev_b32 v{vt1}, 6, v{vt1}")
        for i in range(4):
            a(f"ds_read_b128 v[{MLr+4*i}:{MLr+4*i+3}], v{vt1} offset:{L_MLW+16*i}")
        for w in range(8):
            a(f"ds_read_b128 v[{OW+4*w}:{OW+4*w+3}], v{vt0} offset:{L_OW+2048*w}")
        a("s_waitcnt lgkmcnt(8)")
        a(f"v_max3_f32 v{vm}, v{MLr}, v{MLr+2}, v{MLr+4}")
        a(f"v_max3_f32 v{vm}, v{vm}, v{MLr+6}, v{MLr+8}")
        a(f"v_max3_f32 v{vm}, v{vm}, v{MLr+10}, v{MLr+12}")
        a(f"v_max_f32 v{vm}, v{vm}, v{MLr+14}")
        for w in range(8):
            a(f"v_sub_f32 v{MLr+2*w}, v{MLr+2*w}, v{vm}")
        for w in range(8):
            a(f"v_mul_f32 v{MLr+2*w}, 0x3fb8aa3b, v{MLr+2*w}")
        for w in range(8):
            a(f"v_exp_f32 v{MLr+2*w}, v{MLr+2*w}")
        self.nop(1)
        a(f"v_mul_f32 v{vl}, v{MLr}, v{MLr+1}")
        for w in range(1, 8):
            a(f"v_fmac_f32 v{vl}, v{MLr+2*w}, v{MLr+2*w+1}")
        a("s_waitcnt lgkmcnt(0)")
        O = 152
        for r in range(4):
            a(f"v_mul_f32 v{O+r}, v{MLr}, v{OW+r}")
        for w in range(1, 8):
            for r in range(4):
                a(f"v_fmac_f32 v{O+r}, v{MLr+2*w}, v{OW+4*w+r}")
        for r in range(4):
            self.tag32(O+r, vT)
        a(f"s_lshl_b32 s{S_TMP}, s{S_BK}, 3")
        a(f"s_add_u32 s{S_TMP}, s{S_TMP}, s{S_SP}")
        a(f"s_lshl_b32 s{S_TMP}, s{S_TMP}, 11")
        a(f"s_add_u32 s{S_TMP}, s{S_TMP}, {WS_OPP}")
        a(f"buffer_store_dwordx4 v[{O}:{O+3}], v{vt0}, s[{S_WS}:{S_WS+3}], s{S_TMP} offen sc1")
        a(f"s_cmp_lg_u32 s{S_V4}, 0")
        a("s_cbranch_scc1 L_kv_sig" if self.t2late == 2 else "s_cbranch_scc1 L_end")
        M4 = O + 4
        a(f"v_or_b32 v{M4}, v{vm}, v{vT}")
        a(f"v_and_or_b32 v{M4+1}, v{vl}, s{S_HI16}, v{vT}")
        a(f"v_lshl_or_b32 v{M4+2}, v{vl}, 16, v{vT}")
        a(f"v_mov_b32 v{M4+3}, v{vT}")
        a(f"v_lshlrev_b32 v{vt1}, 1, v{vt1}")
        a(f"s_lshl_b32 s{S_TMP}, s{S_BK}, 9")
        a(f"s_lshl_b32 s{S_TMP2}, s{S_SP}, 4")
        a(f"s_add_u32 s{S_TMP}, s{S_TMP}, s{S_TMP2}")
        a(f"s_add_u32 s{S_TMP}, s{S_TMP}, {WS_ML}")
        a("s_mov_b64 exec, 0x1111")
        a(f"buffer_store_dwordx4 v[{M4}:{M4+3}], v{vt1}, s[{S_WS}:{S_WS+3}], s{S_TMP} offen sc1")
        a("s_mov_b64 exec, -1")
        self.stamp(9, 8)
        if self.t2late == 2:
            a("L_kv_sig:")
            a(f"v_mov_b32 v{vt1}, {L_CNT + 20}")
            a(f"v_mov_b32 v{vt2}, 1")
            a("s_mov_b64 exec, 1")
            a(f"ds_add_u32 v{vt1}, v{vt2}")
            a("s_waitcnt lgkmcnt(0)")
        a("s_endpgm")
        if self.pf:
            a("L_kv_pf:")
            a(f"s_cmp_lt_u32 s{S_V4}, 4")
            a("s_cbranch_scc1 L_end")
            a(f"s_cmp_lt_u32 s2, {T2_0}")
            a("s_cbranch_scc1 L_end")
            a(f"s_cmp_ge_u32 s2, {T2_0+T2_N}")
            a("s_cbranch_scc1 L_end")
            self.srd(S_WG, 76, 512*1792*2)
            self.srd(S_WU, 78, 512*1792*2)
            ST = 100
            a(f"s_sub_u32 s{S_TMP}, s2, {T2_0}")
            a(f"s_and_b32 s{ST}, s{S_TMP}, 7")
            a(f"s_mul_i32 s{ST}, s{ST}, 7")
            a(f"s_lshr_b32 s{S_TMP}, s{S_TMP}, 3")
            a(f"s_add_u32 s{ST}, s{ST}, s{S_TMP}")
            a(f"s_sub_u32 s{S_V4}, s{S_V4}, 4")
            a(f"v_lshrrev_b32 v{vt0}, 2, v0")
            a(f"v_mul_u32_u24 v{vt0}, 3584, v{vt0}")
            a(f"v_and_b32 v{vt1}, 3, v0")
            a(f"v_lshl_add_u32 v{vt0}, v{vt1}, 4, v{vt0}")
            a(f"s_mul_i32 s{S_TMP}, s{S_V4}, {128*3584}")
            a(f"s_lshl_b32 s{S_TMP2}, s{ST}, 6")
            a(f"s_add_u32 s{S_TMP}, s{S_TMP}, s{S_TMP2}")
            for j in range(8):
                a(f"buffer_load_dwordx4 v[{40+8*j}:{43+8*j}], v{vt0}, s[{S_WG}:{S_WG+3}], s{S_TMP} offen")
                a(f"buffer_load_dwordx4 v[{44+8*j}:{47+8*j}], v{vt0}, s[{S_WU}:{S_WU+3}], s{S_TMP} offen")
                if j < 7:
                    a(f"s_add_u32 s{S_TMP}, s{S_TMP}, {16*3584}")
            if self.pf >= 2:
                a(f"v_lshlrev_b32 v{vt0}, 4, v0")
                a(f"s_lshl_b32 s{S_TMP}, s{ST}, 15")
                a(f"s_lshl_b32 s{S_TMP2}, s{S_V4}, 13")
                a(f"s_add_u32 s{S_TMP}, s{S_TMP}, s{S_TMP2}")
                for j in range(8):
                    a(f"buffer_load_dwordx4 v[{104+4*j}:{107+4*j}], v{vt0}, s[{S_WD}:{S_WD+3}], s{S_TMP} offen")
                    if j < 7:
                        a(f"s_add_u32 s{S_TMP}, s{S_TMP}, 1024")
            a("s_waitcnt vmcnt(0)")
            a("s_endpgm")

    def svc(self):
        a = self.a
        vT, vM0, vM1, vMe, vG, vB, vU = 1, 2, 3, 4, 5, 6, 7
        vA, vO, vt0, vt1, vt2, vt3 = 8, 9, 10, 11, 12, 13
        vC16 = 14
        vL16 = 15
        W0 = 16
        WA = 40
        WB = 56
        WC = 72
        SC = WC + 32
        if self.prio:
            a(f"s_setprio {self.prio}")
        self.srd(S_WQ, 70, 512*4096*2)
        self.srd(S_WO, 72, 512*4096*2)
        self.srd(S_WM, 84, 512*3072*2)
        self.srd(S_WG, 76, 512*1792*2)
        self.srd(S_WU, 78, 512*1792*2)
        self.srd(S_WD, 80, 512*1792*2)
        self.srd(S_X, 64, 4096)
        self.srd(S_C, 82, 4096)
        self.srd(S_OUT, 86, 4096)
        v = S_WID
        a(f"v_lshrrev_b32 v{vG}, 4, v0")
        a(f"v_bfe_u32 v{vB}, v0, 2, 2")
        a(f"v_and_b32 v{vU}, 3, v0")
        a(f"v_and_b32 v{vC16}, 15, v0")
        a(f"v_lshlrev_b32 v{vC16}, 4, v{vC16}")
        a(f"v_lshlrev_b32 v{vL16}, 4, v0")
        a(f"v_mov_b32 v{vt0}, 0")
        a(f"v_lshlrev_b32 v{vt1}, 2, v0")
        a(f"s_cmp_lg_u32 s{v}, 0")
        a("s_cbranch_scc1 L_s_nz")
        a("s_mov_b64 exec, 0xffff")
        a(f"ds_write_b32 v{vt1}, v{vt0} offset:{L_CNT}")
        a("s_mov_b64 exec, -1")
        a("L_s_nz:")

        def t1_loads():
            SROW = 101
            a(f"s_lshr_b32 s{S_TMP}, s2, 3")
            a(f"s_lshl_b32 s{SROW}, s{S_TMP}, 7")
            a(f"s_bfe_u32 s{S_TMP}, s2, 0x10002")
            a(f"s_lshl_b32 s{S_TMP}, s{S_TMP}, 6")
            a(f"s_add_u32 s{SROW}, s{SROW}, s{S_TMP}")
            a(f"s_lshr_b32 s{S_TMP}, s{v}, 1")
            a(f"s_lshl_b32 s{S_TMP}, s{S_TMP}, 5")
            a(f"s_add_u32 s{SROW}, s{SROW}, s{S_TMP}")
            a(f"s_and_b32 s{S_TMP}, s{v}, 1")
            a(f"s_lshl_b32 s{S_TMP}, s{S_TMP}, 2")
            a(f"s_add_u32 s{SROW}, s{SROW}, s{S_TMP}")
            a(f"s_lshl_b32 s{S_TMP}, s{SROW}, 10")
            a(f"s_and_b32 s{S_TMP2}, s2, 3")
            a(f"s_lshl_b32 s{S_TMP2}, s{S_TMP2}, 8")
            a(f"s_add_u32 s{S_TMP}, s{S_TMP}, s{S_TMP2}")
            a(f"v_lshl_add_u32 v{vt0}, v{vG}, 10, v{vC16}")
            for j in range(4):
                a(f"buffer_load_dwordx4 v[{WB+4*j}:{WB+4*j+3}], v{vt0}, s[{S_WO}:{S_WO+3}], s{S_TMP} offen nt")
                if j < 3:
                    a(f"s_add_u32 s{S_TMP}, s{S_TMP}, 8192")

        a(f"s_cmp_ge_u32 s2, {NFRONT}")
        a("s_cbranch_scc1 L_s_nf")
        SK0 = S_R
        a(f"s_and_b32 s{SK0}, s2, 7")
        a(f"s_lshl_b32 s{SK0}, s{SK0}, 6")
        a(f"s_cmp_ge_u32 s2, {F1A_N}")
        a("s_cbranch_scc1 L_s_nof1a")
        CC = W0
        a(f"s_lshl_b32 s{S_TMP}, s{v}, 4")
        a(f"s_add_u32 s{S_TMP}, s{S_TMP}, s{SK0}")
        a(f"v_lshlrev_b32 v{vt0}, 10, v{vB}")
        a(f"v_lshl_add_u32 v{vt0}, v{vG}, 3, v{vt0}")
        a(f"s_lshl_b32 s{S_TMP2}, s{S_TMP}, 1")
        a(f"buffer_load_dwordx2 v[{CC}:{CC+1}], v{vt0}, s[{S_C}:{S_C+3}], s{S_TMP2} offen")
        a(f"v_mul_u32_u24 v{vt0}, {4*6144}, v{vG}")
        a(f"v_add_u32 v{vt0}, v{vt0}, v{vC16}")
        a(f"s_mul_i32 s{S_TMP}, s{S_TMP}, 6144")
        a(f"s_lshr_b32 s{S_TMP2}, s2, 3")
        a(f"s_lshl_b32 s{S_TMP2}, s{S_TMP2}, 8")
        a(f"s_add_u32 s{S_TMP}, s{S_TMP}, s{S_TMP2}")
        for j in range(4):
            a(f"buffer_load_dwordx4 v[{WC+4*j}:{WC+4*j+3}], v{vt0}, s[{S_WM}:{S_WM+3}], s{S_TMP} offen nt")
            if j < 3:
                a(f"s_add_u32 s{S_TMP}, s{S_TMP}, 6144")
        a("L_s_nof1a:")
        XS = SC
        XO = W0 + 4
        a(f"v_lshlrev_b32 v{vt0}, 10, v{vB}")
        a(f"v_lshl_add_u32 v{vt0}, v{vG}, 8, v{vt0}")
        a(f"v_lshl_add_u32 v{vt0}, v{vU}, 6, v{vt0}")
        for i in range(4):
            a(f"buffer_load_dwordx4 v[{XS+4*i}:{XS+4*i+3}], v{vt0}, s[{S_X}:{S_X+3}], 0 offen offset:{16*i}")
        SRB0 = 97
        a(f"s_lshr_b32 s{S_TMP}, s{v}, 1")
        a(f"s_lshl_b32 s{S_TMP}, s{S_TMP}, 5")
        a(f"s_add_u32 s{SRB0}, s{SK0}, s{S_TMP}")
        a(f"s_and_b32 s{S_TMP}, s{v}, 1")
        a(f"s_lshl_b32 s{S_TMP}, s{S_TMP}, 2")
        a(f"s_add_u32 s{SRB0}, s{SRB0}, s{S_TMP}")
        a(f"v_lshlrev_b32 v{vt0}, 10, v{vB}")
        a(f"v_lshl_add_u32 v{vt0}, v{vG}, 1, v{vt0}")
        a(f"s_lshl_b32 s{S_TMP}, s{SRB0}, 1")
        for j in range(4):
            a(f"buffer_load_ushort v{XO+j}, v{vt0}, s[{S_X}:{S_X+3}], s{S_TMP} offen offset:{16*j}")
        a(f"v_lshl_add_u32 v{vt0}, v{vG}, 13, v{vC16}")
        a(f"s_lshl_b32 s{S_TMP}, s{SRB0}, 13")
        a(f"s_lshr_b32 s{S_TMP2}, s2, 3")
        a(f"s_lshl_b32 s{S_TMP2}, s{S_TMP2}, 9")
        a(f"s_add_u32 s{S_TMP}, s{S_TMP}, s{S_TMP2}")
        for j in range(4):
            a(f"buffer_load_dwordx4 v[{WA+4*j}:{WA+4*j+3}], v{vt0}, s[{S_WQ}:{S_WQ+3}], s{S_TMP} offen nt")
            a(f"buffer_load_dwordx4 v[{WB+4*j}:{WB+4*j+3}], v{vt0}, s[{S_WQ}:{S_WQ+3}], s{S_TMP} offen offset:256 nt")
            if j < 3:
                a(f"s_add_u32 s{S_TMP}, s{S_TMP}, {8*8192}")
        a("s_waitcnt lgkmcnt(0)")
        a("s_barrier")
        self.masks(vM0, vM1, vt0)
        self.get_tag(vT)
        self.stamp(0, W0+8, [])
        a(f"s_cmp_ge_u32 s2, {F1A_N}")
        a("s_cbranch_scc1 L_s_nof1b")
        DU = W0 + 8
        BB = W0 + 12
        a("s_waitcnt vmcnt(20)")
        for i in range(2):
            a(f"v_lshlrev_b32 v{DU+2*i}, 16, v{CC+i}")
            a(f"v_and_b32 v{DU+2*i+1}, s{S_HI16}, v{CC+i}")
        for i in range(4):
            a(f"v_mul_f32 v{BB+i}, 0xbfb8aa3b, v{DU+i}")
        for i in range(4):
            a(f"v_exp_f32 v{BB+i}, v{BB+i}")
        self.nop(1)
        for i in range(4):
            a(f"v_add_f32 v{BB+i}, 1.0, v{BB+i}")
        for i in range(4):
            a(f"v_rcp_f32 v{BB+i}, v{BB+i}")
        self.nop(1)
        for i in range(4):
            a(f"v_mul_f32 v{DU+i}, v{DU+i}, v{BB+i}")
        for i in range(4):
            a(f"v_cvt_pk_bf16_f32 v{DU+i}, v{DU+i}, v{DU+i}")
        XB = W0 + 12
        D1, D2 = WC+16, WC+20
        self.gemv_x_build(DU, 4, XB, vM0, vM1)
        a("s_waitcnt vmcnt(16)")
        self.gemv_mfma(WC, 4, XB, D1, D2)
        self.nop(8)

        def modp_addr():
            a(f"s_and_b32 s{S_TMP}, s2, 7")
            a(f"s_lshl_b32 s{S_TMP}, s{S_TMP}, 3")
            a(f"s_lshr_b32 s{S_TMP2}, s2, 3")
            a(f"s_add_u32 s{S_TMP}, s{S_TMP}, s{S_TMP2}")
            a(f"s_lshl_b32 s{S_TMP}, s{S_TMP}, 11")
            a(f"s_add_u32 s{S_TMP}, s{S_TMP}, {WS_MODP}")
        self.cu_reduce([(D1, D2)], 0, L_OW, modp_addr, vt0, vt1, vT, vL16, WC)
        self.stamp(1, W0+8, [])
        a("L_s_nof1b:")
        XF = SC + 16
        a("s_waitcnt vmcnt(8)")
        for i in range(16):
            a(f"v_lshlrev_b32 v{XF+2*i}, 16, v{XS+i}")
            a(f"v_and_b32 v{XF+2*i+1}, s{S_HI16}, v{XS+i}")
        vMean, vVar = W0, W0+1
        Y = W0 + 8
        self.ln_sum(XF, 32, vMean, vt0)
        self.allreduce(vMean, vt0, "v_add_f32")
        a(f"v_mul_f32 v{vMean}, 0x3b000000, v{vMean}")
        for i in range(32):
            a(f"v_sub_f32 v{XF+i}, v{XF+i}, v{vMean}")
        a(f"v_mul_f32 v{vVar}, v{XF}, v{XF}")
        a(f"v_mul_f32 v{vt0}, v{XF+1}, v{XF+1}")
        for i in range(2, 32, 2):
            a(f"v_fmac_f32 v{vVar}, v{XF+i}, v{XF+i}")
            a(f"v_fmac_f32 v{vt0}, v{XF+i+1}, v{XF+i+1}")
        a(f"v_add_f32 v{vVar}, v{vVar}, v{vt0}")
        self.allreduce(vVar, vt0, "v_add_f32")
        a(f"v_mul_f32 v{vVar}, 0x3b000000, v{vVar}")
        self.ln_fin(vMean, vVar, vt0)
        for j in range(4):
            a(f"v_lshlrev_b32 v{Y+j}, 16, v{XO+j}")
        self.ln_norm(Y, 4, vMean, vVar, vt0, vt1)
        P0 = WC
        a(f"v_lshlrev_b32 v{vt2}, 14, v{vU}")
        a(f"v_lshl_add_u32 v{vt2}, v{vB}, 6, v{vt2}")
        a(f"v_lshl_add_u32 v{vt2}, v{vG}, 4, v{vt2}")
        a(f"s_bfe_u32 s{S_TMP}, s2, 0x20001")
        a(f"s_lshl_b32 s{S_SO}, s{S_TMP}, 11")
        a(f"s_and_b32 s{S_TMP}, s{v}, 1")
        a(f"s_lshl_b32 s{S_TMP}, s{S_TMP}, 10")
        a(f"s_add_u32 s{S_SO}, s{S_SO}, s{S_TMP}")
        a(f"s_and_b32 s{S_TMP}, s2, 1")
        a(f"s_lshl_b32 s{S_TMP}, s{S_TMP}, 1")
        a(f"s_lshr_b32 s{S_TMP2}, s{v}, 1")
        a(f"s_add_u32 s{S_TMP}, s{S_TMP}, s{S_TMP2}")
        a(f"s_lshl_b32 s{S_TMP}, s{S_TMP}, 8")
        a(f"s_add_u32 s{S_SO}, s{S_SO}, s{S_TMP}")
        a(f"s_add_u32 s{S_SO}, s{S_SO}, {WS_MODP}")
        a(f"s_add_u32 s97, s{S_SO}, {4*8*2048}")
        a(f"s_add_u32 s98, s{S_SO}, {4*2048}")
        a(f"s_add_u32 s99, s{S_SO}, {4*8*2048 + 4*2048}")

        def iss():
            for q, sreg in enumerate([S_SO, 97, 98, 99]):
                a(f"buffer_load_dwordx4 v[{P0+4*q}:{P0+4*q+3}], v{vt2}, s[{S_WS}:{S_WS+3}], s{sreg} offen sc1")
        self.poll(iss, list(range(P0, P0+16)), vA, vO, vT)
        self.stamp(2, W0+20, [])
        SA, CA = P0, P0+8
        for r in range(4):
            a(f"v_add_f32 v{SA+r}, v{SA+r}, v{SA+4+r}")
            a(f"v_add_f32 v{CA+r}, v{CA+r}, v{CA+4+r}")
        xs = [SA+r for r in range(4)] + [CA+r for r in range(4)]
        self.nop(1)
        for x in xs:
            a(f"v_add_f32_dpp v{x}, v{x}, v{x} quad_perm:[1,0,3,2] row_mask:0xf bank_mask:0xf")
        for x in xs:
            a(f"v_add_f32_dpp v{x}, v{x}, v{x} quad_perm:[2,3,0,1] row_mask:0xf bank_mask:0xf")
        self.round2(SA, SA+1, vt0)
        self.round2(SA+2, SA+3, vt1)
        self.round2(CA, CA+1, vt0)
        self.round2(CA+2, CA+3, vt1)
        self.modulate(Y, 4, SA, CA, vt0, vt1, clean=True)
        XB = W0 + 12
        D1, D2, D3, D4 = W0, W0+4, WC+16, WC+20
        self.gemv_x_build(Y, 4, XB, vM0, vM1)
        self.nop(2)
        self.gemv_mfma(WA, 4, XB, D1, D2)
        self.gemv_mfma(WB, 4, XB, D3, D4)
        self.nop(8)

        def qp_addr():
            a(f"s_and_b32 s{S_TMP}, s2, 7")
            a(f"s_lshl_b32 s{S_TMP}, s{S_TMP}, 5")
            a(f"s_lshr_b32 s{S_TMP2}, s2, 3")
            a(f"s_lshl_b32 s{S_TMP2}, s{S_TMP2}, 1")
            a(f"s_add_u32 s{S_TMP}, s{S_TMP}, s{S_TMP2}")
            a(f"s_lshr_b32 s{S_TMP2}, s{v}, 1")
            a(f"s_add_u32 s{S_TMP}, s{S_TMP}, s{S_TMP2}")
            a(f"s_lshl_b32 s{S_TMP}, s{S_TMP}, 11")
            a(f"s_add_u32 s{S_TMP}, s{S_TMP}, {WS_QP}")
        self.cu_reduce([(D1, D2), (D3, D4)], 1, L_RP, qp_addr, vt0, vt1, vT, vL16, WC+24)
        a(f"v_mov_b32 v{vt0}, {L_CNT+16}")
        a(f"v_mov_b32 v{vt1}, 1")
        a("s_mov_b64 exec, 1")
        a(f"ds_add_u32 v{vt0}, v{vt1}")
        a("s_mov_b64 exec, -1")
        self.stamp(3, W0+20)
        a("s_branch L_s_join")
        STILE = 100
        vCc = W0

        def t2_wloads():
            a(f"s_sub_u32 s{S_TMP}, s2, {T2_0}")
            a(f"s_and_b32 s{STILE}, s{S_TMP}, 7")
            a(f"s_mul_i32 s{STILE}, s{STILE}, 7")
            a(f"s_lshr_b32 s{S_TMP}, s{S_TMP}, 3")
            a(f"s_add_u32 s{STILE}, s{STILE}, s{S_TMP}")
            a(f"v_mul_u32_u24 v{vt0}, {32*3584}, v{vG}")
            a(f"v_and_b32 v{vt1}, 15, v0")
            a(f"v_lshl_add_u32 v{vt0}, v{vt1}, 2, v{vt0}")
            a(f"s_mul_i32 s{S_TMP}, s{v}, {128*3584}")
            a(f"s_lshl_b32 s{S_TMP2}, s{STILE}, 6")
            a(f"s_add_u32 s{S_TMP}, s{S_TMP}, s{S_TMP2}")
            for t in range(32):
                a(f"buffer_load_dword v{WC+t}, v{vt0}, s[{S_WG}:{S_WG+3}], s{S_TMP} offen nt")
                a(f"buffer_load_dword v{WC+32+t}, v{vt0}, s[{S_WU}:{S_WU+3}], s{S_TMP} offen nt")
                if t < 31:
                    a(f"s_add_u32 s{S_TMP}, s{S_TMP}, 3584")

        def f1b_loads():
            a(f"s_sub_u32 s{S_TMP}, s2, {F1B_0}")
            a(f"s_and_b32 s{STILE}, s{S_TMP}, 7")
            a(f"s_lshl_b32 s{STILE}, s{STILE}, 3")
            a(f"s_lshr_b32 s{S_TMP}, s{S_TMP}, 3")
            a(f"s_add_u32 s{STILE}, s{STILE}, s{S_TMP}")
            a(f"s_add_u32 s{STILE}, s{STILE}, 32")
            a(f"v_lshlrev_b32 v{vt0}, 10, v{vB}")
            a(f"v_lshl_add_u32 v{vt0}, v{vG}, 6, v{vt0}")
            a(f"v_lshl_add_u32 v{vt0}, v{vU}, 4, v{vt0}")
            a(f"s_lshl_b32 s{S_TMP}, s{v}, 8")
            a(f"buffer_load_dwordx4 v[{vCc}:{vCc+3}], v{vt0}, s[{S_C}:{S_C+3}], s{S_TMP} offen")
            a(f"v_mul_u32_u24 v{vt0}, {32*6144}, v{vG}")
            a(f"v_and_b32 v{vt1}, 15, v0")
            a(f"v_lshl_add_u32 v{vt0}, v{vt1}, 2, v{vt0}")
            a(f"s_mul_i32 s{S_TMP}, s{v}, {128*6144}")
            a(f"s_lshl_b32 s{S_TMP2}, s{STILE}, 6")
            a(f"s_add_u32 s{S_TMP}, s{S_TMP}, s{S_TMP2}")
            for t in range(32):
                a(f"buffer_load_dword v{WC+t}, v{vt0}, s[{S_WM}:{S_WM+3}], s{S_TMP} offen nt")
                if t < 31:
                    a(f"s_add_u32 s{S_TMP}, s{S_TMP}, 6144")

        def f1b_compute():
            DU = W0 + 8
            BB = W0 + 16
            ACC = W0
            a("s_waitcnt vmcnt(32)")
            for i in range(4):
                a(f"v_lshlrev_b32 v{DU+2*i}, 16, v{vCc+i}")
                a(f"v_and_b32 v{DU+2*i+1}, s{S_HI16}, v{vCc+i}")
            for i in range(8):
                a(f"v_mul_f32 v{BB+i}, 0xbfb8aa3b, v{DU+i}")
            for i in range(8):
                a(f"v_exp_f32 v{BB+i}, v{BB+i}")
            self.nop(1)
            for i in range(8):
                a(f"v_add_f32 v{BB+i}, 1.0, v{BB+i}")
            for i in range(8):
                a(f"v_rcp_f32 v{BB+i}, v{BB+i}")
            self.nop(1)
            for i in range(8):
                a(f"v_mul_f32 v{DU+i}, v{DU+i}, v{BB+i}")
            for i in range(8):
                a(f"v_cvt_pk_bf16_f32 v{DU+i}, v{DU+i}, v{DU+i}")
            self.nop(1)
            for T in range(8):
                us = T//2
                bb = BB + 4*(T & 1)
                for j in range(4):
                    a(f"v_and_b32_dpp v{bb+j}, v{DU+4*(T%2)+j}, v{vMe} quad_perm:[{us},{us},{us},{us}] row_mask:0xf bank_mask:0xf")
                a(f"s_waitcnt vmcnt({28 - 4*T})")
                self.nop(1)
                c = "0" if T == 0 else f"v[{ACC}:{ACC+3}]"
                a(f"v_mfma_f32_16x16x32_bf16 v[{ACC}:{ACC+3}], v[{WC+4*T}:{WC+4*T+3}], v[{bb}:{bb+3}], {c}")
            self.nop(8)
            a(f"s_lshl_b32 s{S_TMP}, s{v}, 10")
            a(f"v_add_u32 v{vt0}, s{S_TMP}, v{vL16}")
            a(f"ds_write_b128 v{vt0}, v[{ACC}:{ACC+3}] offset:{L_F1P}")
            self.lds_bar(0, 4, vt0, vt1)
            a(f"s_lshl_b32 s{S_TMP}, s{v}, 2")
            a(f"v_add_u32 v{vt0}, s{S_TMP}, v{vL16}")
            for i in range(4):
                a(f"ds_read_b32 v{DU+i}, v{vt0} offset:{L_F1P+1024*i}")
            a("s_waitcnt lgkmcnt(0)")
            a(f"v_add_f32 v{DU}, v{DU}, v{DU+1}")
            a(f"v_add_f32 v{DU+2}, v{DU+2}, v{DU+3}")
            a(f"v_add_f32 v{DU}, v{DU}, v{DU+2}")
            a(f"v_cvt_pk_bf16_f32 v{DU}, v{DU}, v{DU}")
            a(f"v_lshl_or_b32 v{DU}, v{DU}, 16, v{vT}")
            a(f"v_mul_u32_u24 v{vt0}, {3072*4}, v{vB}")
            a(f"v_lshl_add_u32 v{vt0}, v{vG}, 5, v{vt0}")
            a(f"v_and_b32 v{vt1}, 1, v0")
            a(f"v_lshl_add_u32 v{vt0}, v{vt1}, 2, v{vt0}")
            a(f"s_lshl_b32 s{S_TMP}, s{STILE}, 7")
            a(f"s_lshl_b32 s{S_TMP2}, s{v}, 3")
            a(f"s_add_u32 s{S_TMP}, s{S_TMP}, s{S_TMP2}")
            a(f"s_add_u32 s{S_TMP}, s{S_TMP}, {WS_MOD}")
            a("s_mov_b32 exec_lo, 0x33333333")
            a("s_mov_b32 exec_hi, 0x33333333")
            a(f"buffer_store_dword v{DU}, v{vt0}, s[{S_WS}:{S_WS+3}], s{S_TMP} offen sc1")
            a("s_mov_b64 exec, -1")

        a("L_s_nf:")
        if self.wearly:
            t1_loads()
            a(f"s_cmp_ge_u32 s2, {F1B_0}")
            a("s_cbranch_scc1 L_s_nf1b")
            t2_wloads()
            a("s_branch L_s_nf1c")
            a("L_s_nf1b:")
            a(f"s_cmp_ge_u32 s2, {F1B_0 + F1B_N}")
            a("s_cbranch_scc1 L_s_nf1c")
            f1b_loads()
            a("L_s_nf1c:")
        a("s_waitcnt lgkmcnt(0)")
        a("s_barrier")
        self.get_tag(vT)
        self.masks(vM0, vM1, vt0)
        self.masks(vMe, None, vt0, four=False)
        self.stamp(0, W0+8, [])
        if self.wearly:
            a(f"s_cmp_lt_u32 s2, {F1B_0}")
            a("s_cbranch_scc1 L_s_join")
            a(f"s_cmp_ge_u32 s2, {F1B_0 + F1B_N}")
            a("s_cbranch_scc1 L_s_join")
            f1b_compute()
        a("L_s_join:")
        QD = W0
        a(f"v_lshrrev_b32 v{vt2}, 5, v0")
        a(f"v_lshlrev_b32 v{vt2}, 16, v{vt2}")
        a(f"v_bfe_u32 v{vt3}, v0, 4, 1")
        a(f"v_lshl_add_u32 v{vt2}, v{vt3}, 10, v{vt2}")
        a(f"v_lshl_add_u32 v{vt2}, v{vB}, 8, v{vt2}")
        a(f"v_lshl_add_u32 v{vt2}, v{vU}, 4, v{vt2}")
        a(f"s_bfe_u32 s{S_TMP}, s2, 0x20003")
        a(f"s_and_b32 s{S_TMP2}, s2, 1")
        a(f"s_lshl_b32 s{S_TMP2}, s{S_TMP2}, 2")
        a(f"s_add_u32 s{S_TMP}, s{S_TMP}, s{S_TMP2}")
        a(f"s_lshl_b32 s{S_TMP}, s{S_TMP}, 2")
        a(f"s_add_u32 s{S_TMP}, s{S_TMP}, s{v}")
        a(f"s_lshl_b32 s{S_TMP}, s{S_TMP}, 11")
        a(f"s_bfe_u32 s{S_TMP2}, s2, 0x20001")
        a(f"s_lshl_b32 s{S_TMP2}, s{S_TMP2}, 6")
        a(f"s_add_u32 s{S_TMP}, s{S_TMP}, s{S_TMP2}")
        a(f"s_add_u32 s{S_SO}, s{S_TMP}, {WS_QP}")
        a(f"s_add_u32 s97, s{S_SO}, {1 << 17}")
        a(f"s_add_u32 s98, s{S_SO}, {2 << 17}")
        a(f"s_add_u32 s99, s{S_SO}, {3 << 17}")

        def iss():
            for q, sreg in enumerate([S_SO, 97, 98, 99]):
                a(f"buffer_load_dwordx4 v[{QD+4*q}:{QD+4*q+3}], v{vt2}, s[{S_WS}:{S_WS+3}], s{sreg} offen sc1")
        self.poll(iss, list(range(QD, QD+16)), vA, vO, vT)
        for r in range(4):
            a(f"v_add_f32 v{QD+r}, v{QD+r}, v{QD+4+r}")
            a(f"v_add_f32 v{QD+8+r}, v{QD+8+r}, v{QD+12+r}")
        for r in range(4):
            a(f"v_add_f32 v{QD+r}, v{QD+r}, v{QD+8+r}")
        self.nop(2)
        a(f"v_permlane32_swap_b32 v{QD}, v{QD+2}")
        a(f"v_permlane32_swap_b32 v{QD+1}, v{QD+3}")
        a(f"v_add_f32 v{QD}, v{QD}, v{QD+2}")
        a(f"v_add_f32 v{QD+1}, v{QD+1}, v{QD+3}")
        a(f"v_cvt_pk_bf16_f32 v{QD}, v{QD}, v{QD+1}")
        a(f"v_lshlrev_b32 v{vt0}, 6, v{vB}")
        a(f"v_lshrrev_b32 v{vt1}, 5, v0")
        a(f"v_lshl_add_u32 v{vt0}, v{vt1}, 5, v{vt0}")
        a(f"v_lshl_add_u32 v{vt0}, v{vt3}, 3, v{vt0}")
        a(f"v_lshl_add_u32 v{vt0}, v{vU}, 1, v{vt0}")
        a(f"s_lshl_b32 s{S_TMP}, s{v}, 8")
        a(f"v_add_u32 v{vt0}, s{S_TMP}, v{vt0}")
        a(f"ds_write_b16 v{vt0}, v{QD} offset:{L_QL}")
        a(f"ds_write_b16_d16_hi v{vt0}, v{QD} offset:{L_QL+16}")
        a("s_waitcnt lgkmcnt(0)")
        a(f"v_mov_b32 v{vt0}, {L_CNT+8}")
        a(f"v_mov_b32 v{vt1}, 1")
        a("s_mov_b64 exec, 1")
        a(f"ds_add_u32 v{vt0}, v{vt1}")
        a("s_mov_b64 exec, -1")
        self.stamp(4, W0+20)
        SBC = WA
        if self.wearly:
            a(f"s_cmp_ge_u32 s2, {NFRONT}")
            a("s_cbranch_scc1 L_s_prep_done")
            t1_loads()
        else:
            t1_loads()
            a(f"s_cmp_lt_u32 s2, {NFRONT}")
            a("s_cbranch_scc1 L_s_prep_done")
            a(f"s_cmp_ge_u32 s2, {F1B_0}")
            a("s_cbranch_scc1 L_s_nf1b")
            if not self.t2late:
                t2_wloads()
            a("s_branch L_s_prep_done")
            a("L_s_nf1b:")
            a(f"s_cmp_ge_u32 s2, {F1B_0 + F1B_N}")
            a("s_cbranch_scc1 L_s_prep_done")
            f1b_loads()
            f1b_compute()
        a("L_s_prep_done:")
        OA, OB, MLr = W0, W0+4, W0+8
        a(f"v_lshlrev_b32 v{vt2}, 17, v{vB}")
        a(f"v_lshl_add_u32 v{vt2}, v{vU}, 11, v{vt2}")
        a(f"v_lshl_add_u32 v{vt2}, v{vG}, 4, v{vt2}")
        a(f"s_lshr_b32 s{S_TMP}, s2, 5")
        a(f"s_lshl_b32 s{S_SO}, s{S_TMP}, 14")
        a(f"s_and_b32 s{S_TMP}, s{v}, 1")
        a(f"s_lshl_b32 s{S_TMP}, s{S_TMP}, 10")
        a(f"s_add_u32 s{S_SO}, s{S_SO}, s{S_TMP}")
        a(f"s_bfe_u32 s{S_TMP}, s2, 0x10002")
        a(f"s_lshl_b32 s{S_TMP}, s{S_TMP}, 1")
        a(f"s_lshr_b32 s{S_TMP2}, s{v}, 1")
        a(f"s_add_u32 s{S_TMP}, s{S_TMP}, s{S_TMP2}")
        a(f"s_lshl_b32 s{S_TMP}, s{S_TMP}, 8")
        a(f"s_add_u32 s{S_SO}, s{S_SO}, s{S_TMP}")
        a(f"s_bfe_u32 s{S_TMP}, s2, 0x20003")
        a(f"s_lshl_b32 s{S_TMP2}, s{S_TMP}, 6")
        a(f"s_add_u32 s{S_SO}, s{S_SO}, s{S_TMP2}")
        a(f"s_add_u32 s{S_SO}, s{S_SO}, {WS_OPP}")
        a(f"s_add_u32 s97, s{S_SO}, 8192")
        a(f"v_lshlrev_b32 v{vt3}, 12, v{vB}")
        a(f"v_lshl_add_u32 v{vt3}, v{vU}, 4, v{vt3}")
        a(f"s_lshr_b32 s98, s2, 3")
        a(f"s_lshl_b32 s98, s98, 7")
        a(f"s_add_u32 s98, s98, {WS_ML}")
        self.lds_wait(3, 8, vt0, vt1)
        self.stamp(5, W0+20)
        if self.t2late == 2:
            a(f"s_cmp_lt_u32 s2, {T2_0}")
            a("s_cbranch_scc1 L_s_t2w_done")
            a(f"s_cmp_ge_u32 s2, {T2_0+T2_N}")
            a("s_cbranch_scc1 L_s_t2w_done")
            self.lds_wait(5, 2, vt0, vt1, sleep=False)
            t2_wloads()
            a("L_s_t2w_done:")

        def iss():
            a(f"buffer_load_dwordx4 v[{OA}:{OA+3}], v{vt2}, s[{S_WS}:{S_WS+3}], s{S_SO} offen sc1")
            a(f"buffer_load_dwordx4 v[{OB}:{OB+3}], v{vt2}, s[{S_WS}:{S_WS+3}], s97 offen sc1")
            a(f"buffer_load_dwordx4 v[{MLr}:{MLr+3}], v{vt3}, s[{S_WS}:{S_WS+3}], s98 offen sc1")
            a(f"buffer_load_dwordx4 v[{MLr+4}:{MLr+7}], v{vt3}, s[{S_WS}:{S_WS+3}], s98 offen offset:64 sc1")
        def iss_o():
            a(f"buffer_load_dwordx4 v[{OA}:{OA+3}], v{vt2}, s[{S_WS}:{S_WS+3}], s{S_SO} offen sc1")
            a(f"buffer_load_dwordx4 v[{OB}:{OB+3}], v{vt2}, s[{S_WS}:{S_WS+3}], s97 offen sc1")

        def iss_m():
            a(f"buffer_load_dwordx4 v[{MLr}:{MLr+3}], v{vt3}, s[{S_WS}:{S_WS+3}], s98 offen sc1")
            a(f"buffer_load_dwordx4 v[{MLr+4}:{MLr+7}], v{vt3}, s[{S_WS}:{S_WS+3}], s98 offen offset:64 sc1")
        if self.gate >= 0:
            self.poll_gated(iss_o, iss_m, range(OA, OA+8), range(MLr, MLr+8), vA, vO, vt0, vt1, vT, self.gate)
        else:
            self.poll3(iss, range(OA, OA+8), range(MLr, MLr+8), vA, vO, vt0, vt1, vT, self.g_opp, self.sl[0])
        self.stamp(6, 8)
        m0, l0, m1, l1 = MLr, MLr+1, MLr+4, MLr+5
        a(f"v_and_b32 v{m0}, s{S_HI16}, v{m0}")
        a(f"v_and_b32 v{m1}, s{S_HI16}, v{m1}")
        a(f"v_lshrrev_b32 v{MLr+2}, 16, v{MLr+2}")
        a(f"v_lshrrev_b32 v{MLr+6}, 16, v{MLr+6}")
        a(f"v_and_or_b32 v{l0}, v{l0}, s{S_HI16}, v{MLr+2}")
        a(f"v_and_or_b32 v{l1}, v{l1}, s{S_HI16}, v{MLr+6}")
        a(f"v_max_f32 v{vt0}, v{m0}, v{m1}")
        self.allreduce(vt0, vt1, "v_max_f32", rows=False)
        a(f"v_sub_f32 v{m0}, v{m0}, v{vt0}")
        a(f"v_sub_f32 v{m1}, v{m1}, v{vt0}")
        a(f"v_mul_f32 v{m0}, 0x3fb8aa3b, v{m0}")
        a(f"v_mul_f32 v{m1}, 0x3fb8aa3b, v{m1}")
        a(f"v_exp_f32 v{m0}, v{m0}")
        a(f"v_exp_f32 v{m1}, v{m1}")
        self.nop(1)
        a(f"v_mul_f32 v{l0}, v{m0}, v{l0}")
        a(f"v_fmac_f32 v{l0}, v{m1}, v{l1}")
        for r in range(4):
            a(f"v_mul_f32 v{OA+r}, v{m0}, v{OA+r}")
        for r in range(4):
            a(f"v_fmac_f32 v{OA+r}, v{m1}, v{OB+r}")
        self.nop(2)
        for x in [l0] + [OA+r for r in range(4)]:
            a(f"v_add_f32_dpp v{x}, v{x}, v{x} quad_perm:[1,0,3,2] row_mask:0xf bank_mask:0xf")
        for x in [l0] + [OA+r for r in range(4)]:
            a(f"v_add_f32_dpp v{x}, v{x}, v{x} quad_perm:[2,3,0,1] row_mask:0xf bank_mask:0xf")
        a(f"v_rcp_f32 v{l0}, v{l0}")
        self.nop(1)
        for r in range(4):
            a(f"v_mul_f32 v{OA+r}, v{OA+r}, v{l0}")
        for r in range(4):
            a(f"v_cvt_pk_bf16_f32 v{OA+r}, v{OA+r}, v{OA+r}")
        D1, D2 = W0+4, W0+8
        XB = WC + 88
        self.gemv_x4(OA, WB, 4, XB, D1, D2, vM0, vM1)

        def ap_addr():
            a(f"s_lshl_b32 s{S_TMP}, s2, 11")
            a(f"s_add_u32 s{S_TMP}, s{S_TMP}, {WS_AP}")
        self.cu_reduce([(D1, D2)], None, L_RP, ap_addr, vt0, vt1, vT, vL16, WB)
        self.stamp(7, 8)
        a(f"s_cmp_lt_u32 s2, {T2_0}")
        a("s_cbranch_scc1 L_s_r")
        a(f"s_cmp_ge_u32 s2, {T2_0+T2_N}")
        a("s_cbranch_scc1 L_end")
        if self.t2late == 1:
            t2_wloads()
        a(f"v_lshl_add_u32 v{vt0}, v{vG}, 13, v{vC16}")
        a(f"s_lshl_b32 s{S_TMP}, s{STILE}, 15")
        a(f"s_lshl_b32 s{S_TMP2}, s{v}, 8")
        a(f"s_add_u32 s{S_TMP}, s{S_TMP}, s{S_TMP2}")
        for j in range(8):
            a(f"buffer_load_dwordx4 v[{WC+64+4*j}:{WC+64+4*j+3}], v{vt0}, s[{S_WD}:{S_WD+3}], s{S_TMP} offen nt")
            if j < 7:
                a(f"s_add_u32 s{S_TMP}, s{S_TMP}, 1024")
        a(f"v_mul_u32_u24 v{vt2}, {3072*4}, v{vB}")
        a(f"v_lshl_add_u32 v{vt2}, v{vG}, 7, v{vt2}")
        a(f"v_lshl_add_u32 v{vt2}, v{vU}, 5, v{vt2}")
        a(f"s_lshl_b32 s{S_SO}, s{v}, 9")
        a(f"s_add_u32 s{S_SO}, s{S_SO}, {WS_MOD + 1536*4}")
        SB0 = W0

        def iss():
            a(f"buffer_load_dwordx4 v[{SB0}:{SB0+3}], v{vt2}, s[{S_WS}:{S_WS+3}], s{S_SO} offen sc1")
            a(f"buffer_load_dwordx4 v[{SB0+4}:{SB0+7}], v{vt2}, s[{S_WS}:{S_WS+3}], s{S_SO} offen offset:16 sc1")
            a(f"buffer_load_dwordx4 v[{SB0+8}:{SB0+11}], v{vt2}, s[{S_WS}:{S_WS+3}], s{S_SO} offen offset:2048 sc1")
            a(f"buffer_load_dwordx4 v[{SB0+12}:{SB0+15}], v{vt2}, s[{S_WS}:{S_WS+3}], s{S_SO} offen offset:2064 sc1")
        self.poll(iss, list(range(SB0, SB0+16)), vA, vO, vT, mask=0xffff)
        for i in range(8):
            a(f"v_and_b32 v{SBC+i}, s{S_HI16}, v{SB0+i}")
            a(f"v_and_b32 v{SB0+8+i}, s{S_HI16}, v{SB0+8+i}")
        for i in range(8):
            a(f"v_add_f32 v{SBC+8+i}, 1.0, v{SB0+8+i}")
        for i in range(0, 8, 2):
            self.round2(SBC+8+i, SBC+8+i+1, vt0 if (i//2) % 2 == 0 else vt1)
        X1r = W0
        a(f"v_lshlrev_b32 v{vt2}, 11, v{vB}")
        a(f"v_lshl_add_u32 v{vt2}, v{vG}, 7, v{vt2}")
        a(f"v_lshl_add_u32 v{vt2}, v{vU}, {4 if self.x1p else 5}, v{vt2}")
        a(f"s_lshl_b32 s{S_SO}, s{v}, 9")
        a(f"s_add_u32 s{S_SO}, s{S_SO}, {WS_X1}")
        a(f"v_lshlrev_b32 v{vt3}, 5, v{vB}")
        a(f"s_lshl_b32 s{S_TMP}, s{v}, 3")
        a(f"v_add_u32 v{vt1}, s{S_TMP}, v{vt3}")

        def iss():
            a(f"buffer_load_dwordx4 v[{X1r}:{X1r+3}], v{vt2}, s[{S_WS}:{S_WS+3}], s{S_SO} offen sc1")
            a(f"buffer_load_dwordx4 v[{X1r+4}:{X1r+7}], v{vt2}, s[{S_WS}:{S_WS+3}], s{S_SO} offen offset:{64 if self.x1p else 16} sc1")
        def iss2(S):
            a(f"buffer_load_dwordx4 v[{S}:{S+3}], v{vt2}, s[{S_WS}:{S_WS+3}], s{S_SO} offen sc1")
            a(f"buffer_load_dwordx4 v[{S+4}:{S+7}], v{vt2}, s[{S_WS}:{S_WS+3}], s{S_SO} offen offset:{64 if self.x1p else 16} sc1")
        if self.pipe[1]:
            self.poll_pipe(iss2, 2, 8, [WB, WB+8], X1r, vA, vO, vT, 16, "lane", self.pipe[1])
        else:
            self.poll3(iss, None, range(X1r, X1r+8), vA, vO, vA, vO, vT, self.g_x1, self.sl[2])
        self.stamp(10, 8)
        for i in range(8):
            a(f"v_and_b32 v{X1r+i}, s{S_HI16}, v{X1r+i}")
        s1, s2_ = vA, vO
        self.ln_sum(X1r, 8, s1, vt0)
        a(f"v_mul_f32 v{s2_}, v{X1r}, v{X1r}")
        a(f"v_mul_f32 v{vt2}, v{X1r+1}, v{X1r+1}")
        for i in range(2, 8, 2):
            a(f"v_fmac_f32 v{s2_}, v{X1r+i}, v{X1r+i}")
            a(f"v_fmac_f32 v{vt2}, v{X1r+i+1}, v{X1r+i+1}")
        a(f"v_add_f32 v{s2_}, v{s2_}, v{vt2}")
        self.allreduce2(s1, s2_, vt0, vt2)
        a("s_mov_b64 exec, 0x1111")
        a(f"ds_write_b64 v{vt1}, v[{s1}:{s2_}] offset:{L_ST}")
        a("s_mov_b64 exec, -1")
        a("s_waitcnt lgkmcnt(0)")
        a("s_barrier")
        ST = W0+8
        a(f"ds_read_b128 v[{ST}:{ST+3}], v{vt3} offset:{L_ST}")
        a(f"ds_read_b128 v[{ST+4}:{ST+7}], v{vt3} offset:{L_ST+16}")
        a("s_waitcnt lgkmcnt(0)")
        a(f"v_add_f32 v{s1}, v{ST}, v{ST+2}")
        a(f"v_add_f32 v{vt0}, v{ST+4}, v{ST+6}")
        a(f"v_add_f32 v{s2_}, v{ST+1}, v{ST+3}")
        a(f"v_add_f32 v{vt1}, v{ST+5}, v{ST+7}")
        a(f"v_add_f32 v{s1}, v{s1}, v{vt0}")
        a(f"v_add_f32 v{s2_}, v{s2_}, v{vt1}")
        a(f"v_mul_f32 v{s1}, 0x3b000000, v{s1}")
        a(f"v_mul_f32 v{s2_}, 0x3b000000, v{s2_}")
        a(f"v_fma_f32 v{s2_}, -v{s1}, v{s1}, v{s2_}")
        a(f"v_max_f32 v{s2_}, 0, v{s2_}")
        self.ln_fin(s1, s2_, vt0)
        self.ln_norm(X1r, 8, s1, s2_, vt0, vt1)
        for i in range(8):
            a(f"v_mul_f32 v{X1r+i}, v{X1r+i}, v{SBC+8+i}")
        for i in range(0, 8, 2):
            self.round2(X1r+i, X1r+i+1, vt0 if (i//2) % 2 == 0 else vt1)
        for i in range(8):
            a(f"v_add_f32 v{X1r+i}, v{X1r+i}, v{SBC+i}")
        for i in range(8):
            a(f"v_cvt_pk_bf16_f32 v{X1r+i}, v{X1r+i}, v{X1r+i}")
        BB = WB
        AG, AU = W0+8, W0+12
        a("s_waitcnt vmcnt(0)")
        for T in range(8):
            us = T//2
            bb = BB + 4*(T & 1)
            for j in range(4):
                a(f"v_and_b32_dpp v{bb+j}, v{X1r+4*(T%2)+j}, v{vMe} quad_perm:[{us},{us},{us},{us}] row_mask:0xf bank_mask:0xf")
            self.nop(2)
            c = "0" if T == 0 else f"v[{AG}:{AG+3}]"
            a(f"v_mfma_f32_16x16x32_bf16 v[{AG}:{AG+3}], v[{WC+4*T}:{WC+4*T+3}], v[{bb}:{bb+3}], {c}")
            c = "0" if T == 0 else f"v[{AU}:{AU+3}]"
            a(f"v_mfma_f32_16x16x32_bf16 v[{AU}:{AU+3}], v[{WC+32+4*T}:{WC+32+4*T+3}], v[{bb}:{bb+3}], {c}")
        a(f"v_lshlrev_b32 v{vt0}, 9, v{vB}")
        a(f"v_lshl_add_u32 v{vt0}, v{vG}, 7, v{vt0}")
        a(f"v_lshl_add_u32 v{vt2}, v{vU}, 5, v{vt0}")
        a(f"v_and_b32 v{vt1}, 1, v0")
        a(f"v_lshl_add_u32 v{vt0}, v{vt1}, 4, v{vt0}")
        a(f"s_lshl_b32 s{S_TMP}, s{v}, 2")
        a(f"v_add_u32 v{vt0}, s{S_TMP}, v{vt0}")
        self.nop(4)
        a("s_mov_b32 exec_lo, 0x33333333")
        a("s_mov_b32 exec_hi, 0x33333333")
        for r in range(4):
            a(f"ds_write_b32 v{vt0}, v{AG+r} offset:{L_GU + 32*r}")
            a(f"ds_write_b32 v{vt0}, v{AU+r} offset:{L_GU + 2048 + 32*r}")
        a("s_mov_b64 exec, -1")
        a("s_waitcnt lgkmcnt(0)")
        a("s_barrier")
        GR = WB
        a(f"ds_read_b128 v[{GR}:{GR+3}], v{vt2} offset:{L_GU}")
        a(f"ds_read_b128 v[{GR+4}:{GR+7}], v{vt2} offset:{L_GU+16}")
        a(f"ds_read_b128 v[{GR+8}:{GR+11}], v{vt2} offset:{L_GU+2048}")
        a(f"ds_read_b128 v[{GR+12}:{GR+15}], v{vt2} offset:{L_GU+2048+16}")
        a(f"s_lshl_b32 s{S_TMP}, s{STILE}, 2")
        a(f"s_add_u32 s{S_TMP}, s{S_TMP}, s{v}")
        a(f"s_lshl_b32 s{S_TMP}, s{S_TMP}, 11")
        a(f"s_add_u32 s{S_TMP}, s{S_TMP}, {WS_DP}")
        a("s_waitcnt lgkmcnt(0)")
        for i in range(4):
            g = GR + 4*i
            a(f"v_add_f32 v{g}, v{g}, v{g+1}")
            a(f"v_add_f32 v{g+2}, v{g+2}, v{g+3}")
        for i in range(4):
            g = GR + 4*i
            a(f"v_add_f32 v{g}, v{g}, v{g+2}")
        g0, g1, u0, u1 = GR, GR+4, GR+8, GR+12
        self.round2(g0, g1, vt0)
        self.round2(u0, u1, vt1)
        a(f"v_mul_f32 v{g0+1}, 0xbfb8aa3b, v{g0}")
        a(f"v_mul_f32 v{g1+1}, 0xbfb8aa3b, v{g1}")
        a(f"v_exp_f32 v{g0+1}, v{g0+1}")
        a(f"v_exp_f32 v{g1+1}, v{g1+1}")
        self.nop(1)
        a(f"v_add_f32 v{g0+1}, 1.0, v{g0+1}")
        a(f"v_add_f32 v{g1+1}, 1.0, v{g1+1}")
        a(f"v_rcp_f32 v{g0+1}, v{g0+1}")
        a(f"v_rcp_f32 v{g1+1}, v{g1+1}")
        self.nop(1)
        a(f"v_mul_f32 v{g0}, v{g0}, v{g0+1}")
        a(f"v_mul_f32 v{g1}, v{g1}, v{g1+1}")
        self.round2(g0, g1, vt0)
        a(f"v_mul_f32 v{g0}, v{g0}, v{u0}")
        a(f"v_mul_f32 v{g1}, v{g1}, v{u1}")
        AD = W0
        a(f"v_cvt_pk_bf16_f32 v{AD}, v{g0}, v{g0}")
        a(f"v_cvt_pk_bf16_f32 v{AD+1}, v{g1}, v{g1}")
        self.nop(1)
        XB = WB
        for j in range(8):
            us = j//2
            a(f"v_and_b32_dpp v{XB+2*j}, v{AD+(j%2)}, v{vM0} quad_perm:[{us},{us},{us},{us}] row_mask:0xf bank_mask:0xf")
            a(f"v_and_b32_dpp v{XB+2*j+1}, v{AD+(j%2)}, v{vM1} quad_perm:[{us},{us},{us},{us}] row_mask:0xf bank_mask:0xf")
        self.nop(2)
        D1, D2, D3, D4 = W0+4, W0+8, W0+12, W0+16
        for j in range(8):
            w = WC + 64 + 4*j
            da, db = (D1, D2) if j % 2 == 0 else (D3, D4)
            c1 = "0" if j < 2 else f"v[{da}:{da+3}]"
            c2 = "0" if j < 2 else f"v[{db}:{db+3}]"
            a(f"v_mfma_f32_16x16x16_bf16 v[{da}:{da+3}], v[{w}:{w+1}], v[{XB+2*j}:{XB+2*j+1}], {c1}")
            a(f"v_mfma_f32_16x16x16_bf16 v[{db}:{db+3}], v[{w+2}:{w+3}], v[{XB+2*j}:{XB+2*j+1}], {c2}")
        self.nop(8)
        for r in range(4):
            a(f"v_add_f32 v{D1+r}, v{D1+r}, v{D3+r}")
        for r in range(4):
            a(f"v_add_f32 v{D2+r}, v{D2+r}, v{D4+r}")
        for r in range(4):
            self.tag32(D1+r, vT)
        a(f"buffer_store_dwordx4 v[{D1}:{D1+3}], v{vL16}, s[{S_WS}:{S_WS+3}], s{S_TMP} offen sc1")
        for r in range(4):
            self.tag32(D2+r, vT)
        a(f"buffer_store_dwordx4 v[{D2}:{D2+3}], v{vL16}, s[{S_WS}:{S_WS+3}], s{S_TMP} offen offset:1024 sc1")
        self.stamp(11, 8)
        a("s_endpgm")
        a("L_s_r:")
        a(f"s_cmp_lg_u32 s{v}, 2")
        a("s_cbranch_scc1 L_end")
        SCOL = 100
        a(f"s_lshr_b32 s{SCOL}, s2, 3")
        a(f"s_lshl_b32 s{SCOL}, s{SCOL}, 5")
        a(f"s_bfe_u32 s{S_TMP}, s2, 0x10002")
        a(f"s_lshl_b32 s{S_TMP}, s{S_TMP}, 2")
        a(f"s_add_u32 s{SCOL}, s{SCOL}, s{S_TMP}")
        a(f"s_and_b32 s{S_TMP}, s2, 3")
        a(f"s_lshl_b32 s{S_TMP2}, s{S_TMP}, 9")
        a(f"s_add_u32 s{S_TMP2}, s{S_TMP2}, s{SCOL}")
        a(f"s_mul_i32 s{S_TMP}, s{S_TMP}, 3072")
        a(f"s_add_u32 s{SCOL}, s{SCOL}, s{S_TMP}")
        vCol = SBC + 3
        a(f"v_lshl_add_u32 v{vt1}, v{vG}, 3, v{vU}")
        a(f"v_add_u32 v{vCol}, s{S_TMP2}, v{vt1}")
        a(f"v_lshlrev_b32 v{vt0}, 1, v{vCol}")
        a(f"buffer_load_ushort v{SBC+2}, v{vt0}, s[{S_X}:{S_X+3}], 0 offen")
        a(f"v_add_u32 v{vt2}, s{SCOL}, v{vt1}")
        a(f"v_lshlrev_b32 v{vt2}, 2, v{vt2}")
        a(f"s_mov_b32 s{S_SO}, {WS_MOD + 1024*4}")
        a(f"s_mov_b32 s97, {WS_MOD + 2560*4}")

        def iss():
            a(f"buffer_load_dword v{SBC}, v{vt2}, s[{S_WS}:{S_WS+3}], s{S_SO} offen sc1")
            a(f"buffer_load_dword v{SBC+1}, v{vt2}, s[{S_WS}:{S_WS+3}], s97 offen sc1")
        self.poll(iss, [SBC, SBC+1, SBC+1], vA, vO, vT, mask=0xffff)
        a(f"v_and_b32 v{SBC}, s{S_HI16}, v{SBC}")
        a(f"v_and_b32 v{SBC+1}, s{S_HI16}, v{SBC+1}")
        a(f"v_lshlrev_b32 v{SBC+2}, 16, v{SBC+2}")
        RD = WC
        RS = [WC+16, WC+32, WC+48][:self.nsets]
        SRB = 101
        a(f"s_lshr_b32 s{SRB}, s2, 5")
        a(f"s_lshl_b32 s{SRB}, s{SRB}, 11")
        a(f"s_bfe_u32 s{S_TMP}, s2, 0x10002")
        a(f"s_lshl_b32 s{S_TMP}, s{S_TMP}, 10")
        a(f"s_add_u32 s{SRB}, s{SRB}, s{S_TMP}")
        a(f"s_bfe_u32 s{S_TMP}, s2, 0x20003")
        a(f"s_lshl_b32 s{S_TMP}, s{S_TMP}, 8")
        a(f"s_add_u32 s{SRB}, s{SRB}, s{S_TMP}")
        a(f"s_and_b32 s{S_TMP}, s2, 3")
        a(f"s_lshl_b32 s{S_TMP}, s{S_TMP}, 6")
        a(f"s_add_u32 s{SRB}, s{SRB}, s{S_TMP}")
        a(f"v_lshrrev_b32 v{vt2}, 2, v0")
        a(f"v_lshlrev_b32 v{vt2}, 13, v{vt2}")
        a(f"v_lshl_add_u32 v{vt2}, v{vU}, 4, v{vt2}")
        a(f"v_and_b32 v{vt3}, 0xffff, v{vt2}")
        QS = [S_SO, 97, 98, 99]
        for q in range(4):
            a(f"s_add_u32 s{QS[q]}, s{SRB}, {WS_AP + q*131072}")
        if self.x1p:
            a(f"v_lshl_add_u32 v{SBC+4}, v{vG}, 2, v{vU}")
            a(f"v_lshlrev_b32 v{SBC+4}, 2, v{SBC+4}")
            a(f"s_and_b32 s96, s2, 3")
            a(f"s_lshl_b32 s96, s96, 11")
            a(f"s_lshr_b32 s{S_TMP2}, s2, 3")
            a(f"s_lshl_b32 s{S_TMP2}, s{S_TMP2}, 7")
            a(f"s_add_u32 s96, s96, s{S_TMP2}")
            a(f"s_bfe_u32 s{S_TMP2}, s2, 0x10002")
            a(f"s_lshl_b32 s{S_TMP2}, s{S_TMP2}, 6")
            a(f"s_add_u32 s96, s96, s{S_TMP2}")
            a(f"s_add_u32 s96, s96, {WS_X1}")

        def iss():
            for q in range(4):
                a(f"buffer_load_dwordx4 v[{RD+4*q}:{RD+4*q+3}], v{vt2}, s[{S_WS}:{S_WS+3}], s{QS[q]} offen sc1")
        def iss2(S):
            for q in range(4):
                a(f"buffer_load_dwordx4 v[{S+4*q}:{S+4*q+3}], v{vt2}, s[{S_WS}:{S_WS+3}], s{QS[q]} offen sc1")
        if self.pipe[0]:
            self.poll_pipe(iss2, 4, 16, [WC+16, WC+32], RD, vA, vO, vT, TAGB, "quad", self.pipe[0])
        else:
            self.poll3(iss, range(RD, RD+16), None, vA, vO, vA, vO, vT, self.g_r, self.sl[1])
        self.stamp(12, 8)
        self.reduce_r(RD, False)
        vga, vgb, vx = SBC, SBC+1, SBC+2
        self.round1(RD)
        a(f"v_mul_f32 v{RD}, v{vga}, v{RD}")
        self.round1(RD)
        a(f"v_add_f32 v{vx}, v{vx}, v{RD}")
        a(f"v_cvt_pk_bf16_f32 v{vx}, v{vx}, v{vx}")
        a(f"v_lshl_or_b32 v{RD}, v{vx}, 16, v{vT}")
        if not self.x1p:
            a(f"v_lshlrev_b32 v{vt1}, 2, v{vCol}")
            a(f"s_mov_b32 s{S_TMP}, {WS_X1}")
        a("s_mov_b32 exec_lo, 0x000f000f")
        a("s_mov_b32 exec_hi, 0x000f000f")
        if self.x1p:
            a(f"buffer_store_dword v{RD}, v{SBC+4}, s[{S_WS}:{S_WS+3}], s96 offen sc1")
        else:
            a(f"buffer_store_dword v{RD}, v{vt1}, s[{S_WS}:{S_WS+3}], s{S_TMP} offen sc1")
        a("s_mov_b64 exec, -1")
        a(f"v_and_b32 v{vx}, s{S_HI16}, v{vx}")
        a(f"v_lshlrev_b32 v{vCol}, 1, v{vCol}")
        self.stamp(13, 8)
        for q in range(4):
            a(f"s_add_u32 s{QS[q]}, s{SRB}, {WS_DP + q*131072}")

        def iss():
            for q in range(4):
                va = vt2 if q < 3 else vt3
                a(f"buffer_load_dwordx4 v[{RD+4*q}:{RD+4*q+3}], v{va}, s[{S_WS}:{S_WS+3}], s{QS[q]} offen sc1")
        def iss2(S):
            for q in range(4):
                va = vt2 if q < 3 else vt3
                a(f"buffer_load_dwordx4 v[{S+4*q}:{S+4*q+3}], v{va}, s[{S_WS}:{S_WS+3}], s{QS[q]} offen sc1")
        if self.pipe[2]:
            self.poll_pipe(iss2, 4, 16, [WC+16, WC+32], RD, vA, vO, vT, TAGB, "quad", self.pipe[2])
        else:
            self.poll3(iss, range(RD, RD+16), None, vA, vO, vA, vO, vT, self.g_r, self.sl[3])
        self.reduce_r(RD, True)
        self.round1(RD)
        a(f"v_mul_f32 v{RD}, v{vgb}, v{RD}")
        self.round1(RD)
        a(f"v_add_f32 v{RD}, v{vx}, v{RD}")
        a(f"v_cvt_pk_bf16_f32 v{RD}, v{RD}, v{RD}")
        a("s_mov_b32 exec_lo, 0x000f000f")
        a("s_mov_b32 exec_hi, 0x000f000f")
        a(f"buffer_store_short v{RD}, v{vCol}, s[{S_OUT}:{S_OUT+3}], 0 offen")
        a("s_mov_b64 exec, -1")
        self.stamp(14, 8)
        a(f"s_cmp_lg_u32 s2, {R_0}")
        a("s_cbranch_scc1 L_end")
        a(f"v_mov_b32 v{vt0}, s{S_E}")
        a(f"v_mov_b32 v{vt1}, {WS_E}")
        a("s_mov_b64 exec, 1")
        a(f"buffer_store_dword v{vt0}, v{vt1}, s[{S_WS}:{S_WS+3}], 0 offen sc1")
        a("s_endpgm")

    def reduce_r(self, RD, half_last):
        a = self.a
        for r in range(4):
            a(f"v_add_f32 v{RD+r}, v{RD+r}, v{RD+4+r}")
        if half_last:
            a("s_mov_b32 exec_hi, 0")
        for r in range(4):
            a(f"v_add_f32 v{RD+8+r}, v{RD+8+r}, v{RD+12+r}")
        if half_last:
            a("s_mov_b32 exec_hi, -1")
        for r in range(4):
            a(f"v_add_f32 v{RD+r}, v{RD+r}, v{RD+8+r}")
        self.nop(2)
        a(f"v_permlane32_swap_b32 v{RD}, v{RD+2}")
        a(f"v_permlane32_swap_b32 v{RD+1}, v{RD+3}")
        a(f"v_add_f32 v{RD}, v{RD}, v{RD+2}")
        a(f"v_add_f32 v{RD+1}, v{RD+1}, v{RD+3}")
        self.nop(2)
        a(f"v_permlane16_swap_b32 v{RD}, v{RD+1}")
        a(f"v_add_f32 v{RD}, v{RD}, v{RD+1}")
        self.nop(2)
        a(f"v_add_f32_dpp v{RD}, v{RD}, v{RD} row_ror:8 row_mask:0xf bank_mask:0xf")
        self.nop(2)
        a(f"v_add_f32_dpp v{RD}, v{RD}, v{RD} row_ror:4 row_mask:0xf bank_mask:0xf")

    def allreduce2(self, r1, r2, t1, t2):
        a = self.a
        self.nop(1)
        for qp in ("[1,0,3,2]", "[2,3,0,1]"):
            a(f"v_add_f32_dpp v{r1}, v{r1}, v{r1} quad_perm:{qp} row_mask:0xf bank_mask:0xf")
            a(f"v_add_f32_dpp v{r2}, v{r2}, v{r2} quad_perm:{qp} row_mask:0xf bank_mask:0xf")
            self.nop(1)
        for sw in ("v_permlane16_swap_b32", "v_permlane32_swap_b32"):
            a(f"v_mov_b32 v{t1}, v{r1}")
            a(f"v_mov_b32 v{t2}, v{r2}")
            self.nop(1)
            a(f"{sw} v{r1}, v{t1}")
            a(f"{sw} v{r2}, v{t2}")
            a(f"v_add_f32 v{r1}, v{r1}, v{t1}")
            a(f"v_add_f32 v{r2}, v{r2}, v{t2}")

    def reduce_q(self, RD, n):
        a = self.a
        idx = list(range(n))
        while len(idx) > 1:
            nxt = []
            for i in range(0, len(idx)-1, 2):
                for r in range(4):
                    a(f"v_add_f32 v{RD+4*idx[i]+r}, v{RD+4*idx[i]+r}, v{RD+4*idx[i+1]+r}")
                nxt.append(idx[i])
            if len(idx) % 2:
                nxt.append(idx[-1])
            idx = nxt
        self.nop(2)
        a(f"v_permlane32_swap_b32 v{RD}, v{RD+2}")
        a(f"v_permlane32_swap_b32 v{RD+1}, v{RD+3}")
        a(f"v_add_f32 v{RD}, v{RD}, v{RD+2}")
        a(f"v_add_f32 v{RD+1}, v{RD+1}, v{RD+3}")
        self.nop(2)
        a(f"v_permlane16_swap_b32 v{RD}, v{RD+1}")
        a(f"v_add_f32 v{RD}, v{RD}, v{RD+1}")

    def ln_sum(self, R, n, dst, t):
        a = self.a
        a(f"v_add_f32 v{dst}, v{R}, v{R+1}")
        a(f"v_add_f32 v{t}, v{R+2}, v{R+3}")
        for i in range(4, n, 2):
            a(f"v_add_f32 v{dst}, v{dst}, v{R+i}")
            a(f"v_add_f32 v{t}, v{t}, v{R+i+1}")
        a(f"v_add_f32 v{dst}, v{dst}, v{t}")

    def ln_fin(self, vMean, vVar, t):
        a = self.a
        self.round2(vMean, vVar, t)
        a(f"v_add_f32 v{vVar}, 0x3727c5ac, v{vVar}")
        self.round1(vVar)
        a(f"v_sqrt_f32 v{vVar}, v{vVar}")
        self.nop(1)
        self.round1(vVar)
        a(f"v_rcp_f32 v{vVar}, v{vVar}")
        self.nop(1)

    def ln_norm(self, Y, n, vMean, vRcp, t0, t1):
        a = self.a
        for i in range(n):
            a(f"v_sub_f32 v{Y+i}, v{Y+i}, v{vMean}")
        for i in range(0, n, 2):
            self.round2(Y+i, Y+i+1, t0 if (i//2) % 2 == 0 else t1)
        for i in range(n):
            a(f"v_mul_f32 v{Y+i}, v{Y+i}, v{vRcp}")
        for i in range(0, n, 2):
            self.round2(Y+i, Y+i+1, t0 if (i//2) % 2 == 0 else t1)

    def modulate(self, Y, n, SH, SCL, t0, t1, clean=False):
        a = self.a
        if not clean:
            for i in range(n):
                a(f"v_and_b32 v{SH+i}, s{S_HI16}, v{SH+i}")
                a(f"v_and_b32 v{SCL+i}, s{S_HI16}, v{SCL+i}")
        for i in range(n):
            a(f"v_add_f32 v{SCL+i}, 1.0, v{SCL+i}")
        for i in range(0, n, 2):
            self.round2(SCL+i, SCL+i+1, t0 if (i//2) % 2 == 0 else t1)
        for i in range(n):
            a(f"v_mul_f32 v{Y+i}, v{Y+i}, v{SCL+i}")
        for i in range(0, n, 2):
            self.round2(Y+i, Y+i+1, t0 if (i//2) % 2 == 0 else t1)
        for i in range(n):
            a(f"v_add_f32 v{Y+i}, v{Y+i}, v{SH+i}")
        for i in range(n):
            a(f"v_cvt_pk_bf16_f32 v{Y+i}, v{Y+i}, v{Y+i}")

    def gemv_x4(self, DU, W, n, XB, D1, D2, vM0, vM1):
        a = self.a
        for j in range(n):
            a(f"v_and_b32 v{XB+2*j}, v{DU+j}, v{vM0}")
            a(f"v_and_b32 v{XB+2*j+1}, v{DU+j}, v{vM1}")
        self.nop(2)
        for j in range(n):
            w = W + 4*j
            c1 = "0" if j == 0 else f"v[{D1}:{D1+3}]"
            c2 = "0" if j == 0 else f"v[{D2}:{D2+3}]"
            a(f"v_mfma_f32_16x16x16_bf16 v[{D1}:{D1+3}], v[{w}:{w+1}], v[{XB+2*j}:{XB+2*j+1}], {c1}")
            a(f"v_mfma_f32_16x16x16_bf16 v[{D2}:{D2+3}], v[{w+2}:{w+3}], v[{XB+2*j}:{XB+2*j+1}], {c2}")
        self.nop(8)

    def gemv_x_build(self, DU, n, XB, vM0, vM1):
        a = self.a
        for j in range(n):
            a(f"v_and_b32 v{XB+2*j}, v{DU+j}, v{vM0}")
            a(f"v_and_b32 v{XB+2*j+1}, v{DU+j}, v{vM1}")
        self.nop(2)

    def gemv_mfma(self, W, n, XB, D1, D2):
        a = self.a
        for j in range(n):
            w = W + 4*j
            c1 = "0" if j == 0 else f"v[{D1}:{D1+3}]"
            c2 = "0" if j == 0 else f"v[{D2}:{D2+3}]"
            a(f"v_mfma_f32_16x16x16_bf16 v[{D1}:{D1+3}], v[{w}:{w+1}], v[{XB+2*j}:{XB+2*j+1}], {c1}")
            a(f"v_mfma_f32_16x16x16_bf16 v[{D2}:{D2+3}], v[{w+2}:{w+3}], v[{XB+2*j}:{XB+2*j+1}], {c2}")

    def cu_reduce(self, tiles, cnt, lbase, addr_fn, vt0, vt1, vT, vL16, R):
        a = self.a
        v = S_WID
        nt = len(tiles)
        a(f"s_lshl_b32 s{S_TMP}, s{v}, 11")
        a(f"v_add_u32 v{vt0}, s{S_TMP}, v{vL16}")
        for t, (D1, D2) in enumerate(tiles):
            a(f"ds_write_b128 v{vt0}, v[{D1}:{D1+3}] offset:{lbase+8192*t}")
            a(f"ds_write_b128 v{vt0}, v[{D2}:{D2+3}] offset:{lbase+8192*t+1024}")
        if cnt is not None:
            self.lds_bar(cnt, 4, vt0, vt1)
        else:
            a("s_waitcnt lgkmcnt(0)")
            a("s_barrier")
        skip = self.label("crs")
        if nt == 1:
            a(f"s_cmp_ge_u32 s{v}, 2")
            a(f"s_cbranch_scc1 {skip}")
        a(f"s_and_b32 s{S_TMP}, s{v}, 1")
        a(f"s_lshl_b32 s{S_TMP}, s{S_TMP}, 10")
        a(f"v_add_u32 v{vt0}, s{S_TMP}, v{vL16}")
        if nt == 2:
            a(f"s_lshr_b32 s{S_TMP}, s{v}, 1")
            a(f"s_lshl_b32 s{S_TMP}, s{S_TMP}, 13")
            a(f"v_add_u32 v{vt1}, s{S_TMP}, v{vt0}")
            rd = vt1
        else:
            rd = vt0
        assert R % 4 == 0
        for i in range(4):
            a(f"ds_read_b128 v[{R+4*i}:{R+4*i+3}], v{rd} offset:{lbase+2048*i}")
        addr_fn()
        a("s_waitcnt lgkmcnt(0)")
        for r in range(4):
            a(f"v_add_f32 v{R+r}, v{R+r}, v{R+4+r}")
            a(f"v_add_f32 v{R+8+r}, v{R+8+r}, v{R+12+r}")
        for r in range(4):
            a(f"v_add_f32 v{R+r}, v{R+r}, v{R+8+r}")
        for r in range(4):
            self.tag32(R+r, vT)
        a(f"buffer_store_dwordx4 v[{R}:{R+3}], v{vt0}, s[{S_WS}:{S_WS+3}], s{S_TMP} offen sc1")
        a(f"{skip}:")

    def build(self):
        self.prologue()
        self.svc()
        self.kv()
        self.a("L_end:")
        body = "\n".join(self.L)
        return f"""; @launch grid=(256,1,1) block=(768,1,1) lds={LDS_SIZE}
.amdgcn_target "amdgcn-amd-amdhsa--gfx950"
.text
.globl {KN}
.p2align 8
.type {KN},@function
{KN}:
{body}
s_endpgm
.section .rodata,"a"
.p2align 6
.amdhsa_kernel {KN}
  .amdhsa_next_free_vgpr 168
  .amdhsa_next_free_sgpr 102
  .amdhsa_accum_offset 168
  .amdhsa_group_segment_fixed_size 0
  .amdhsa_kernarg_size 112
  .amdhsa_user_sgpr_count 2
  .amdhsa_user_sgpr_kernarg_segment_ptr 1
  .amdhsa_system_sgpr_workgroup_id_x 1
.end_amdhsa_kernel
"""


if __name__ == "__main__":
    import argparse
    ap = argparse.ArgumentParser()
    ap.add_argument("-o", default="k1.s")
    ap.add_argument("--dbg", action="store_true")
    ap.add_argument("--dbg2", type=int, default=0)
    ap.add_argument("--prio", type=int, default=3)
    ap.add_argument("--na-front", type=int, default=2)
    ap.add_argument("--p-front", type=int, default=1)
    ap.add_argument("--na-nf", type=int, default=16)
    ap.add_argument("--p-nf", type=int, default=2)
    ap.add_argument("--psleep2", type=int, default=8)
    ap.add_argument("--psleep3", type=int, default=5)
    ap.add_argument("--nsets", type=int, default=1)
    ap.add_argument("--kf", type=int, default=512)
    ap.add_argument("--km", type=int, default=384)
    ap.add_argument("--kh", type=int, default=640)
    ap.add_argument("--wearly", type=int, default=0)
    ap.add_argument("--b0first", type=int, default=0)
    ap.add_argument("--g-opp", default="g16")
    ap.add_argument("--g-x1", default="lane")
    ap.add_argument("--g-r", default="quad")
    ap.add_argument("--t2late", type=int, default=0)
    ap.add_argument("--pf", type=int, default=0)
    ap.add_argument("--pipe", default="0,0,0")
    ap.add_argument("--gate", type=int, default=-1)
    ap.add_argument("--x1p", type=int, default=0)
    ap.add_argument("--rel", type=int, default=2)
    ap.add_argument("--sl", default="0,0,0,0")
    args = ap.parse_args()
    g = Gen(dbg2=args.dbg2, dbg=args.dbg, prio=args.prio, na_front=args.na_front, p_front=args.p_front, na_nf=args.na_nf, p_nf=args.p_nf,
            psleep2=args.psleep2, psleep3=args.psleep3, nsets=args.nsets, kf=args.kf, km=args.km, kh=args.kh, wearly=args.wearly, b0first=args.b0first,
            g_opp=args.g_opp, g_x1=args.g_x1, g_r=args.g_r, t2late=args.t2late, pf=args.pf, pipe=tuple(int(x) for x in args.pipe.split(',')), gate=args.gate, x1p=args.x1p, rel=args.rel, sl=tuple(int(x) for x in args.sl.split(',')))
    open(args.o, "w").write(g.build())
```

```python
import sys
KN = "adaLN_cond__gqa_block_cached__swiglu_ffn__decode_kernel"

WS_E = 0
WS_MOD = 0x1000
WS_QP = 0x10000
WS_MODP = 0xA0000
WS_OPP = 0x100000
WS_ML = 0x180000
WS_AP = 0x200000
WS_X1 = 0x280000
WS_DP = 0x300000
WS_DBG = 0x3C0000
WS_SIZE = 0x400000
L_F1P = 0
L_RP = 4096
L_QL = 20480
L_OW = 24576
L_MLW = 40960
L_ST = 41216
L_CNT = 41344
L_GU = 41472
LDS_SIZE = 49152

NFRONT = 128
F1A_N = 64
T2_0 = 128
T2_N = 56
F1B_0 = 184
F1B_N = 64
R_0 = 0
R_N = 128
LIMIT = 4000

S_K, S_V, S_WS, S_WQ, S_WO, S_WM, S_WG, S_WU, S_WD, S_X, S_C, S_OUT = 4, 8, 12, 16, 20, 24, 28, 32, 36, 40, 44, 48
S_WID, S_T, S_SO, S_IT, S_V4, S_TMP, S_TMP2, S_E = 52, 53, 54, 55, 56, 57, 58, 59
S_B0, S_B1 = 60, 62
S_FF00 = 90
S_HI16 = 91
S_TS = 92
S_R = 96
S_BK, S_SP = 84, 85
S_T3 = 94
TAGB = 4


class Gen:
    def __init__(self, dbg=False, prio=3, na_front=2, p_front=1, na_nf=16, p_nf=2, psleep2=8, psleep3=5, nsets=1, kf=512, km=384, kh=640, wearly=0, b0first=0, g_opp='g16', g_x1='lane', g_r='quad', t2late=0, pf=0, sl=(0,0,0,0), rel=2, x1p=0, gate=-1, pipe=(0,0,0), dbg2=0, xl=0, xls=0, t2alg=0):
        self.pipe = pipe
        self.gate = gate
        self.x1p = x1p
        self.rel = rel
        self.sl = sl
        self.pf = pf
        self.t2late = t2late
        self.g_opp, self.g_x1, self.g_r = g_opp, g_x1, g_r
        self.L = []
        self.dbg = dbg
        self.dbg2 = dbg2
        self.xl = xl
        self.t2alg = t2alg
        self.xls = xls
        self.SP2 = 's95' if xl else 's2'
        self.prio = prio
        self.na_front = na_front
        self.wearly, self.b0first = wearly, b0first
        self.kf, self.km, self.kh = kf, km, kh
        self.psleep2 = psleep2
        self.psleep3 = psleep3
        self.nsets = nsets
        self.p_front = p_front
        self.na_nf = na_nf
        self.p_nf = p_nf
        self.lbl = 0

    def a(self, s):
        self.L.append(s)

    def label(self, p):
        self.lbl += 1
        return f"L_{p}_{self.lbl}"

    def nop(self, n):
        while n > 0:
            k = min(n, 16)
            self.a(f"s_nop {k-1}")
            n -= k

    def srd(self, s, plo, size):
        self.a(f"s_mov_b32 s{s}, s{plo}")
        self.a(f"s_mov_b32 s{s+1}, s{plo+1}")
        self.a(f"s_mov_b32 s{s+2}, {size}")
        self.a(f"s_mov_b32 s{s+3}, 0x00020000")

    def stamp(self, slot, vtmp, d2=None):
        if self.dbg2:
            a = self.a
            if d2 is None:
                d2 = [(slot, False)]
            if self.dbg2 >= 2 and slot in (3, 4, 5, 6, 7):
                d2 = []
            if not d2:
                return
            assert vtmp % 2 == 0
            samp = True
            if samp:
                self.d2n = getattr(self, "d2n", 0) + 1
                a(f"s_and_b32 s{S_TMP2}, s2, 0x38")
                a(f"s_cbranch_scc1 L_d2s_{self.d2n}")
                if slot == 1:
                    a(f"s_cmp_lg_u32 s{S_WID}, 4")
                    a(f"s_cbranch_scc1 L_d2s_{self.d2n}")
            a(f"s_memrealtime s[{S_TS}:{S_TS+1}]")
            a("s_waitcnt lgkmcnt(0)")
            a(f"v_mov_b32 v{vtmp+2}, s{S_TS}")
            a(f"s_load_dwordx2 s[{S_TS}:{S_TS+1}], s[0:1], 96")
            a("s_waitcnt lgkmcnt(0)")
            a("s_mov_b64 exec, 1")
            a(f"v_mov_b32 v{vtmp}, s{S_TS}")
            a(f"v_mov_b32 v{vtmp+1}, s{S_TS+1}")
            for (idx, neg) in sorted(d2, key=lambda t: t[1]):
                if neg:
                    a("s_nop 2")
                    a(f"v_not_b32 v{vtmp+2}, v{vtmp+2}")
                a(f"global_atomic_umax v[{vtmp}:{vtmp+1}], v{vtmp+2}, off offset:{idx*4} sc1")
                a("s_nop 1")
            a("s_mov_b64 exec, -1")
            a("s_nop 1")
            if samp:
                a(f"L_d2s_{self.d2n}:")
            return
        if not self.dbg:
            return
        a = self.a
        a(f"s_memrealtime s[{S_TS}:{S_TS+1}]")
        a("s_waitcnt lgkmcnt(0)")
        a(f"v_mov_b32 v{vtmp}, s{S_TS}")
        a(f"v_mov_b32 v{vtmp+1}, s{S_IT}")
        a(f"s_lshl_b32 s{S_TMP2}, s2, 7")
        a(f"s_add_u32 s{S_TMP2}, s{S_TMP2}, {WS_DBG + slot*8}")
        a(f"v_mov_b32 v{vtmp+2}, s{S_TMP2}")
        a("s_mov_b64 exec, 1")
        a(f"buffer_store_dwordx2 v[{vtmp}:{vtmp+1}], v{vtmp+2}, s[{S_WS}:{S_WS+3}], 0 offen")
        a("s_mov_b64 exec, -1")
        a("s_nop 1")

    def allreduce(self, r, t, op, quad=True, rows=True):
        a = self.a
        if quad:
            self.nop(2)
            a(f"{op}_dpp v{r}, v{r}, v{r} quad_perm:[1,0,3,2] row_mask:0xf bank_mask:0xf")
            self.nop(2)
            a(f"{op}_dpp v{r}, v{r}, v{r} quad_perm:[2,3,0,1] row_mask:0xf bank_mask:0xf")
        if rows:
            a(f"v_mov_b32 v{t}, v{r}")
            self.nop(2)
            a(f"v_permlane16_swap_b32 v{r}, v{t}")
            a(f"{op} v{r}, v{r}, v{t}")
            a(f"v_mov_b32 v{t}, v{r}")
            self.nop(2)
            a(f"v_permlane32_swap_b32 v{r}, v{t}")
            a(f"{op} v{r}, v{r}, v{t}")

    def round2(self, x0, x1, t):
        a = self.a
        a(f"v_cvt_pk_bf16_f32 v{t}, v{x0}, v{x1}")
        a(f"v_lshlrev_b32 v{x0}, 16, v{t}")
        a(f"v_and_b32 v{x1}, s{S_HI16}, v{t}")

    def round1(self, x, t=None):
        a = self.a
        a(f"v_cvt_pk_bf16_f32 v{x}, v{x}, v{x}")
        a(f"v_and_b32 v{x}, s{S_HI16}, v{x}")

    def poll(self, issue, regs, vA, vO, vT, mask=(1 << TAGB) - 1):
        a = self.a
        lp = self.label("poll")
        ld = self.label("pd")
        a(f"s_mov_b32 s{S_IT}, 0")
        a(f"{lp}:")
        issue()
        a("s_waitcnt vmcnt(0)")
        rs = list(regs)
        assert len(rs) >= 3
        a(f"v_bitop3_b32 v{vA}, v{rs[0]}, v{rs[1]}, v{rs[2]} bitop3:0x80")
        a(f"v_or3_b32 v{vO}, v{rs[0]}, v{rs[1]}, v{rs[2]}")
        i = 3
        while i < len(rs):
            r1 = rs[i]
            r2 = rs[i+1] if i+1 < len(rs) else rs[i]
            a(f"v_bitop3_b32 v{vA}, v{vA}, v{r1}, v{r2} bitop3:0x80")
            a(f"v_or3_b32 v{vO}, v{vO}, v{r1}, v{r2}")
            i += 2
        a(f"v_xor_b32 v{vA}, v{vA}, v{vT}")
        a(f"v_xor_b32 v{vO}, v{vO}, v{vT}")
        a(f"v_or_b32 v{vA}, v{vA}, v{vO}")
        a(f"v_and_b32 v{vA}, {mask:#x}, v{vA}")
        a(f"v_cmp_ne_u32 vcc, 0, v{vA}")
        a(f"s_add_u32 s{S_IT}, s{S_IT}, 1")
        a(f"s_cmp_lt_u32 s{S_IT}, {LIMIT}")
        a(f"s_cbranch_scc0 {ld}")
        a(f"s_cbranch_vccnz {lp}")
        a(f"{ld}:")

    def tagcheck(self, rs, vA, vO, vT, mask):
        a = self.a
        rs = list(rs)
        assert len(rs) >= 3
        a(f"v_bitop3_b32 v{vA}, v{rs[0]}, v{rs[1]}, v{rs[2]} bitop3:0x80")
        a(f"v_or3_b32 v{vO}, v{rs[0]}, v{rs[1]}, v{rs[2]}")
        i = 3
        while i < len(rs):
            r1 = rs[i]
            r2 = rs[i+1] if i+1 < len(rs) else rs[i]
            a(f"v_bitop3_b32 v{vA}, v{vA}, v{r1}, v{r2} bitop3:0x80")
            a(f"v_or3_b32 v{vO}, v{vO}, v{r1}, v{r2}")
            i += 2
        a(f"v_xor_b32 v{vA}, v{vA}, v{vT}")
        a(f"v_xor_b32 v{vO}, v{vO}, v{vT}")
        a(f"v_or_b32 v{vA}, v{vA}, v{vO}")
        a(f"v_and_b32 v{vA}, {mask:#x}, v{vA}")
        a(f"v_cmp_ne_u32 vcc, 0, v{vA}")

    def poll2(self, issue, nl, nreg, sets, F, vA, vO, vT, mask=(1 << TAGB) - 1, sleep=None):
        a = self.a
        ns = len(sets)
        if sleep is None:
            sleep = self.psleep3 if ns >= 3 else self.psleep2
        lp = self.label("pp")
        ld = self.label("ppd")
        a(f"s_mov_b32 s{S_IT}, 0")
        if ns == 1:
            a(f"{lp}:")
            issue(F)
            a("s_waitcnt vmcnt(0)")
            self.tagcheck(range(F, F+nreg), vA, vO, vT, mask)
            a("s_mov_b64 exec, vcc")
            a(f"s_cbranch_execz {ld}")
            a(f"s_add_u32 s{S_IT}, s{S_IT}, 1")
            a(f"s_cmp_lt_u32 s{S_IT}, {LIMIT}")
            a(f"s_cbranch_scc1 {lp}")
            a(f"{ld}:")
            a("s_mov_b64 exec, -1")
            return
        for i, S in enumerate(sets):
            issue(S)
            if i < ns - 1 and sleep:
                a(f"s_sleep {sleep}")
        a(f"{lp}:")
        for S in sets:
            a(f"s_waitcnt vmcnt({nl*(ns-1)})")
            self.tagcheck(range(S, S+nreg), vA, vO, vT, mask)
            a("s_andn2_b64 exec, exec, vcc")
            sk = self.label("pps")
            a(f"s_cbranch_execz {sk}")
            for i in range(nreg):
                a(f"v_mov_b32 v{F+i}, v{S+i}")
            a(f"{sk}:")
            a("s_mov_b64 exec, vcc")
            a(f"s_cbranch_execz {ld}")
            issue(S)
            if sleep:
                a(f"s_sleep {sleep}")
        a(f"s_add_u32 s{S_IT}, s{S_IT}, 1")
        a(f"s_cmp_lt_u32 s{S_IT}, {LIMIT}")
        a(f"s_cbranch_scc1 {lp}")
        a(f"{ld}:")
        a("s_mov_b64 exec, -1")

    def mismatch(self, rs, vA, vO, vT):
        a = self.a
        rs = list(rs)
        assert len(rs) >= 3
        a(f"v_bitop3_b32 v{vA}, v{rs[0]}, v{rs[1]}, v{rs[2]} bitop3:0x80")
        a(f"v_or3_b32 v{vO}, v{rs[0]}, v{rs[1]}, v{rs[2]}")
        i = 3
        while i < len(rs):
            r1 = rs[i]
            r2 = rs[i+1] if i+1 < len(rs) else rs[i]
            a(f"v_bitop3_b32 v{vA}, v{vA}, v{r1}, v{r2} bitop3:0x80")
            a(f"v_or3_b32 v{vO}, v{vO}, v{r1}, v{r2}")
            i += 2
        a(f"v_bitop3_b32 v{vA}, v{vA}, v{vO}, v{vT} bitop3:0x7e")

    def poll3(self, issue, r4, r16, vA, vO, vA2, vO2, vT, group, sleep=0):
        a = self.a
        lp = self.label("p3")
        ld = self.label("p3d")
        a(f"s_mov_b32 s{S_IT}, 0")
        a(f"{lp}:")
        issue()
        a("s_waitcnt vmcnt(0)")
        if r4:
            self.mismatch(r4, vA, vO, vT)
        if r16:
            self.mismatch(r16, vA2, vO2, vT)
        if r4 and r16:
            a(f"v_lshlrev_b32 v{vA}, {32-TAGB}, v{vA}")
            a(f"v_lshl_or_b32 v{vA}, v{vA2}, 16, v{vA}")
        elif r4:
            a(f"v_lshlrev_b32 v{vA}, {32-TAGB}, v{vA}")
        else:
            a(f"v_lshlrev_b32 v{vA}, 16, v{vA2}")
        if group == "quad":
            self.nop(2)
            a(f"v_or_b32_dpp v{vA}, v{vA}, v{vA} quad_perm:[1,0,3,2] row_mask:0xf bank_mask:0xf")
            self.nop(2)
            a(f"v_or_b32_dpp v{vA}, v{vA}, v{vA} quad_perm:[2,3,0,1] row_mask:0xf bank_mask:0xf")
        a(f"v_cmp_ne_u32 vcc, 0, v{vA}")
        a(f"s_add_u32 s{S_IT}, s{S_IT}, 1")
        if group == "wave":
            a(f"s_cmp_lt_u32 s{S_IT}, {LIMIT}")
            a(f"s_cbranch_scc0 {ld}")
            a(f"s_cbranch_vccnz {lp}")
            a(f"{ld}:")
            return
        if group == "g16":
            a(f"s_or_b32 s{S_TMP}, vcc_lo, vcc_hi")
            a(f"s_lshr_b32 s{S_TMP2}, s{S_TMP}, 16")
            a(f"s_or_b32 s{S_TMP}, s{S_TMP}, s{S_TMP2}")
            a(f"s_and_b32 s{S_TMP}, s{S_TMP}, 0xffff")
            a(f"s_mul_i32 s{S_TMP}, s{S_TMP}, 0x10001")
            a(f"s_mov_b32 exec_lo, s{S_TMP}")
            a(f"s_mov_b32 exec_hi, s{S_TMP}")
        else:
            a("s_mov_b64 exec, vcc")
        a(f"s_cbranch_execz {ld}")
        if sleep:
            a(f"s_sleep {sleep}")
        a(f"s_cmp_lt_u32 s{S_IT}, {LIMIT}")
        a(f"s_cbranch_scc1 {lp}")
        a(f"{ld}:")
        a("s_mov_b64 exec, -1")

    def fold16(self, sd, st):
        a = self.a
        a(f"s_or_b32 s{sd}, vcc_lo, vcc_hi")
        a(f"s_lshr_b32 s{st}, s{sd}, 16")
        a(f"s_or_b32 s{sd}, s{sd}, s{st}")
        a(f"s_and_b32 s{sd}, s{sd}, 0xffff")

    def poll_gated(self, iss_opp, iss_ml, ro, rm, vA, vO, vA2, vO2, vT, thr):
        a = self.a
        sAct, sGate, sMl = 99, 101, 96
        lp = self.label("pg")
        ld = self.label("pgd")
        sk = self.label("pgs")
        sp = self.label("pgp")
        a(f"s_mov_b32 s{S_IT}, 0")
        a(f"s_mov_b32 s{sAct}, 0xffff")
        a(f"s_mov_b32 s{sGate}, 0xffff")
        a(f"{lp}:")
        a(f"s_mul_i32 s{S_TMP}, s{sGate}, 0x10001")
        a(f"s_mov_b32 exec_lo, s{S_TMP}")
        a(f"s_mov_b32 exec_hi, s{S_TMP}")
        a(f"s_cbranch_execz {sk}")
        iss_opp()
        a(f"{sk}:")
        a(f"s_mul_i32 s{S_TMP}, s{sAct}, 0x10001")
        a(f"s_mov_b32 exec_lo, s{S_TMP}")
        a(f"s_mov_b32 exec_hi, s{S_TMP}")
        iss_ml()
        a("s_waitcnt vmcnt(0)")
        self.mismatch(rm, vA2, vO2, vT)
        self.mismatch(ro, vA, vO, vT)
        a(f"v_lshlrev_b32 v{vA2}, 16, v{vA2}")
        a(f"v_lshlrev_b32 v{vA}, {32-TAGB}, v{vA}")
        a(f"v_cmp_ne_u32 vcc, 0, v{vA2}")
        self.fold16(sMl, S_TMP)
        a(f"v_cmp_ne_u32 vcc, 0, v{vA}")
        self.fold16(sAct, S_TMP)
        a(f"s_or_b32 s{sAct}, s{sAct}, s{sMl}")
        a(f"s_cmp_eq_u32 s{sAct}, 0")
        a(f"s_cbranch_scc1 {ld}")
        a(f"s_andn2_b32 s{sGate}, s{sAct}, s{sMl}")
        a(f"s_bcnt1_i32_b32 s{S_TMP}, s{sAct}")
        a(f"s_cmp_le_u32 s{S_TMP}, {thr}")
        a(f"s_cselect_b32 s{sGate}, s{sAct}, s{sGate}")
        a(f"s_add_u32 s{S_IT}, s{S_IT}, 1")
        a(f"s_cmp_lt_u32 s{S_IT}, {LIMIT}")
        a(f"s_cbranch_scc1 {lp}")
        a(f"{ld}:")
        a("s_mov_b64 exec, -1")

    def poll_pipe(self, issue, nl, nreg, sets, F, vA, vO, vT, bits, group, delay):
        a = self.a
        lp = self.label("pq")
        ld = self.label("pqd")
        a(f"s_mov_b32 s{S_IT}, 0")
        issue(sets[0])
        a(f"s_sleep {delay}")
        issue(sets[1])
        a(f"{lp}:")
        for S in sets:
            a(f"s_waitcnt vmcnt({nl})")
            self.mismatch(range(S, S+nreg), vA, vO, vT)
            a(f"v_lshlrev_b32 v{vA}, {32-bits}, v{vA}")
            if group == "quad":
                self.nop(2)
                a(f"v_or_b32_dpp v{vA}, v{vA}, v{vA} quad_perm:[1,0,3,2] row_mask:0xf bank_mask:0xf")
                self.nop(2)
                a(f"v_or_b32_dpp v{vA}, v{vA}, v{vA} quad_perm:[2,3,0,1] row_mask:0xf bank_mask:0xf")
            a(f"v_cmp_ne_u32 vcc, 0, v{vA}")
            a("s_andn2_b64 exec, exec, vcc")
            sk = self.label("pqs")
            a(f"s_cbranch_execz {sk}")
            for i in range(nreg):
                a(f"v_mov_b32 v{F+i}, v{S+i}")
            a(f"{sk}:")
            a("s_mov_b64 exec, vcc")
            a(f"s_cbranch_execz {ld}")
            issue(S)
        a(f"s_add_u32 s{S_IT}, s{S_IT}, 1")
        a(f"s_cmp_lt_u32 s{S_IT}, {LIMIT}")
        a(f"s_cbranch_scc1 {lp}")
        a(f"{ld}:")
        a("s_mov_b64 exec, -1")

    def lds_bar(self, k, n, vA, vB):
        a = self.a
        lp = self.label("lb")
        ld = self.label("lbd")
        a("s_waitcnt lgkmcnt(0)")
        a(f"v_mov_b32 v{vA}, {L_CNT + 4*k}")
        a(f"v_mov_b32 v{vB}, 1")
        a("s_mov_b64 exec, 1")
        a(f"ds_add_u32 v{vA}, v{vB}")
        a("s_mov_b64 exec, -1")
        self.lds_wait(k, n, vA, vB, sleep=False)

    def lds_wait(self, k, n, vA, vB, sleep=True):
        a = self.a
        lp = self.label("lw")
        ld = self.label("lwd")
        a(f"v_mov_b32 v{vA}, {L_CNT + 4*k}")
        a(f"s_mov_b32 s{S_IT}, 0")
        a(f"{lp}:")
        a(f"ds_read_b32 v{vB}, v{vA}")
        a("s_waitcnt lgkmcnt(0)")
        a(f"v_readfirstlane_b32 s{S_TMP}, v{vB}")
        a(f"s_add_u32 s{S_IT}, s{S_IT}, 1")
        a(f"s_cmp_ge_u32 s{S_TMP}, {n}")
        a(f"s_cbranch_scc1 {ld}")
        if sleep:
            a("s_sleep 1")
        a(f"s_cmp_lt_u32 s{S_IT}, 400000")
        a(f"s_cbranch_scc1 {lp}")
        a(f"{ld}:")

    def tag32(self, r, vT):
        self.a(f"v_and_or_b32 v{r}, v{r}, {-(1 << TAGB)}, s{S_T3}")

    def masks(self, vM0, vM1, vt, four=True):
        a = self.a
        a(f"v_mov_b32 v{vt}, 0xffff")
        a(f"v_mov_b32 v{vM0}, s{S_HI16}")
        a(f"v_cndmask_b32 v{vM0}, v{vt}, v{vM0}, s[{S_B0}:{S_B0+1}]")
        if four:
            a(f"v_mov_b32 v{vt}, 0")
            a(f"v_cndmask_b32 v{vM1}, v{vt}, v{vM0}, s[{S_B1}:{S_B1+1}]")
            a(f"v_cndmask_b32 v{vM0}, v{vM0}, v{vt}, s[{S_B1}:{S_B1+1}]")

    def prologue(self):
        a = self.a
        a("s_cmp_ge_u32 s2, 256")
        a("s_cbranch_scc1 L_end")
        a("s_load_dwordx16 s[64:79], s[0:1], 0")
        a("s_load_dwordx8 s[80:87], s[0:1], 64")
        a("s_load_dwordx2 s[88:89], s[0:1], 104")
        a("v_lshrrev_b32 v1, 6, v0")
        a("v_and_b32 v0, 63, v0")
        a(f"s_mov_b32 s{S_B0}, 0xaaaaaaaa")
        a(f"s_mov_b32 s{S_B0+1}, 0xaaaaaaaa")
        a(f"v_readfirstlane_b32 s{S_WID}, v1")
        a(f"s_mov_b32 s{S_B1}, 0xcccccccc")
        a(f"s_mov_b32 s{S_B1+1}, 0xcccccccc")
        a(f"s_mov_b32 s{S_HI16}, 0xffff0000")
        a("s_waitcnt lgkmcnt(0)")
        a(f"s_load_dword s{S_E}, s[88:89], {WS_E}")
        self.srd(S_WS, 88, WS_SIZE)
        a(f"s_cmp_ge_u32 s{S_WID}, 4")
        a("s_cbranch_scc1 L_kv")
        if self.xl:
            a("s_and_b32 s95, s2, 7")
            a("s_lshl_b32 s95, s95, 5")
            a(f"s_and_b32 s{S_TMP}, s2, 0x18")
            a(f"s_or_b32 s95, s95, s{S_TMP}")
            a(f"s_lshr_b32 s{S_TMP}, s2, 5")
            a(f"s_or_b32 s95, s95, s{S_TMP}")

    def get_tag(self, vT):
        a = self.a
        a("s_waitcnt lgkmcnt(0)")
        a(f"s_add_u32 s{S_E}, s{S_E}, 1")
        a(f"s_and_b32 s{S_T}, s{S_E}, 0xffff")
        a(f"s_and_b32 s{S_T3}, s{S_E}, {(1 << TAGB) - 1}")
        a(f"v_mov_b32 v{vT}, s{S_T}")

    def kv(self):
        a = self.a
        a("L_kv:")
        if self.dbg:
            a(f"s_mov_b32 s{S_IT}, 0")
            a("s_cmp_lt_u32 s2, 128")
            a("s_cbranch_scc1 L_kv_dbg1")
            self.stamp(1, 8)
            a("s_branch L_kv_dbg2")
            a("L_kv_dbg1:")
            self.stamp(10, 8)
            a("L_kv_dbg2:")
        if self.dbg2:
            self.stamp(1, 8, [(1, True), (2, False)])
        vKa, vVa, vT, vM0, vM1, vt0, vt1, vt2 = 1, 2, 3, 4, 5, 6, 7, 8
        self.srd(S_K, 66, 0x2000000)
        self.srd(S_V, 68, 0x2000000)
        a(f"s_sub_u32 s{S_V4}, s{S_WID}, 4")
        if self.xl:
            a(f"s_and_b32 s{S_BK}, s2, 31")
        else:
            a(f"s_and_b32 s{S_BK}, s2, 7")
            a(f"s_lshl_b32 s{S_BK}, s{S_BK}, 2")
            a(f"s_bfe_u32 s{S_TMP}, s2, 0x20003")
            a(f"s_add_u32 s{S_BK}, s{S_BK}, s{S_TMP}")
        a(f"s_lshr_b32 s{S_SP}, s2, 5")
        a(f"v_and_b32 v{vt0}, 3, v0")
        a(f"v_lshlrev_b32 v{vt0}, 4, v{vt0}")
        a(f"v_bfe_u32 v{vt1}, v0, 2, 2")
        a(f"v_lshl_add_u32 v{vt0}, v{vt1}, 8, v{vt0}")
        a(f"v_lshrrev_b32 v{vt1}, 4, v0")
        a(f"v_lshl_add_u32 v{vt0}, v{vt1}, 6, v{vt0}")
        a(f"v_lshlrev_b32 v{vt2}, 4, v0")
        if self.pf:
            self.srd(S_WD, 80, 512*1792*2)
        for i in range(1, 5):
            a(f"s_mov_b32 s{79+i}, {4096*i}")
        a(f"s_lshl_b32 s{S_TMP}, s{S_BK}, 20")
        KF, KM, KH = self.kf, self.km, self.kh
        assert 4*KF + 2*KM + 2*KH == 4096
        classes = [("f", KF, 0, 0, True), ("m", KM, 4*KF, 4, False), ("h", KH, 4*KF + 2*KM, 6, False)]
        used = []
        a(f"s_cmp_ge_u32 s{S_SP}, 6")
        a("s_cbranch_scc1 L_kvc_h")
        a(f"s_cmp_ge_u32 s{S_SP}, 4")
        a("s_cbranch_scc1 L_kvc_m")
        for (nm, K, key0, s0, front) in classes:
            a(f"L_kvc_{nm}:")
            gs = K // 16
            glo, nhi = gs // 8, gs % 8
            assert K % 16 == 0 and 3 <= glo and glo + (1 if nhi else 0) <= 5
            a(f"s_mul_i32 s{S_TMP2}, s{S_SP}, {K}")
            off = key0 - s0*K
            if off > 0:
                a(f"s_add_u32 s{S_TMP2}, s{S_TMP2}, {off}")
            elif off < 0:
                a(f"s_sub_u32 s{S_TMP2}, s{S_TMP2}, {-off}")
            a(f"s_lshl_b32 s{S_TMP2}, s{S_TMP2}, 8")
            a(f"s_add_u32 s{S_TMP}, s{S_TMP}, s{S_TMP2}")
            lo = f"L_kvp_{'f' if front else 'n'}{glo}"
            hi = f"L_kvp_{'f' if front else 'n'}{glo+1}"
            if nhi:
                a(f"s_mul_i32 s{S_TMP2}, s{S_V4}, {16*(glo+1)*256}")
                a(f"s_cmp_lt_u32 s{S_V4}, {nhi}")
                l2 = self.label("kvl")
                a(f"s_cbranch_scc0 {l2}")
                a(f"s_add_u32 s{S_TMP}, s{S_TMP}, s{S_TMP2}")
                a(f"s_branch {hi}")
                a(f"{l2}:")
                if (glo+1, front) not in used:
                    used.append((glo+1, front))
            a(f"s_mul_i32 s{S_TMP2}, s{S_V4}, {16*glo*256}")
            a(f"s_add_u32 s{S_TMP}, s{S_TMP}, s{S_TMP2}")
            if nhi:
                a(f"s_add_u32 s{S_TMP}, s{S_TMP}, {nhi*16*256}")
            a(f"s_branch {lo}")
            if (glo, front) not in used:
                used.append((glo, front))
        for k, (G, front) in enumerate(used):
            a(f"L_kvp_{'f' if front else 'n'}{G}:")
            if front:
                self.kv_path(G, self.na_front, self.p_front, k == len(used) - 1, front=True)
            else:
                self.kv_path(G, self.na_nf, self.p_nf, k == len(used) - 1, self.b0first)

    def kv_path(self, G, nA, P, last, b0first=False, front=False):
        a = self.a
        vKa, vVa, vT, vM0, vM1, vt0, vt1, vt2 = 1, 2, 3, 4, 5, 6, 7, 8
        vQ = 12
        vD = 16
        vS = 32
        vm, vl = 38, 39
        KR = 40
        nL = 4*G
        if G <= 4:
            kreg = [KR + 4*j for j in range(nL)]
            vreg = [104 + 4*j for j in range(nL)]
            pre = [("K", j) for j in range(nL)] + [("V", j) for j in range(nL)]
            post = []
            XR, AC, nch = KR, KR + 32, 2
        else:
            kreg = [KR + 4*j for j in range(nL)]
            vreg = [120 + 4*j for j in range(12)] + [KR + 4*j for j in range(8)]
            pre = [("K", j) for j in range(nL)] + [("V", j) for j in range(12)]
            post = [("V", j) for j in range(12, 20)]
            XR, AC, nch = 72, 112, 1
        so = ["0", "s80", "s81", "s82", "s83"]
        issued = []

        def ld(item):
            t, j = item
            srd, va, reg = (S_K, vKa, kreg[j]) if t == "K" else (S_V, vVa, vreg[j])
            a(f"buffer_load_dwordx4 v[{reg}:{reg+3}], v{va}, s[{srd}:{srd+3}], {so[j//4]} offen offset:{(j%4)*1024} nt")
        a(f"v_add_u32 v{vKa}, s{S_TMP}, v{vt0}")
        a(f"v_add_u32 v{vVa}, s{S_TMP}, v{vt2}")
        nA = min(nA, len(pre))
        if b0first:
            a("s_barrier")
        for it in pre[:nA]:
            ld(it)
        if not b0first:
            a("s_barrier")
        lall = self.label("kvall")
        if nA < len(pre):
            lf = [self.label("kvf") for _ in pre]
            a(f"v_mov_b32 v{vt0}, {L_CNT + (4*self.rel if front else 8)}")
            for idx in range(nA, len(pre)):
                a(f"s_waitcnt vmcnt({P-1})")
                a(f"ds_read_b32 v{vt1}, v{vt0}")
                a("s_waitcnt lgkmcnt(0)")
                a(f"v_readfirstlane_b32 s{S_TMP}, v{vt1}")
                a(f"s_cmp_ge_u32 s{S_TMP}, 4")
                a(f"s_cbranch_scc1 {lf[idx]}")
                ld(pre[idx])
            a(f"s_branch {lall}")
            for idx in range(nA, len(pre)):
                a(f"{lf[idx]}:")
                ld(pre[idx])
        a(f"{lall}:")
        issued = list(pre)
        self.masks(vM0, vM1, vt0)
        self.get_tag(vT)
        self.lds_wait(2, 4, vt0, vt1)
        self.stamp(8, 8, [])
        a(f"v_bfe_u32 v{vt0}, v0, 2, 2")
        a(f"v_lshlrev_b32 v{vt0}, 8, v{vt0}")
        a(f"v_lshrrev_b32 v{vt1}, 4, v0")
        a(f"v_lshl_add_u32 v{vt0}, v{vt1}, 6, v{vt0}")
        a(f"v_and_b32 v{vt1}, 3, v0")
        a(f"v_lshl_add_u32 v{vt0}, v{vt1}, 4, v{vt0}")
        a(f"ds_read_b128 v[{vQ}:{vQ+3}], v{vt0} offset:{L_QL}")
        a("s_waitcnt lgkmcnt(0)")

        def wait_for(item):
            n = len(issued) - 1 - issued.index(item)
            a(f"s_waitcnt vmcnt({n})")
        for J in range(G):
            wait_for(("K", 4*J+3))
            for jj in range(4):
                k = kreg[4*J+jj]
                d = vD + 4*jj
                a(f"v_mfma_f32_16x16x32_bf16 v[{d}:{d+3}], v[{k}:{k+3}], v[{vQ}:{vQ+3}], 0")
            self.nop(8)
            for jj in range(4):
                d = vD + 4*jj
                a(f"v_cndmask_b32 v{d}, v{d}, v{d+1}, s[{S_B0}:{S_B0+1}]")
                a(f"v_cndmask_b32 v{d+2}, v{d+2}, v{d+3}, s[{S_B0}:{S_B0+1}]")
                a(f"v_cndmask_b32 v{d}, v{d}, v{d+2}, s[{S_B1}:{S_B1+1}]")
            if post and J < 2:
                for it in post[4*J:4*J+4]:
                    ld(it)
                    issued.append(it)
            v0_, v1_, v2_, v3_ = vD, vD+4, vD+8, vD+12
            a(f"v_cndmask_b32 v{v0_+1}, v{v0_}, v{v1_}, s[{S_B0}:{S_B0+1}]")
            a(f"v_cndmask_b32 v{v0_+2}, v{v1_}, v{v0_}, s[{S_B0}:{S_B0+1}]")
            a(f"v_cndmask_b32 v{v2_+1}, v{v2_}, v{v3_}, s[{S_B0}:{S_B0+1}]")
            a(f"v_cndmask_b32 v{v2_+2}, v{v3_}, v{v2_}, s[{S_B0}:{S_B0+1}]")
            self.nop(1)
            a(f"v_add_f32_dpp v{v0_}, v{v0_+2}, v{v0_+1} quad_perm:[1,0,3,2] row_mask:0xf bank_mask:0xf")
            a(f"v_add_f32_dpp v{v2_}, v{v2_+2}, v{v2_+1} quad_perm:[1,0,3,2] row_mask:0xf bank_mask:0xf")
            a(f"v_cndmask_b32 v{v0_+1}, v{v0_}, v{v2_}, s[{S_B1}:{S_B1+1}]")
            a(f"v_cndmask_b32 v{v0_+2}, v{v2_}, v{v0_}, s[{S_B1}:{S_B1+1}]")
            self.nop(2)
            a(f"v_add_f32_dpp v{vS+J}, v{v0_+2}, v{v0_+1} quad_perm:[2,3,0,1] row_mask:0xf bank_mask:0xf")
        def rnd():
            for J in range(0, G - 1, 2):
                self.round2(vS+J, vS+J+1, vt0 if J % 4 == 0 else vt1)
            if G % 2:
                self.round1(vS+G-1)
        rnd()
        for J in range(G):
            a(f"v_mul_f32 v{vS+J}, 0x3db504f3, v{vS+J}")
        rnd()
        a(f"v_max3_f32 v{vm}, v{vS}, v{vS+1}, v{vS+2}")
        if G == 4:
            a(f"v_max_f32 v{vm}, v{vm}, v{vS+3}")
        elif G == 5:
            a(f"v_max3_f32 v{vm}, v{vm}, v{vS+3}, v{vS+4}")
        self.allreduce(vm, vt0, "v_max_f32")
        for J in range(G):
            a(f"v_sub_f32 v{vS+J}, v{vS+J}, v{vm}")
        for J in range(G):
            a(f"v_mul_f32 v{vS+J}, 0x3fb8aa3b, v{vS+J}")
        for J in range(G):
            a(f"v_exp_f32 v{vS+J}, v{vS+J}")
        self.nop(1)
        a(f"v_add_f32 v{vl}, v{vS}, v{vS+1}")
        for J in range(2, G):
            a(f"v_add_f32 v{vl}, v{vl}, v{vS+J}")
        for J in range(G):
            a(f"v_cvt_pk_bf16_f32 v{vS+J}, v{vS+J}, v{vS+J}")
        self.nop(1)
        for j in range(nL):
            J, jj = j//4, j % 4
            a(f"v_and_b32_dpp v{XR+2*j}, v{vS+J}, v{vM0} quad_perm:[{jj},{jj},{jj},{jj}] row_mask:0xf bank_mask:0xf")
            a(f"v_and_b32_dpp v{XR+2*j+1}, v{vS+J}, v{vM1} quad_perm:[{jj},{jj},{jj},{jj}] row_mask:0xf bank_mask:0xf")
        self.allreduce(vl, vt0, "v_add_f32")
        a(f"v_bfe_u32 v{vt0}, v0, 2, 2")
        a(f"v_lshlrev_b32 v{vt0}, 6, v{vt0}")
        a(f"s_lshl_b32 s{S_TMP}, s{S_V4}, 3")
        a(f"v_add_u32 v{vt0}, s{S_TMP}, v{vt0}")
        a("s_mov_b64 exec, 0x1111")
        a(f"ds_write_b32 v{vt0}, v{vm} offset:{L_MLW}")
        a(f"ds_write_b32 v{vt0}, v{vl} offset:{L_MLW+4}")
        a("s_mov_b64 exec, -1")
        for j in range(nL):
            wait_for(("V", j))
            v = vreg[j]
            p = (j & 1) if nch == 2 else 0
            d1 = AC + 8*p
            d2 = d1 + 4
            first = j < nch
            c1 = "0" if first else f"v[{d1}:{d1+3}]"
            c2 = "0" if first else f"v[{d2}:{d2+3}]"
            a(f"v_mfma_f32_16x16x16_bf16 v[{d1}:{d1+3}], v[{v}:{v+1}], v[{XR+2*j}:{XR+2*j+1}], {c1}")
            a(f"v_mfma_f32_16x16x16_bf16 v[{d2}:{d2+3}], v[{v+2}:{v+3}], v[{XR+2*j}:{XR+2*j+1}], {c2}")
        self.nop(8)
        if nch == 2:
            for r in range(8):
                a(f"v_add_f32 v{AC+r}, v{AC+r}, v{AC+8+r}")
        self.stamp(15, 8, [(15, False), (0, True)])
        a(f"s_lshl_b32 s{S_TMP}, s{S_V4}, 11")
        a(f"v_lshlrev_b32 v{vt0}, 4, v0")
        a(f"v_add_u32 v{vt0}, s{S_TMP}, v{vt0}")
        a(f"ds_write_b128 v{vt0}, v[{AC}:{AC+3}] offset:{L_OW}")
        a(f"ds_write_b128 v{vt0}, v[{AC+4}:{AC+7}] offset:{L_OW+1024}")
        a("s_waitcnt lgkmcnt(0)")
        a(f"v_mov_b32 v{vt1}, {L_CNT + 12}")
        a(f"v_mov_b32 v{vt2}, 1")
        a("s_mov_b64 exec, 1")
        a(f"ds_add_u32 v{vt1}, v{vt2}")
        a("s_mov_b64 exec, -1")
        a(f"s_cmp_ge_u32 s{S_V4}, 2")
        a("s_cbranch_scc1 L_kv_pf" if self.pf else "s_cbranch_scc1 L_end")
        if not last:
            a("s_branch L_kv_comb")
            return
        a("L_kv_comb:")
        self.lds_wait(3, 8, vt0, vt1, sleep=False)
        OW = 104
        MLr = 136
        a(f"s_lshl_b32 s{S_TMP}, s{S_V4}, 10")
        a(f"v_lshlrev_b32 v{vt0}, 4, v0")
        a(f"v_add_u32 v{vt0}, s{S_TMP}, v{vt0}")
        a(f"v_bfe_u32 v{vt1}, v0, 2, 2")
        a(f"v_lshlrev_b32 v{vt1}, 6, v{vt1}")
        for i in range(4):
            a(f"ds_read_b128 v[{MLr+4*i}:{MLr+4*i+3}], v{vt1} offset:{L_MLW+16*i}")
        for w in range(8):
            a(f"ds_read_b128 v[{OW+4*w}:{OW+4*w+3}], v{vt0} offset:{L_OW+2048*w}")
        a("s_waitcnt lgkmcnt(8)")
        a(f"v_max3_f32 v{vm}, v{MLr}, v{MLr+2}, v{MLr+4}")
        a(f"v_max3_f32 v{vm}, v{vm}, v{MLr+6}, v{MLr+8}")
        a(f"v_max3_f32 v{vm}, v{vm}, v{MLr+10}, v{MLr+12}")
        a(f"v_max_f32 v{vm}, v{vm}, v{MLr+14}")
        for w in range(8):
            a(f"v_sub_f32 v{MLr+2*w}, v{MLr+2*w}, v{vm}")
        for w in range(8):
            a(f"v_mul_f32 v{MLr+2*w}, 0x3fb8aa3b, v{MLr+2*w}")
        for w in range(8):
            a(f"v_exp_f32 v{MLr+2*w}, v{MLr+2*w}")
        self.nop(1)
        a(f"v_mul_f32 v{vl}, v{MLr}, v{MLr+1}")
        for w in range(1, 8):
            a(f"v_fmac_f32 v{vl}, v{MLr+2*w}, v{MLr+2*w+1}")
        a("s_waitcnt lgkmcnt(0)")
        O = 152
        for r in range(4):
            a(f"v_mul_f32 v{O+r}, v{MLr}, v{OW+r}")
        for w in range(1, 8):
            for r in range(4):
                a(f"v_fmac_f32 v{O+r}, v{MLr+2*w}, v{OW+4*w+r}")
        for r in range(4):
            self.tag32(O+r, vT)
        a(f"s_lshl_b32 s{S_TMP}, s{S_BK}, 3")
        a(f"s_add_u32 s{S_TMP}, s{S_TMP}, s{S_SP}")
        a(f"s_lshl_b32 s{S_TMP}, s{S_TMP}, 11")
        a(f"s_add_u32 s{S_TMP}, s{S_TMP}, {WS_OPP}")
        if self.xls:
            a(f"buffer_store_dwordx4 v[{O}:{O+3}], v{vt0}, s[{S_WS}:{S_WS+3}], s{S_TMP} offen")
        a(f"buffer_store_dwordx4 v[{O}:{O+3}], v{vt0}, s[{S_WS}:{S_WS+3}], s{S_TMP} offen sc1")
        a(f"s_cmp_lg_u32 s{S_V4}, 0")
        a("s_cbranch_scc1 L_kv_sig" if self.t2late == 2 else "s_cbranch_scc1 L_end")
        M4 = O + 4
        a(f"v_or_b32 v{M4}, v{vm}, v{vT}")
        a(f"v_and_or_b32 v{M4+1}, v{vl}, s{S_HI16}, v{vT}")
        a(f"v_lshl_or_b32 v{M4+2}, v{vl}, 16, v{vT}")
        a(f"v_mov_b32 v{M4+3}, v{vT}")
        a(f"v_lshlrev_b32 v{vt1}, 1, v{vt1}")
        a(f"s_lshl_b32 s{S_TMP}, s{S_BK}, 9")
        a(f"s_lshl_b32 s{S_TMP2}, s{S_SP}, 4")
        a(f"s_add_u32 s{S_TMP}, s{S_TMP}, s{S_TMP2}")
        a(f"s_add_u32 s{S_TMP}, s{S_TMP}, {WS_ML}")
        a("s_mov_b64 exec, 0x1111")
        if self.xls:
            a(f"buffer_store_dwordx4 v[{M4}:{M4+3}], v{vt1}, s[{S_WS}:{S_WS+3}], s{S_TMP} offen")
        a(f"buffer_store_dwordx4 v[{M4}:{M4+3}], v{vt1}, s[{S_WS}:{S_WS+3}], s{S_TMP} offen sc1")
        a("s_mov_b64 exec, -1")
        self.stamp(9, 8)
        if self.t2late == 2:
            a("L_kv_sig:")
            a(f"v_mov_b32 v{vt1}, {L_CNT + 20}")
            a(f"v_mov_b32 v{vt2}, 1")
            a("s_mov_b64 exec, 1")
            a(f"ds_add_u32 v{vt1}, v{vt2}")
            a("s_waitcnt lgkmcnt(0)")
        a("s_endpgm")
        if self.pf:
            a("L_kv_pf:")
            a(f"s_cmp_lt_u32 s{S_V4}, 4")
            a("s_cbranch_scc1 L_end")
            a(f"s_cmp_lt_u32 s2, {T2_0}")
            a("s_cbranch_scc1 L_end")
            a(f"s_cmp_ge_u32 s2, {T2_0+T2_N}")
            a("s_cbranch_scc1 L_end")
            self.srd(S_WG, 76, 512*1792*2)
            self.srd(S_WU, 78, 512*1792*2)
            ST = 100
            a(f"s_sub_u32 s{S_TMP}, s2, {T2_0}")
            a(f"s_and_b32 s{ST}, s{S_TMP}, 7")
            a(f"s_mul_i32 s{ST}, s{ST}, 7")
            a(f"s_lshr_b32 s{S_TMP}, s{S_TMP}, 3")
            a(f"s_add_u32 s{ST}, s{ST}, s{S_TMP}")
            a(f"s_sub_u32 s{S_V4}, s{S_V4}, 4")
            a(f"v_lshrrev_b32 v{vt0}, 2, v0")
            a(f"v_mul_u32_u24 v{vt0}, 3584, v{vt0}")
            a(f"v_and_b32 v{vt1}, 3, v0")
            a(f"v_lshl_add_u32 v{vt0}, v{vt1}, 4, v{vt0}")
            a(f"s_mul_i32 s{S_TMP}, s{S_V4}, {128*3584}")
            a(f"s_lshl_b32 s{S_TMP2}, s{ST}, 6")
            a(f"s_add_u32 s{S_TMP}, s{S_TMP}, s{S_TMP2}")
            for j in range(8):
                a(f"buffer_load_dwordx4 v[{40+8*j}:{43+8*j}], v{vt0}, s[{S_WG}:{S_WG+3}], s{S_TMP} offen")
                a(f"buffer_load_dwordx4 v[{44+8*j}:{47+8*j}], v{vt0}, s[{S_WU}:{S_WU+3}], s{S_TMP} offen")
                if j < 7:
                    a(f"s_add_u32 s{S_TMP}, s{S_TMP}, {16*3584}")
            if self.pf >= 2:
                a(f"v_lshlrev_b32 v{vt0}, 4, v0")
                a(f"s_lshl_b32 s{S_TMP}, s{ST}, 15")
                a(f"s_lshl_b32 s{S_TMP2}, s{S_V4}, 13")
                a(f"s_add_u32 s{S_TMP}, s{S_TMP}, s{S_TMP2}")
                for j in range(8):
                    a(f"buffer_load_dwordx4 v[{104+4*j}:{107+4*j}], v{vt0}, s[{S_WD}:{S_WD+3}], s{S_TMP} offen")
                    if j < 7:
                        a(f"s_add_u32 s{S_TMP}, s{S_TMP}, 1024")
            a("s_waitcnt vmcnt(0)")
            a("s_endpgm")

    def svc(self):
        a = self.a
        vT, vM0, vM1, vMe, vG, vB, vU = 1, 2, 3, 4, 5, 6, 7
        vA, vO, vt0, vt1, vt2, vt3 = 8, 9, 10, 11, 12, 13
        vC16 = 14
        vL16 = 15
        W0 = 16
        WA = 40
        WB = 56
        WC = 72
        SC = WC + 32
        if self.prio:
            a(f"s_setprio {self.prio}")
        self.srd(S_WQ, 70, 512*4096*2)
        self.srd(S_WO, 72, 512*4096*2)
        self.srd(S_WM, 84, 512*3072*2)
        self.srd(S_WG, 76, 512*1792*2)
        self.srd(S_WU, 78, 512*1792*2)
        self.srd(S_WD, 80, 512*1792*2)
        self.srd(S_X, 64, 4096)
        self.srd(S_C, 82, 4096)
        self.srd(S_OUT, 86, 4096)
        v = S_WID
        a(f"v_lshrrev_b32 v{vG}, 4, v0")
        a(f"v_bfe_u32 v{vB}, v0, 2, 2")
        a(f"v_and_b32 v{vU}, 3, v0")
        a(f"v_and_b32 v{vC16}, 15, v0")
        a(f"v_lshlrev_b32 v{vC16}, 4, v{vC16}")
        a(f"v_lshlrev_b32 v{vL16}, 4, v0")
        a(f"v_mov_b32 v{vt0}, 0")
        a(f"v_lshlrev_b32 v{vt1}, 2, v0")
        a(f"s_cmp_lg_u32 s{v}, 0")
        a("s_cbranch_scc1 L_s_nz")
        a("s_mov_b64 exec, 0xffff")
        a(f"ds_write_b32 v{vt1}, v{vt0} offset:{L_CNT}")
        a("s_mov_b64 exec, -1")
        a("L_s_nz:")

        def t1_loads():
            SROW = 101
            a(f"s_lshr_b32 s{S_TMP}, {self.SP2}, 3")
            a(f"s_lshl_b32 s{SROW}, s{S_TMP}, 7")
            a(f"s_bfe_u32 s{S_TMP}, {self.SP2}, 0x10002")
            a(f"s_lshl_b32 s{S_TMP}, s{S_TMP}, 6")
            a(f"s_add_u32 s{SROW}, s{SROW}, s{S_TMP}")
            a(f"s_lshr_b32 s{S_TMP}, s{v}, 1")
            a(f"s_lshl_b32 s{S_TMP}, s{S_TMP}, 5")
            a(f"s_add_u32 s{SROW}, s{SROW}, s{S_TMP}")
            a(f"s_and_b32 s{S_TMP}, s{v}, 1")
            a(f"s_lshl_b32 s{S_TMP}, s{S_TMP}, 2")
            a(f"s_add_u32 s{SROW}, s{SROW}, s{S_TMP}")
            a(f"s_lshl_b32 s{S_TMP}, s{SROW}, 10")
            a(f"s_and_b32 s{S_TMP2}, {self.SP2}, 3")
            a(f"s_lshl_b32 s{S_TMP2}, s{S_TMP2}, 8")
            a(f"s_add_u32 s{S_TMP}, s{S_TMP}, s{S_TMP2}")
            a(f"v_lshl_add_u32 v{vt0}, v{vG}, 10, v{vC16}")
            for j in range(4):
                a(f"buffer_load_dwordx4 v[{WB+4*j}:{WB+4*j+3}], v{vt0}, s[{S_WO}:{S_WO+3}], s{S_TMP} offen nt")
                if j < 3:
                    a(f"s_add_u32 s{S_TMP}, s{S_TMP}, 8192")

        a(f"s_cmp_ge_u32 s2, {NFRONT}")
        a("s_cbranch_scc1 L_s_nf")
        SK0 = S_R
        a(f"s_and_b32 s{SK0}, s2, 7")
        a(f"s_lshl_b32 s{SK0}, s{SK0}, 6")
        a(f"s_cmp_ge_u32 s2, {F1A_N}")
        a("s_cbranch_scc1 L_s_nof1a")
        CC = W0
        a(f"s_lshl_b32 s{S_TMP}, s{v}, 4")
        a(f"s_add_u32 s{S_TMP}, s{S_TMP}, s{SK0}")
        a(f"v_lshlrev_b32 v{vt0}, 10, v{vB}")
        a(f"v_lshl_add_u32 v{vt0}, v{vG}, 3, v{vt0}")
        a(f"s_lshl_b32 s{S_TMP2}, s{S_TMP}, 1")
        a(f"buffer_load_dwordx2 v[{CC}:{CC+1}], v{vt0}, s[{S_C}:{S_C+3}], s{S_TMP2} offen")
        a(f"v_mul_u32_u24 v{vt0}, {4*6144}, v{vG}")
        a(f"v_add_u32 v{vt0}, v{vt0}, v{vC16}")
        a(f"s_mul_i32 s{S_TMP}, s{S_TMP}, 6144")
        a(f"s_lshr_b32 s{S_TMP2}, s2, 3")
        a(f"s_lshl_b32 s{S_TMP2}, s{S_TMP2}, 8")
        a(f"s_add_u32 s{S_TMP}, s{S_TMP}, s{S_TMP2}")
        for j in range(4):
            a(f"buffer_load_dwordx4 v[{WC+4*j}:{WC+4*j+3}], v{vt0}, s[{S_WM}:{S_WM+3}], s{S_TMP} offen nt")
            if j < 3:
                a(f"s_add_u32 s{S_TMP}, s{S_TMP}, 6144")
        a("L_s_nof1a:")
        XS = SC
        XO = W0 + 4
        a(f"v_lshlrev_b32 v{vt0}, 10, v{vB}")
        a(f"v_lshl_add_u32 v{vt0}, v{vG}, 8, v{vt0}")
        a(f"v_lshl_add_u32 v{vt0}, v{vU}, 6, v{vt0}")
        for i in range(4):
            a(f"buffer_load_dwordx4 v[{XS+4*i}:{XS+4*i+3}], v{vt0}, s[{S_X}:{S_X+3}], 0 offen offset:{16*i}")
        SRB0 = 97
        a(f"s_lshr_b32 s{S_TMP}, s{v}, 1")
        a(f"s_lshl_b32 s{S_TMP}, s{S_TMP}, 5")
        a(f"s_add_u32 s{SRB0}, s{SK0}, s{S_TMP}")
        a(f"s_and_b32 s{S_TMP}, s{v}, 1")
        a(f"s_lshl_b32 s{S_TMP}, s{S_TMP}, 2")
        a(f"s_add_u32 s{SRB0}, s{SRB0}, s{S_TMP}")
        a(f"v_lshlrev_b32 v{vt0}, 10, v{vB}")
        a(f"v_lshl_add_u32 v{vt0}, v{vG}, 1, v{vt0}")
        a(f"s_lshl_b32 s{S_TMP}, s{SRB0}, 1")
        for j in range(4):
            a(f"buffer_load_ushort v{XO+j}, v{vt0}, s[{S_X}:{S_X+3}], s{S_TMP} offen offset:{16*j}")
        a(f"v_lshl_add_u32 v{vt0}, v{vG}, 13, v{vC16}")
        a(f"s_lshl_b32 s{S_TMP}, s{SRB0}, 13")
        a(f"s_lshr_b32 s{S_TMP2}, s2, 3")
        a(f"s_lshl_b32 s{S_TMP2}, s{S_TMP2}, 9")
        a(f"s_add_u32 s{S_TMP}, s{S_TMP}, s{S_TMP2}")
        for j in range(4):
            a(f"buffer_load_dwordx4 v[{WA+4*j}:{WA+4*j+3}], v{vt0}, s[{S_WQ}:{S_WQ+3}], s{S_TMP} offen nt")
            a(f"buffer_load_dwordx4 v[{WB+4*j}:{WB+4*j+3}], v{vt0}, s[{S_WQ}:{S_WQ+3}], s{S_TMP} offen offset:256 nt")
            if j < 3:
                a(f"s_add_u32 s{S_TMP}, s{S_TMP}, {8*8192}")
        a("s_waitcnt lgkmcnt(0)")
        a("s_barrier")
        self.masks(vM0, vM1, vt0)
        self.get_tag(vT)
        self.stamp(0, W0+8, [])
        a(f"s_cmp_ge_u32 s2, {F1A_N}")
        a("s_cbranch_scc1 L_s_nof1b")
        DU = W0 + 8
        BB = W0 + 12
        a("s_waitcnt vmcnt(20)")
        for i in range(2):
            a(f"v_lshlrev_b32 v{DU+2*i}, 16, v{CC+i}")
            a(f"v_and_b32 v{DU+2*i+1}, s{S_HI16}, v{CC+i}")
        for i in range(4):
            a(f"v_mul_f32 v{BB+i}, 0xbfb8aa3b, v{DU+i}")
        for i in range(4):
            a(f"v_exp_f32 v{BB+i}, v{BB+i}")
        self.nop(1)
        for i in range(4):
            a(f"v_add_f32 v{BB+i}, 1.0, v{BB+i}")
        for i in range(4):
            a(f"v_rcp_f32 v{BB+i}, v{BB+i}")
        self.nop(1)
        for i in range(4):
            a(f"v_mul_f32 v{DU+i}, v{DU+i}, v{BB+i}")
        for i in range(4):
            a(f"v_cvt_pk_bf16_f32 v{DU+i}, v{DU+i}, v{DU+i}")
        XB = W0 + 12
        D1, D2 = WC+16, WC+20
        self.gemv_x_build(DU, 4, XB, vM0, vM1)
        a("s_waitcnt vmcnt(16)")
        self.gemv_mfma(WC, 4, XB, D1, D2)
        self.nop(8)

        def modp_addr():
            a(f"s_and_b32 s{S_TMP}, s2, 7")
            a(f"s_lshl_b32 s{S_TMP}, s{S_TMP}, 3")
            a(f"s_lshr_b32 s{S_TMP2}, s2, 3")
            a(f"s_add_u32 s{S_TMP}, s{S_TMP}, s{S_TMP2}")
            a(f"s_lshl_b32 s{S_TMP}, s{S_TMP}, 11")
            a(f"s_add_u32 s{S_TMP}, s{S_TMP}, {WS_MODP}")
        self.cu_reduce([(D1, D2)], 0, L_OW, modp_addr, vt0, vt1, vT, vL16, WC)
        self.stamp(1, W0+8, [])
        a("L_s_nof1b:")
        XF = SC + 16
        a("s_waitcnt vmcnt(8)")
        for i in range(16):
            a(f"v_lshlrev_b32 v{XF+2*i}, 16, v{XS+i}")
            a(f"v_and_b32 v{XF+2*i+1}, s{S_HI16}, v{XS+i}")
        vMean, vVar = W0, W0+1
        Y = W0 + 8
        self.ln_sum(XF, 32, vMean, vt0)
        self.allreduce(vMean, vt0, "v_add_f32")
        a(f"v_mul_f32 v{vMean}, 0x3b000000, v{vMean}")
        for i in range(32):
            a(f"v_sub_f32 v{XF+i}, v{XF+i}, v{vMean}")
        a(f"v_mul_f32 v{vVar}, v{XF}, v{XF}")
        a(f"v_mul_f32 v{vt0}, v{XF+1}, v{XF+1}")
        for i in range(2, 32, 2):
            a(f"v_fmac_f32 v{vVar}, v{XF+i}, v{XF+i}")
            a(f"v_fmac_f32 v{vt0}, v{XF+i+1}, v{XF+i+1}")
        a(f"v_add_f32 v{vVar}, v{vVar}, v{vt0}")
        self.allreduce(vVar, vt0, "v_add_f32")
        a(f"v_mul_f32 v{vVar}, 0x3b000000, v{vVar}")
        self.ln_fin(vMean, vVar, vt0)
        for j in range(4):
            a(f"v_lshlrev_b32 v{Y+j}, 16, v{XO+j}")
        self.ln_norm(Y, 4, vMean, vVar, vt0, vt1)
        P0 = WC
        a(f"v_lshlrev_b32 v{vt2}, 14, v{vU}")
        a(f"v_lshl_add_u32 v{vt2}, v{vB}, 6, v{vt2}")
        a(f"v_lshl_add_u32 v{vt2}, v{vG}, 4, v{vt2}")
        a(f"s_bfe_u32 s{S_TMP}, s2, 0x20001")
        a(f"s_lshl_b32 s{S_SO}, s{S_TMP}, 11")
        a(f"s_and_b32 s{S_TMP}, s{v}, 1")
        a(f"s_lshl_b32 s{S_TMP}, s{S_TMP}, 10")
        a(f"s_add_u32 s{S_SO}, s{S_SO}, s{S_TMP}")
        a(f"s_and_b32 s{S_TMP}, s2, 1")
        a(f"s_lshl_b32 s{S_TMP}, s{S_TMP}, 1")
        a(f"s_lshr_b32 s{S_TMP2}, s{v}, 1")
        a(f"s_add_u32 s{S_TMP}, s{S_TMP}, s{S_TMP2}")
        a(f"s_lshl_b32 s{S_TMP}, s{S_TMP}, 8")
        a(f"s_add_u32 s{S_SO}, s{S_SO}, s{S_TMP}")
        a(f"s_add_u32 s{S_SO}, s{S_SO}, {WS_MODP}")
        a(f"s_add_u32 s97, s{S_SO}, {4*8*2048}")
        a(f"s_add_u32 s98, s{S_SO}, {4*2048}")
        a(f"s_add_u32 s99, s{S_SO}, {4*8*2048 + 4*2048}")

        def iss():
            for q, sreg in enumerate([S_SO, 97, 98, 99]):
                a(f"buffer_load_dwordx4 v[{P0+4*q}:{P0+4*q+3}], v{vt2}, s[{S_WS}:{S_WS+3}], s{sreg} offen sc1")
        self.poll(iss, list(range(P0, P0+16)), vA, vO, vT)
        self.stamp(2, W0+20, [])
        SA, CA = P0, P0+8
        for r in range(4):
            a(f"v_add_f32 v{SA+r}, v{SA+r}, v{SA+4+r}")
            a(f"v_add_f32 v{CA+r}, v{CA+r}, v{CA+4+r}")
        xs = [SA+r for r in range(4)] + [CA+r for r in range(4)]
        self.nop(1)
        for x in xs:
            a(f"v_add_f32_dpp v{x}, v{x}, v{x} quad_perm:[1,0,3,2] row_mask:0xf bank_mask:0xf")
        for x in xs:
            a(f"v_add_f32_dpp v{x}, v{x}, v{x} quad_perm:[2,3,0,1] row_mask:0xf bank_mask:0xf")
        self.round2(SA, SA+1, vt0)
        self.round2(SA+2, SA+3, vt1)
        self.round2(CA, CA+1, vt0)
        self.round2(CA+2, CA+3, vt1)
        self.modulate(Y, 4, SA, CA, vt0, vt1, clean=True)
        XB = W0 + 12
        D1, D2, D3, D4 = W0, W0+4, WC+16, WC+20
        self.gemv_x_build(Y, 4, XB, vM0, vM1)
        self.nop(2)
        self.gemv_mfma(WA, 4, XB, D1, D2)
        self.gemv_mfma(WB, 4, XB, D3, D4)
        self.nop(8)

        def qp_addr():
            a(f"s_and_b32 s{S_TMP}, s2, 7")
            a(f"s_lshl_b32 s{S_TMP}, s{S_TMP}, 5")
            a(f"s_lshr_b32 s{S_TMP2}, s2, 3")
            a(f"s_lshl_b32 s{S_TMP2}, s{S_TMP2}, 1")
            a(f"s_add_u32 s{S_TMP}, s{S_TMP}, s{S_TMP2}")
            a(f"s_lshr_b32 s{S_TMP2}, s{v}, 1")
            a(f"s_add_u32 s{S_TMP}, s{S_TMP}, s{S_TMP2}")
            a(f"s_lshl_b32 s{S_TMP}, s{S_TMP}, 11")
            a(f"s_add_u32 s{S_TMP}, s{S_TMP}, {WS_QP}")
        self.cu_reduce([(D1, D2), (D3, D4)], 1, L_RP, qp_addr, vt0, vt1, vT, vL16, WC+24)
        a(f"v_mov_b32 v{vt0}, {L_CNT+16}")
        a(f"v_mov_b32 v{vt1}, 1")
        a("s_mov_b64 exec, 1")
        a(f"ds_add_u32 v{vt0}, v{vt1}")
        a("s_mov_b64 exec, -1")
        self.stamp(3, W0+20)
        a("s_branch L_s_join")
        STILE = 100
        vCc = W0

        def t2_wloads():
            a(f"s_sub_u32 s{S_TMP}, s2, {T2_0}")
            a(f"s_and_b32 s{STILE}, s{S_TMP}, 7")
            a(f"s_mul_i32 s{STILE}, s{STILE}, 7")
            a(f"s_lshr_b32 s{S_TMP}, s{S_TMP}, 3")
            a(f"s_add_u32 s{STILE}, s{STILE}, s{S_TMP}")
            a(f"v_mul_u32_u24 v{vt0}, {32*3584}, v{vG}")
            a(f"v_and_b32 v{vt1}, 15, v0")
            a(f"v_lshl_add_u32 v{vt0}, v{vt1}, 2, v{vt0}")
            a(f"s_mul_i32 s{S_TMP}, s{v}, {128*3584}")
            a(f"s_lshl_b32 s{S_TMP2}, s{STILE}, 6")
            a(f"s_add_u32 s{S_TMP}, s{S_TMP}, s{S_TMP2}")
            for t in range(32):
                a(f"buffer_load_dword v{WC+t}, v{vt0}, s[{S_WG}:{S_WG+3}], s{S_TMP} offen nt")
                a(f"buffer_load_dword v{WC+32+t}, v{vt0}, s[{S_WU}:{S_WU+3}], s{S_TMP} offen nt")
                if t < 31:
                    a(f"s_add_u32 s{S_TMP}, s{S_TMP}, 3584")

        def f1b_loads():
            a(f"s_sub_u32 s{S_TMP}, s2, {F1B_0}")
            a(f"s_and_b32 s{STILE}, s{S_TMP}, 7")
            a(f"s_lshl_b32 s{STILE}, s{STILE}, 3")
            a(f"s_lshr_b32 s{S_TMP}, s{S_TMP}, 3")
            a(f"s_add_u32 s{STILE}, s{STILE}, s{S_TMP}")
            a(f"s_add_u32 s{STILE}, s{STILE}, 32")
            a(f"v_lshlrev_b32 v{vt0}, 10, v{vB}")
            a(f"v_lshl_add_u32 v{vt0}, v{vG}, 6, v{vt0}")
            a(f"v_lshl_add_u32 v{vt0}, v{vU}, 4, v{vt0}")
            a(f"s_lshl_b32 s{S_TMP}, s{v}, 8")
            a(f"buffer_load_dwordx4 v[{vCc}:{vCc+3}], v{vt0}, s[{S_C}:{S_C+3}], s{S_TMP} offen")
            a(f"v_mul_u32_u24 v{vt0}, {32*6144}, v{vG}")
            a(f"v_and_b32 v{vt1}, 15, v0")
            a(f"v_lshl_add_u32 v{vt0}, v{vt1}, 2, v{vt0}")
            a(f"s_mul_i32 s{S_TMP}, s{v}, {128*6144}")
            a(f"s_lshl_b32 s{S_TMP2}, s{STILE}, 6")
            a(f"s_add_u32 s{S_TMP}, s{S_TMP}, s{S_TMP2}")
            for t in range(32):
                a(f"buffer_load_dword v{WC+t}, v{vt0}, s[{S_WM}:{S_WM+3}], s{S_TMP} offen nt")
                if t < 31:
                    a(f"s_add_u32 s{S_TMP}, s{S_TMP}, 6144")

        def f1b_compute():
            DU = W0 + 8
            BB = W0 + 16
            ACC = W0
            a("s_waitcnt vmcnt(32)")
            for i in range(4):
                a(f"v_lshlrev_b32 v{DU+2*i}, 16, v{vCc+i}")
                a(f"v_and_b32 v{DU+2*i+1}, s{S_HI16}, v{vCc+i}")
            for i in range(8):
                a(f"v_mul_f32 v{BB+i}, 0xbfb8aa3b, v{DU+i}")
            for i in range(8):
                a(f"v_exp_f32 v{BB+i}, v{BB+i}")
            self.nop(1)
            for i in range(8):
                a(f"v_add_f32 v{BB+i}, 1.0, v{BB+i}")
            for i in range(8):
                a(f"v_rcp_f32 v{BB+i}, v{BB+i}")
            self.nop(1)
            for i in range(8):
                a(f"v_mul_f32 v{DU+i}, v{DU+i}, v{BB+i}")
            for i in range(8):
                a(f"v_cvt_pk_bf16_f32 v{DU+i}, v{DU+i}, v{DU+i}")
            self.nop(1)
            for T in range(8):
                us = T//2
                bb = BB + 4*(T & 1)
                for j in range(4):
                    a(f"v_and_b32_dpp v{bb+j}, v{DU+4*(T%2)+j}, v{vMe} quad_perm:[{us},{us},{us},{us}] row_mask:0xf bank_mask:0xf")
                a(f"s_waitcnt vmcnt({28 - 4*T})")
                self.nop(1)
                c = "0" if T == 0 else f"v[{ACC}:{ACC+3}]"
                a(f"v_mfma_f32_16x16x32_bf16 v[{ACC}:{ACC+3}], v[{WC+4*T}:{WC+4*T+3}], v[{bb}:{bb+3}], {c}")
            self.nop(8)
            a(f"s_lshl_b32 s{S_TMP}, s{v}, 10")
            a(f"v_add_u32 v{vt0}, s{S_TMP}, v{vL16}")
            a(f"ds_write_b128 v{vt0}, v[{ACC}:{ACC+3}] offset:{L_F1P}")
            self.lds_bar(0, 4, vt0, vt1)
            a(f"s_lshl_b32 s{S_TMP}, s{v}, 2")
            a(f"v_add_u32 v{vt0}, s{S_TMP}, v{vL16}")
            for i in range(4):
                a(f"ds_read_b32 v{DU+i}, v{vt0} offset:{L_F1P+1024*i}")
            a("s_waitcnt lgkmcnt(0)")
            a(f"v_add_f32 v{DU}, v{DU}, v{DU+1}")
            a(f"v_add_f32 v{DU+2}, v{DU+2}, v{DU+3}")
            a(f"v_add_f32 v{DU}, v{DU}, v{DU+2}")
            a(f"v_cvt_pk_bf16_f32 v{DU}, v{DU}, v{DU}")
            a(f"v_lshl_or_b32 v{DU}, v{DU}, 16, v{vT}")
            a(f"v_mul_u32_u24 v{vt0}, {3072*4}, v{vB}")
            a(f"v_lshl_add_u32 v{vt0}, v{vG}, 5, v{vt0}")
            a(f"v_and_b32 v{vt1}, 1, v0")
            a(f"v_lshl_add_u32 v{vt0}, v{vt1}, 2, v{vt0}")
            a(f"s_lshl_b32 s{S_TMP}, s{STILE}, 7")
            a(f"s_lshl_b32 s{S_TMP2}, s{v}, 3")
            a(f"s_add_u32 s{S_TMP}, s{S_TMP}, s{S_TMP2}")
            a(f"s_add_u32 s{S_TMP}, s{S_TMP}, {WS_MOD}")
            a("s_mov_b32 exec_lo, 0x33333333")
            a("s_mov_b32 exec_hi, 0x33333333")
            a(f"buffer_store_dword v{DU}, v{vt0}, s[{S_WS}:{S_WS+3}], s{S_TMP} offen sc1")
            a("s_mov_b64 exec, -1")

        a("L_s_nf:")
        if self.wearly:
            t1_loads()
            a(f"s_cmp_ge_u32 s2, {F1B_0}")
            a("s_cbranch_scc1 L_s_nf1b")
            t2_wloads()
            a("s_branch L_s_nf1c")
            a("L_s_nf1b:")
            a(f"s_cmp_ge_u32 s2, {F1B_0 + F1B_N}")
            a("s_cbranch_scc1 L_s_nf1c")
            f1b_loads()
            a("L_s_nf1c:")
        a("s_waitcnt lgkmcnt(0)")
        a("s_barrier")
        self.get_tag(vT)
        self.masks(vM0, vM1, vt0)
        self.masks(vMe, None, vt0, four=False)
        self.stamp(0, W0+8, [])
        if self.wearly:
            a(f"s_cmp_lt_u32 s2, {F1B_0}")
            a("s_cbranch_scc1 L_s_join")
            a(f"s_cmp_ge_u32 s2, {F1B_0 + F1B_N}")
            a("s_cbranch_scc1 L_s_join")
            f1b_compute()
        a("L_s_join:")
        QD = W0
        a(f"v_lshrrev_b32 v{vt2}, 5, v0")
        a(f"v_lshlrev_b32 v{vt2}, 16, v{vt2}")
        a(f"v_bfe_u32 v{vt3}, v0, 4, 1")
        a(f"v_lshl_add_u32 v{vt2}, v{vt3}, 10, v{vt2}")
        a(f"v_lshl_add_u32 v{vt2}, v{vB}, 8, v{vt2}")
        a(f"v_lshl_add_u32 v{vt2}, v{vU}, 4, v{vt2}")
        if self.xl:
            a(f"s_and_b32 s{S_TMP}, s2, 7")
        else:
            a(f"s_bfe_u32 s{S_TMP}, s2, 0x20003")
            a(f"s_and_b32 s{S_TMP2}, s2, 1")
            a(f"s_lshl_b32 s{S_TMP2}, s{S_TMP2}, 2")
            a(f"s_add_u32 s{S_TMP}, s{S_TMP}, s{S_TMP2}")
        a(f"s_lshl_b32 s{S_TMP}, s{S_TMP}, 2")
        a(f"s_add_u32 s{S_TMP}, s{S_TMP}, s{v}")
        a(f"s_lshl_b32 s{S_TMP}, s{S_TMP}, 11")
        a(f"s_bfe_u32 s{S_TMP2}, s2, {'0x20003' if self.xl else '0x20001'}")
        a(f"s_lshl_b32 s{S_TMP2}, s{S_TMP2}, 6")
        a(f"s_add_u32 s{S_TMP}, s{S_TMP}, s{S_TMP2}")
        a(f"s_add_u32 s{S_SO}, s{S_TMP}, {WS_QP}")
        a(f"s_add_u32 s97, s{S_SO}, {1 << 17}")
        a(f"s_add_u32 s98, s{S_SO}, {2 << 17}")
        a(f"s_add_u32 s99, s{S_SO}, {3 << 17}")

        def iss():
            for q, sreg in enumerate([S_SO, 97, 98, 99]):
                a(f"buffer_load_dwordx4 v[{QD+4*q}:{QD+4*q+3}], v{vt2}, s[{S_WS}:{S_WS+3}], s{sreg} offen sc1")
        self.poll(iss, list(range(QD, QD+16)), vA, vO, vT)
        for r in range(4):
            a(f"v_add_f32 v{QD+r}, v{QD+r}, v{QD+4+r}")
            a(f"v_add_f32 v{QD+8+r}, v{QD+8+r}, v{QD+12+r}")
        for r in range(4):
            a(f"v_add_f32 v{QD+r}, v{QD+r}, v{QD+8+r}")
        self.nop(2)
        a(f"v_permlane32_swap_b32 v{QD}, v{QD+2}")
        a(f"v_permlane32_swap_b32 v{QD+1}, v{QD+3}")
        a(f"v_add_f32 v{QD}, v{QD}, v{QD+2}")
        a(f"v_add_f32 v{QD+1}, v{QD+1}, v{QD+3}")
        a(f"v_cvt_pk_bf16_f32 v{QD}, v{QD}, v{QD+1}")
        a(f"v_lshlrev_b32 v{vt0}, 6, v{vB}")
        a(f"v_lshrrev_b32 v{vt1}, 5, v0")
        a(f"v_lshl_add_u32 v{vt0}, v{vt1}, 5, v{vt0}")
        a(f"v_lshl_add_u32 v{vt0}, v{vt3}, 3, v{vt0}")
        a(f"v_lshl_add_u32 v{vt0}, v{vU}, 1, v{vt0}")
        a(f"s_lshl_b32 s{S_TMP}, s{v}, 8")
        a(f"v_add_u32 v{vt0}, s{S_TMP}, v{vt0}")
        a(f"ds_write_b16 v{vt0}, v{QD} offset:{L_QL}")
        a(f"ds_write_b16_d16_hi v{vt0}, v{QD} offset:{L_QL+16}")
        a("s_waitcnt lgkmcnt(0)")
        a(f"v_mov_b32 v{vt0}, {L_CNT+8}")
        a(f"v_mov_b32 v{vt1}, 1")
        a("s_mov_b64 exec, 1")
        a(f"ds_add_u32 v{vt0}, v{vt1}")
        a("s_mov_b64 exec, -1")
        self.stamp(4, W0+20)
        SBC = WA
        if self.wearly:
            a(f"s_cmp_ge_u32 s2, {NFRONT}")
            a("s_cbranch_scc1 L_s_prep_done")
            t1_loads()
        else:
            t1_loads()
            a(f"s_cmp_lt_u32 s2, {NFRONT}")
            a("s_cbranch_scc1 L_s_prep_done")
            a(f"s_cmp_ge_u32 s2, {F1B_0}")
            a("s_cbranch_scc1 L_s_nf1b")
            if not self.t2late:
                t2_wloads()
            a("s_branch L_s_prep_done")
            a("L_s_nf1b:")
            a(f"s_cmp_ge_u32 s2, {F1B_0 + F1B_N}")
            a("s_cbranch_scc1 L_s_prep_done")
            f1b_loads()
            f1b_compute()
        a("L_s_prep_done:")
        OA, OB, MLr = W0, W0+4, W0+8
        a(f"v_lshlrev_b32 v{vt2}, 17, v{vB}")
        a(f"v_lshl_add_u32 v{vt2}, v{vU}, 11, v{vt2}")
        a(f"v_lshl_add_u32 v{vt2}, v{vG}, 4, v{vt2}")
        a(f"s_lshr_b32 s{S_TMP}, {self.SP2}, 5")
        a(f"s_lshl_b32 s{S_SO}, s{S_TMP}, 14")
        a(f"s_and_b32 s{S_TMP}, s{v}, 1")
        a(f"s_lshl_b32 s{S_TMP}, s{S_TMP}, 10")
        a(f"s_add_u32 s{S_SO}, s{S_SO}, s{S_TMP}")
        a(f"s_bfe_u32 s{S_TMP}, {self.SP2}, 0x10002")
        a(f"s_lshl_b32 s{S_TMP}, s{S_TMP}, 1")
        a(f"s_lshr_b32 s{S_TMP2}, s{v}, 1")
        a(f"s_add_u32 s{S_TMP}, s{S_TMP}, s{S_TMP2}")
        a(f"s_lshl_b32 s{S_TMP}, s{S_TMP}, 8")
        a(f"s_add_u32 s{S_SO}, s{S_SO}, s{S_TMP}")
        a(f"s_bfe_u32 s{S_TMP}, {self.SP2}, 0x20003")
        a(f"s_lshl_b32 s{S_TMP2}, s{S_TMP}, 6")
        a(f"s_add_u32 s{S_SO}, s{S_SO}, s{S_TMP2}")
        a(f"s_add_u32 s{S_SO}, s{S_SO}, {WS_OPP}")
        a(f"s_add_u32 s97, s{S_SO}, 8192")
        a(f"v_lshlrev_b32 v{vt3}, 12, v{vB}")
        a(f"v_lshl_add_u32 v{vt3}, v{vU}, 4, v{vt3}")
        a(f"s_lshr_b32 s98, {self.SP2}, 3")
        a(f"s_lshl_b32 s98, s98, 7")
        a(f"s_add_u32 s98, s98, {WS_ML}")
        self.lds_wait(3, 8, vt0, vt1)
        self.stamp(5, W0+20)
        if self.t2late == 2:
            a(f"s_cmp_lt_u32 s2, {T2_0}")
            a("s_cbranch_scc1 L_s_t2w_done")
            a(f"s_cmp_ge_u32 s2, {T2_0+T2_N}")
            a("s_cbranch_scc1 L_s_t2w_done")
            self.lds_wait(5, 2, vt0, vt1, sleep=False)
            t2_wloads()
            a("L_s_t2w_done:")

        def iss_f(fl):
            a(f"buffer_load_dwordx4 v[{OA}:{OA+3}], v{vt2}, s[{S_WS}:{S_WS+3}], s{S_SO} offen {fl}")
            a(f"buffer_load_dwordx4 v[{OB}:{OB+3}], v{vt2}, s[{S_WS}:{S_WS+3}], s97 offen {fl}")
            a(f"buffer_load_dwordx4 v[{MLr}:{MLr+3}], v{vt3}, s[{S_WS}:{S_WS+3}], s98 offen {fl}")
            a(f"buffer_load_dwordx4 v[{MLr+4}:{MLr+7}], v{vt3}, s[{S_WS}:{S_WS+3}], s98 offen offset:64 {fl}")
        def iss():
            if self.xl <= 1:
                iss_f("sc1")
                return
            a(f"s_and_b32 s{S_TMP}, s{S_IT}, {self.xl-1}")
            a(f"s_cmp_eq_u32 s{S_TMP}, {self.xl-1}")
            a("s_cbranch_scc1 L_xl_far")
            iss_f("sc0")
            a("s_branch L_xl_j")
            a("L_xl_far:")
            iss_f("sc1")
            a("L_xl_j:")
        def iss_o():
            a(f"buffer_load_dwordx4 v[{OA}:{OA+3}], v{vt2}, s[{S_WS}:{S_WS+3}], s{S_SO} offen sc1")
            a(f"buffer_load_dwordx4 v[{OB}:{OB+3}], v{vt2}, s[{S_WS}:{S_WS+3}], s97 offen sc1")

        def iss_m():
            a(f"buffer_load_dwordx4 v[{MLr}:{MLr+3}], v{vt3}, s[{S_WS}:{S_WS+3}], s98 offen sc1")
            a(f"buffer_load_dwordx4 v[{MLr+4}:{MLr+7}], v{vt3}, s[{S_WS}:{S_WS+3}], s98 offen offset:64 sc1")
        if self.gate >= 0:
            self.poll_gated(iss_o, iss_m, range(OA, OA+8), range(MLr, MLr+8), vA, vO, vt0, vt1, vT, self.gate)
        else:
            self.poll3(iss, range(OA, OA+8), range(MLr, MLr+8), vA, vO, vt0, vt1, vT, self.g_opp, self.sl[0])
        self.stamp(6, 8)
        m0, l0, m1, l1 = MLr, MLr+1, MLr+4, MLr+5
        a(f"v_and_b32 v{m0}, s{S_HI16}, v{m0}")
        a(f"v_and_b32 v{m1}, s{S_HI16}, v{m1}")
        a(f"v_lshrrev_b32 v{MLr+2}, 16, v{MLr+2}")
        a(f"v_lshrrev_b32 v{MLr+6}, 16, v{MLr+6}")
        a(f"v_and_or_b32 v{l0}, v{l0}, s{S_HI16}, v{MLr+2}")
        a(f"v_and_or_b32 v{l1}, v{l1}, s{S_HI16}, v{MLr+6}")
        a(f"v_max_f32 v{vt0}, v{m0}, v{m1}")
        self.allreduce(vt0, vt1, "v_max_f32", rows=False)
        a(f"v_sub_f32 v{m0}, v{m0}, v{vt0}")
        a(f"v_sub_f32 v{m1}, v{m1}, v{vt0}")
        a(f"v_mul_f32 v{m0}, 0x3fb8aa3b, v{m0}")
        a(f"v_mul_f32 v{m1}, 0x3fb8aa3b, v{m1}")
        a(f"v_exp_f32 v{m0}, v{m0}")
        a(f"v_exp_f32 v{m1}, v{m1}")
        self.nop(1)
        a(f"v_mul_f32 v{l0}, v{m0}, v{l0}")
        a(f"v_fmac_f32 v{l0}, v{m1}, v{l1}")
        for r in range(4):
            a(f"v_mul_f32 v{OA+r}, v{m0}, v{OA+r}")
        for r in range(4):
            a(f"v_fmac_f32 v{OA+r}, v{m1}, v{OB+r}")
        self.nop(2)
        for x in [l0] + [OA+r for r in range(4)]:
            a(f"v_add_f32_dpp v{x}, v{x}, v{x} quad_perm:[1,0,3,2] row_mask:0xf bank_mask:0xf")
        for x in [l0] + [OA+r for r in range(4)]:
            a(f"v_add_f32_dpp v{x}, v{x}, v{x} quad_perm:[2,3,0,1] row_mask:0xf bank_mask:0xf")
        a(f"v_rcp_f32 v{l0}, v{l0}")
        self.nop(1)
        for r in range(4):
            a(f"v_mul_f32 v{OA+r}, v{OA+r}, v{l0}")
        for r in range(4):
            a(f"v_cvt_pk_bf16_f32 v{OA+r}, v{OA+r}, v{OA+r}")
        D1, D2 = W0+4, W0+8
        XB = WC + 88
        self.gemv_x4(OA, WB, 4, XB, D1, D2, vM0, vM1)

        def ap_addr():
            a(f"s_lshl_b32 s{S_TMP}, {self.SP2}, 11")
            a(f"s_add_u32 s{S_TMP}, s{S_TMP}, {WS_AP}")
        self.cu_reduce([(D1, D2)], None, L_RP, ap_addr, vt0, vt1, vT, vL16, WB)
        self.stamp(7, 8)
        a(f"s_cmp_lt_u32 s2, {T2_0}")
        a("s_cbranch_scc1 L_s_r")
        a(f"s_cmp_ge_u32 s2, {T2_0+T2_N}")
        a("s_cbranch_scc1 L_end")
        if self.t2late == 1:
            t2_wloads()
        a(f"v_lshl_add_u32 v{vt0}, v{vG}, 13, v{vC16}")
        a(f"s_lshl_b32 s{S_TMP}, s{STILE}, 15")
        a(f"s_lshl_b32 s{S_TMP2}, s{v}, 8")
        a(f"s_add_u32 s{S_TMP}, s{S_TMP}, s{S_TMP2}")
        for j in range(8):
            a(f"buffer_load_dwordx4 v[{WC+64+4*j}:{WC+64+4*j+3}], v{vt0}, s[{S_WD}:{S_WD+3}], s{S_TMP} offen nt")
            if j < 7:
                a(f"s_add_u32 s{S_TMP}, s{S_TMP}, 1024")
        a(f"v_mul_u32_u24 v{vt2}, {3072*4}, v{vB}")
        a(f"v_lshl_add_u32 v{vt2}, v{vG}, 7, v{vt2}")
        a(f"v_lshl_add_u32 v{vt2}, v{vU}, 5, v{vt2}")
        a(f"s_lshl_b32 s{S_SO}, s{v}, 9")
        a(f"s_add_u32 s{S_SO}, s{S_SO}, {WS_MOD + 1536*4}")
        SB0 = W0

        def iss():
            a(f"buffer_load_dwordx4 v[{SB0}:{SB0+3}], v{vt2}, s[{S_WS}:{S_WS+3}], s{S_SO} offen sc1")
            a(f"buffer_load_dwordx4 v[{SB0+4}:{SB0+7}], v{vt2}, s[{S_WS}:{S_WS+3}], s{S_SO} offen offset:16 sc1")
            a(f"buffer_load_dwordx4 v[{SB0+8}:{SB0+11}], v{vt2}, s[{S_WS}:{S_WS+3}], s{S_SO} offen offset:2048 sc1")
            a(f"buffer_load_dwordx4 v[{SB0+12}:{SB0+15}], v{vt2}, s[{S_WS}:{S_WS+3}], s{S_SO} offen offset:2064 sc1")
        self.poll(iss, list(range(SB0, SB0+16)), vA, vO, vT, mask=0xffff)
        for i in range(8):
            a(f"v_and_b32 v{SBC+i}, s{S_HI16}, v{SB0+i}")
            a(f"v_and_b32 v{SB0+8+i}, s{S_HI16}, v{SB0+8+i}")
        for i in range(8):
            a(f"v_add_f32 v{SBC+8+i}, 1.0, v{SB0+8+i}")
        for i in range(0, 8, 2):
            self.round2(SBC+8+i, SBC+8+i+1, vt0 if (i//2) % 2 == 0 else vt1)
        X1r = W0
        vGW, vGR = WB + 8, WB + 9

        def gu_mfma(X, AG, AU, fill=None):
            BB = WB
            for T in range(8):
                us = T//2
                bb = BB + 4*(T & 1)
                for j in range(4):
                    a(f"v_and_b32_dpp v{bb+j}, v{X+4*(T%2)+j}, v{vMe} quad_perm:[{us},{us},{us},{us}] row_mask:0xf bank_mask:0xf")
                if fill and len(fill[T]) >= 2:
                    for ins in fill[T]:
                        a(ins)
                else:
                    self.nop(2)
                c = "0" if T == 0 else f"v[{AG}:{AG+3}]"
                a(f"v_mfma_f32_16x16x32_bf16 v[{AG}:{AG+3}], v[{WC+4*T}:{WC+4*T+3}], v[{bb}:{bb+3}], {c}")
                c = "0" if T == 0 else f"v[{AU}:{AU+3}]"
                a(f"v_mfma_f32_16x16x32_bf16 v[{AU}:{AU+3}], v[{WC+32+4*T}:{WC+32+4*T+3}], v[{bb}:{bb+3}], {c}")

        def gu_write(AG, AU, base):
            a("s_mov_b32 exec_lo, 0x33333333")
            a("s_mov_b32 exec_hi, 0x33333333")
            for r in range(4):
                a(f"ds_write_b32 v{vGW}, v{AG+r} offset:{base + 32*r}")
                a(f"ds_write_b32 v{vGW}, v{AU+r} offset:{base + 2048 + 32*r}")
            a("s_mov_b64 exec, -1")

        def gu_read(GR, base):
            a(f"ds_read_b128 v[{GR}:{GR+3}], v{vGR} offset:{base}")
            a(f"ds_read_b128 v[{GR+4}:{GR+7}], v{vGR} offset:{base+16}")
            a(f"ds_read_b128 v[{GR+8}:{GR+11}], v{vGR} offset:{base+2048}")
            a(f"ds_read_b128 v[{GR+12}:{GR+15}], v{vGR} offset:{base+2048+16}")

        def gu_sum(GR):
            for i in range(4):
                g = GR + 4*i
                a(f"v_add_f32 v{g}, v{g}, v{g+1}")
                a(f"v_add_f32 v{g+2}, v{g+2}, v{g+3}")
            for i in range(4):
                g = GR + 4*i
                a(f"v_add_f32 v{g}, v{g}, v{g+2}")

        if self.t2alg:
            a(f"v_lshlrev_b32 v{vGW}, 9, v{vB}")
            a(f"v_lshl_add_u32 v{vGW}, v{vG}, 7, v{vGW}")
            a(f"v_lshl_add_u32 v{vGR}, v{vU}, 5, v{vGW}")
            a(f"v_and_b32 v{vt1}, 1, v0")
            a(f"v_lshl_add_u32 v{vGW}, v{vt1}, 4, v{vGW}")
            a(f"s_lshl_b32 s{S_TMP}, s{v}, 2")
            a(f"v_add_u32 v{vGW}, s{S_TMP}, v{vGW}")
            for i in range(8):
                a(f"v_cvt_pk_bf16_f32 v{W0+i}, v{SBC+8+i}, v{SBC+8+i}")
            for i in range(8):
                a(f"v_cvt_pk_bf16_f32 v{W0+16+i}, v{SBC+i}, v{SBC+i}")
            assert self.t2late == 2
            a("s_waitcnt vmcnt(0)")
            gu_mfma(W0, W0+8, W0+12)
            self.nop(8)
            self.nop(6)
            gu_write(W0+8, W0+12, L_OW)
            gu_mfma(W0+16, W0, W0+4)
            self.nop(8)
            self.nop(6)
            gu_write(W0, W0+4, L_OW + 4096)
            a("s_waitcnt lgkmcnt(0)")
            a("s_barrier")
            gu_read(W0, L_OW)
            a("s_waitcnt lgkmcnt(0)")
            gu_sum(W0)
            for i in range(4):
                a(f"v_mov_b32 v{SBC+i}, v{W0+4*i}")
            gu_read(W0, L_OW + 4096)
            a("s_waitcnt lgkmcnt(0)")
            gu_sum(W0)
            for i in range(4):
                a(f"v_mov_b32 v{SBC+4+i}, v{W0+4*i}")
        a(f"v_lshlrev_b32 v{vt2}, 11, v{vB}")
        a(f"v_lshl_add_u32 v{vt2}, v{vG}, 7, v{vt2}")
        a(f"v_lshl_add_u32 v{vt2}, v{vU}, {4 if self.x1p else 5}, v{vt2}")
        a(f"s_lshl_b32 s{S_SO}, s{v}, 9")
        a(f"s_add_u32 s{S_SO}, s{S_SO}, {WS_X1}")
        a(f"v_lshlrev_b32 v{vt3}, 5, v{vB}")
        a(f"s_lshl_b32 s{S_TMP}, s{v}, 3")
        a(f"v_add_u32 v{vt1}, s{S_TMP}, v{vt3}")

        def iss():
            a(f"buffer_load_dwordx4 v[{X1r}:{X1r+3}], v{vt2}, s[{S_WS}:{S_WS+3}], s{S_SO} offen sc1")
            a(f"buffer_load_dwordx4 v[{X1r+4}:{X1r+7}], v{vt2}, s[{S_WS}:{S_WS+3}], s{S_SO} offen offset:{64 if self.x1p else 16} sc1")
        def iss2(S):
            a(f"buffer_load_dwordx4 v[{S}:{S+3}], v{vt2}, s[{S_WS}:{S_WS+3}], s{S_SO} offen sc1")
            a(f"buffer_load_dwordx4 v[{S+4}:{S+7}], v{vt2}, s[{S_WS}:{S_WS+3}], s{S_SO} offen offset:{64 if self.x1p else 16} sc1")
        if self.pipe[1]:
            self.poll_pipe(iss2, 2, 8, [WB, WB+8], X1r, vA, vO, vT, 16, "lane", self.pipe[1])
        else:
            self.poll3(iss, None, range(X1r, X1r+8), vA, vO, vA, vO, vT, self.g_x1, self.sl[2])
        self.stamp(10, 8)
        if self.t2alg:
            s1, s2_ = vA, vO
            Y = W0 + 16
            AG, AU = W0+8, W0+12
            for i in range(8):
                a(f"v_and_b32 v{X1r+i}, s{S_HI16}, v{X1r+i}")
            for i in range(8):
                a(f"v_mul_f32 v{Y+i}, v{X1r+i}, v{SBC+8+i}")
            for i in range(8):
                a(f"v_cvt_pk_bf16_f32 v{Y+i}, v{Y+i}, v{Y+i}")
            st = []
            st.append(f"v_add_f32 v{s1}, v{X1r}, v{X1r+1}")
            st.append(f"v_add_f32 v{vt0}, v{X1r+2}, v{X1r+3}")
            st.append(f"v_mul_f32 v{s2_}, v{X1r}, v{X1r}")
            st.append(f"v_mul_f32 v{vt2}, v{X1r+1}, v{X1r+1}")
            for i in range(4, 8, 2):
                st.append(f"v_add_f32 v{s1}, v{s1}, v{X1r+i}")
                st.append(f"v_add_f32 v{vt0}, v{vt0}, v{X1r+i+1}")
            for i in range(2, 8, 2):
                st.append(f"v_fmac_f32 v{s2_}, v{X1r+i}, v{X1r+i}")
                st.append(f"v_fmac_f32 v{vt2}, v{X1r+i+1}, v{X1r+i+1}")
            st.append(f"v_add_f32 v{s1}, v{s1}, v{vt0}")
            st.append(f"v_add_f32 v{s2_}, v{s2_}, v{vt2}")
            assert len(st) == 16
            fill = [st[2*T:2*T+2] for T in range(8)]
            gu_mfma(Y, AG, AU, fill)
            self.allreduce2(s1, s2_, vt0, vt2)
            a("s_mov_b64 exec, 0x1111")
            a(f"ds_write_b64 v{vt1}, v[{s1}:{s2_}] offset:{L_ST}")
            gu_write(AG, AU, L_GU)
            a(f"s_lshl_b32 s{S_TMP}, s{STILE}, 2")
            a(f"s_add_u32 s{S_TMP}, s{S_TMP}, s{v}")
            a(f"s_lshl_b32 s{S_TMP}, s{S_TMP}, 11")
            a(f"s_add_u32 s{S_TMP}, s{S_TMP}, {WS_DP}")
            a("s_waitcnt lgkmcnt(0)")
            a("s_barrier")
            ST = W0+16
            GR = W0
            a(f"ds_read_b128 v[{ST}:{ST+3}], v{vt3} offset:{L_ST}")
            a(f"ds_read_b128 v[{ST+4}:{ST+7}], v{vt3} offset:{L_ST+16}")
            gu_read(GR, L_GU)
            a("s_waitcnt lgkmcnt(4)")
            a(f"v_add_f32 v{s1}, v{ST}, v{ST+2}")
            a(f"v_add_f32 v{vt0}, v{ST+4}, v{ST+6}")
            a(f"v_add_f32 v{s2_}, v{ST+1}, v{ST+3}")
            a(f"v_add_f32 v{vt1}, v{ST+5}, v{ST+7}")
            a(f"v_add_f32 v{s1}, v{s1}, v{vt0}")
            a(f"v_add_f32 v{s2_}, v{s2_}, v{vt1}")
            a(f"v_mul_f32 v{s1}, 0x3b000000, v{s1}")
            a(f"v_mul_f32 v{s2_}, 0x3b000000, v{s2_}")
            a(f"v_fma_f32 v{s2_}, -v{s1}, v{s1}, v{s2_}")
            a(f"v_max_f32 v{s2_}, 0, v{s2_}")
            self.ln_fin(s1, s2_, vt0)
            a("s_waitcnt lgkmcnt(0)")
            gu_sum(GR)
            for i in range(4):
                a(f"v_fma_f32 v{GR+4*i}, -v{s1}, v{SBC+i}, v{GR+4*i}")
            for i in range(4):
                a(f"v_fma_f32 v{GR+4*i}, v{s2_}, v{GR+4*i}, v{SBC+4+i}")
        else:
            for i in range(8):
                a(f"v_and_b32 v{X1r+i}, s{S_HI16}, v{X1r+i}")
            s1, s2_ = vA, vO
            self.ln_sum(X1r, 8, s1, vt0)
            a(f"v_mul_f32 v{s2_}, v{X1r}, v{X1r}")
            a(f"v_mul_f32 v{vt2}, v{X1r+1}, v{X1r+1}")
            for i in range(2, 8, 2):
                a(f"v_fmac_f32 v{s2_}, v{X1r+i}, v{X1r+i}")
                a(f"v_fmac_f32 v{vt2}, v{X1r+i+1}, v{X1r+i+1}")
            a(f"v_add_f32 v{s2_}, v{s2_}, v{vt2}")
            self.allreduce2(s1, s2_, vt0, vt2)
            a("s_mov_b64 exec, 0x1111")
            a(f"ds_write_b64 v{vt1}, v[{s1}:{s2_}] offset:{L_ST}")
            a("s_mov_b64 exec, -1")
            a("s_waitcnt lgkmcnt(0)")
            a("s_barrier")
            ST = W0+8
            a(f"ds_read_b128 v[{ST}:{ST+3}], v{vt3} offset:{L_ST}")
            a(f"ds_read_b128 v[{ST+4}:{ST+7}], v{vt3} offset:{L_ST+16}")
            a("s_waitcnt lgkmcnt(0)")
            a(f"v_add_f32 v{s1}, v{ST}, v{ST+2}")
            a(f"v_add_f32 v{vt0}, v{ST+4}, v{ST+6}")
            a(f"v_add_f32 v{s2_}, v{ST+1}, v{ST+3}")
            a(f"v_add_f32 v{vt1}, v{ST+5}, v{ST+7}")
            a(f"v_add_f32 v{s1}, v{s1}, v{vt0}")
            a(f"v_add_f32 v{s2_}, v{s2_}, v{vt1}")
            a(f"v_mul_f32 v{s1}, 0x3b000000, v{s1}")
            a(f"v_mul_f32 v{s2_}, 0x3b000000, v{s2_}")
            a(f"v_fma_f32 v{s2_}, -v{s1}, v{s1}, v{s2_}")
            a(f"v_max_f32 v{s2_}, 0, v{s2_}")
            self.ln_fin(s1, s2_, vt0)
            self.ln_norm(X1r, 8, s1, s2_, vt0, vt1)
            for i in range(8):
                a(f"v_mul_f32 v{X1r+i}, v{X1r+i}, v{SBC+8+i}")
            for i in range(0, 8, 2):
                self.round2(X1r+i, X1r+i+1, vt0 if (i//2) % 2 == 0 else vt1)
            for i in range(8):
                a(f"v_add_f32 v{X1r+i}, v{X1r+i}, v{SBC+i}")
            for i in range(8):
                a(f"v_cvt_pk_bf16_f32 v{X1r+i}, v{X1r+i}, v{X1r+i}")
            BB = WB
            AG, AU = W0+8, W0+12
            a("s_waitcnt vmcnt(0)")
            for T in range(8):
                us = T//2
                bb = BB + 4*(T & 1)
                for j in range(4):
                    a(f"v_and_b32_dpp v{bb+j}, v{X1r+4*(T%2)+j}, v{vMe} quad_perm:[{us},{us},{us},{us}] row_mask:0xf bank_mask:0xf")
                self.nop(2)
                c = "0" if T == 0 else f"v[{AG}:{AG+3}]"
                a(f"v_mfma_f32_16x16x32_bf16 v[{AG}:{AG+3}], v[{WC+4*T}:{WC+4*T+3}], v[{bb}:{bb+3}], {c}")
                c = "0" if T == 0 else f"v[{AU}:{AU+3}]"
                a(f"v_mfma_f32_16x16x32_bf16 v[{AU}:{AU+3}], v[{WC+32+4*T}:{WC+32+4*T+3}], v[{bb}:{bb+3}], {c}")
            a(f"v_lshlrev_b32 v{vt0}, 9, v{vB}")
            a(f"v_lshl_add_u32 v{vt0}, v{vG}, 7, v{vt0}")
            a(f"v_lshl_add_u32 v{vt2}, v{vU}, 5, v{vt0}")
            a(f"v_and_b32 v{vt1}, 1, v0")
            a(f"v_lshl_add_u32 v{vt0}, v{vt1}, 4, v{vt0}")
            a(f"s_lshl_b32 s{S_TMP}, s{v}, 2")
            a(f"v_add_u32 v{vt0}, s{S_TMP}, v{vt0}")
            self.nop(4)
            a("s_mov_b32 exec_lo, 0x33333333")
            a("s_mov_b32 exec_hi, 0x33333333")
            for r in range(4):
                a(f"ds_write_b32 v{vt0}, v{AG+r} offset:{L_GU + 32*r}")
                a(f"ds_write_b32 v{vt0}, v{AU+r} offset:{L_GU + 2048 + 32*r}")
            a("s_mov_b64 exec, -1")
            a("s_waitcnt lgkmcnt(0)")
            a("s_barrier")
            GR = WB
            a(f"ds_read_b128 v[{GR}:{GR+3}], v{vt2} offset:{L_GU}")
            a(f"ds_read_b128 v[{GR+4}:{GR+7}], v{vt2} offset:{L_GU+16}")
            a(f"ds_read_b128 v[{GR+8}:{GR+11}], v{vt2} offset:{L_GU+2048}")
            a(f"ds_read_b128 v[{GR+12}:{GR+15}], v{vt2} offset:{L_GU+2048+16}")
            a(f"s_lshl_b32 s{S_TMP}, s{STILE}, 2")
            a(f"s_add_u32 s{S_TMP}, s{S_TMP}, s{v}")
            a(f"s_lshl_b32 s{S_TMP}, s{S_TMP}, 11")
            a(f"s_add_u32 s{S_TMP}, s{S_TMP}, {WS_DP}")
            a("s_waitcnt lgkmcnt(0)")
            for i in range(4):
                g = GR + 4*i
                a(f"v_add_f32 v{g}, v{g}, v{g+1}")
                a(f"v_add_f32 v{g+2}, v{g+2}, v{g+3}")
            for i in range(4):
                g = GR + 4*i
                a(f"v_add_f32 v{g}, v{g}, v{g+2}")
        g0, g1, u0, u1 = GR, GR+4, GR+8, GR+12
        self.round2(g0, g1, vt0)
        self.round2(u0, u1, vt1)
        a(f"v_mul_f32 v{g0+1}, 0xbfb8aa3b, v{g0}")
        a(f"v_mul_f32 v{g1+1}, 0xbfb8aa3b, v{g1}")
        a(f"v_exp_f32 v{g0+1}, v{g0+1}")
        a(f"v_exp_f32 v{g1+1}, v{g1+1}")
        self.nop(1)
        a(f"v_add_f32 v{g0+1}, 1.0, v{g0+1}")
        a(f"v_add_f32 v{g1+1}, 1.0, v{g1+1}")
        a(f"v_rcp_f32 v{g0+1}, v{g0+1}")
        a(f"v_rcp_f32 v{g1+1}, v{g1+1}")
        self.nop(1)
        a(f"v_mul_f32 v{g0}, v{g0}, v{g0+1}")
        a(f"v_mul_f32 v{g1}, v{g1}, v{g1+1}")
        self.round2(g0, g1, vt0)
        a(f"v_mul_f32 v{g0}, v{g0}, v{u0}")
        a(f"v_mul_f32 v{g1}, v{g1}, v{u1}")
        AD = W0
        a(f"v_cvt_pk_bf16_f32 v{AD}, v{g0}, v{g0}")
        a(f"v_cvt_pk_bf16_f32 v{AD+1}, v{g1}, v{g1}")
        self.nop(1)
        XB = WB
        for j in range(8):
            us = j//2
            a(f"v_and_b32_dpp v{XB+2*j}, v{AD+(j%2)}, v{vM0} quad_perm:[{us},{us},{us},{us}] row_mask:0xf bank_mask:0xf")
            a(f"v_and_b32_dpp v{XB+2*j+1}, v{AD+(j%2)}, v{vM1} quad_perm:[{us},{us},{us},{us}] row_mask:0xf bank_mask:0xf")
        self.nop(2)
        D1, D2, D3, D4 = W0+4, W0+8, W0+12, W0+16
        for j in range(8):
            w = WC + 64 + 4*j
            da, db = (D1, D2) if j % 2 == 0 else (D3, D4)
            c1 = "0" if j < 2 else f"v[{da}:{da+3}]"
            c2 = "0" if j < 2 else f"v[{db}:{db+3}]"
            a(f"v_mfma_f32_16x16x16_bf16 v[{da}:{da+3}], v[{w}:{w+1}], v[{XB+2*j}:{XB+2*j+1}], {c1}")
            a(f"v_mfma_f32_16x16x16_bf16 v[{db}:{db+3}], v[{w+2}:{w+3}], v[{XB+2*j}:{XB+2*j+1}], {c2}")
        self.nop(8)
        for r in range(4):
            a(f"v_add_f32 v{D1+r}, v{D1+r}, v{D3+r}")
        for r in range(4):
            a(f"v_add_f32 v{D2+r}, v{D2+r}, v{D4+r}")
        for r in range(4):
            self.tag32(D1+r, vT)
        a(f"buffer_store_dwordx4 v[{D1}:{D1+3}], v{vL16}, s[{S_WS}:{S_WS+3}], s{S_TMP} offen sc1")
        for r in range(4):
            self.tag32(D2+r, vT)
        a(f"buffer_store_dwordx4 v[{D2}:{D2+3}], v{vL16}, s[{S_WS}:{S_WS+3}], s{S_TMP} offen offset:1024 sc1")
        self.stamp(11, 8)
        a("s_endpgm")
        a("L_s_r:")
        a(f"s_cmp_lg_u32 s{v}, 2")
        a("s_cbranch_scc1 L_end")
        SCOL = 100
        a(f"s_lshr_b32 s{SCOL}, s2, 3")
        a(f"s_lshl_b32 s{SCOL}, s{SCOL}, 5")
        a(f"s_bfe_u32 s{S_TMP}, s2, 0x10002")
        a(f"s_lshl_b32 s{S_TMP}, s{S_TMP}, 2")
        a(f"s_add_u32 s{SCOL}, s{SCOL}, s{S_TMP}")
        a(f"s_and_b32 s{S_TMP}, s2, 3")
        a(f"s_lshl_b32 s{S_TMP2}, s{S_TMP}, 9")
        a(f"s_add_u32 s{S_TMP2}, s{S_TMP2}, s{SCOL}")
        a(f"s_mul_i32 s{S_TMP}, s{S_TMP}, 3072")
        a(f"s_add_u32 s{SCOL}, s{SCOL}, s{S_TMP}")
        vCol = SBC + 3
        a(f"v_lshl_add_u32 v{vt1}, v{vG}, 3, v{vU}")
        a(f"v_add_u32 v{vCol}, s{S_TMP2}, v{vt1}")
        a(f"v_lshlrev_b32 v{vt0}, 1, v{vCol}")
        a(f"buffer_load_ushort v{SBC+2}, v{vt0}, s[{S_X}:{S_X+3}], 0 offen")
        a(f"v_add_u32 v{vt2}, s{SCOL}, v{vt1}")
        a(f"v_lshlrev_b32 v{vt2}, 2, v{vt2}")
        a(f"s_mov_b32 s{S_SO}, {WS_MOD + 1024*4}")
        a(f"s_mov_b32 s97, {WS_MOD + 2560*4}")

        def iss():
            a(f"buffer_load_dword v{SBC}, v{vt2}, s[{S_WS}:{S_WS+3}], s{S_SO} offen sc1")
            a(f"buffer_load_dword v{SBC+1}, v{vt2}, s[{S_WS}:{S_WS+3}], s97 offen sc1")
        self.poll(iss, [SBC, SBC+1, SBC+1], vA, vO, vT, mask=0xffff)
        a(f"v_and_b32 v{SBC}, s{S_HI16}, v{SBC}")
        a(f"v_and_b32 v{SBC+1}, s{S_HI16}, v{SBC+1}")
        a(f"v_lshlrev_b32 v{SBC+2}, 16, v{SBC+2}")
        RD = WC
        RS = [WC+16, WC+32, WC+48][:self.nsets]
        SRB = 101
        a(f"s_lshr_b32 s{SRB}, s2, 5")
        a(f"s_lshl_b32 s{SRB}, s{SRB}, 11")
        a(f"s_bfe_u32 s{S_TMP}, s2, 0x10002")
        a(f"s_lshl_b32 s{S_TMP}, s{S_TMP}, 10")
        a(f"s_add_u32 s{SRB}, s{SRB}, s{S_TMP}")
        a(f"s_bfe_u32 s{S_TMP}, s2, 0x20003")
        a(f"s_lshl_b32 s{S_TMP}, s{S_TMP}, 8")
        a(f"s_add_u32 s{SRB}, s{SRB}, s{S_TMP}")
        a(f"s_and_b32 s{S_TMP}, s2, 3")
        a(f"s_lshl_b32 s{S_TMP}, s{S_TMP}, 6")
        a(f"s_add_u32 s{SRB}, s{SRB}, s{S_TMP}")
        a(f"v_lshrrev_b32 v{vt2}, 2, v0")
        a(f"v_lshlrev_b32 v{vt2}, 13, v{vt2}")
        a(f"v_lshl_add_u32 v{vt2}, v{vU}, 4, v{vt2}")
        a(f"v_and_b32 v{vt3}, 0xffff, v{vt2}")
        QS = [S_SO, 97, 98, 99]
        for q in range(4):
            a(f"s_add_u32 s{QS[q]}, s{SRB}, {WS_AP + q*131072}")
        if self.x1p:
            a(f"v_lshl_add_u32 v{SBC+4}, v{vG}, 2, v{vU}")
            a(f"v_lshlrev_b32 v{SBC+4}, 2, v{SBC+4}")
            a(f"s_and_b32 s96, s2, 3")
            a(f"s_lshl_b32 s96, s96, 11")
            a(f"s_lshr_b32 s{S_TMP2}, s2, 3")
            a(f"s_lshl_b32 s{S_TMP2}, s{S_TMP2}, 7")
            a(f"s_add_u32 s96, s96, s{S_TMP2}")
            a(f"s_bfe_u32 s{S_TMP2}, s2, 0x10002")
            a(f"s_lshl_b32 s{S_TMP2}, s{S_TMP2}, 6")
            a(f"s_add_u32 s96, s96, s{S_TMP2}")
            a(f"s_add_u32 s96, s96, {WS_X1}")

        def iss():
            for q in range(4):
                a(f"buffer_load_dwordx4 v[{RD+4*q}:{RD+4*q+3}], v{vt2}, s[{S_WS}:{S_WS+3}], s{QS[q]} offen sc1")
        def iss2(S):
            for q in range(4):
                a(f"buffer_load_dwordx4 v[{S+4*q}:{S+4*q+3}], v{vt2}, s[{S_WS}:{S_WS+3}], s{QS[q]} offen sc1")
        if self.pipe[0]:
            self.poll_pipe(iss2, 4, 16, [WC+16, WC+32], RD, vA, vO, vT, TAGB, "quad", self.pipe[0])
        else:
            self.poll3(iss, range(RD, RD+16), None, vA, vO, vA, vO, vT, self.g_r, self.sl[1])
        self.stamp(12, 8)
        self.reduce_r(RD, False)
        vga, vgb, vx = SBC, SBC+1, SBC+2
        self.round1(RD)
        a(f"v_mul_f32 v{RD}, v{vga}, v{RD}")
        self.round1(RD)
        a(f"v_add_f32 v{vx}, v{vx}, v{RD}")
        a(f"v_cvt_pk_bf16_f32 v{vx}, v{vx}, v{vx}")
        a(f"v_lshl_or_b32 v{RD}, v{vx}, 16, v{vT}")
        if not self.x1p:
            a(f"v_lshlrev_b32 v{vt1}, 2, v{vCol}")
            a(f"s_mov_b32 s{S_TMP}, {WS_X1}")
        a("s_mov_b32 exec_lo, 0x000f000f")
        a("s_mov_b32 exec_hi, 0x000f000f")
        if self.x1p:
            a(f"buffer_store_dword v{RD}, v{SBC+4}, s[{S_WS}:{S_WS+3}], s96 offen sc1")
        else:
            a(f"buffer_store_dword v{RD}, v{vt1}, s[{S_WS}:{S_WS+3}], s{S_TMP} offen sc1")
        a("s_mov_b64 exec, -1")
        a(f"v_and_b32 v{vx}, s{S_HI16}, v{vx}")
        a(f"v_lshlrev_b32 v{vCol}, 1, v{vCol}")
        self.stamp(13, 8)
        for q in range(4):
            a(f"s_add_u32 s{QS[q]}, s{SRB}, {WS_DP + q*131072}")

        def iss():
            for q in range(4):
                va = vt2 if q < 3 else vt3
                a(f"buffer_load_dwordx4 v[{RD+4*q}:{RD+4*q+3}], v{va}, s[{S_WS}:{S_WS+3}], s{QS[q]} offen sc1")
        def iss2(S):
            for q in range(4):
                va = vt2 if q < 3 else vt3
                a(f"buffer_load_dwordx4 v[{S+4*q}:{S+4*q+3}], v{va}, s[{S_WS}:{S_WS+3}], s{QS[q]} offen sc1")
        if self.pipe[2]:
            self.poll_pipe(iss2, 4, 16, [WC+16, WC+32], RD, vA, vO, vT, TAGB, "quad", self.pipe[2])
        else:
            self.poll3(iss, range(RD, RD+16), None, vA, vO, vA, vO, vT, self.g_r, self.sl[3])
        self.reduce_r(RD, True)
        self.round1(RD)
        a(f"v_mul_f32 v{RD}, v{vgb}, v{RD}")
        self.round1(RD)
        a(f"v_add_f32 v{RD}, v{vx}, v{RD}")
        a(f"v_cvt_pk_bf16_f32 v{RD}, v{RD}, v{RD}")
        a("s_mov_b32 exec_lo, 0x000f000f")
        a("s_mov_b32 exec_hi, 0x000f000f")
        a(f"buffer_store_short v{RD}, v{vCol}, s[{S_OUT}:{S_OUT+3}], 0 offen")
        a("s_mov_b64 exec, -1")
        self.stamp(14, 8)
        if self.dbg2 >= 2:
            a("s_mov_b32 s90, 0")
            a("s_memtime s[92:93]")
            a("s_waitcnt lgkmcnt(0)")
            a("s_mov_b32 s3, s92")
            a("L_ic_loop:")
            for i in range(self.dbg2):
                a(f"v_mul_f32_e64 v{40+(i%16)}, v{60+(i%8)}, v{70+(i%8)}")
            a("s_memtime s[92:93]")
            a("s_waitcnt lgkmcnt(0)")
            a("s_sub_u32 s3, s92, s3")
            a("v_mov_b32 v10, s3")
            a("s_mov_b32 s3, s92")
            a("s_and_b32 s57, s2, 0x38")
            a("s_cbranch_scc1 L_ic_skip")
            a("s_load_dwordx2 s[92:93], s[0:1], 96")
            a("s_waitcnt lgkmcnt(0)")
            a("s_mov_b64 exec, 1")
            a("v_mov_b32 v8, s92")
            a("v_mov_b32 v9, s93")
            a("s_lshl_b32 s57, s90, 2")
            a("v_add_u32 v8, s57, v8")
            a("global_atomic_umax v[8:9], v10, off offset:12 sc1")
            a("v_not_b32 v11, v10")
            a("global_atomic_umax v[8:9], v11, off offset:24 sc1")
            a("s_mov_b64 exec, -1")
            a("s_memtime s[92:93]")
            a("s_waitcnt lgkmcnt(0)")
            a("s_mov_b32 s3, s92")
            a("L_ic_skip:")
            a("s_add_u32 s90, s90, 1")
            a("s_cmp_lt_u32 s90, 3")
            a("s_cbranch_scc1 L_ic_loop")
        a(f"s_cmp_lg_u32 s2, {R_0}")
        a("s_cbranch_scc1 L_end")
        a(f"v_mov_b32 v{vt0}, s{S_E}")
        a(f"v_mov_b32 v{vt1}, {WS_E}")
        a("s_mov_b64 exec, 1")
        a(f"buffer_store_dword v{vt0}, v{vt1}, s[{S_WS}:{S_WS+3}], 0 offen sc1")
        a("s_endpgm")

    def reduce_r(self, RD, half_last):
        a = self.a
        for r in range(4):
            a(f"v_add_f32 v{RD+r}, v{RD+r}, v{RD+4+r}")
        if half_last:
            a("s_mov_b32 exec_hi, 0")
        for r in range(4):
            a(f"v_add_f32 v{RD+8+r}, v{RD+8+r}, v{RD+12+r}")
        if half_last:
            a("s_mov_b32 exec_hi, -1")
        for r in range(4):
            a(f"v_add_f32 v{RD+r}, v{RD+r}, v{RD+8+r}")
        self.nop(2)
        a(f"v_permlane32_swap_b32 v{RD}, v{RD+2}")
        a(f"v_permlane32_swap_b32 v{RD+1}, v{RD+3}")
        a(f"v_add_f32 v{RD}, v{RD}, v{RD+2}")
        a(f"v_add_f32 v{RD+1}, v{RD+1}, v{RD+3}")
        self.nop(2)
        a(f"v_permlane16_swap_b32 v{RD}, v{RD+1}")
        a(f"v_add_f32 v{RD}, v{RD}, v{RD+1}")
        self.nop(2)
        a(f"v_add_f32_dpp v{RD}, v{RD}, v{RD} row_ror:8 row_mask:0xf bank_mask:0xf")
        self.nop(2)
        a(f"v_add_f32_dpp v{RD}, v{RD}, v{RD} row_ror:4 row_mask:0xf bank_mask:0xf")

    def allreduce2(self, r1, r2, t1, t2):
        a = self.a
        self.nop(1)
        for qp in ("[1,0,3,2]", "[2,3,0,1]"):
            a(f"v_add_f32_dpp v{r1}, v{r1}, v{r1} quad_perm:{qp} row_mask:0xf bank_mask:0xf")
            a(f"v_add_f32_dpp v{r2}, v{r2}, v{r2} quad_perm:{qp} row_mask:0xf bank_mask:0xf")
            self.nop(1)
        for sw in ("v_permlane16_swap_b32", "v_permlane32_swap_b32"):
            a(f"v_mov_b32 v{t1}, v{r1}")
            a(f"v_mov_b32 v{t2}, v{r2}")
            self.nop(1)
            a(f"{sw} v{r1}, v{t1}")
            a(f"{sw} v{r2}, v{t2}")
            a(f"v_add_f32 v{r1}, v{r1}, v{t1}")
            a(f"v_add_f32 v{r2}, v{r2}, v{t2}")

    def reduce_q(self, RD, n):
        a = self.a
        idx = list(range(n))
        while len(idx) > 1:
            nxt = []
            for i in range(0, len(idx)-1, 2):
                for r in range(4):
                    a(f"v_add_f32 v{RD+4*idx[i]+r}, v{RD+4*idx[i]+r}, v{RD+4*idx[i+1]+r}")
                nxt.append(idx[i])
            if len(idx) % 2:
                nxt.append(idx[-1])
            idx = nxt
        self.nop(2)
        a(f"v_permlane32_swap_b32 v{RD}, v{RD+2}")
        a(f"v_permlane32_swap_b32 v{RD+1}, v{RD+3}")
        a(f"v_add_f32 v{RD}, v{RD}, v{RD+2}")
        a(f"v_add_f32 v{RD+1}, v{RD+1}, v{RD+3}")
        self.nop(2)
        a(f"v_permlane16_swap_b32 v{RD}, v{RD+1}")
        a(f"v_add_f32 v{RD}, v{RD}, v{RD+1}")

    def ln_sum(self, R, n, dst, t):
        a = self.a
        a(f"v_add_f32 v{dst}, v{R}, v{R+1}")
        a(f"v_add_f32 v{t}, v{R+2}, v{R+3}")
        for i in range(4, n, 2):
            a(f"v_add_f32 v{dst}, v{dst}, v{R+i}")
            a(f"v_add_f32 v{t}, v{t}, v{R+i+1}")
        a(f"v_add_f32 v{dst}, v{dst}, v{t}")

    def ln_fin(self, vMean, vVar, t):
        a = self.a
        self.round2(vMean, vVar, t)
        a(f"v_add_f32 v{vVar}, 0x3727c5ac, v{vVar}")
        self.round1(vVar)
        a(f"v_sqrt_f32 v{vVar}, v{vVar}")
        self.nop(1)
        self.round1(vVar)
        a(f"v_rcp_f32 v{vVar}, v{vVar}")
        self.nop(1)

    def ln_norm(self, Y, n, vMean, vRcp, t0, t1):
        a = self.a
        for i in range(n):
            a(f"v_sub_f32 v{Y+i}, v{Y+i}, v{vMean}")
        for i in range(0, n, 2):
            self.round2(Y+i, Y+i+1, t0 if (i//2) % 2 == 0 else t1)
        for i in range(n):
            a(f"v_mul_f32 v{Y+i}, v{Y+i}, v{vRcp}")
        for i in range(0, n, 2):
            self.round2(Y+i, Y+i+1, t0 if (i//2) % 2 == 0 else t1)

    def modulate(self, Y, n, SH, SCL, t0, t1, clean=False):
        a = self.a
        if not clean:
            for i in range(n):
                a(f"v_and_b32 v{SH+i}, s{S_HI16}, v{SH+i}")
                a(f"v_and_b32 v{SCL+i}, s{S_HI16}, v{SCL+i}")
        for i in range(n):
            a(f"v_add_f32 v{SCL+i}, 1.0, v{SCL+i}")
        for i in range(0, n, 2):
            self.round2(SCL+i, SCL+i+1, t0 if (i//2) % 2 == 0 else t1)
        for i in range(n):
            a(f"v_mul_f32 v{Y+i}, v{Y+i}, v{SCL+i}")
        for i in range(0, n, 2):
            self.round2(Y+i, Y+i+1, t0 if (i//2) % 2 == 0 else t1)
        for i in range(n):
            a(f"v_add_f32 v{Y+i}, v{Y+i}, v{SH+i}")
        for i in range(n):
            a(f"v_cvt_pk_bf16_f32 v{Y+i}, v{Y+i}, v{Y+i}")

    def gemv_x4(self, DU, W, n, XB, D1, D2, vM0, vM1):
        a = self.a
        for j in range(n):
            a(f"v_and_b32 v{XB+2*j}, v{DU+j}, v{vM0}")
            a(f"v_and_b32 v{XB+2*j+1}, v{DU+j}, v{vM1}")
        self.nop(2)
        for j in range(n):
            w = W + 4*j
            c1 = "0" if j == 0 else f"v[{D1}:{D1+3}]"
            c2 = "0" if j == 0 else f"v[{D2}:{D2+3}]"
            a(f"v_mfma_f32_16x16x16_bf16 v[{D1}:{D1+3}], v[{w}:{w+1}], v[{XB+2*j}:{XB+2*j+1}], {c1}")
            a(f"v_mfma_f32_16x16x16_bf16 v[{D2}:{D2+3}], v[{w+2}:{w+3}], v[{XB+2*j}:{XB+2*j+1}], {c2}")
        self.nop(8)

    def gemv_x_build(self, DU, n, XB, vM0, vM1):
        a = self.a
        for j in range(n):
            a(f"v_and_b32 v{XB+2*j}, v{DU+j}, v{vM0}")
            a(f"v_and_b32 v{XB+2*j+1}, v{DU+j}, v{vM1}")
        self.nop(2)

    def gemv_mfma(self, W, n, XB, D1, D2):
        a = self.a
        for j in range(n):
            w = W + 4*j
            c1 = "0" if j == 0 else f"v[{D1}:{D1+3}]"
            c2 = "0" if j == 0 else f"v[{D2}:{D2+3}]"
            a(f"v_mfma_f32_16x16x16_bf16 v[{D1}:{D1+3}], v[{w}:{w+1}], v[{XB+2*j}:{XB+2*j+1}], {c1}")
            a(f"v_mfma_f32_16x16x16_bf16 v[{D2}:{D2+3}], v[{w+2}:{w+3}], v[{XB+2*j}:{XB+2*j+1}], {c2}")

    def cu_reduce(self, tiles, cnt, lbase, addr_fn, vt0, vt1, vT, vL16, R):
        a = self.a
        v = S_WID
        nt = len(tiles)
        a(f"s_lshl_b32 s{S_TMP}, s{v}, 11")
        a(f"v_add_u32 v{vt0}, s{S_TMP}, v{vL16}")
        for t, (D1, D2) in enumerate(tiles):
            a(f"ds_write_b128 v{vt0}, v[{D1}:{D1+3}] offset:{lbase+8192*t}")
            a(f"ds_write_b128 v{vt0}, v[{D2}:{D2+3}] offset:{lbase+8192*t+1024}")
        if cnt is not None:
            self.lds_bar(cnt, 4, vt0, vt1)
        else:
            a("s_waitcnt lgkmcnt(0)")
            a("s_barrier")
        skip = self.label("crs")
        if nt == 1:
            a(f"s_cmp_ge_u32 s{v}, 2")
            a(f"s_cbranch_scc1 {skip}")
        a(f"s_and_b32 s{S_TMP}, s{v}, 1")
        a(f"s_lshl_b32 s{S_TMP}, s{S_TMP}, 10")
        a(f"v_add_u32 v{vt0}, s{S_TMP}, v{vL16}")
        if nt == 2:
            a(f"s_lshr_b32 s{S_TMP}, s{v}, 1")
            a(f"s_lshl_b32 s{S_TMP}, s{S_TMP}, 13")
            a(f"v_add_u32 v{vt1}, s{S_TMP}, v{vt0}")
            rd = vt1
        else:
            rd = vt0
        assert R % 4 == 0
        for i in range(4):
            a(f"ds_read_b128 v[{R+4*i}:{R+4*i+3}], v{rd} offset:{lbase+2048*i}")
        addr_fn()
        a("s_waitcnt lgkmcnt(0)")
        for r in range(4):
            a(f"v_add_f32 v{R+r}, v{R+r}, v{R+4+r}")
            a(f"v_add_f32 v{R+8+r}, v{R+8+r}, v{R+12+r}")
        for r in range(4):
            a(f"v_add_f32 v{R+r}, v{R+r}, v{R+8+r}")
        for r in range(4):
            self.tag32(R+r, vT)
        a(f"buffer_store_dwordx4 v[{R}:{R+3}], v{vt0}, s[{S_WS}:{S_WS+3}], s{S_TMP} offen sc1")
        a(f"{skip}:")

    def build(self):
        self.prologue()
        self.svc()
        self.kv()
        self.a("L_end:")
        body = "\n".join(self.L)
        return f"""; @launch grid=(256,1,1) block=(768,1,1) lds={LDS_SIZE}
.amdgcn_target "amdgcn-amd-amdhsa--gfx950"
.text
.globl {KN}
.p2align 8
.type {KN},@function
{KN}:
{body}
s_endpgm
.section .rodata,"a"
.p2align 6
.amdhsa_kernel {KN}
  .amdhsa_next_free_vgpr 168
  .amdhsa_next_free_sgpr 102
  .amdhsa_accum_offset 168
  .amdhsa_group_segment_fixed_size 0
  .amdhsa_kernarg_size 112
  .amdhsa_user_sgpr_count 2
  .amdhsa_user_sgpr_kernarg_segment_ptr 1
  .amdhsa_system_sgpr_workgroup_id_x 1
.end_amdhsa_kernel
"""


if __name__ == "__main__":
    import argparse
    ap = argparse.ArgumentParser()
    ap.add_argument("-o", default="k1.s")
    ap.add_argument("--dbg", action="store_true")
    ap.add_argument("--dbg2", type=int, default=0)
    ap.add_argument("--xl", type=int, default=0)
    ap.add_argument("--t2alg", type=int, default=0)
    ap.add_argument("--xls", type=int, default=0)
    ap.add_argument("--prio", type=int, default=3)
    ap.add_argument("--na-front", type=int, default=2)
    ap.add_argument("--p-front", type=int, default=1)
    ap.add_argument("--na-nf", type=int, default=16)
    ap.add_argument("--p-nf", type=int, default=2)
    ap.add_argument("--psleep2", type=int, default=8)
    ap.add_argument("--psleep3", type=int, default=5)
    ap.add_argument("--nsets", type=int, default=1)
    ap.add_argument("--kf", type=int, default=512)
    ap.add_argument("--km", type=int, default=384)
    ap.add_argument("--kh", type=int, default=640)
    ap.add_argument("--wearly", type=int, default=0)
    ap.add_argument("--b0first", type=int, default=0)
    ap.add_argument("--g-opp", default="g16")
    ap.add_argument("--g-x1", default="lane")
    ap.add_argument("--g-r", default="quad")
    ap.add_argument("--t2late", type=int, default=0)
    ap.add_argument("--pf", type=int, default=0)
    ap.add_argument("--pipe", default="0,0,0")
    ap.add_argument("--gate", type=int, default=-1)
    ap.add_argument("--x1p", type=int, default=0)
    ap.add_argument("--rel", type=int, default=2)
    ap.add_argument("--sl", default="0,0,0,0")
    args = ap.parse_args()
    g = Gen(t2alg=args.t2alg, xl=args.xl, xls=args.xls, dbg2=args.dbg2, dbg=args.dbg, prio=args.prio, na_front=args.na_front, p_front=args.p_front, na_nf=args.na_nf, p_nf=args.p_nf,
            psleep2=args.psleep2, psleep3=args.psleep3, nsets=args.nsets, kf=args.kf, km=args.km, kh=args.kh, wearly=args.wearly, b0first=args.b0first,
            g_opp=args.g_opp, g_x1=args.g_x1, g_r=args.g_r, t2late=args.t2late, pf=args.pf, pipe=tuple(int(x) for x in args.pipe.split(',')), gate=args.gate, x1p=args.x1p, rel=args.rel, sl=tuple(int(x) for x in args.sl.split(',')))
    open(args.o, "w").write(g.build())
```

```python
import sys
KN = "adaLN_cond__gqa_block_cached__swiglu_ffn__decode_kernel"

WS_E = 0
WS_MOD = 0x1000
WS_QP = 0x10000
WS_MODP = 0xA0000
WS_OPP = 0x100000
WS_ML = 0x180000
WS_AP = 0x200000
WS_X1 = 0x280000
WS_DP = 0x300000
WS_DBG = 0x3C0000
WS_SIZE = 0x400000
L_F1P = 0
L_RP = 4096
L_QL = 20480
L_OW = 24576
L_MLW = 40960
L_ST = 41216
L_CNT = 41344
L_GU = 41472
LDS_SIZE = 49152

NFRONT = 128
F1A_N = 64
T2_0 = 128
T2_N = 56
F1B_0 = 184
F1B_N = 64
R_0 = 0
R_N = 128
LIMIT = 4000

S_K, S_V, S_WS, S_WQ, S_WO, S_WM, S_WG, S_WU, S_WD, S_X, S_C, S_OUT = 4, 8, 12, 16, 20, 24, 28, 32, 36, 40, 44, 48
S_WID, S_T, S_SO, S_IT, S_V4, S_TMP, S_TMP2, S_E = 52, 53, 54, 55, 56, 57, 58, 59
S_B0, S_B1 = 60, 62
S_FF00 = 90
S_HI16 = 91
S_TS = 92
S_R = 96
S_BK, S_SP = 84, 85
S_T3 = 94
TAGB = 4


class Gen:
    def __init__(self, dbg=False, prio=3, na_front=2, p_front=1, na_nf=16, p_nf=2, psleep2=8, psleep3=5, nsets=1, kf=512, km=384, kh=640, wearly=0, b0first=0, g_opp='g16', g_x1='lane', g_r='quad', t2late=0, pf=0, sl=(0,0,0,0), rel=2, x1p=0, gate=-1, pipe=(0,0,0), dbg2=0, xl=0, xls=0, t2alg=0, delay=0):
        self.pipe = pipe
        self.gate = gate
        self.x1p = x1p
        self.rel = rel
        self.sl = sl
        self.pf = pf
        self.t2late = t2late
        self.g_opp, self.g_x1, self.g_r = g_opp, g_x1, g_r
        self.L = []
        self.dbg = dbg
        self.dbg2 = dbg2
        self.xl = xl
        self.delay = delay
        self.t2alg = t2alg
        self.xls = xls
        self.SP2 = 's95' if xl else 's2'
        self.prio = prio
        self.na_front = na_front
        self.wearly, self.b0first = wearly, b0first
        self.kf, self.km, self.kh = kf, km, kh
        self.psleep2 = psleep2
        self.psleep3 = psleep3
        self.nsets = nsets
        self.p_front = p_front
        self.na_nf = na_nf
        self.p_nf = p_nf
        self.lbl = 0

    def a(self, s):
        self.L.append(s)

    def label(self, p):
        self.lbl += 1
        return f"L_{p}_{self.lbl}"

    def nop(self, n):
        while n > 0:
            k = min(n, 16)
            self.a(f"s_nop {k-1}")
            n -= k

    def srd(self, s, plo, size):
        self.a(f"s_mov_b32 s{s}, s{plo}")
        self.a(f"s_mov_b32 s{s+1}, s{plo+1}")
        self.a(f"s_mov_b32 s{s+2}, {size}")
        self.a(f"s_mov_b32 s{s+3}, 0x00020000")

    def stamp(self, slot, vtmp, d2=None):
        if self.dbg2:
            a = self.a
            if d2 is None:
                d2 = [(slot, False)]
            if self.dbg2 >= 2 and slot in (3, 4, 5, 6, 7):
                d2 = []
            if not d2:
                return
            assert vtmp % 2 == 0
            samp = True
            if samp:
                self.d2n = getattr(self, "d2n", 0) + 1
                a(f"s_and_b32 s{S_TMP2}, s2, 0x38")
                a(f"s_cbranch_scc1 L_d2s_{self.d2n}")
                if slot == 1:
                    a(f"s_cmp_lg_u32 s{S_WID}, 4")
                    a(f"s_cbranch_scc1 L_d2s_{self.d2n}")
            a(f"s_memrealtime s[{S_TS}:{S_TS+1}]")
            a("s_waitcnt lgkmcnt(0)")
            a(f"v_mov_b32 v{vtmp+2}, s{S_TS}")
            a(f"s_load_dwordx2 s[{S_TS}:{S_TS+1}], s[0:1], 96")
            a("s_waitcnt lgkmcnt(0)")
            a("s_mov_b64 exec, 1")
            a(f"v_mov_b32 v{vtmp}, s{S_TS}")
            a(f"v_mov_b32 v{vtmp+1}, s{S_TS+1}")
            for (idx, neg) in sorted(d2, key=lambda t: t[1]):
                if neg:
                    a("s_nop 2")
                    a(f"v_not_b32 v{vtmp+2}, v{vtmp+2}")
                a(f"global_atomic_umax v[{vtmp}:{vtmp+1}], v{vtmp+2}, off offset:{idx*4} sc1")
                a("s_nop 1")
            a("s_mov_b64 exec, -1")
            a("s_nop 1")
            if samp:
                a(f"L_d2s_{self.d2n}:")
            return
        if not self.dbg:
            return
        a = self.a
        a(f"s_memrealtime s[{S_TS}:{S_TS+1}]")
        a("s_waitcnt lgkmcnt(0)")
        a(f"v_mov_b32 v{vtmp}, s{S_TS}")
        a(f"v_mov_b32 v{vtmp+1}, s{S_IT}")
        a(f"s_lshl_b32 s{S_TMP2}, s2, 7")
        a(f"s_add_u32 s{S_TMP2}, s{S_TMP2}, {WS_DBG + slot*8}")
        a(f"v_mov_b32 v{vtmp+2}, s{S_TMP2}")
        a("s_mov_b64 exec, 1")
        a(f"buffer_store_dwordx2 v[{vtmp}:{vtmp+1}], v{vtmp+2}, s[{S_WS}:{S_WS+3}], 0 offen")
        a("s_mov_b64 exec, -1")
        a("s_nop 1")

    def allreduce(self, r, t, op, quad=True, rows=True):
        a = self.a
        if quad:
            self.nop(2)
            a(f"{op}_dpp v{r}, v{r}, v{r} quad_perm:[1,0,3,2] row_mask:0xf bank_mask:0xf")
            self.nop(2)
            a(f"{op}_dpp v{r}, v{r}, v{r} quad_perm:[2,3,0,1] row_mask:0xf bank_mask:0xf")
        if rows:
            a(f"v_mov_b32 v{t}, v{r}")
            self.nop(2)
            a(f"v_permlane16_swap_b32 v{r}, v{t}")
            a(f"{op} v{r}, v{r}, v{t}")
            a(f"v_mov_b32 v{t}, v{r}")
            self.nop(2)
            a(f"v_permlane32_swap_b32 v{r}, v{t}")
            a(f"{op} v{r}, v{r}, v{t}")

    def round2(self, x0, x1, t):
        a = self.a
        a(f"v_cvt_pk_bf16_f32 v{t}, v{x0}, v{x1}")
        a(f"v_lshlrev_b32 v{x0}, 16, v{t}")
        a(f"v_and_b32 v{x1}, s{S_HI16}, v{t}")

    def round1(self, x, t=None):
        a = self.a
        a(f"v_cvt_pk_bf16_f32 v{x}, v{x}, v{x}")
        a(f"v_and_b32 v{x}, s{S_HI16}, v{x}")

    def poll(self, issue, regs, vA, vO, vT, mask=(1 << TAGB) - 1):
        a = self.a
        lp = self.label("poll")
        ld = self.label("pd")
        a(f"s_mov_b32 s{S_IT}, 0")
        a(f"{lp}:")
        issue()
        a("s_waitcnt vmcnt(0)")
        rs = list(regs)
        assert len(rs) >= 3
        a(f"v_bitop3_b32 v{vA}, v{rs[0]}, v{rs[1]}, v{rs[2]} bitop3:0x80")
        a(f"v_or3_b32 v{vO}, v{rs[0]}, v{rs[1]}, v{rs[2]}")
        i = 3
        while i < len(rs):
            r1 = rs[i]
            r2 = rs[i+1] if i+1 < len(rs) else rs[i]
            a(f"v_bitop3_b32 v{vA}, v{vA}, v{r1}, v{r2} bitop3:0x80")
            a(f"v_or3_b32 v{vO}, v{vO}, v{r1}, v{r2}")
            i += 2
        a(f"v_xor_b32 v{vA}, v{vA}, v{vT}")
        a(f"v_xor_b32 v{vO}, v{vO}, v{vT}")
        a(f"v_or_b32 v{vA}, v{vA}, v{vO}")
        a(f"v_and_b32 v{vA}, {mask:#x}, v{vA}")
        a(f"v_cmp_ne_u32 vcc, 0, v{vA}")
        a(f"s_add_u32 s{S_IT}, s{S_IT}, 1")
        a(f"s_cmp_lt_u32 s{S_IT}, {LIMIT}")
        a(f"s_cbranch_scc0 {ld}")
        a(f"s_cbranch_vccnz {lp}")
        a(f"{ld}:")

    def tagcheck(self, rs, vA, vO, vT, mask):
        a = self.a
        rs = list(rs)
        assert len(rs) >= 3
        a(f"v_bitop3_b32 v{vA}, v{rs[0]}, v{rs[1]}, v{rs[2]} bitop3:0x80")
        a(f"v_or3_b32 v{vO}, v{rs[0]}, v{rs[1]}, v{rs[2]}")
        i = 3
        while i < len(rs):
            r1 = rs[i]
            r2 = rs[i+1] if i+1 < len(rs) else rs[i]
            a(f"v_bitop3_b32 v{vA}, v{vA}, v{r1}, v{r2} bitop3:0x80")
            a(f"v_or3_b32 v{vO}, v{vO}, v{r1}, v{r2}")
            i += 2
        a(f"v_xor_b32 v{vA}, v{vA}, v{vT}")
        a(f"v_xor_b32 v{vO}, v{vO}, v{vT}")
        a(f"v_or_b32 v{vA}, v{vA}, v{vO}")
        a(f"v_and_b32 v{vA}, {mask:#x}, v{vA}")
        a(f"v_cmp_ne_u32 vcc, 0, v{vA}")

    def poll2(self, issue, nl, nreg, sets, F, vA, vO, vT, mask=(1 << TAGB) - 1, sleep=None):
        a = self.a
        ns = len(sets)
        if sleep is None:
            sleep = self.psleep3 if ns >= 3 else self.psleep2
        lp = self.label("pp")
        ld = self.label("ppd")
        a(f"s_mov_b32 s{S_IT}, 0")
        if ns == 1:
            a(f"{lp}:")
            issue(F)
            a("s_waitcnt vmcnt(0)")
            self.tagcheck(range(F, F+nreg), vA, vO, vT, mask)
            a("s_mov_b64 exec, vcc")
            a(f"s_cbranch_execz {ld}")
            a(f"s_add_u32 s{S_IT}, s{S_IT}, 1")
            a(f"s_cmp_lt_u32 s{S_IT}, {LIMIT}")
            a(f"s_cbranch_scc1 {lp}")
            a(f"{ld}:")
            a("s_mov_b64 exec, -1")
            return
        for i, S in enumerate(sets):
            issue(S)
            if i < ns - 1 and sleep:
                a(f"s_sleep {sleep}")
        a(f"{lp}:")
        for S in sets:
            a(f"s_waitcnt vmcnt({nl*(ns-1)})")
            self.tagcheck(range(S, S+nreg), vA, vO, vT, mask)
            a("s_andn2_b64 exec, exec, vcc")
            sk = self.label("pps")
            a(f"s_cbranch_execz {sk}")
            for i in range(nreg):
                a(f"v_mov_b32 v{F+i}, v{S+i}")
            a(f"{sk}:")
            a("s_mov_b64 exec, vcc")
            a(f"s_cbranch_execz {ld}")
            issue(S)
            if sleep:
                a(f"s_sleep {sleep}")
        a(f"s_add_u32 s{S_IT}, s{S_IT}, 1")
        a(f"s_cmp_lt_u32 s{S_IT}, {LIMIT}")
        a(f"s_cbranch_scc1 {lp}")
        a(f"{ld}:")
        a("s_mov_b64 exec, -1")

    def mismatch(self, rs, vA, vO, vT):
        a = self.a
        rs = list(rs)
        assert len(rs) >= 3
        a(f"v_bitop3_b32 v{vA}, v{rs[0]}, v{rs[1]}, v{rs[2]} bitop3:0x80")
        a(f"v_or3_b32 v{vO}, v{rs[0]}, v{rs[1]}, v{rs[2]}")
        i = 3
        while i < len(rs):
            r1 = rs[i]
            r2 = rs[i+1] if i+1 < len(rs) else rs[i]
            a(f"v_bitop3_b32 v{vA}, v{vA}, v{r1}, v{r2} bitop3:0x80")
            a(f"v_or3_b32 v{vO}, v{vO}, v{r1}, v{r2}")
            i += 2
        a(f"v_bitop3_b32 v{vA}, v{vA}, v{vO}, v{vT} bitop3:0x7e")

    def poll3(self, issue, r4, r16, vA, vO, vA2, vO2, vT, group, sleep=0):
        a = self.a
        lp = self.label("p3")
        ld = self.label("p3d")
        a(f"s_mov_b32 s{S_IT}, 0")
        a(f"{lp}:")
        issue()
        a("s_waitcnt vmcnt(0)")
        if r4:
            self.mismatch(r4, vA, vO, vT)
        if r16:
            self.mismatch(r16, vA2, vO2, vT)
        if r4 and r16:
            a(f"v_lshlrev_b32 v{vA}, {32-TAGB}, v{vA}")
            a(f"v_lshl_or_b32 v{vA}, v{vA2}, 16, v{vA}")
        elif r4:
            a(f"v_lshlrev_b32 v{vA}, {32-TAGB}, v{vA}")
        else:
            a(f"v_lshlrev_b32 v{vA}, 16, v{vA2}")
        if group == "quad":
            self.nop(2)
            a(f"v_or_b32_dpp v{vA}, v{vA}, v{vA} quad_perm:[1,0,3,2] row_mask:0xf bank_mask:0xf")
            self.nop(2)
            a(f"v_or_b32_dpp v{vA}, v{vA}, v{vA} quad_perm:[2,3,0,1] row_mask:0xf bank_mask:0xf")
        a(f"v_cmp_ne_u32 vcc, 0, v{vA}")
        a(f"s_add_u32 s{S_IT}, s{S_IT}, 1")
        if group == "wave":
            a(f"s_cmp_lt_u32 s{S_IT}, {LIMIT}")
            a(f"s_cbranch_scc0 {ld}")
            a(f"s_cbranch_vccnz {lp}")
            a(f"{ld}:")
            return
        if group == "g16":
            a(f"s_or_b32 s{S_TMP}, vcc_lo, vcc_hi")
            a(f"s_lshr_b32 s{S_TMP2}, s{S_TMP}, 16")
            a(f"s_or_b32 s{S_TMP}, s{S_TMP}, s{S_TMP2}")
            a(f"s_and_b32 s{S_TMP}, s{S_TMP}, 0xffff")
            a(f"s_mul_i32 s{S_TMP}, s{S_TMP}, 0x10001")
            a(f"s_mov_b32 exec_lo, s{S_TMP}")
            a(f"s_mov_b32 exec_hi, s{S_TMP}")
        else:
            a("s_mov_b64 exec, vcc")
        a(f"s_cbranch_execz {ld}")
        if sleep:
            a(f"s_sleep {sleep}")
        a(f"s_cmp_lt_u32 s{S_IT}, {LIMIT}")
        a(f"s_cbranch_scc1 {lp}")
        a(f"{ld}:")
        a("s_mov_b64 exec, -1")

    def fold16(self, sd, st):
        a = self.a
        a(f"s_or_b32 s{sd}, vcc_lo, vcc_hi")
        a(f"s_lshr_b32 s{st}, s{sd}, 16")
        a(f"s_or_b32 s{sd}, s{sd}, s{st}")
        a(f"s_and_b32 s{sd}, s{sd}, 0xffff")

    def poll_gated(self, iss_opp, iss_ml, ro, rm, vA, vO, vA2, vO2, vT, thr):
        a = self.a
        sAct, sGate, sMl = 99, 101, 96
        lp = self.label("pg")
        ld = self.label("pgd")
        sk = self.label("pgs")
        sp = self.label("pgp")
        a(f"s_mov_b32 s{S_IT}, 0")
        a(f"s_mov_b32 s{sAct}, 0xffff")
        a(f"s_mov_b32 s{sGate}, 0xffff")
        a(f"{lp}:")
        a(f"s_mul_i32 s{S_TMP}, s{sGate}, 0x10001")
        a(f"s_mov_b32 exec_lo, s{S_TMP}")
        a(f"s_mov_b32 exec_hi, s{S_TMP}")
        a(f"s_cbranch_execz {sk}")
        iss_opp()
        a(f"{sk}:")
        a(f"s_mul_i32 s{S_TMP}, s{sAct}, 0x10001")
        a(f"s_mov_b32 exec_lo, s{S_TMP}")
        a(f"s_mov_b32 exec_hi, s{S_TMP}")
        iss_ml()
        a("s_waitcnt vmcnt(0)")
        self.mismatch(rm, vA2, vO2, vT)
        self.mismatch(ro, vA, vO, vT)
        a(f"v_lshlrev_b32 v{vA2}, 16, v{vA2}")
        a(f"v_lshlrev_b32 v{vA}, {32-TAGB}, v{vA}")
        a(f"v_cmp_ne_u32 vcc, 0, v{vA2}")
        self.fold16(sMl, S_TMP)
        a(f"v_cmp_ne_u32 vcc, 0, v{vA}")
        self.fold16(sAct, S_TMP)
        a(f"s_or_b32 s{sAct}, s{sAct}, s{sMl}")
        a(f"s_cmp_eq_u32 s{sAct}, 0")
        a(f"s_cbranch_scc1 {ld}")
        a(f"s_andn2_b32 s{sGate}, s{sAct}, s{sMl}")
        a(f"s_bcnt1_i32_b32 s{S_TMP}, s{sAct}")
        a(f"s_cmp_le_u32 s{S_TMP}, {thr}")
        a(f"s_cselect_b32 s{sGate}, s{sAct}, s{sGate}")
        a(f"s_add_u32 s{S_IT}, s{S_IT}, 1")
        a(f"s_cmp_lt_u32 s{S_IT}, {LIMIT}")
        a(f"s_cbranch_scc1 {lp}")
        a(f"{ld}:")
        a("s_mov_b64 exec, -1")

    def poll_pipe(self, issue, nl, nreg, sets, F, vA, vO, vT, bits, group, delay):
        a = self.a
        lp = self.label("pq")
        ld = self.label("pqd")
        a(f"s_mov_b32 s{S_IT}, 0")
        issue(sets[0])
        a(f"s_sleep {delay}")
        issue(sets[1])
        a(f"{lp}:")
        for S in sets:
            a(f"s_waitcnt vmcnt({nl})")
            self.mismatch(range(S, S+nreg), vA, vO, vT)
            a(f"v_lshlrev_b32 v{vA}, {32-bits}, v{vA}")
            if group == "quad":
                self.nop(2)
                a(f"v_or_b32_dpp v{vA}, v{vA}, v{vA} quad_perm:[1,0,3,2] row_mask:0xf bank_mask:0xf")
                self.nop(2)
                a(f"v_or_b32_dpp v{vA}, v{vA}, v{vA} quad_perm:[2,3,0,1] row_mask:0xf bank_mask:0xf")
            a(f"v_cmp_ne_u32 vcc, 0, v{vA}")
            a("s_andn2_b64 exec, exec, vcc")
            sk = self.label("pqs")
            a(f"s_cbranch_execz {sk}")
            for i in range(nreg):
                a(f"v_mov_b32 v{F+i}, v{S+i}")
            a(f"{sk}:")
            a("s_mov_b64 exec, vcc")
            a(f"s_cbranch_execz {ld}")
            issue(S)
        a(f"s_add_u32 s{S_IT}, s{S_IT}, 1")
        a(f"s_cmp_lt_u32 s{S_IT}, {LIMIT}")
        a(f"s_cbranch_scc1 {lp}")
        a(f"{ld}:")
        a("s_mov_b64 exec, -1")

    def lds_bar(self, k, n, vA, vB):
        a = self.a
        lp = self.label("lb")
        ld = self.label("lbd")
        a("s_waitcnt lgkmcnt(0)")
        a(f"v_mov_b32 v{vA}, {L_CNT + 4*k}")
        a(f"v_mov_b32 v{vB}, 1")
        a("s_mov_b64 exec, 1")
        a(f"ds_add_u32 v{vA}, v{vB}")
        a("s_mov_b64 exec, -1")
        self.lds_wait(k, n, vA, vB, sleep=False)

    def lds_wait(self, k, n, vA, vB, sleep=True):
        a = self.a
        lp = self.label("lw")
        ld = self.label("lwd")
        a(f"v_mov_b32 v{vA}, {L_CNT + 4*k}")
        a(f"s_mov_b32 s{S_IT}, 0")
        a(f"{lp}:")
        a(f"ds_read_b32 v{vB}, v{vA}")
        a("s_waitcnt lgkmcnt(0)")
        a(f"v_readfirstlane_b32 s{S_TMP}, v{vB}")
        a(f"s_add_u32 s{S_IT}, s{S_IT}, 1")
        a(f"s_cmp_ge_u32 s{S_TMP}, {n}")
        a(f"s_cbranch_scc1 {ld}")
        if sleep:
            a("s_sleep 1")
        a(f"s_cmp_lt_u32 s{S_IT}, 400000")
        a(f"s_cbranch_scc1 {lp}")
        a(f"{ld}:")

    def tag32(self, r, vT):
        self.a(f"v_and_or_b32 v{r}, v{r}, {-(1 << TAGB)}, s{S_T3}")

    def masks(self, vM0, vM1, vt, four=True):
        a = self.a
        a(f"v_mov_b32 v{vt}, 0xffff")
        a(f"v_mov_b32 v{vM0}, s{S_HI16}")
        a(f"v_cndmask_b32 v{vM0}, v{vt}, v{vM0}, s[{S_B0}:{S_B0+1}]")
        if four:
            a(f"v_mov_b32 v{vt}, 0")
            a(f"v_cndmask_b32 v{vM1}, v{vt}, v{vM0}, s[{S_B1}:{S_B1+1}]")
            a(f"v_cndmask_b32 v{vM0}, v{vM0}, v{vt}, s[{S_B1}:{S_B1+1}]")

    def prologue(self):
        a = self.a
        a("s_cmp_ge_u32 s2, 256")
        a("s_cbranch_scc1 L_end")
        a("s_load_dwordx16 s[64:79], s[0:1], 0")
        a("s_load_dwordx8 s[80:87], s[0:1], 64")
        a("s_load_dwordx2 s[88:89], s[0:1], 104")
        a("v_lshrrev_b32 v1, 6, v0")
        a("v_and_b32 v0, 63, v0")
        a(f"s_mov_b32 s{S_B0}, 0xaaaaaaaa")
        a(f"s_mov_b32 s{S_B0+1}, 0xaaaaaaaa")
        a(f"v_readfirstlane_b32 s{S_WID}, v1")
        a(f"s_mov_b32 s{S_B1}, 0xcccccccc")
        a(f"s_mov_b32 s{S_B1+1}, 0xcccccccc")
        a(f"s_mov_b32 s{S_HI16}, 0xffff0000")
        a("s_waitcnt lgkmcnt(0)")
        a(f"s_load_dword s{S_E}, s[88:89], {WS_E}")
        self.srd(S_WS, 88, WS_SIZE)
        a(f"s_cmp_ge_u32 s{S_WID}, 4")
        a("s_cbranch_scc1 L_kv")
        if self.xl:
            a("s_and_b32 s95, s2, 7")
            a("s_lshl_b32 s95, s95, 5")
            a(f"s_and_b32 s{S_TMP}, s2, 0x18")
            a(f"s_or_b32 s95, s95, s{S_TMP}")
            a(f"s_lshr_b32 s{S_TMP}, s2, 5")
            a(f"s_or_b32 s95, s95, s{S_TMP}")

    def get_tag(self, vT):
        a = self.a
        a("s_waitcnt lgkmcnt(0)")
        a(f"s_add_u32 s{S_E}, s{S_E}, 1")
        a(f"s_and_b32 s{S_T}, s{S_E}, 0xffff")
        a(f"s_and_b32 s{S_T3}, s{S_E}, {(1 << TAGB) - 1}")
        a(f"v_mov_b32 v{vT}, s{S_T}")

    def kv(self):
        a = self.a
        a("L_kv:")
        if self.dbg:
            a(f"s_mov_b32 s{S_IT}, 0")
            a("s_cmp_lt_u32 s2, 128")
            a("s_cbranch_scc1 L_kv_dbg1")
            self.stamp(1, 8)
            a("s_branch L_kv_dbg2")
            a("L_kv_dbg1:")
            self.stamp(10, 8)
            a("L_kv_dbg2:")
        if self.dbg2:
            self.stamp(1, 8, [(1, True), (2, False)])
        vKa, vVa, vT, vM0, vM1, vt0, vt1, vt2 = 1, 2, 3, 4, 5, 6, 7, 8
        self.srd(S_K, 66, 0x2000000)
        self.srd(S_V, 68, 0x2000000)
        a(f"s_sub_u32 s{S_V4}, s{S_WID}, 4")
        if self.xl > 0:
            a(f"s_and_b32 s{S_BK}, s2, 31")
        else:
            a(f"s_and_b32 s{S_BK}, s2, 7")
            a(f"s_lshl_b32 s{S_BK}, s{S_BK}, 2")
            a(f"s_bfe_u32 s{S_TMP}, s2, 0x20003")
            a(f"s_add_u32 s{S_BK}, s{S_BK}, s{S_TMP}")
        a(f"s_lshr_b32 s{S_SP}, s2, 5")
        a(f"v_and_b32 v{vt0}, 3, v0")
        a(f"v_lshlrev_b32 v{vt0}, 4, v{vt0}")
        a(f"v_bfe_u32 v{vt1}, v0, 2, 2")
        a(f"v_lshl_add_u32 v{vt0}, v{vt1}, 8, v{vt0}")
        a(f"v_lshrrev_b32 v{vt1}, 4, v0")
        a(f"v_lshl_add_u32 v{vt0}, v{vt1}, 6, v{vt0}")
        a(f"v_lshlrev_b32 v{vt2}, 4, v0")
        if self.pf:
            self.srd(S_WD, 80, 512*1792*2)
        for i in range(1, 5):
            a(f"s_mov_b32 s{79+i}, {4096*i}")
        a(f"s_lshl_b32 s{S_TMP}, s{S_BK}, 20")
        KF, KM, KH = self.kf, self.km, self.kh
        assert 4*KF + 2*KM + 2*KH == 4096
        classes = [("f", KF, 0, 0, True), ("m", KM, 4*KF, 4, False), ("h", KH, 4*KF + 2*KM, 6, False)]
        used = []
        a(f"s_cmp_ge_u32 s{S_SP}, 6")
        a("s_cbranch_scc1 L_kvc_h")
        a(f"s_cmp_ge_u32 s{S_SP}, 4")
        a("s_cbranch_scc1 L_kvc_m")
        for (nm, K, key0, s0, front) in classes:
            a(f"L_kvc_{nm}:")
            gs = K // 16
            glo, nhi = gs // 8, gs % 8
            assert K % 16 == 0 and 3 <= glo and glo + (1 if nhi else 0) <= 5
            a(f"s_mul_i32 s{S_TMP2}, s{S_SP}, {K}")
            off = key0 - s0*K
            if off > 0:
                a(f"s_add_u32 s{S_TMP2}, s{S_TMP2}, {off}")
            elif off < 0:
                a(f"s_sub_u32 s{S_TMP2}, s{S_TMP2}, {-off}")
            a(f"s_lshl_b32 s{S_TMP2}, s{S_TMP2}, 8")
            a(f"s_add_u32 s{S_TMP}, s{S_TMP}, s{S_TMP2}")
            lo = f"L_kvp_{'f' if front else 'n'}{glo}"
            hi = f"L_kvp_{'f' if front else 'n'}{glo+1}"
            if nhi:
                a(f"s_mul_i32 s{S_TMP2}, s{S_V4}, {16*(glo+1)*256}")
                a(f"s_cmp_lt_u32 s{S_V4}, {nhi}")
                l2 = self.label("kvl")
                a(f"s_cbranch_scc0 {l2}")
                a(f"s_add_u32 s{S_TMP}, s{S_TMP}, s{S_TMP2}")
                a(f"s_branch {hi}")
                a(f"{l2}:")
                if (glo+1, front) not in used:
                    used.append((glo+1, front))
            a(f"s_mul_i32 s{S_TMP2}, s{S_V4}, {16*glo*256}")
            a(f"s_add_u32 s{S_TMP}, s{S_TMP}, s{S_TMP2}")
            if nhi:
                a(f"s_add_u32 s{S_TMP}, s{S_TMP}, {nhi*16*256}")
            a(f"s_branch {lo}")
            if (glo, front) not in used:
                used.append((glo, front))
        for k, (G, front) in enumerate(used):
            a(f"L_kvp_{'f' if front else 'n'}{G}:")
            if front:
                self.kv_path(G, self.na_front, self.p_front, k == len(used) - 1, front=True)
            else:
                self.kv_path(G, self.na_nf, self.p_nf, k == len(used) - 1, self.b0first)

    def kv_path(self, G, nA, P, last, b0first=False, front=False):
        a = self.a
        vKa, vVa, vT, vM0, vM1, vt0, vt1, vt2 = 1, 2, 3, 4, 5, 6, 7, 8
        vQ = 12
        vD = 16
        vS = 32
        vm, vl = 38, 39
        KR = 40
        nL = 4*G
        if G <= 4:
            kreg = [KR + 4*j for j in range(nL)]
            vreg = [104 + 4*j for j in range(nL)]
            pre = [("K", j) for j in range(nL)] + [("V", j) for j in range(nL)]
            post = []
            XR, AC, nch = KR, KR + 32, 2
        else:
            kreg = [KR + 4*j for j in range(nL)]
            vreg = [120 + 4*j for j in range(12)] + [KR + 4*j for j in range(8)]
            pre = [("K", j) for j in range(nL)] + [("V", j) for j in range(12)]
            post = [("V", j) for j in range(12, 20)]
            XR, AC, nch = 72, 112, 1
        so = ["0", "s80", "s81", "s82", "s83"]
        issued = []

        def ld(item):
            t, j = item
            srd, va, reg = (S_K, vKa, kreg[j]) if t == "K" else (S_V, vVa, vreg[j])
            a(f"buffer_load_dwordx4 v[{reg}:{reg+3}], v{va}, s[{srd}:{srd+3}], {so[j//4]} offen offset:{(j%4)*1024} nt")
        a(f"v_add_u32 v{vKa}, s{S_TMP}, v{vt0}")
        a(f"v_add_u32 v{vVa}, s{S_TMP}, v{vt2}")
        nA = min(nA, len(pre))
        if b0first:
            a("s_barrier")
        for it in pre[:nA]:
            ld(it)
        if not b0first:
            a("s_barrier")
        lall = self.label("kvall")
        if nA < len(pre):
            lf = [self.label("kvf") for _ in pre]
            a(f"v_mov_b32 v{vt0}, {L_CNT + (4*self.rel if front else 8)}")
            for idx in range(nA, len(pre)):
                a(f"s_waitcnt vmcnt({P-1})")
                a(f"ds_read_b32 v{vt1}, v{vt0}")
                a("s_waitcnt lgkmcnt(0)")
                a(f"v_readfirstlane_b32 s{S_TMP}, v{vt1}")
                a(f"s_cmp_ge_u32 s{S_TMP}, 4")
                a(f"s_cbranch_scc1 {lf[idx]}")
                ld(pre[idx])
            a(f"s_branch {lall}")
            for idx in range(nA, len(pre)):
                a(f"{lf[idx]}:")
                ld(pre[idx])
        a(f"{lall}:")
        issued = list(pre)
        self.masks(vM0, vM1, vt0)
        self.get_tag(vT)
        self.lds_wait(2, 4, vt0, vt1)
        self.stamp(8, 8, [])
        a(f"v_bfe_u32 v{vt0}, v0, 2, 2")
        a(f"v_lshlrev_b32 v{vt0}, 8, v{vt0}")
        a(f"v_lshrrev_b32 v{vt1}, 4, v0")
        a(f"v_lshl_add_u32 v{vt0}, v{vt1}, 6, v{vt0}")
        a(f"v_and_b32 v{vt1}, 3, v0")
        a(f"v_lshl_add_u32 v{vt0}, v{vt1}, 4, v{vt0}")
        a(f"ds_read_b128 v[{vQ}:{vQ+3}], v{vt0} offset:{L_QL}")
        a("s_waitcnt lgkmcnt(0)")

        def wait_for(item):
            n = len(issued) - 1 - issued.index(item)
            a(f"s_waitcnt vmcnt({n})")
        for J in range(G):
            wait_for(("K", 4*J+3))
            for jj in range(4):
                k = kreg[4*J+jj]
                d = vD + 4*jj
                a(f"v_mfma_f32_16x16x32_bf16 v[{d}:{d+3}], v[{k}:{k+3}], v[{vQ}:{vQ+3}], 0")
            self.nop(8)
            for jj in range(4):
                d = vD + 4*jj
                a(f"v_cndmask_b32 v{d}, v{d}, v{d+1}, s[{S_B0}:{S_B0+1}]")
                a(f"v_cndmask_b32 v{d+2}, v{d+2}, v{d+3}, s[{S_B0}:{S_B0+1}]")
                a(f"v_cndmask_b32 v{d}, v{d}, v{d+2}, s[{S_B1}:{S_B1+1}]")
            if post and J < 2:
                for it in post[4*J:4*J+4]:
                    ld(it)
                    issued.append(it)
            v0_, v1_, v2_, v3_ = vD, vD+4, vD+8, vD+12
            a(f"v_cndmask_b32 v{v0_+1}, v{v0_}, v{v1_}, s[{S_B0}:{S_B0+1}]")
            a(f"v_cndmask_b32 v{v0_+2}, v{v1_}, v{v0_}, s[{S_B0}:{S_B0+1}]")
            a(f"v_cndmask_b32 v{v2_+1}, v{v2_}, v{v3_}, s[{S_B0}:{S_B0+1}]")
            a(f"v_cndmask_b32 v{v2_+2}, v{v3_}, v{v2_}, s[{S_B0}:{S_B0+1}]")
            self.nop(1)
            a(f"v_add_f32_dpp v{v0_}, v{v0_+2}, v{v0_+1} quad_perm:[1,0,3,2] row_mask:0xf bank_mask:0xf")
            a(f"v_add_f32_dpp v{v2_}, v{v2_+2}, v{v2_+1} quad_perm:[1,0,3,2] row_mask:0xf bank_mask:0xf")
            a(f"v_cndmask_b32 v{v0_+1}, v{v0_}, v{v2_}, s[{S_B1}:{S_B1+1}]")
            a(f"v_cndmask_b32 v{v0_+2}, v{v2_}, v{v0_}, s[{S_B1}:{S_B1+1}]")
            self.nop(2)
            a(f"v_add_f32_dpp v{vS+J}, v{v0_+2}, v{v0_+1} quad_perm:[2,3,0,1] row_mask:0xf bank_mask:0xf")
        def rnd():
            for J in range(0, G - 1, 2):
                self.round2(vS+J, vS+J+1, vt0 if J % 4 == 0 else vt1)
            if G % 2:
                self.round1(vS+G-1)
        rnd()
        for J in range(G):
            a(f"v_mul_f32 v{vS+J}, 0x3db504f3, v{vS+J}")
        rnd()
        a(f"v_max3_f32 v{vm}, v{vS}, v{vS+1}, v{vS+2}")
        if G == 4:
            a(f"v_max_f32 v{vm}, v{vm}, v{vS+3}")
        elif G == 5:
            a(f"v_max3_f32 v{vm}, v{vm}, v{vS+3}, v{vS+4}")
        self.allreduce(vm, vt0, "v_max_f32")
        for J in range(G):
            a(f"v_sub_f32 v{vS+J}, v{vS+J}, v{vm}")
        for J in range(G):
            a(f"v_mul_f32 v{vS+J}, 0x3fb8aa3b, v{vS+J}")
        for J in range(G):
            a(f"v_exp_f32 v{vS+J}, v{vS+J}")
        self.nop(1)
        a(f"v_add_f32 v{vl}, v{vS}, v{vS+1}")
        for J in range(2, G):
            a(f"v_add_f32 v{vl}, v{vl}, v{vS+J}")
        for J in range(G):
            a(f"v_cvt_pk_bf16_f32 v{vS+J}, v{vS+J}, v{vS+J}")
        self.nop(1)
        for j in range(nL):
            J, jj = j//4, j % 4
            a(f"v_and_b32_dpp v{XR+2*j}, v{vS+J}, v{vM0} quad_perm:[{jj},{jj},{jj},{jj}] row_mask:0xf bank_mask:0xf")
            a(f"v_and_b32_dpp v{XR+2*j+1}, v{vS+J}, v{vM1} quad_perm:[{jj},{jj},{jj},{jj}] row_mask:0xf bank_mask:0xf")
        self.allreduce(vl, vt0, "v_add_f32")
        a(f"v_bfe_u32 v{vt0}, v0, 2, 2")
        a(f"v_lshlrev_b32 v{vt0}, 6, v{vt0}")
        a(f"s_lshl_b32 s{S_TMP}, s{S_V4}, 3")
        a(f"v_add_u32 v{vt0}, s{S_TMP}, v{vt0}")
        a("s_mov_b64 exec, 0x1111")
        a(f"ds_write_b32 v{vt0}, v{vm} offset:{L_MLW}")
        a(f"ds_write_b32 v{vt0}, v{vl} offset:{L_MLW+4}")
        a("s_mov_b64 exec, -1")
        for j in range(nL):
            wait_for(("V", j))
            v = vreg[j]
            p = (j & 1) if nch == 2 else 0
            d1 = AC + 8*p
            d2 = d1 + 4
            first = j < nch
            c1 = "0" if first else f"v[{d1}:{d1+3}]"
            c2 = "0" if first else f"v[{d2}:{d2+3}]"
            a(f"v_mfma_f32_16x16x16_bf16 v[{d1}:{d1+3}], v[{v}:{v+1}], v[{XR+2*j}:{XR+2*j+1}], {c1}")
            a(f"v_mfma_f32_16x16x16_bf16 v[{d2}:{d2+3}], v[{v+2}:{v+3}], v[{XR+2*j}:{XR+2*j+1}], {c2}")
        self.nop(8)
        if nch == 2:
            for r in range(8):
                a(f"v_add_f32 v{AC+r}, v{AC+r}, v{AC+8+r}")
        self.stamp(15, 8, [(15, False), (0, True)])
        a(f"s_lshl_b32 s{S_TMP}, s{S_V4}, 11")
        a(f"v_lshlrev_b32 v{vt0}, 4, v0")
        a(f"v_add_u32 v{vt0}, s{S_TMP}, v{vt0}")
        a(f"ds_write_b128 v{vt0}, v[{AC}:{AC+3}] offset:{L_OW}")
        a(f"ds_write_b128 v{vt0}, v[{AC+4}:{AC+7}] offset:{L_OW+1024}")
        a("s_waitcnt lgkmcnt(0)")
        a(f"v_mov_b32 v{vt1}, {L_CNT + 12}")
        a(f"v_mov_b32 v{vt2}, 1")
        a("s_mov_b64 exec, 1")
        a(f"ds_add_u32 v{vt1}, v{vt2}")
        a("s_mov_b64 exec, -1")
        a(f"s_cmp_ge_u32 s{S_V4}, 2")
        a("s_cbranch_scc1 L_kv_pf" if self.pf else "s_cbranch_scc1 L_end")
        if not last:
            a("s_branch L_kv_comb")
            return
        a("L_kv_comb:")
        self.lds_wait(3, 8, vt0, vt1, sleep=False)
        OW = 104
        MLr = 136
        a(f"s_lshl_b32 s{S_TMP}, s{S_V4}, 10")
        a(f"v_lshlrev_b32 v{vt0}, 4, v0")
        a(f"v_add_u32 v{vt0}, s{S_TMP}, v{vt0}")
        a(f"v_bfe_u32 v{vt1}, v0, 2, 2")
        a(f"v_lshlrev_b32 v{vt1}, 6, v{vt1}")
        for i in range(4):
            a(f"ds_read_b128 v[{MLr+4*i}:{MLr+4*i+3}], v{vt1} offset:{L_MLW+16*i}")
        for w in range(8):
            a(f"ds_read_b128 v[{OW+4*w}:{OW+4*w+3}], v{vt0} offset:{L_OW+2048*w}")
        a("s_waitcnt lgkmcnt(8)")
        a(f"v_max3_f32 v{vm}, v{MLr}, v{MLr+2}, v{MLr+4}")
        a(f"v_max3_f32 v{vm}, v{vm}, v{MLr+6}, v{MLr+8}")
        a(f"v_max3_f32 v{vm}, v{vm}, v{MLr+10}, v{MLr+12}")
        a(f"v_max_f32 v{vm}, v{vm}, v{MLr+14}")
        for w in range(8):
            a(f"v_sub_f32 v{MLr+2*w}, v{MLr+2*w}, v{vm}")
        for w in range(8):
            a(f"v_mul_f32 v{MLr+2*w}, 0x3fb8aa3b, v{MLr+2*w}")
        for w in range(8):
            a(f"v_exp_f32 v{MLr+2*w}, v{MLr+2*w}")
        self.nop(1)
        a(f"v_mul_f32 v{vl}, v{MLr}, v{MLr+1}")
        for w in range(1, 8):
            a(f"v_fmac_f32 v{vl}, v{MLr+2*w}, v{MLr+2*w+1}")
        a("s_waitcnt lgkmcnt(0)")
        O = 152
        for r in range(4):
            a(f"v_mul_f32 v{O+r}, v{MLr}, v{OW+r}")
        for w in range(1, 8):
            for r in range(4):
                a(f"v_fmac_f32 v{O+r}, v{MLr+2*w}, v{OW+4*w+r}")
        for r in range(4):
            self.tag32(O+r, vT)
        a(f"s_lshl_b32 s{S_TMP}, s{S_BK}, 3")
        a(f"s_add_u32 s{S_TMP}, s{S_TMP}, s{S_SP}")
        a(f"s_lshl_b32 s{S_TMP}, s{S_TMP}, 11")
        a(f"s_add_u32 s{S_TMP}, s{S_TMP}, {WS_OPP}")
        if self.xls:
            a(f"buffer_store_dwordx4 v[{O}:{O+3}], v{vt0}, s[{S_WS}:{S_WS+3}], s{S_TMP} offen")
        a(f"buffer_store_dwordx4 v[{O}:{O+3}], v{vt0}, s[{S_WS}:{S_WS+3}], s{S_TMP} offen sc1")
        a(f"s_cmp_lg_u32 s{S_V4}, 0")
        a("s_cbranch_scc1 L_kv_sig" if self.t2late == 2 else "s_cbranch_scc1 L_end")
        M4 = O + 4
        a(f"v_or_b32 v{M4}, v{vm}, v{vT}")
        a(f"v_and_or_b32 v{M4+1}, v{vl}, s{S_HI16}, v{vT}")
        a(f"v_lshl_or_b32 v{M4+2}, v{vl}, 16, v{vT}")
        a(f"v_mov_b32 v{M4+3}, v{vT}")
        a(f"v_lshlrev_b32 v{vt1}, 1, v{vt1}")
        a(f"s_lshl_b32 s{S_TMP}, s{S_BK}, 9")
        a(f"s_lshl_b32 s{S_TMP2}, s{S_SP}, 4")
        a(f"s_add_u32 s{S_TMP}, s{S_TMP}, s{S_TMP2}")
        a(f"s_add_u32 s{S_TMP}, s{S_TMP}, {WS_ML}")
        a("s_mov_b64 exec, 0x1111")
        if self.xls:
            a(f"buffer_store_dwordx4 v[{M4}:{M4+3}], v{vt1}, s[{S_WS}:{S_WS+3}], s{S_TMP} offen")
        a(f"buffer_store_dwordx4 v[{M4}:{M4+3}], v{vt1}, s[{S_WS}:{S_WS+3}], s{S_TMP} offen sc1")
        a("s_mov_b64 exec, -1")
        self.stamp(9, 8)
        if self.t2late == 2:
            a("L_kv_sig:")
            a(f"v_mov_b32 v{vt1}, {L_CNT + 20}")
            a(f"v_mov_b32 v{vt2}, 1")
            a("s_mov_b64 exec, 1")
            a(f"ds_add_u32 v{vt1}, v{vt2}")
            a("s_waitcnt lgkmcnt(0)")
        a("s_endpgm")
        if self.pf:
            a("L_kv_pf:")
            a(f"s_cmp_lt_u32 s{S_V4}, 4")
            a("s_cbranch_scc1 L_end")
            a(f"s_cmp_lt_u32 s2, {T2_0}")
            a("s_cbranch_scc1 L_end")
            a(f"s_cmp_ge_u32 s2, {T2_0+T2_N}")
            a("s_cbranch_scc1 L_end")
            self.srd(S_WG, 76, 512*1792*2)
            self.srd(S_WU, 78, 512*1792*2)
            ST = 100
            a(f"s_sub_u32 s{S_TMP}, s2, {T2_0}")
            a(f"s_and_b32 s{ST}, s{S_TMP}, 7")
            a(f"s_mul_i32 s{ST}, s{ST}, 7")
            a(f"s_lshr_b32 s{S_TMP}, s{S_TMP}, 3")
            a(f"s_add_u32 s{ST}, s{ST}, s{S_TMP}")
            a(f"s_sub_u32 s{S_V4}, s{S_V4}, 4")
            a(f"v_lshrrev_b32 v{vt0}, 2, v0")
            a(f"v_mul_u32_u24 v{vt0}, 3584, v{vt0}")
            a(f"v_and_b32 v{vt1}, 3, v0")
            a(f"v_lshl_add_u32 v{vt0}, v{vt1}, 4, v{vt0}")
            a(f"s_mul_i32 s{S_TMP}, s{S_V4}, {128*3584}")
            a(f"s_lshl_b32 s{S_TMP2}, s{ST}, 6")
            a(f"s_add_u32 s{S_TMP}, s{S_TMP}, s{S_TMP2}")
            for j in range(8):
                a(f"buffer_load_dwordx4 v[{40+8*j}:{43+8*j}], v{vt0}, s[{S_WG}:{S_WG+3}], s{S_TMP} offen")
                a(f"buffer_load_dwordx4 v[{44+8*j}:{47+8*j}], v{vt0}, s[{S_WU}:{S_WU+3}], s{S_TMP} offen")
                if j < 7:
                    a(f"s_add_u32 s{S_TMP}, s{S_TMP}, {16*3584}")
            if self.pf >= 2:
                a(f"v_lshlrev_b32 v{vt0}, 4, v0")
                a(f"s_lshl_b32 s{S_TMP}, s{ST}, 15")
                a(f"s_lshl_b32 s{S_TMP2}, s{S_V4}, 13")
                a(f"s_add_u32 s{S_TMP}, s{S_TMP}, s{S_TMP2}")
                for j in range(8):
                    a(f"buffer_load_dwordx4 v[{104+4*j}:{107+4*j}], v{vt0}, s[{S_WD}:{S_WD+3}], s{S_TMP} offen")
                    if j < 7:
                        a(f"s_add_u32 s{S_TMP}, s{S_TMP}, 1024")
            a("s_waitcnt vmcnt(0)")
            a("s_endpgm")

    def svc(self):
        a = self.a
        vT, vM0, vM1, vMe, vG, vB, vU = 1, 2, 3, 4, 5, 6, 7
        vA, vO, vt0, vt1, vt2, vt3 = 8, 9, 10, 11, 12, 13
        vC16 = 14
        vL16 = 15
        W0 = 16
        WA = 40
        WB = 56
        WC = 72
        SC = WC + 32
        if self.prio:
            a(f"s_setprio {self.prio}")
        self.srd(S_WQ, 70, 512*4096*2)
        self.srd(S_WO, 72, 512*4096*2)
        self.srd(S_WM, 84, 512*3072*2)
        self.srd(S_WG, 76, 512*1792*2)
        self.srd(S_WU, 78, 512*1792*2)
        self.srd(S_WD, 80, 512*1792*2)
        self.srd(S_X, 64, 4096)
        self.srd(S_C, 82, 4096)
        self.srd(S_OUT, 86, 4096)
        v = S_WID
        a(f"v_lshrrev_b32 v{vG}, 4, v0")
        a(f"v_bfe_u32 v{vB}, v0, 2, 2")
        a(f"v_and_b32 v{vU}, 3, v0")
        a(f"v_and_b32 v{vC16}, 15, v0")
        a(f"v_lshlrev_b32 v{vC16}, 4, v{vC16}")
        a(f"v_lshlrev_b32 v{vL16}, 4, v0")
        a(f"v_mov_b32 v{vt0}, 0")
        a(f"v_lshlrev_b32 v{vt1}, 2, v0")
        a(f"s_cmp_lg_u32 s{v}, 0")
        a("s_cbranch_scc1 L_s_nz")
        a("s_mov_b64 exec, 0xffff")
        a(f"ds_write_b32 v{vt1}, v{vt0} offset:{L_CNT}")
        a("s_mov_b64 exec, -1")
        a("L_s_nz:")

        def t1_loads():
            SROW = 101
            a(f"s_lshr_b32 s{S_TMP}, {self.SP2}, 3")
            a(f"s_lshl_b32 s{SROW}, s{S_TMP}, 7")
            a(f"s_bfe_u32 s{S_TMP}, {self.SP2}, 0x10002")
            a(f"s_lshl_b32 s{S_TMP}, s{S_TMP}, 6")
            a(f"s_add_u32 s{SROW}, s{SROW}, s{S_TMP}")
            a(f"s_lshr_b32 s{S_TMP}, s{v}, 1")
            a(f"s_lshl_b32 s{S_TMP}, s{S_TMP}, 5")
            a(f"s_add_u32 s{SROW}, s{SROW}, s{S_TMP}")
            a(f"s_and_b32 s{S_TMP}, s{v}, 1")
            a(f"s_lshl_b32 s{S_TMP}, s{S_TMP}, 2")
            a(f"s_add_u32 s{SROW}, s{SROW}, s{S_TMP}")
            a(f"s_lshl_b32 s{S_TMP}, s{SROW}, 10")
            a(f"s_and_b32 s{S_TMP2}, {self.SP2}, 3")
            a(f"s_lshl_b32 s{S_TMP2}, s{S_TMP2}, 8")
            a(f"s_add_u32 s{S_TMP}, s{S_TMP}, s{S_TMP2}")
            a(f"v_lshl_add_u32 v{vt0}, v{vG}, 10, v{vC16}")
            for j in range(4):
                a(f"buffer_load_dwordx4 v[{WB+4*j}:{WB+4*j+3}], v{vt0}, s[{S_WO}:{S_WO+3}], s{S_TMP} offen nt")
                if j < 3:
                    a(f"s_add_u32 s{S_TMP}, s{S_TMP}, 8192")

        a(f"s_cmp_ge_u32 s2, {NFRONT}")
        a("s_cbranch_scc1 L_s_nf")
        SK0 = S_R
        a(f"s_and_b32 s{SK0}, s2, 7")
        a(f"s_lshl_b32 s{SK0}, s{SK0}, 6")
        a(f"s_cmp_ge_u32 s2, {F1A_N}")
        a("s_cbranch_scc1 L_s_nof1a")
        CC = W0
        a(f"s_lshl_b32 s{S_TMP}, s{v}, 4")
        a(f"s_add_u32 s{S_TMP}, s{S_TMP}, s{SK0}")
        a(f"v_lshlrev_b32 v{vt0}, 10, v{vB}")
        a(f"v_lshl_add_u32 v{vt0}, v{vG}, 3, v{vt0}")
        a(f"s_lshl_b32 s{S_TMP2}, s{S_TMP}, 1")
        a(f"buffer_load_dwordx2 v[{CC}:{CC+1}], v{vt0}, s[{S_C}:{S_C+3}], s{S_TMP2} offen")
        a(f"v_mul_u32_u24 v{vt0}, {4*6144}, v{vG}")
        a(f"v_add_u32 v{vt0}, v{vt0}, v{vC16}")
        a(f"s_mul_i32 s{S_TMP}, s{S_TMP}, 6144")
        a(f"s_lshr_b32 s{S_TMP2}, s2, 3")
        a(f"s_lshl_b32 s{S_TMP2}, s{S_TMP2}, 8")
        a(f"s_add_u32 s{S_TMP}, s{S_TMP}, s{S_TMP2}")
        for j in range(4):
            a(f"buffer_load_dwordx4 v[{WC+4*j}:{WC+4*j+3}], v{vt0}, s[{S_WM}:{S_WM+3}], s{S_TMP} offen nt")
            if j < 3:
                a(f"s_add_u32 s{S_TMP}, s{S_TMP}, 6144")
        a("L_s_nof1a:")
        XS = SC
        XO = W0 + 4
        a(f"v_lshlrev_b32 v{vt0}, 10, v{vB}")
        a(f"v_lshl_add_u32 v{vt0}, v{vG}, 8, v{vt0}")
        a(f"v_lshl_add_u32 v{vt0}, v{vU}, 6, v{vt0}")
        for i in range(4):
            a(f"buffer_load_dwordx4 v[{XS+4*i}:{XS+4*i+3}], v{vt0}, s[{S_X}:{S_X+3}], 0 offen offset:{16*i}")
        SRB0 = 97
        a(f"s_lshr_b32 s{S_TMP}, s{v}, 1")
        a(f"s_lshl_b32 s{S_TMP}, s{S_TMP}, 5")
        a(f"s_add_u32 s{SRB0}, s{SK0}, s{S_TMP}")
        a(f"s_and_b32 s{S_TMP}, s{v}, 1")
        a(f"s_lshl_b32 s{S_TMP}, s{S_TMP}, 2")
        a(f"s_add_u32 s{SRB0}, s{SRB0}, s{S_TMP}")
        a(f"v_lshlrev_b32 v{vt0}, 10, v{vB}")
        a(f"v_lshl_add_u32 v{vt0}, v{vG}, 1, v{vt0}")
        a(f"s_lshl_b32 s{S_TMP}, s{SRB0}, 1")
        for j in range(4):
            a(f"buffer_load_ushort v{XO+j}, v{vt0}, s[{S_X}:{S_X+3}], s{S_TMP} offen offset:{16*j}")
        a(f"v_lshl_add_u32 v{vt0}, v{vG}, 13, v{vC16}")
        a(f"s_lshl_b32 s{S_TMP}, s{SRB0}, 13")
        a(f"s_lshr_b32 s{S_TMP2}, s2, 3")
        a(f"s_lshl_b32 s{S_TMP2}, s{S_TMP2}, 9")
        a(f"s_add_u32 s{S_TMP}, s{S_TMP}, s{S_TMP2}")
        for j in range(4):
            a(f"buffer_load_dwordx4 v[{WA+4*j}:{WA+4*j+3}], v{vt0}, s[{S_WQ}:{S_WQ+3}], s{S_TMP} offen nt")
            a(f"buffer_load_dwordx4 v[{WB+4*j}:{WB+4*j+3}], v{vt0}, s[{S_WQ}:{S_WQ+3}], s{S_TMP} offen offset:256 nt")
            if j < 3:
                a(f"s_add_u32 s{S_TMP}, s{S_TMP}, {8*8192}")
        a("s_waitcnt lgkmcnt(0)")
        a("s_barrier")
        self.masks(vM0, vM1, vt0)
        self.get_tag(vT)
        self.stamp(0, W0+8, [])
        a(f"s_cmp_ge_u32 s2, {F1A_N}")
        a("s_cbranch_scc1 L_s_nof1b")
        DU = W0 + 8
        BB = W0 + 12
        a("s_waitcnt vmcnt(20)")
        for i in range(2):
            a(f"v_lshlrev_b32 v{DU+2*i}, 16, v{CC+i}")
            a(f"v_and_b32 v{DU+2*i+1}, s{S_HI16}, v{CC+i}")
        for i in range(4):
            a(f"v_mul_f32 v{BB+i}, 0xbfb8aa3b, v{DU+i}")
        for i in range(4):
            a(f"v_exp_f32 v{BB+i}, v{BB+i}")
        self.nop(1)
        for i in range(4):
            a(f"v_add_f32 v{BB+i}, 1.0, v{BB+i}")
        for i in range(4):
            a(f"v_rcp_f32 v{BB+i}, v{BB+i}")
        self.nop(1)
        for i in range(4):
            a(f"v_mul_f32 v{DU+i}, v{DU+i}, v{BB+i}")
        for i in range(4):
            a(f"v_cvt_pk_bf16_f32 v{DU+i}, v{DU+i}, v{DU+i}")
        XB = W0 + 12
        D1, D2 = WC+16, WC+20
        self.gemv_x_build(DU, 4, XB, vM0, vM1)
        a("s_waitcnt vmcnt(16)")
        self.gemv_mfma(WC, 4, XB, D1, D2)
        self.nop(8)

        def modp_addr():
            a(f"s_and_b32 s{S_TMP}, s2, 7")
            a(f"s_lshl_b32 s{S_TMP}, s{S_TMP}, 3")
            a(f"s_lshr_b32 s{S_TMP2}, s2, 3")
            a(f"s_add_u32 s{S_TMP}, s{S_TMP}, s{S_TMP2}")
            a(f"s_lshl_b32 s{S_TMP}, s{S_TMP}, 11")
            a(f"s_add_u32 s{S_TMP}, s{S_TMP}, {WS_MODP}")
        self.cu_reduce([(D1, D2)], 0, L_OW, modp_addr, vt0, vt1, vT, vL16, WC)
        self.stamp(1, W0+8, [])
        a("L_s_nof1b:")
        XF = SC + 16
        a("s_waitcnt vmcnt(8)")
        for i in range(16):
            a(f"v_lshlrev_b32 v{XF+2*i}, 16, v{XS+i}")
            a(f"v_and_b32 v{XF+2*i+1}, s{S_HI16}, v{XS+i}")
        vMean, vVar = W0, W0+1
        Y = W0 + 8
        self.ln_sum(XF, 32, vMean, vt0)
        self.allreduce(vMean, vt0, "v_add_f32")
        a(f"v_mul_f32 v{vMean}, 0x3b000000, v{vMean}")
        for i in range(32):
            a(f"v_sub_f32 v{XF+i}, v{XF+i}, v{vMean}")
        a(f"v_mul_f32 v{vVar}, v{XF}, v{XF}")
        a(f"v_mul_f32 v{vt0}, v{XF+1}, v{XF+1}")
        for i in range(2, 32, 2):
            a(f"v_fmac_f32 v{vVar}, v{XF+i}, v{XF+i}")
            a(f"v_fmac_f32 v{vt0}, v{XF+i+1}, v{XF+i+1}")
        a(f"v_add_f32 v{vVar}, v{vVar}, v{vt0}")
        self.allreduce(vVar, vt0, "v_add_f32")
        a(f"v_mul_f32 v{vVar}, 0x3b000000, v{vVar}")
        self.ln_fin(vMean, vVar, vt0)
        for j in range(4):
            a(f"v_lshlrev_b32 v{Y+j}, 16, v{XO+j}")
        self.ln_norm(Y, 4, vMean, vVar, vt0, vt1)
        P0 = WC
        a(f"v_lshlrev_b32 v{vt2}, 14, v{vU}")
        a(f"v_lshl_add_u32 v{vt2}, v{vB}, 6, v{vt2}")
        a(f"v_lshl_add_u32 v{vt2}, v{vG}, 4, v{vt2}")
        a(f"s_bfe_u32 s{S_TMP}, s2, 0x20001")
        a(f"s_lshl_b32 s{S_SO}, s{S_TMP}, 11")
        a(f"s_and_b32 s{S_TMP}, s{v}, 1")
        a(f"s_lshl_b32 s{S_TMP}, s{S_TMP}, 10")
        a(f"s_add_u32 s{S_SO}, s{S_SO}, s{S_TMP}")
        a(f"s_and_b32 s{S_TMP}, s2, 1")
        a(f"s_lshl_b32 s{S_TMP}, s{S_TMP}, 1")
        a(f"s_lshr_b32 s{S_TMP2}, s{v}, 1")
        a(f"s_add_u32 s{S_TMP}, s{S_TMP}, s{S_TMP2}")
        a(f"s_lshl_b32 s{S_TMP}, s{S_TMP}, 8")
        a(f"s_add_u32 s{S_SO}, s{S_SO}, s{S_TMP}")
        a(f"s_add_u32 s{S_SO}, s{S_SO}, {WS_MODP}")
        a(f"s_add_u32 s97, s{S_SO}, {4*8*2048}")
        a(f"s_add_u32 s98, s{S_SO}, {4*2048}")
        a(f"s_add_u32 s99, s{S_SO}, {4*8*2048 + 4*2048}")

        def iss():
            for q, sreg in enumerate([S_SO, 97, 98, 99]):
                a(f"buffer_load_dwordx4 v[{P0+4*q}:{P0+4*q+3}], v{vt2}, s[{S_WS}:{S_WS+3}], s{sreg} offen sc1")
        self.poll(iss, list(range(P0, P0+16)), vA, vO, vT)
        self.stamp(2, W0+20, [])
        SA, CA = P0, P0+8
        for r in range(4):
            a(f"v_add_f32 v{SA+r}, v{SA+r}, v{SA+4+r}")
            a(f"v_add_f32 v{CA+r}, v{CA+r}, v{CA+4+r}")
        xs = [SA+r for r in range(4)] + [CA+r for r in range(4)]
        self.nop(1)
        for x in xs:
            a(f"v_add_f32_dpp v{x}, v{x}, v{x} quad_perm:[1,0,3,2] row_mask:0xf bank_mask:0xf")
        for x in xs:
            a(f"v_add_f32_dpp v{x}, v{x}, v{x} quad_perm:[2,3,0,1] row_mask:0xf bank_mask:0xf")
        self.round2(SA, SA+1, vt0)
        self.round2(SA+2, SA+3, vt1)
        self.round2(CA, CA+1, vt0)
        self.round2(CA+2, CA+3, vt1)
        self.modulate(Y, 4, SA, CA, vt0, vt1, clean=True)
        XB = W0 + 12
        D1, D2, D3, D4 = W0, W0+4, WC+16, WC+20
        self.gemv_x_build(Y, 4, XB, vM0, vM1)
        self.nop(2)
        self.gemv_mfma(WA, 4, XB, D1, D2)
        self.gemv_mfma(WB, 4, XB, D3, D4)
        self.nop(8)

        def qp_addr():
            a(f"s_and_b32 s{S_TMP}, s2, 7")
            a(f"s_lshl_b32 s{S_TMP}, s{S_TMP}, 5")
            a(f"s_lshr_b32 s{S_TMP2}, s2, 3")
            a(f"s_lshl_b32 s{S_TMP2}, s{S_TMP2}, 1")
            a(f"s_add_u32 s{S_TMP}, s{S_TMP}, s{S_TMP2}")
            a(f"s_lshr_b32 s{S_TMP2}, s{v}, 1")
            a(f"s_add_u32 s{S_TMP}, s{S_TMP}, s{S_TMP2}")
            a(f"s_lshl_b32 s{S_TMP}, s{S_TMP}, 11")
            a(f"s_add_u32 s{S_TMP}, s{S_TMP}, {WS_QP}")
        self.cu_reduce([(D1, D2), (D3, D4)], 1, L_RP, qp_addr, vt0, vt1, vT, vL16, WC+24)
        a(f"v_mov_b32 v{vt0}, {L_CNT+16}")
        a(f"v_mov_b32 v{vt1}, 1")
        a("s_mov_b64 exec, 1")
        a(f"ds_add_u32 v{vt0}, v{vt1}")
        a("s_mov_b64 exec, -1")
        self.stamp(3, W0+20)
        a("s_branch L_s_join")
        STILE = 100
        vCc = W0

        def t2_wloads():
            a(f"s_sub_u32 s{S_TMP}, s2, {T2_0}")
            a(f"s_and_b32 s{STILE}, s{S_TMP}, 7")
            a(f"s_mul_i32 s{STILE}, s{STILE}, 7")
            a(f"s_lshr_b32 s{S_TMP}, s{S_TMP}, 3")
            a(f"s_add_u32 s{STILE}, s{STILE}, s{S_TMP}")
            a(f"v_mul_u32_u24 v{vt0}, {32*3584}, v{vG}")
            a(f"v_and_b32 v{vt1}, 15, v0")
            a(f"v_lshl_add_u32 v{vt0}, v{vt1}, 2, v{vt0}")
            a(f"s_mul_i32 s{S_TMP}, s{v}, {128*3584}")
            a(f"s_lshl_b32 s{S_TMP2}, s{STILE}, 6")
            a(f"s_add_u32 s{S_TMP}, s{S_TMP}, s{S_TMP2}")
            for t in range(32):
                a(f"buffer_load_dword v{WC+t}, v{vt0}, s[{S_WG}:{S_WG+3}], s{S_TMP} offen nt")
                a(f"buffer_load_dword v{WC+32+t}, v{vt0}, s[{S_WU}:{S_WU+3}], s{S_TMP} offen nt")
                if t < 31:
                    a(f"s_add_u32 s{S_TMP}, s{S_TMP}, 3584")

        def f1b_loads():
            a(f"s_sub_u32 s{S_TMP}, s2, {F1B_0}")
            a(f"s_and_b32 s{STILE}, s{S_TMP}, 7")
            a(f"s_lshl_b32 s{STILE}, s{STILE}, 3")
            a(f"s_lshr_b32 s{S_TMP}, s{S_TMP}, 3")
            a(f"s_add_u32 s{STILE}, s{STILE}, s{S_TMP}")
            a(f"s_add_u32 s{STILE}, s{STILE}, 32")
            a(f"v_lshlrev_b32 v{vt0}, 10, v{vB}")
            a(f"v_lshl_add_u32 v{vt0}, v{vG}, 6, v{vt0}")
            a(f"v_lshl_add_u32 v{vt0}, v{vU}, 4, v{vt0}")
            a(f"s_lshl_b32 s{S_TMP}, s{v}, 8")
            a(f"buffer_load_dwordx4 v[{vCc}:{vCc+3}], v{vt0}, s[{S_C}:{S_C+3}], s{S_TMP} offen")
            a(f"v_mul_u32_u24 v{vt0}, {32*6144}, v{vG}")
            a(f"v_and_b32 v{vt1}, 15, v0")
            a(f"v_lshl_add_u32 v{vt0}, v{vt1}, 2, v{vt0}")
            a(f"s_mul_i32 s{S_TMP}, s{v}, {128*6144}")
            a(f"s_lshl_b32 s{S_TMP2}, s{STILE}, 6")
            a(f"s_add_u32 s{S_TMP}, s{S_TMP}, s{S_TMP2}")
            for t in range(32):
                a(f"buffer_load_dword v{WC+t}, v{vt0}, s[{S_WM}:{S_WM+3}], s{S_TMP} offen nt")
                if t < 31:
                    a(f"s_add_u32 s{S_TMP}, s{S_TMP}, 6144")

        def f1b_compute():
            DU = W0 + 8
            BB = W0 + 16
            ACC = W0
            a("s_waitcnt vmcnt(32)")
            for i in range(4):
                a(f"v_lshlrev_b32 v{DU+2*i}, 16, v{vCc+i}")
                a(f"v_and_b32 v{DU+2*i+1}, s{S_HI16}, v{vCc+i}")
            for i in range(8):
                a(f"v_mul_f32 v{BB+i}, 0xbfb8aa3b, v{DU+i}")
            for i in range(8):
                a(f"v_exp_f32 v{BB+i}, v{BB+i}")
            self.nop(1)
            for i in range(8):
                a(f"v_add_f32 v{BB+i}, 1.0, v{BB+i}")
            for i in range(8):
                a(f"v_rcp_f32 v{BB+i}, v{BB+i}")
            self.nop(1)
            for i in range(8):
                a(f"v_mul_f32 v{DU+i}, v{DU+i}, v{BB+i}")
            for i in range(8):
                a(f"v_cvt_pk_bf16_f32 v{DU+i}, v{DU+i}, v{DU+i}")
            self.nop(1)
            for T in range(8):
                us = T//2
                bb = BB + 4*(T & 1)
                for j in range(4):
                    a(f"v_and_b32_dpp v{bb+j}, v{DU+4*(T%2)+j}, v{vMe} quad_perm:[{us},{us},{us},{us}] row_mask:0xf bank_mask:0xf")
                a(f"s_waitcnt vmcnt({28 - 4*T})")
                self.nop(1)
                c = "0" if T == 0 else f"v[{ACC}:{ACC+3}]"
                a(f"v_mfma_f32_16x16x32_bf16 v[{ACC}:{ACC+3}], v[{WC+4*T}:{WC+4*T+3}], v[{bb}:{bb+3}], {c}")
            self.nop(8)
            a(f"s_lshl_b32 s{S_TMP}, s{v}, 10")
            a(f"v_add_u32 v{vt0}, s{S_TMP}, v{vL16}")
            a(f"ds_write_b128 v{vt0}, v[{ACC}:{ACC+3}] offset:{L_F1P}")
            self.lds_bar(0, 4, vt0, vt1)
            a(f"s_lshl_b32 s{S_TMP}, s{v}, 2")
            a(f"v_add_u32 v{vt0}, s{S_TMP}, v{vL16}")
            for i in range(4):
                a(f"ds_read_b32 v{DU+i}, v{vt0} offset:{L_F1P+1024*i}")
            a("s_waitcnt lgkmcnt(0)")
            a(f"v_add_f32 v{DU}, v{DU}, v{DU+1}")
            a(f"v_add_f32 v{DU+2}, v{DU+2}, v{DU+3}")
            a(f"v_add_f32 v{DU}, v{DU}, v{DU+2}")
            a(f"v_cvt_pk_bf16_f32 v{DU}, v{DU}, v{DU}")
            a(f"v_lshl_or_b32 v{DU}, v{DU}, 16, v{vT}")
            a(f"v_mul_u32_u24 v{vt0}, {3072*4}, v{vB}")
            a(f"v_lshl_add_u32 v{vt0}, v{vG}, 5, v{vt0}")
            a(f"v_and_b32 v{vt1}, 1, v0")
            a(f"v_lshl_add_u32 v{vt0}, v{vt1}, 2, v{vt0}")
            a(f"s_lshl_b32 s{S_TMP}, s{STILE}, 7")
            a(f"s_lshl_b32 s{S_TMP2}, s{v}, 3")
            a(f"s_add_u32 s{S_TMP}, s{S_TMP}, s{S_TMP2}")
            a(f"s_add_u32 s{S_TMP}, s{S_TMP}, {WS_MOD}")
            a("s_mov_b32 exec_lo, 0x33333333")
            a("s_mov_b32 exec_hi, 0x33333333")
            a(f"buffer_store_dword v{DU}, v{vt0}, s[{S_WS}:{S_WS+3}], s{S_TMP} offen sc1")
            a("s_mov_b64 exec, -1")

        a("L_s_nf:")
        if self.wearly:
            t1_loads()
            a(f"s_cmp_ge_u32 s2, {F1B_0}")
            a("s_cbranch_scc1 L_s_nf1b")
            t2_wloads()
            a("s_branch L_s_nf1c")
            a("L_s_nf1b:")
            a(f"s_cmp_ge_u32 s2, {F1B_0 + F1B_N}")
            a("s_cbranch_scc1 L_s_nf1c")
            f1b_loads()
            a("L_s_nf1c:")
        a("s_waitcnt lgkmcnt(0)")
        a("s_barrier")
        self.get_tag(vT)
        self.masks(vM0, vM1, vt0)
        self.masks(vMe, None, vt0, four=False)
        self.stamp(0, W0+8, [])
        if self.wearly:
            a(f"s_cmp_lt_u32 s2, {F1B_0}")
            a("s_cbranch_scc1 L_s_join")
            a(f"s_cmp_ge_u32 s2, {F1B_0 + F1B_N}")
            a("s_cbranch_scc1 L_s_join")
            f1b_compute()
        a("L_s_join:")
        QD = W0
        a(f"v_lshrrev_b32 v{vt2}, 5, v0")
        a(f"v_lshlrev_b32 v{vt2}, 16, v{vt2}")
        a(f"v_bfe_u32 v{vt3}, v0, 4, 1")
        a(f"v_lshl_add_u32 v{vt2}, v{vt3}, 10, v{vt2}")
        a(f"v_lshl_add_u32 v{vt2}, v{vB}, 8, v{vt2}")
        a(f"v_lshl_add_u32 v{vt2}, v{vU}, 4, v{vt2}")
        if self.xl > 0:
            a(f"s_and_b32 s{S_TMP}, s2, 7")
        else:
            a(f"s_bfe_u32 s{S_TMP}, s2, 0x20003")
            a(f"s_and_b32 s{S_TMP2}, s2, 1")
            a(f"s_lshl_b32 s{S_TMP2}, s{S_TMP2}, 2")
            a(f"s_add_u32 s{S_TMP}, s{S_TMP}, s{S_TMP2}")
        a(f"s_lshl_b32 s{S_TMP}, s{S_TMP}, 2")
        a(f"s_add_u32 s{S_TMP}, s{S_TMP}, s{v}")
        a(f"s_lshl_b32 s{S_TMP}, s{S_TMP}, 11")
        a(f"s_bfe_u32 s{S_TMP2}, s2, {'0x20003' if self.xl > 0 else '0x20001'}")
        a(f"s_lshl_b32 s{S_TMP2}, s{S_TMP2}, 6")
        a(f"s_add_u32 s{S_TMP}, s{S_TMP}, s{S_TMP2}")
        a(f"s_add_u32 s{S_SO}, s{S_TMP}, {WS_QP}")
        a(f"s_add_u32 s97, s{S_SO}, {1 << 17}")
        a(f"s_add_u32 s98, s{S_SO}, {2 << 17}")
        a(f"s_add_u32 s99, s{S_SO}, {3 << 17}")

        def iss():
            for q, sreg in enumerate([S_SO, 97, 98, 99]):
                a(f"buffer_load_dwordx4 v[{QD+4*q}:{QD+4*q+3}], v{vt2}, s[{S_WS}:{S_WS+3}], s{sreg} offen sc1")
        self.poll(iss, list(range(QD, QD+16)), vA, vO, vT)
        for r in range(4):
            a(f"v_add_f32 v{QD+r}, v{QD+r}, v{QD+4+r}")
            a(f"v_add_f32 v{QD+8+r}, v{QD+8+r}, v{QD+12+r}")
        for r in range(4):
            a(f"v_add_f32 v{QD+r}, v{QD+r}, v{QD+8+r}")
        self.nop(2)
        a(f"v_permlane32_swap_b32 v{QD}, v{QD+2}")
        a(f"v_permlane32_swap_b32 v{QD+1}, v{QD+3}")
        a(f"v_add_f32 v{QD}, v{QD}, v{QD+2}")
        a(f"v_add_f32 v{QD+1}, v{QD+1}, v{QD+3}")
        a(f"v_cvt_pk_bf16_f32 v{QD}, v{QD}, v{QD+1}")
        a(f"v_lshlrev_b32 v{vt0}, 6, v{vB}")
        a(f"v_lshrrev_b32 v{vt1}, 5, v0")
        a(f"v_lshl_add_u32 v{vt0}, v{vt1}, 5, v{vt0}")
        a(f"v_lshl_add_u32 v{vt0}, v{vt3}, 3, v{vt0}")
        a(f"v_lshl_add_u32 v{vt0}, v{vU}, 1, v{vt0}")
        a(f"s_lshl_b32 s{S_TMP}, s{v}, 8")
        a(f"v_add_u32 v{vt0}, s{S_TMP}, v{vt0}")
        a(f"ds_write_b16 v{vt0}, v{QD} offset:{L_QL}")
        a(f"ds_write_b16_d16_hi v{vt0}, v{QD} offset:{L_QL+16}")
        a("s_waitcnt lgkmcnt(0)")
        a(f"v_mov_b32 v{vt0}, {L_CNT+8}")
        a(f"v_mov_b32 v{vt1}, 1")
        a("s_mov_b64 exec, 1")
        a(f"ds_add_u32 v{vt0}, v{vt1}")
        a("s_mov_b64 exec, -1")
        self.stamp(4, W0+20)
        SBC = WA
        if self.wearly:
            a(f"s_cmp_ge_u32 s2, {NFRONT}")
            a("s_cbranch_scc1 L_s_prep_done")
            t1_loads()
        else:
            t1_loads()
            a(f"s_cmp_lt_u32 s2, {NFRONT}")
            a("s_cbranch_scc1 L_s_prep_done")
            a(f"s_cmp_ge_u32 s2, {F1B_0}")
            a("s_cbranch_scc1 L_s_nf1b")
            if not self.t2late:
                t2_wloads()
            a("s_branch L_s_prep_done")
            a("L_s_nf1b:")
            a(f"s_cmp_ge_u32 s2, {F1B_0 + F1B_N}")
            a("s_cbranch_scc1 L_s_prep_done")
            f1b_loads()
            f1b_compute()
        a("L_s_prep_done:")
        OA, OB, MLr = W0, W0+4, W0+8
        a(f"v_lshlrev_b32 v{vt2}, 17, v{vB}")
        a(f"v_lshl_add_u32 v{vt2}, v{vU}, 11, v{vt2}")
        a(f"v_lshl_add_u32 v{vt2}, v{vG}, 4, v{vt2}")
        a(f"s_lshr_b32 s{S_TMP}, {self.SP2}, 5")
        a(f"s_lshl_b32 s{S_SO}, s{S_TMP}, 14")
        a(f"s_and_b32 s{S_TMP}, s{v}, 1")
        a(f"s_lshl_b32 s{S_TMP}, s{S_TMP}, 10")
        a(f"s_add_u32 s{S_SO}, s{S_SO}, s{S_TMP}")
        a(f"s_bfe_u32 s{S_TMP}, {self.SP2}, 0x10002")
        a(f"s_lshl_b32 s{S_TMP}, s{S_TMP}, 1")
        a(f"s_lshr_b32 s{S_TMP2}, s{v}, 1")
        a(f"s_add_u32 s{S_TMP}, s{S_TMP}, s{S_TMP2}")
        a(f"s_lshl_b32 s{S_TMP}, s{S_TMP}, 8")
        a(f"s_add_u32 s{S_SO}, s{S_SO}, s{S_TMP}")
        a(f"s_bfe_u32 s{S_TMP}, {self.SP2}, 0x20003")
        a(f"s_lshl_b32 s{S_TMP2}, s{S_TMP}, 6")
        a(f"s_add_u32 s{S_SO}, s{S_SO}, s{S_TMP2}")
        a(f"s_add_u32 s{S_SO}, s{S_SO}, {WS_OPP}")
        a(f"s_add_u32 s97, s{S_SO}, 8192")
        a(f"v_lshlrev_b32 v{vt3}, 12, v{vB}")
        a(f"v_lshl_add_u32 v{vt3}, v{vU}, 4, v{vt3}")
        a(f"s_lshr_b32 s98, {self.SP2}, 3")
        a(f"s_lshl_b32 s98, s98, 7")
        a(f"s_add_u32 s98, s98, {WS_ML}")
        self.lds_wait(3, 8, vt0, vt1)
        self.stamp(5, W0+20)
        if self.t2late == 2:
            a(f"s_cmp_lt_u32 s2, {T2_0}")
            a("s_cbranch_scc1 L_s_t2w_done")
            a(f"s_cmp_ge_u32 s2, {T2_0+T2_N}")
            a("s_cbranch_scc1 L_s_t2w_done")
            self.lds_wait(5, 2, vt0, vt1, sleep=False)
            t2_wloads()
            a("L_s_t2w_done:")

        def iss_f(fl):
            a(f"buffer_load_dwordx4 v[{OA}:{OA+3}], v{vt2}, s[{S_WS}:{S_WS+3}], s{S_SO} offen {fl}")
            a(f"buffer_load_dwordx4 v[{OB}:{OB+3}], v{vt2}, s[{S_WS}:{S_WS+3}], s97 offen {fl}")
            a(f"buffer_load_dwordx4 v[{MLr}:{MLr+3}], v{vt3}, s[{S_WS}:{S_WS+3}], s98 offen {fl}")
            a(f"buffer_load_dwordx4 v[{MLr+4}:{MLr+7}], v{vt3}, s[{S_WS}:{S_WS+3}], s98 offen offset:64 {fl}")
        def iss():
            if self.xl <= 1:
                iss_f("sc1")
                return
            a(f"s_and_b32 s{S_TMP}, s{S_IT}, {self.xl-1}")
            a(f"s_cmp_eq_u32 s{S_TMP}, {self.xl-1}")
            a("s_cbranch_scc1 L_xl_far")
            iss_f("sc0")
            a("s_branch L_xl_j")
            a("L_xl_far:")
            iss_f("sc1")
            a("L_xl_j:")
        def iss_o():
            a(f"buffer_load_dwordx4 v[{OA}:{OA+3}], v{vt2}, s[{S_WS}:{S_WS+3}], s{S_SO} offen sc1")
            a(f"buffer_load_dwordx4 v[{OB}:{OB+3}], v{vt2}, s[{S_WS}:{S_WS+3}], s97 offen sc1")

        def iss_m():
            a(f"buffer_load_dwordx4 v[{MLr}:{MLr+3}], v{vt3}, s[{S_WS}:{S_WS+3}], s98 offen sc1")
            a(f"buffer_load_dwordx4 v[{MLr+4}:{MLr+7}], v{vt3}, s[{S_WS}:{S_WS+3}], s98 offen offset:64 sc1")
        if self.gate >= 0:
            self.poll_gated(iss_o, iss_m, range(OA, OA+8), range(MLr, MLr+8), vA, vO, vt0, vt1, vT, self.gate)
        else:
            self.poll3(iss, range(OA, OA+8), range(MLr, MLr+8), vA, vO, vt0, vt1, vT, self.g_opp, self.sl[0])
        self.stamp(6, 8)
        m0, l0, m1, l1 = MLr, MLr+1, MLr+4, MLr+5
        a(f"v_and_b32 v{m0}, s{S_HI16}, v{m0}")
        a(f"v_and_b32 v{m1}, s{S_HI16}, v{m1}")
        a(f"v_lshrrev_b32 v{MLr+2}, 16, v{MLr+2}")
        a(f"v_lshrrev_b32 v{MLr+6}, 16, v{MLr+6}")
        a(f"v_and_or_b32 v{l0}, v{l0}, s{S_HI16}, v{MLr+2}")
        a(f"v_and_or_b32 v{l1}, v{l1}, s{S_HI16}, v{MLr+6}")
        a(f"v_max_f32 v{vt0}, v{m0}, v{m1}")
        self.allreduce(vt0, vt1, "v_max_f32", rows=False)
        a(f"v_sub_f32 v{m0}, v{m0}, v{vt0}")
        a(f"v_sub_f32 v{m1}, v{m1}, v{vt0}")
        a(f"v_mul_f32 v{m0}, 0x3fb8aa3b, v{m0}")
        a(f"v_mul_f32 v{m1}, 0x3fb8aa3b, v{m1}")
        a(f"v_exp_f32 v{m0}, v{m0}")
        a(f"v_exp_f32 v{m1}, v{m1}")
        self.nop(1)
        a(f"v_mul_f32 v{l0}, v{m0}, v{l0}")
        a(f"v_fmac_f32 v{l0}, v{m1}, v{l1}")
        for r in range(4):
            a(f"v_mul_f32 v{OA+r}, v{m0}, v{OA+r}")
        for r in range(4):
            a(f"v_fmac_f32 v{OA+r}, v{m1}, v{OB+r}")
        self.nop(2)
        for x in [l0] + [OA+r for r in range(4)]:
            a(f"v_add_f32_dpp v{x}, v{x}, v{x} quad_perm:[1,0,3,2] row_mask:0xf bank_mask:0xf")
        for x in [l0] + [OA+r for r in range(4)]:
            a(f"v_add_f32_dpp v{x}, v{x}, v{x} quad_perm:[2,3,0,1] row_mask:0xf bank_mask:0xf")
        a(f"v_rcp_f32 v{l0}, v{l0}")
        self.nop(1)
        for r in range(4):
            a(f"v_mul_f32 v{OA+r}, v{OA+r}, v{l0}")
        for r in range(4):
            a(f"v_cvt_pk_bf16_f32 v{OA+r}, v{OA+r}, v{OA+r}")
        D1, D2 = W0+4, W0+8
        XB = WC + 88
        self.gemv_x4(OA, WB, 4, XB, D1, D2, vM0, vM1)

        def ap_addr():
            a(f"s_lshl_b32 s{S_TMP}, {self.SP2}, 11")
            a(f"s_add_u32 s{S_TMP}, s{S_TMP}, {WS_AP}")
        self.cu_reduce([(D1, D2)], None, L_RP, ap_addr, vt0, vt1, vT, vL16, WB)
        self.stamp(7, 8)
        a(f"s_cmp_lt_u32 s2, {T2_0}")
        a("s_cbranch_scc1 L_s_r")
        a(f"s_cmp_ge_u32 s2, {T2_0+T2_N}")
        a("s_cbranch_scc1 L_end")
        if self.t2late == 1:
            t2_wloads()
        a(f"v_lshl_add_u32 v{vt0}, v{vG}, 13, v{vC16}")
        a(f"s_lshl_b32 s{S_TMP}, s{STILE}, 15")
        a(f"s_lshl_b32 s{S_TMP2}, s{v}, 8")
        a(f"s_add_u32 s{S_TMP}, s{S_TMP}, s{S_TMP2}")
        for j in range(8):
            a(f"buffer_load_dwordx4 v[{WC+64+4*j}:{WC+64+4*j+3}], v{vt0}, s[{S_WD}:{S_WD+3}], s{S_TMP} offen nt")
            if j < 7:
                a(f"s_add_u32 s{S_TMP}, s{S_TMP}, 1024")
        a(f"v_mul_u32_u24 v{vt2}, {3072*4}, v{vB}")
        a(f"v_lshl_add_u32 v{vt2}, v{vG}, 7, v{vt2}")
        a(f"v_lshl_add_u32 v{vt2}, v{vU}, 5, v{vt2}")
        a(f"s_lshl_b32 s{S_SO}, s{v}, 9")
        a(f"s_add_u32 s{S_SO}, s{S_SO}, {WS_MOD + 1536*4}")
        SB0 = W0

        def iss():
            a(f"buffer_load_dwordx4 v[{SB0}:{SB0+3}], v{vt2}, s[{S_WS}:{S_WS+3}], s{S_SO} offen sc1")
            a(f"buffer_load_dwordx4 v[{SB0+4}:{SB0+7}], v{vt2}, s[{S_WS}:{S_WS+3}], s{S_SO} offen offset:16 sc1")
            a(f"buffer_load_dwordx4 v[{SB0+8}:{SB0+11}], v{vt2}, s[{S_WS}:{S_WS+3}], s{S_SO} offen offset:2048 sc1")
            a(f"buffer_load_dwordx4 v[{SB0+12}:{SB0+15}], v{vt2}, s[{S_WS}:{S_WS+3}], s{S_SO} offen offset:2064 sc1")
        self.poll(iss, list(range(SB0, SB0+16)), vA, vO, vT, mask=0xffff)
        for i in range(8):
            a(f"v_and_b32 v{SBC+i}, s{S_HI16}, v{SB0+i}")
            a(f"v_and_b32 v{SB0+8+i}, s{S_HI16}, v{SB0+8+i}")
        for i in range(8):
            a(f"v_add_f32 v{SBC+8+i}, 1.0, v{SB0+8+i}")
        for i in range(0, 8, 2):
            self.round2(SBC+8+i, SBC+8+i+1, vt0 if (i//2) % 2 == 0 else vt1)
        X1r = W0
        vGW, vGR = WB + 8, WB + 9

        def gu_mfma(X, AG, AU, fill=None):
            BB = WB
            for T in range(8):
                us = T//2
                bb = BB + 4*(T & 1)
                for j in range(4):
                    a(f"v_and_b32_dpp v{bb+j}, v{X+4*(T%2)+j}, v{vMe} quad_perm:[{us},{us},{us},{us}] row_mask:0xf bank_mask:0xf")
                if fill and len(fill[T]) >= 2:
                    for ins in fill[T]:
                        a(ins)
                else:
                    self.nop(2)
                c = "0" if T == 0 else f"v[{AG}:{AG+3}]"
                a(f"v_mfma_f32_16x16x32_bf16 v[{AG}:{AG+3}], v[{WC+4*T}:{WC+4*T+3}], v[{bb}:{bb+3}], {c}")
                c = "0" if T == 0 else f"v[{AU}:{AU+3}]"
                a(f"v_mfma_f32_16x16x32_bf16 v[{AU}:{AU+3}], v[{WC+32+4*T}:{WC+32+4*T+3}], v[{bb}:{bb+3}], {c}")

        def gu_write(AG, AU, base):
            a("s_mov_b32 exec_lo, 0x33333333")
            a("s_mov_b32 exec_hi, 0x33333333")
            for r in range(4):
                a(f"ds_write_b32 v{vGW}, v{AG+r} offset:{base + 32*r}")
                a(f"ds_write_b32 v{vGW}, v{AU+r} offset:{base + 2048 + 32*r}")
            a("s_mov_b64 exec, -1")

        def gu_read(GR, base):
            a(f"ds_read_b128 v[{GR}:{GR+3}], v{vGR} offset:{base}")
            a(f"ds_read_b128 v[{GR+4}:{GR+7}], v{vGR} offset:{base+16}")
            a(f"ds_read_b128 v[{GR+8}:{GR+11}], v{vGR} offset:{base+2048}")
            a(f"ds_read_b128 v[{GR+12}:{GR+15}], v{vGR} offset:{base+2048+16}")

        def gu_sum(GR):
            for i in range(4):
                g = GR + 4*i
                a(f"v_add_f32 v{g}, v{g}, v{g+1}")
                a(f"v_add_f32 v{g+2}, v{g+2}, v{g+3}")
            for i in range(4):
                g = GR + 4*i
                a(f"v_add_f32 v{g}, v{g}, v{g+2}")

        if self.t2alg:
            a(f"v_lshlrev_b32 v{vGW}, 9, v{vB}")
            a(f"v_lshl_add_u32 v{vGW}, v{vG}, 7, v{vGW}")
            a(f"v_lshl_add_u32 v{vGR}, v{vU}, 5, v{vGW}")
            a(f"v_and_b32 v{vt1}, 1, v0")
            a(f"v_lshl_add_u32 v{vGW}, v{vt1}, 4, v{vGW}")
            a(f"s_lshl_b32 s{S_TMP}, s{v}, 2")
            a(f"v_add_u32 v{vGW}, s{S_TMP}, v{vGW}")
            for i in range(8):
                a(f"v_cvt_pk_bf16_f32 v{W0+i}, v{SBC+8+i}, v{SBC+8+i}")
            for i in range(8):
                a(f"v_cvt_pk_bf16_f32 v{W0+16+i}, v{SBC+i}, v{SBC+i}")
            assert self.t2late == 2
            a("s_waitcnt vmcnt(0)")
            gu_mfma(W0, W0+8, W0+12)
            self.nop(8)
            self.nop(6)
            gu_write(W0+8, W0+12, L_OW)
            gu_mfma(W0+16, W0, W0+4)
            self.nop(8)
            self.nop(6)
            gu_write(W0, W0+4, L_OW + 4096)
            a("s_waitcnt lgkmcnt(0)")
            a("s_barrier")
            gu_read(W0, L_OW)
            a("s_waitcnt lgkmcnt(0)")
            gu_sum(W0)
            for i in range(4):
                a(f"v_mov_b32 v{SBC+i}, v{W0+4*i}")
            gu_read(W0, L_OW + 4096)
            a("s_waitcnt lgkmcnt(0)")
            gu_sum(W0)
            for i in range(4):
                a(f"v_mov_b32 v{SBC+4+i}, v{W0+4*i}")
        a(f"v_lshlrev_b32 v{vt2}, 11, v{vB}")
        a(f"v_lshl_add_u32 v{vt2}, v{vG}, 7, v{vt2}")
        a(f"v_lshl_add_u32 v{vt2}, v{vU}, {4 if self.x1p else 5}, v{vt2}")
        a(f"s_lshl_b32 s{S_SO}, s{v}, 9")
        a(f"s_add_u32 s{S_SO}, s{S_SO}, {WS_X1}")
        a(f"v_lshlrev_b32 v{vt3}, 5, v{vB}")
        a(f"s_lshl_b32 s{S_TMP}, s{v}, 3")
        a(f"v_add_u32 v{vt1}, s{S_TMP}, v{vt3}")

        def iss():
            a(f"buffer_load_dwordx4 v[{X1r}:{X1r+3}], v{vt2}, s[{S_WS}:{S_WS+3}], s{S_SO} offen sc1")
            a(f"buffer_load_dwordx4 v[{X1r+4}:{X1r+7}], v{vt2}, s[{S_WS}:{S_WS+3}], s{S_SO} offen offset:{64 if self.x1p else 16} sc1")
        def iss2(S):
            a(f"buffer_load_dwordx4 v[{S}:{S+3}], v{vt2}, s[{S_WS}:{S_WS+3}], s{S_SO} offen sc1")
            a(f"buffer_load_dwordx4 v[{S+4}:{S+7}], v{vt2}, s[{S_WS}:{S_WS+3}], s{S_SO} offen offset:{64 if self.x1p else 16} sc1")
        if self.pipe[1]:
            self.poll_pipe(iss2, 2, 8, [WB, WB+8], X1r, vA, vO, vT, 16, "lane", self.pipe[1])
        else:
            self.poll3(iss, None, range(X1r, X1r+8), vA, vO, vA, vO, vT, self.g_x1, self.sl[2])
        self.stamp(10, 8)
        if self.t2alg:
            s1, s2_ = vA, vO
            Y = W0 + 16
            AG, AU = W0+8, W0+12
            for i in range(8):
                a(f"v_and_b32 v{X1r+i}, s{S_HI16}, v{X1r+i}")
            for i in range(8):
                a(f"v_mul_f32 v{Y+i}, v{X1r+i}, v{SBC+8+i}")
            for i in range(8):
                a(f"v_cvt_pk_bf16_f32 v{Y+i}, v{Y+i}, v{Y+i}")
            st = []
            st.append(f"v_add_f32 v{s1}, v{X1r}, v{X1r+1}")
            st.append(f"v_add_f32 v{vt0}, v{X1r+2}, v{X1r+3}")
            st.append(f"v_mul_f32 v{s2_}, v{X1r}, v{X1r}")
            st.append(f"v_mul_f32 v{vt2}, v{X1r+1}, v{X1r+1}")
            for i in range(4, 8, 2):
                st.append(f"v_add_f32 v{s1}, v{s1}, v{X1r+i}")
                st.append(f"v_add_f32 v{vt0}, v{vt0}, v{X1r+i+1}")
            for i in range(2, 8, 2):
                st.append(f"v_fmac_f32 v{s2_}, v{X1r+i}, v{X1r+i}")
                st.append(f"v_fmac_f32 v{vt2}, v{X1r+i+1}, v{X1r+i+1}")
            st.append(f"v_add_f32 v{s1}, v{s1}, v{vt0}")
            st.append(f"v_add_f32 v{s2_}, v{s2_}, v{vt2}")
            assert len(st) == 16
            fill = [st[2*T:2*T+2] for T in range(8)]
            gu_mfma(Y, AG, AU, fill)
            self.allreduce2(s1, s2_, vt0, vt2)
            a("s_mov_b64 exec, 0x1111")
            a(f"ds_write_b64 v{vt1}, v[{s1}:{s2_}] offset:{L_ST}")
            gu_write(AG, AU, L_GU)
            a(f"s_lshl_b32 s{S_TMP}, s{STILE}, 2")
            a(f"s_add_u32 s{S_TMP}, s{S_TMP}, s{v}")
            a(f"s_lshl_b32 s{S_TMP}, s{S_TMP}, 11")
            a(f"s_add_u32 s{S_TMP}, s{S_TMP}, {WS_DP}")
            a("s_waitcnt lgkmcnt(0)")
            a("s_barrier")
            ST = W0+16
            GR = W0
            a(f"ds_read_b128 v[{ST}:{ST+3}], v{vt3} offset:{L_ST}")
            a(f"ds_read_b128 v[{ST+4}:{ST+7}], v{vt3} offset:{L_ST+16}")
            gu_read(GR, L_GU)
            a("s_waitcnt lgkmcnt(4)")
            a(f"v_add_f32 v{s1}, v{ST}, v{ST+2}")
            a(f"v_add_f32 v{vt0}, v{ST+4}, v{ST+6}")
            a(f"v_add_f32 v{s2_}, v{ST+1}, v{ST+3}")
            a(f"v_add_f32 v{vt1}, v{ST+5}, v{ST+7}")
            a(f"v_add_f32 v{s1}, v{s1}, v{vt0}")
            a(f"v_add_f32 v{s2_}, v{s2_}, v{vt1}")
            a(f"v_mul_f32 v{s1}, 0x3b000000, v{s1}")
            a(f"v_mul_f32 v{s2_}, 0x3b000000, v{s2_}")
            a(f"v_fma_f32 v{s2_}, -v{s1}, v{s1}, v{s2_}")
            a(f"v_max_f32 v{s2_}, 0, v{s2_}")
            self.ln_fin(s1, s2_, vt0)
            a("s_waitcnt lgkmcnt(0)")
            gu_sum(GR)
            for i in range(4):
                a(f"v_fma_f32 v{GR+4*i}, -v{s1}, v{SBC+i}, v{GR+4*i}")
            for i in range(4):
                a(f"v_fma_f32 v{GR+4*i}, v{s2_}, v{GR+4*i}, v{SBC+4+i}")
        else:
            for i in range(8):
                a(f"v_and_b32 v{X1r+i}, s{S_HI16}, v{X1r+i}")
            s1, s2_ = vA, vO
            self.ln_sum(X1r, 8, s1, vt0)
            a(f"v_mul_f32 v{s2_}, v{X1r}, v{X1r}")
            a(f"v_mul_f32 v{vt2}, v{X1r+1}, v{X1r+1}")
            for i in range(2, 8, 2):
                a(f"v_fmac_f32 v{s2_}, v{X1r+i}, v{X1r+i}")
                a(f"v_fmac_f32 v{vt2}, v{X1r+i+1}, v{X1r+i+1}")
            a(f"v_add_f32 v{s2_}, v{s2_}, v{vt2}")
            self.allreduce2(s1, s2_, vt0, vt2)
            a("s_mov_b64 exec, 0x1111")
            a(f"ds_write_b64 v{vt1}, v[{s1}:{s2_}] offset:{L_ST}")
            a("s_mov_b64 exec, -1")
            a("s_waitcnt lgkmcnt(0)")
            a("s_barrier")
            ST = W0+8
            a(f"ds_read_b128 v[{ST}:{ST+3}], v{vt3} offset:{L_ST}")
            a(f"ds_read_b128 v[{ST+4}:{ST+7}], v{vt3} offset:{L_ST+16}")
            a("s_waitcnt lgkmcnt(0)")
            a(f"v_add_f32 v{s1}, v{ST}, v{ST+2}")
            a(f"v_add_f32 v{vt0}, v{ST+4}, v{ST+6}")
            a(f"v_add_f32 v{s2_}, v{ST+1}, v{ST+3}")
            a(f"v_add_f32 v{vt1}, v{ST+5}, v{ST+7}")
            a(f"v_add_f32 v{s1}, v{s1}, v{vt0}")
            a(f"v_add_f32 v{s2_}, v{s2_}, v{vt1}")
            a(f"v_mul_f32 v{s1}, 0x3b000000, v{s1}")
            a(f"v_mul_f32 v{s2_}, 0x3b000000, v{s2_}")
            a(f"v_fma_f32 v{s2_}, -v{s1}, v{s1}, v{s2_}")
            a(f"v_max_f32 v{s2_}, 0, v{s2_}")
            self.ln_fin(s1, s2_, vt0)
            self.ln_norm(X1r, 8, s1, s2_, vt0, vt1)
            for i in range(8):
                a(f"v_mul_f32 v{X1r+i}, v{X1r+i}, v{SBC+8+i}")
            for i in range(0, 8, 2):
                self.round2(X1r+i, X1r+i+1, vt0 if (i//2) % 2 == 0 else vt1)
            for i in range(8):
                a(f"v_add_f32 v{X1r+i}, v{X1r+i}, v{SBC+i}")
            for i in range(8):
                a(f"v_cvt_pk_bf16_f32 v{X1r+i}, v{X1r+i}, v{X1r+i}")
            BB = WB
            AG, AU = W0+8, W0+12
            a("s_waitcnt vmcnt(0)")
            for T in range(8):
                us = T//2
                bb = BB + 4*(T & 1)
                for j in range(4):
                    a(f"v_and_b32_dpp v{bb+j}, v{X1r+4*(T%2)+j}, v{vMe} quad_perm:[{us},{us},{us},{us}] row_mask:0xf bank_mask:0xf")
                self.nop(2)
                c = "0" if T == 0 else f"v[{AG}:{AG+3}]"
                a(f"v_mfma_f32_16x16x32_bf16 v[{AG}:{AG+3}], v[{WC+4*T}:{WC+4*T+3}], v[{bb}:{bb+3}], {c}")
                c = "0" if T == 0 else f"v[{AU}:{AU+3}]"
                a(f"v_mfma_f32_16x16x32_bf16 v[{AU}:{AU+3}], v[{WC+32+4*T}:{WC+32+4*T+3}], v[{bb}:{bb+3}], {c}")
            a(f"v_lshlrev_b32 v{vt0}, 9, v{vB}")
            a(f"v_lshl_add_u32 v{vt0}, v{vG}, 7, v{vt0}")
            a(f"v_lshl_add_u32 v{vt2}, v{vU}, 5, v{vt0}")
            a(f"v_and_b32 v{vt1}, 1, v0")
            a(f"v_lshl_add_u32 v{vt0}, v{vt1}, 4, v{vt0}")
            a(f"s_lshl_b32 s{S_TMP}, s{v}, 2")
            a(f"v_add_u32 v{vt0}, s{S_TMP}, v{vt0}")
            self.nop(4)
            a("s_mov_b32 exec_lo, 0x33333333")
            a("s_mov_b32 exec_hi, 0x33333333")
            for r in range(4):
                a(f"ds_write_b32 v{vt0}, v{AG+r} offset:{L_GU + 32*r}")
                a(f"ds_write_b32 v{vt0}, v{AU+r} offset:{L_GU + 2048 + 32*r}")
            a("s_mov_b64 exec, -1")
            a("s_waitcnt lgkmcnt(0)")
            a("s_barrier")
            GR = WB
            a(f"ds_read_b128 v[{GR}:{GR+3}], v{vt2} offset:{L_GU}")
            a(f"ds_read_b128 v[{GR+4}:{GR+7}], v{vt2} offset:{L_GU+16}")
            a(f"ds_read_b128 v[{GR+8}:{GR+11}], v{vt2} offset:{L_GU+2048}")
            a(f"ds_read_b128 v[{GR+12}:{GR+15}], v{vt2} offset:{L_GU+2048+16}")
            a(f"s_lshl_b32 s{S_TMP}, s{STILE}, 2")
            a(f"s_add_u32 s{S_TMP}, s{S_TMP}, s{v}")
            a(f"s_lshl_b32 s{S_TMP}, s{S_TMP}, 11")
            a(f"s_add_u32 s{S_TMP}, s{S_TMP}, {WS_DP}")
            a("s_waitcnt lgkmcnt(0)")
            for i in range(4):
                g = GR + 4*i
                a(f"v_add_f32 v{g}, v{g}, v{g+1}")
                a(f"v_add_f32 v{g+2}, v{g+2}, v{g+3}")
            for i in range(4):
                g = GR + 4*i
                a(f"v_add_f32 v{g}, v{g}, v{g+2}")
        g0, g1, u0, u1 = GR, GR+4, GR+8, GR+12
        self.round2(g0, g1, vt0)
        self.round2(u0, u1, vt1)
        a(f"v_mul_f32 v{g0+1}, 0xbfb8aa3b, v{g0}")
        a(f"v_mul_f32 v{g1+1}, 0xbfb8aa3b, v{g1}")
        a(f"v_exp_f32 v{g0+1}, v{g0+1}")
        a(f"v_exp_f32 v{g1+1}, v{g1+1}")
        self.nop(1)
        a(f"v_add_f32 v{g0+1}, 1.0, v{g0+1}")
        a(f"v_add_f32 v{g1+1}, 1.0, v{g1+1}")
        a(f"v_rcp_f32 v{g0+1}, v{g0+1}")
        a(f"v_rcp_f32 v{g1+1}, v{g1+1}")
        self.nop(1)
        a(f"v_mul_f32 v{g0}, v{g0}, v{g0+1}")
        a(f"v_mul_f32 v{g1}, v{g1}, v{g1+1}")
        self.round2(g0, g1, vt0)
        a(f"v_mul_f32 v{g0}, v{g0}, v{u0}")
        a(f"v_mul_f32 v{g1}, v{g1}, v{u1}")
        AD = W0
        a(f"v_cvt_pk_bf16_f32 v{AD}, v{g0}, v{g0}")
        a(f"v_cvt_pk_bf16_f32 v{AD+1}, v{g1}, v{g1}")
        self.nop(1)
        XB = WB
        for j in range(8):
            us = j//2
            a(f"v_and_b32_dpp v{XB+2*j}, v{AD+(j%2)}, v{vM0} quad_perm:[{us},{us},{us},{us}] row_mask:0xf bank_mask:0xf")
            a(f"v_and_b32_dpp v{XB+2*j+1}, v{AD+(j%2)}, v{vM1} quad_perm:[{us},{us},{us},{us}] row_mask:0xf bank_mask:0xf")
        self.nop(2)
        D1, D2, D3, D4 = W0+4, W0+8, W0+12, W0+16
        for j in range(8):
            w = WC + 64 + 4*j
            da, db = (D1, D2) if j % 2 == 0 else (D3, D4)
            c1 = "0" if j < 2 else f"v[{da}:{da+3}]"
            c2 = "0" if j < 2 else f"v[{db}:{db+3}]"
            a(f"v_mfma_f32_16x16x16_bf16 v[{da}:{da+3}], v[{w}:{w+1}], v[{XB+2*j}:{XB+2*j+1}], {c1}")
            a(f"v_mfma_f32_16x16x16_bf16 v[{db}:{db+3}], v[{w+2}:{w+3}], v[{XB+2*j}:{XB+2*j+1}], {c2}")
        self.nop(8)
        for r in range(4):
            a(f"v_add_f32 v{D1+r}, v{D1+r}, v{D3+r}")
        for r in range(4):
            a(f"v_add_f32 v{D2+r}, v{D2+r}, v{D4+r}")
        for r in range(4):
            self.tag32(D1+r, vT)
        a(f"buffer_store_dwordx4 v[{D1}:{D1+3}], v{vL16}, s[{S_WS}:{S_WS+3}], s{S_TMP} offen sc1")
        for r in range(4):
            self.tag32(D2+r, vT)
        a(f"buffer_store_dwordx4 v[{D2}:{D2+3}], v{vL16}, s[{S_WS}:{S_WS+3}], s{S_TMP} offen offset:1024 sc1")
        self.stamp(11, 8)
        a("s_endpgm")
        a("L_s_r:")
        a(f"s_cmp_lg_u32 s{v}, 2")
        a("s_cbranch_scc1 L_end")
        SCOL = 100
        a(f"s_lshr_b32 s{SCOL}, s2, 3")
        a(f"s_lshl_b32 s{SCOL}, s{SCOL}, 5")
        a(f"s_bfe_u32 s{S_TMP}, s2, 0x10002")
        a(f"s_lshl_b32 s{S_TMP}, s{S_TMP}, 2")
        a(f"s_add_u32 s{SCOL}, s{SCOL}, s{S_TMP}")
        a(f"s_and_b32 s{S_TMP}, s2, 3")
        a(f"s_lshl_b32 s{S_TMP2}, s{S_TMP}, 9")
        a(f"s_add_u32 s{S_TMP2}, s{S_TMP2}, s{SCOL}")
        a(f"s_mul_i32 s{S_TMP}, s{S_TMP}, 3072")
        a(f"s_add_u32 s{SCOL}, s{SCOL}, s{S_TMP}")
        vCol = SBC + 3
        a(f"v_lshl_add_u32 v{vt1}, v{vG}, 3, v{vU}")
        a(f"v_add_u32 v{vCol}, s{S_TMP2}, v{vt1}")
        a(f"v_lshlrev_b32 v{vt0}, 1, v{vCol}")
        a(f"buffer_load_ushort v{SBC+2}, v{vt0}, s[{S_X}:{S_X+3}], 0 offen")
        a(f"v_add_u32 v{vt2}, s{SCOL}, v{vt1}")
        a(f"v_lshlrev_b32 v{vt2}, 2, v{vt2}")
        a(f"s_mov_b32 s{S_SO}, {WS_MOD + 1024*4}")
        a(f"s_mov_b32 s97, {WS_MOD + 2560*4}")

        def iss():
            a(f"buffer_load_dword v{SBC}, v{vt2}, s[{S_WS}:{S_WS+3}], s{S_SO} offen sc1")
            a(f"buffer_load_dword v{SBC+1}, v{vt2}, s[{S_WS}:{S_WS+3}], s97 offen sc1")
        self.poll(iss, [SBC, SBC+1, SBC+1], vA, vO, vT, mask=0xffff)
        a(f"v_and_b32 v{SBC}, s{S_HI16}, v{SBC}")
        a(f"v_and_b32 v{SBC+1}, s{S_HI16}, v{SBC+1}")
        a(f"v_lshlrev_b32 v{SBC+2}, 16, v{SBC+2}")
        RD = WC
        RS = [WC+16, WC+32, WC+48][:self.nsets]
        SRB = 101
        a(f"s_lshr_b32 s{SRB}, s2, 5")
        a(f"s_lshl_b32 s{SRB}, s{SRB}, 11")
        a(f"s_bfe_u32 s{S_TMP}, s2, 0x10002")
        a(f"s_lshl_b32 s{S_TMP}, s{S_TMP}, 10")
        a(f"s_add_u32 s{SRB}, s{SRB}, s{S_TMP}")
        a(f"s_bfe_u32 s{S_TMP}, s2, 0x20003")
        a(f"s_lshl_b32 s{S_TMP}, s{S_TMP}, 8")
        a(f"s_add_u32 s{SRB}, s{SRB}, s{S_TMP}")
        a(f"s_and_b32 s{S_TMP}, s2, 3")
        a(f"s_lshl_b32 s{S_TMP}, s{S_TMP}, 6")
        a(f"s_add_u32 s{SRB}, s{SRB}, s{S_TMP}")
        a(f"v_lshrrev_b32 v{vt2}, 2, v0")
        a(f"v_lshlrev_b32 v{vt2}, 13, v{vt2}")
        a(f"v_lshl_add_u32 v{vt2}, v{vU}, 4, v{vt2}")
        a(f"v_and_b32 v{vt3}, 0xffff, v{vt2}")
        QS = [S_SO, 97, 98, 99]
        for q in range(4):
            a(f"s_add_u32 s{QS[q]}, s{SRB}, {WS_AP + q*131072}")
        if self.x1p:
            a(f"v_lshl_add_u32 v{SBC+4}, v{vG}, 2, v{vU}")
            a(f"v_lshlrev_b32 v{SBC+4}, 2, v{SBC+4}")
            a(f"s_and_b32 s96, s2, 3")
            a(f"s_lshl_b32 s96, s96, 11")
            a(f"s_lshr_b32 s{S_TMP2}, s2, 3")
            a(f"s_lshl_b32 s{S_TMP2}, s{S_TMP2}, 7")
            a(f"s_add_u32 s96, s96, s{S_TMP2}")
            a(f"s_bfe_u32 s{S_TMP2}, s2, 0x10002")
            a(f"s_lshl_b32 s{S_TMP2}, s{S_TMP2}, 6")
            a(f"s_add_u32 s96, s96, s{S_TMP2}")
            a(f"s_add_u32 s96, s96, {WS_X1}")

        def iss():
            for q in range(4):
                a(f"buffer_load_dwordx4 v[{RD+4*q}:{RD+4*q+3}], v{vt2}, s[{S_WS}:{S_WS+3}], s{QS[q]} offen sc1")
        def iss2(S):
            for q in range(4):
                a(f"buffer_load_dwordx4 v[{S+4*q}:{S+4*q+3}], v{vt2}, s[{S_WS}:{S_WS+3}], s{QS[q]} offen sc1")
        if self.pipe[0]:
            self.poll_pipe(iss2, 4, 16, [WC+16, WC+32], RD, vA, vO, vT, TAGB, "quad", self.pipe[0])
        else:
            self.poll3(iss, range(RD, RD+16), None, vA, vO, vA, vO, vT, self.g_r, self.sl[1])
        self.stamp(12, 8)
        self.reduce_r(RD, False)
        vga, vgb, vx = SBC, SBC+1, SBC+2
        self.round1(RD)
        a(f"v_mul_f32 v{RD}, v{vga}, v{RD}")
        self.round1(RD)
        a(f"v_add_f32 v{vx}, v{vx}, v{RD}")
        a(f"v_cvt_pk_bf16_f32 v{vx}, v{vx}, v{vx}")
        a(f"v_lshl_or_b32 v{RD}, v{vx}, 16, v{vT}")
        if not self.x1p:
            a(f"v_lshlrev_b32 v{vt1}, 2, v{vCol}")
            a(f"s_mov_b32 s{S_TMP}, {WS_X1}")
        a("s_mov_b32 exec_lo, 0x000f000f")
        a("s_mov_b32 exec_hi, 0x000f000f")
        if self.x1p:
            a(f"buffer_store_dword v{RD}, v{SBC+4}, s[{S_WS}:{S_WS+3}], s96 offen sc1")
        else:
            a(f"buffer_store_dword v{RD}, v{vt1}, s[{S_WS}:{S_WS+3}], s{S_TMP} offen sc1")
        a("s_mov_b64 exec, -1")
        a(f"v_and_b32 v{vx}, s{S_HI16}, v{vx}")
        a(f"v_lshlrev_b32 v{vCol}, 1, v{vCol}")
        self.stamp(13, 8)
        for q in range(4):
            a(f"s_add_u32 s{QS[q]}, s{SRB}, {WS_DP + q*131072}")

        def iss():
            for q in range(4):
                va = vt2 if q < 3 else vt3
                a(f"buffer_load_dwordx4 v[{RD+4*q}:{RD+4*q+3}], v{va}, s[{S_WS}:{S_WS+3}], s{QS[q]} offen sc1")
        def iss2(S):
            for q in range(4):
                va = vt2 if q < 3 else vt3
                a(f"buffer_load_dwordx4 v[{S+4*q}:{S+4*q+3}], v{va}, s[{S_WS}:{S_WS+3}], s{QS[q]} offen sc1")
        if self.pipe[2]:
            self.poll_pipe(iss2, 4, 16, [WC+16, WC+32], RD, vA, vO, vT, TAGB, "quad", self.pipe[2])
        else:
            self.poll3(iss, range(RD, RD+16), None, vA, vO, vA, vO, vT, self.g_r, self.sl[3])
        self.reduce_r(RD, True)
        self.round1(RD)
        a(f"v_mul_f32 v{RD}, v{vgb}, v{RD}")
        self.round1(RD)
        a(f"v_add_f32 v{RD}, v{vx}, v{RD}")
        a(f"v_cvt_pk_bf16_f32 v{RD}, v{RD}, v{RD}")
        a("s_mov_b32 exec_lo, 0x000f000f")
        a("s_mov_b32 exec_hi, 0x000f000f")
        a(f"buffer_store_short v{RD}, v{vCol}, s[{S_OUT}:{S_OUT+3}], 0 offen")
        a("s_mov_b64 exec, -1")
        self.stamp(14, 8)
        if self.delay:
            a("s_mov_b32 s90, 0")
            a("L_dl_loop:")
            for i in range(256):
                a(f"v_mul_f32_e64 v{40+(i%16)}, v{60+(i%8)}, v{70+(i%8)}")
            a("s_add_u32 s90, s90, 1")
            a(f"s_cmp_lt_u32 s90, {self.delay}")
            a("s_cbranch_scc1 L_dl_loop")
        if self.dbg2 >= 2:
            a("s_mov_b32 s90, 0")
            a("s_memtime s[92:93]")
            a("s_waitcnt lgkmcnt(0)")
            a("s_mov_b32 s3, s92")
            a("L_ic_loop:")
            for i in range(self.dbg2):
                a(f"v_mul_f32_e64 v{40+(i%16)}, v{60+(i%8)}, v{70+(i%8)}")
            a("s_memtime s[92:93]")
            a("s_waitcnt lgkmcnt(0)")
            a("s_sub_u32 s3, s92, s3")
            a("v_mov_b32 v10, s3")
            a("s_mov_b32 s3, s92")
            a("s_and_b32 s57, s2, 0x38")
            a("s_cbranch_scc1 L_ic_skip")
            a("s_load_dwordx2 s[92:93], s[0:1], 96")
            a("s_waitcnt lgkmcnt(0)")
            a("s_mov_b64 exec, 1")
            a("v_mov_b32 v8, s92")
            a("v_mov_b32 v9, s93")
            a("s_lshl_b32 s57, s90, 2")
            a("v_add_u32 v8, s57, v8")
            a("global_atomic_umax v[8:9], v10, off offset:12 sc1")
            a("v_not_b32 v11, v10")
            a("global_atomic_umax v[8:9], v11, off offset:24 sc1")
            a("s_mov_b64 exec, -1")
            a("s_memtime s[92:93]")
            a("s_waitcnt lgkmcnt(0)")
            a("s_mov_b32 s3, s92")
            a("L_ic_skip:")
            a("s_add_u32 s90, s90, 1")
            a("s_cmp_lt_u32 s90, 3")
            a("s_cbranch_scc1 L_ic_loop")
        a(f"s_cmp_lg_u32 s2, {R_0}")
        a("s_cbranch_scc1 L_end")
        a(f"v_mov_b32 v{vt0}, s{S_E}")
        a(f"v_mov_b32 v{vt1}, {WS_E}")
        a("s_mov_b64 exec, 1")
        a(f"buffer_store_dword v{vt0}, v{vt1}, s[{S_WS}:{S_WS+3}], 0 offen sc1")
        a("s_endpgm")

    def reduce_r(self, RD, half_last):
        a = self.a
        for r in range(4):
            a(f"v_add_f32 v{RD+r}, v{RD+r}, v{RD+4+r}")
        if half_last:
            a("s_mov_b32 exec_hi, 0")
        for r in range(4):
            a(f"v_add_f32 v{RD+8+r}, v{RD+8+r}, v{RD+12+r}")
        if half_last:
            a("s_mov_b32 exec_hi, -1")
        for r in range(4):
            a(f"v_add_f32 v{RD+r}, v{RD+r}, v{RD+8+r}")
        self.nop(2)
        a(f"v_permlane32_swap_b32 v{RD}, v{RD+2}")
        a(f"v_permlane32_swap_b32 v{RD+1}, v{RD+3}")
        a(f"v_add_f32 v{RD}, v{RD}, v{RD+2}")
        a(f"v_add_f32 v{RD+1}, v{RD+1}, v{RD+3}")
        self.nop(2)
        a(f"v_permlane16_swap_b32 v{RD}, v{RD+1}")
        a(f"v_add_f32 v{RD}, v{RD}, v{RD+1}")
        self.nop(2)
        a(f"v_add_f32_dpp v{RD}, v{RD}, v{RD} row_ror:8 row_mask:0xf bank_mask:0xf")
        self.nop(2)
        a(f"v_add_f32_dpp v{RD}, v{RD}, v{RD} row_ror:4 row_mask:0xf bank_mask:0xf")

    def allreduce2(self, r1, r2, t1, t2):
        a = self.a
        self.nop(1)
        for qp in ("[1,0,3,2]", "[2,3,0,1]"):
            a(f"v_add_f32_dpp v{r1}, v{r1}, v{r1} quad_perm:{qp} row_mask:0xf bank_mask:0xf")
            a(f"v_add_f32_dpp v{r2}, v{r2}, v{r2} quad_perm:{qp} row_mask:0xf bank_mask:0xf")
            self.nop(1)
        for sw in ("v_permlane16_swap_b32", "v_permlane32_swap_b32"):
            a(f"v_mov_b32 v{t1}, v{r1}")
            a(f"v_mov_b32 v{t2}, v{r2}")
            self.nop(1)
            a(f"{sw} v{r1}, v{t1}")
            a(f"{sw} v{r2}, v{t2}")
            a(f"v_add_f32 v{r1}, v{r1}, v{t1}")
            a(f"v_add_f32 v{r2}, v{r2}, v{t2}")

    def reduce_q(self, RD, n):
        a = self.a
        idx = list(range(n))
        while len(idx) > 1:
            nxt = []
            for i in range(0, len(idx)-1, 2):
                for r in range(4):
                    a(f"v_add_f32 v{RD+4*idx[i]+r}, v{RD+4*idx[i]+r}, v{RD+4*idx[i+1]+r}")
                nxt.append(idx[i])
            if len(idx) % 2:
                nxt.append(idx[-1])
            idx = nxt
        self.nop(2)
        a(f"v_permlane32_swap_b32 v{RD}, v{RD+2}")
        a(f"v_permlane32_swap_b32 v{RD+1}, v{RD+3}")
        a(f"v_add_f32 v{RD}, v{RD}, v{RD+2}")
        a(f"v_add_f32 v{RD+1}, v{RD+1}, v{RD+3}")
        self.nop(2)
        a(f"v_permlane16_swap_b32 v{RD}, v{RD+1}")
        a(f"v_add_f32 v{RD}, v{RD}, v{RD+1}")

    def ln_sum(self, R, n, dst, t):
        a = self.a
        a(f"v_add_f32 v{dst}, v{R}, v{R+1}")
        a(f"v_add_f32 v{t}, v{R+2}, v{R+3}")
        for i in range(4, n, 2):
            a(f"v_add_f32 v{dst}, v{dst}, v{R+i}")
            a(f"v_add_f32 v{t}, v{t}, v{R+i+1}")
        a(f"v_add_f32 v{dst}, v{dst}, v{t}")

    def ln_fin(self, vMean, vVar, t):
        a = self.a
        self.round2(vMean, vVar, t)
        a(f"v_add_f32 v{vVar}, 0x3727c5ac, v{vVar}")
        self.round1(vVar)
        a(f"v_sqrt_f32 v{vVar}, v{vVar}")
        self.nop(1)
        self.round1(vVar)
        a(f"v_rcp_f32 v{vVar}, v{vVar}")
        self.nop(1)

    def ln_norm(self, Y, n, vMean, vRcp, t0, t1):
        a = self.a
        for i in range(n):
            a(f"v_sub_f32 v{Y+i}, v{Y+i}, v{vMean}")
        for i in range(0, n, 2):
            self.round2(Y+i, Y+i+1, t0 if (i//2) % 2 == 0 else t1)
        for i in range(n):
            a(f"v_mul_f32 v{Y+i}, v{Y+i}, v{vRcp}")
        for i in range(0, n, 2):
            self.round2(Y+i, Y+i+1, t0 if (i//2) % 2 == 0 else t1)

    def modulate(self, Y, n, SH, SCL, t0, t1, clean=False):
        a = self.a
        if not clean:
            for i in range(n):
                a(f"v_and_b32 v{SH+i}, s{S_HI16}, v{SH+i}")
                a(f"v_and_b32 v{SCL+i}, s{S_HI16}, v{SCL+i}")
        for i in range(n):
            a(f"v_add_f32 v{SCL+i}, 1.0, v{SCL+i}")
        for i in range(0, n, 2):
            self.round2(SCL+i, SCL+i+1, t0 if (i//2) % 2 == 0 else t1)
        for i in range(n):
            a(f"v_mul_f32 v{Y+i}, v{Y+i}, v{SCL+i}")
        for i in range(0, n, 2):
            self.round2(Y+i, Y+i+1, t0 if (i//2) % 2 == 0 else t1)
        for i in range(n):
            a(f"v_add_f32 v{Y+i}, v{Y+i}, v{SH+i}")
        for i in range(n):
            a(f"v_cvt_pk_bf16_f32 v{Y+i}, v{Y+i}, v{Y+i}")

    def gemv_x4(self, DU, W, n, XB, D1, D2, vM0, vM1):
        a = self.a
        for j in range(n):
            a(f"v_and_b32 v{XB+2*j}, v{DU+j}, v{vM0}")
            a(f"v_and_b32 v{XB+2*j+1}, v{DU+j}, v{vM1}")
        self.nop(2)
        for j in range(n):
            w = W + 4*j
            c1 = "0" if j == 0 else f"v[{D1}:{D1+3}]"
            c2 = "0" if j == 0 else f"v[{D2}:{D2+3}]"
            a(f"v_mfma_f32_16x16x16_bf16 v[{D1}:{D1+3}], v[{w}:{w+1}], v[{XB+2*j}:{XB+2*j+1}], {c1}")
            a(f"v_mfma_f32_16x16x16_bf16 v[{D2}:{D2+3}], v[{w+2}:{w+3}], v[{XB+2*j}:{XB+2*j+1}], {c2}")
        self.nop(8)

    def gemv_x_build(self, DU, n, XB, vM0, vM1):
        a = self.a
        for j in range(n):
            a(f"v_and_b32 v{XB+2*j}, v{DU+j}, v{vM0}")
            a(f"v_and_b32 v{XB+2*j+1}, v{DU+j}, v{vM1}")
        self.nop(2)

    def gemv_mfma(self, W, n, XB, D1, D2):
        a = self.a
        for j in range(n):
            w = W + 4*j
            c1 = "0" if j == 0 else f"v[{D1}:{D1+3}]"
            c2 = "0" if j == 0 else f"v[{D2}:{D2+3}]"
            a(f"v_mfma_f32_16x16x16_bf16 v[{D1}:{D1+3}], v[{w}:{w+1}], v[{XB+2*j}:{XB+2*j+1}], {c1}")
            a(f"v_mfma_f32_16x16x16_bf16 v[{D2}:{D2+3}], v[{w+2}:{w+3}], v[{XB+2*j}:{XB+2*j+1}], {c2}")

    def cu_reduce(self, tiles, cnt, lbase, addr_fn, vt0, vt1, vT, vL16, R):
        a = self.a
        v = S_WID
        nt = len(tiles)
        a(f"s_lshl_b32 s{S_TMP}, s{v}, 11")
        a(f"v_add_u32 v{vt0}, s{S_TMP}, v{vL16}")
        for t, (D1, D2) in enumerate(tiles):
            a(f"ds_write_b128 v{vt0}, v[{D1}:{D1+3}] offset:{lbase+8192*t}")
            a(f"ds_write_b128 v{vt0}, v[{D2}:{D2+3}] offset:{lbase+8192*t+1024}")
        if cnt is not None:
            self.lds_bar(cnt, 4, vt0, vt1)
        else:
            a("s_waitcnt lgkmcnt(0)")
            a("s_barrier")
        skip = self.label("crs")
        if nt == 1:
            a(f"s_cmp_ge_u32 s{v}, 2")
            a(f"s_cbranch_scc1 {skip}")
        a(f"s_and_b32 s{S_TMP}, s{v}, 1")
        a(f"s_lshl_b32 s{S_TMP}, s{S_TMP}, 10")
        a(f"v_add_u32 v{vt0}, s{S_TMP}, v{vL16}")
        if nt == 2:
            a(f"s_lshr_b32 s{S_TMP}, s{v}, 1")
            a(f"s_lshl_b32 s{S_TMP}, s{S_TMP}, 13")
            a(f"v_add_u32 v{vt1}, s{S_TMP}, v{vt0}")
            rd = vt1
        else:
            rd = vt0
        assert R % 4 == 0
        for i in range(4):
            a(f"ds_read_b128 v[{R+4*i}:{R+4*i+3}], v{rd} offset:{lbase+2048*i}")
        addr_fn()
        a("s_waitcnt lgkmcnt(0)")
        for r in range(4):
            a(f"v_add_f32 v{R+r}, v{R+r}, v{R+4+r}")
            a(f"v_add_f32 v{R+8+r}, v{R+8+r}, v{R+12+r}")
        for r in range(4):
            a(f"v_add_f32 v{R+r}, v{R+r}, v{R+8+r}")
        for r in range(4):
            self.tag32(R+r, vT)
        a(f"buffer_store_dwordx4 v[{R}:{R+3}], v{vt0}, s[{S_WS}:{S_WS+3}], s{S_TMP} offen sc1")
        a(f"{skip}:")

    def build(self):
        self.prologue()
        self.svc()
        self.kv()
        self.a("L_end:")
        body = "\n".join(self.L)
        return f"""; @launch grid=(256,1,1) block=(768,1,1) lds={LDS_SIZE}
.amdgcn_target "amdgcn-amd-amdhsa--gfx950"
.text
.globl {KN}
.p2align 8
.type {KN},@function
{KN}:
{body}
s_endpgm
.section .rodata,"a"
.p2align 6
.amdhsa_kernel {KN}
  .amdhsa_next_free_vgpr 168
  .amdhsa_next_free_sgpr 102
  .amdhsa_accum_offset 168
  .amdhsa_group_segment_fixed_size 0
  .amdhsa_kernarg_size 112
  .amdhsa_user_sgpr_count 2
  .amdhsa_user_sgpr_kernarg_segment_ptr 1
  .amdhsa_system_sgpr_workgroup_id_x 1
.end_amdhsa_kernel
"""


if __name__ == "__main__":
    import argparse
    ap = argparse.ArgumentParser()
    ap.add_argument("-o", default="k1.s")
    ap.add_argument("--dbg", action="store_true")
    ap.add_argument("--dbg2", type=int, default=0)
    ap.add_argument("--xl", type=int, default=0)
    ap.add_argument("--delay", type=int, default=0)
    ap.add_argument("--t2alg", type=int, default=0)
    ap.add_argument("--xls", type=int, default=0)
    ap.add_argument("--prio", type=int, default=3)
    ap.add_argument("--na-front", type=int, default=2)
    ap.add_argument("--p-front", type=int, default=1)
    ap.add_argument("--na-nf", type=int, default=16)
    ap.add_argument("--p-nf", type=int, default=2)
    ap.add_argument("--psleep2", type=int, default=8)
    ap.add_argument("--psleep3", type=int, default=5)
    ap.add_argument("--nsets", type=int, default=1)
    ap.add_argument("--kf", type=int, default=512)
    ap.add_argument("--km", type=int, default=384)
    ap.add_argument("--kh", type=int, default=640)
    ap.add_argument("--wearly", type=int, default=0)
    ap.add_argument("--b0first", type=int, default=0)
    ap.add_argument("--g-opp", default="g16")
    ap.add_argument("--g-x1", default="lane")
    ap.add_argument("--g-r", default="quad")
    ap.add_argument("--t2late", type=int, default=0)
    ap.add_argument("--pf", type=int, default=0)
    ap.add_argument("--pipe", default="0,0,0")
    ap.add_argument("--gate", type=int, default=-1)
    ap.add_argument("--x1p", type=int, default=0)
    ap.add_argument("--rel", type=int, default=2)
    ap.add_argument("--sl", default="0,0,0,0")
    args = ap.parse_args()
    g = Gen(delay=args.delay, t2alg=args.t2alg, xl=args.xl, xls=args.xls, dbg2=args.dbg2, dbg=args.dbg, prio=args.prio, na_front=args.na_front, p_front=args.p_front, na_nf=args.na_nf, p_nf=args.p_nf,
            psleep2=args.psleep2, psleep3=args.psleep3, nsets=args.nsets, kf=args.kf, km=args.km, kh=args.kh, wearly=args.wearly, b0first=args.b0first,
            g_opp=args.g_opp, g_x1=args.g_x1, g_r=args.g_r, t2late=args.t2late, pf=args.pf, pipe=tuple(int(x) for x in args.pipe.split(',')), gate=args.gate, x1p=args.x1p, rel=args.rel, sl=tuple(int(x) for x in args.sl.split(',')))
    open(args.o, "w").write(g.build())
```

```python
import sys
KN = "adaLN_cond__gqa_block_cached__swiglu_ffn__decode_kernel"

WS_E = 0
WS_MOD = 0x1000
WS_QP = 0x10000
WS_MODP = 0xA0000
WS_OPP = 0x100000
WS_ML = 0x180000
WS_AP = 0x200000
WS_X1 = 0x280000
WS_DP = 0x300000
WS_DBG = 0x3C0000
WS_SIZE = 0x400000
L_F1P = 0
L_RP = 4096
L_QL = 20480
L_OW = 24576
L_MLW = 40960
L_ST = 41216
L_CNT = 41344
L_GU = 41472
LDS_SIZE = 49152

NFRONT = 128
F1A_N = 64
T2_0 = 128
T2_N = 56
F1B_0 = 184
F1B_N = 64
R_0 = 0
R_N = 128
LIMIT = 4000

S_K, S_V, S_WS, S_WQ, S_WO, S_WM, S_WG, S_WU, S_WD, S_X, S_C, S_OUT = 4, 8, 12, 16, 20, 24, 28, 32, 36, 40, 44, 48
S_WID, S_T, S_SO, S_IT, S_V4, S_TMP, S_TMP2, S_E = 52, 53, 54, 55, 56, 57, 58, 59
S_B0, S_B1 = 60, 62
S_FF00 = 90
S_HI16 = 91
S_TS = 92
S_R = 96
S_BK, S_SP = 84, 85
S_T3 = 94
TAGB = 4


class Gen:
    def __init__(self, dbg=False, prio=3, na_front=2, p_front=1, na_nf=16, p_nf=2, psleep2=8, psleep3=5, nsets=1, kf=512, km=384, kh=640, wearly=0, b0first=0, g_opp='g16', g_x1='lane', g_r='quad', t2late=0, pf=0, sl=(0,0,0,0), rel=2, x1p=0, gate=-1, pipe=(0,0,0), dbg2=0, xl=0, xls=0, t2alg=0, delay=0, pt=0):
        self.pipe = pipe
        self.gate = gate
        self.x1p = x1p
        self.rel = rel
        self.sl = sl
        self.pf = pf
        self.t2late = t2late
        self.g_opp, self.g_x1, self.g_r = g_opp, g_x1, g_r
        self.L = []
        self.dbg = dbg
        self.dbg2 = dbg2
        self.xl = xl
        self.pt = pt
        self.delay = delay
        self.t2alg = t2alg
        self.xls = xls
        self.SP2 = 's95' if xl else 's2'
        self.prio = prio
        self.na_front = na_front
        self.wearly, self.b0first = wearly, b0first
        self.kf, self.km, self.kh = kf, km, kh
        self.psleep2 = psleep2
        self.psleep3 = psleep3
        self.nsets = nsets
        self.p_front = p_front
        self.na_nf = na_nf
        self.p_nf = p_nf
        self.lbl = 0

    def a(self, s):
        self.L.append(s)

    def label(self, p):
        self.lbl += 1
        return f"L_{p}_{self.lbl}"

    def nop(self, n):
        while n > 0:
            k = min(n, 16)
            self.a(f"s_nop {k-1}")
            n -= k

    def srd(self, s, plo, size):
        self.a(f"s_mov_b32 s{s}, s{plo}")
        self.a(f"s_mov_b32 s{s+1}, s{plo+1}")
        self.a(f"s_mov_b32 s{s+2}, {size}")
        self.a(f"s_mov_b32 s{s+3}, 0x00020000")

    def stamp(self, slot, vtmp, d2=None):
        if self.dbg2:
            a = self.a
            if d2 is None:
                d2 = [(slot, False)]
            if self.dbg2 >= 2 and slot in (3, 4, 5, 6, 7):
                d2 = []
            if not d2:
                return
            assert vtmp % 2 == 0
            samp = True
            if samp:
                self.d2n = getattr(self, "d2n", 0) + 1
                a(f"s_and_b32 s{S_TMP2}, s2, 0x38")
                a(f"s_cbranch_scc1 L_d2s_{self.d2n}")
                if slot == 1:
                    a(f"s_cmp_lg_u32 s{S_WID}, 4")
                    a(f"s_cbranch_scc1 L_d2s_{self.d2n}")
            a(f"s_memrealtime s[{S_TS}:{S_TS+1}]")
            a("s_waitcnt lgkmcnt(0)")
            a(f"v_mov_b32 v{vtmp+2}, s{S_TS}")
            a(f"s_load_dwordx2 s[{S_TS}:{S_TS+1}], s[0:1], 96")
            a("s_waitcnt lgkmcnt(0)")
            a("s_mov_b64 exec, 1")
            a(f"v_mov_b32 v{vtmp}, s{S_TS}")
            a(f"v_mov_b32 v{vtmp+1}, s{S_TS+1}")
            for (idx, neg) in sorted(d2, key=lambda t: t[1]):
                if neg:
                    a("s_nop 2")
                    a(f"v_not_b32 v{vtmp+2}, v{vtmp+2}")
                a(f"global_atomic_umax v[{vtmp}:{vtmp+1}], v{vtmp+2}, off offset:{idx*4} sc1")
                a("s_nop 1")
            a("s_mov_b64 exec, -1")
            a("s_nop 1")
            if samp:
                a(f"L_d2s_{self.d2n}:")
            return
        if not self.dbg:
            return
        a = self.a
        a(f"s_memrealtime s[{S_TS}:{S_TS+1}]")
        a("s_waitcnt lgkmcnt(0)")
        a(f"v_mov_b32 v{vtmp}, s{S_TS}")
        a(f"v_mov_b32 v{vtmp+1}, s{S_IT}")
        a(f"s_lshl_b32 s{S_TMP2}, s2, 7")
        a(f"s_add_u32 s{S_TMP2}, s{S_TMP2}, {WS_DBG + slot*8}")
        a(f"v_mov_b32 v{vtmp+2}, s{S_TMP2}")
        a("s_mov_b64 exec, 1")
        a(f"buffer_store_dwordx2 v[{vtmp}:{vtmp+1}], v{vtmp+2}, s[{S_WS}:{S_WS+3}], 0 offen")
        a("s_mov_b64 exec, -1")
        a("s_nop 1")

    def allreduce(self, r, t, op, quad=True, rows=True):
        a = self.a
        if quad:
            self.nop(2)
            a(f"{op}_dpp v{r}, v{r}, v{r} quad_perm:[1,0,3,2] row_mask:0xf bank_mask:0xf")
            self.nop(2)
            a(f"{op}_dpp v{r}, v{r}, v{r} quad_perm:[2,3,0,1] row_mask:0xf bank_mask:0xf")
        if rows:
            a(f"v_mov_b32 v{t}, v{r}")
            self.nop(2)
            a(f"v_permlane16_swap_b32 v{r}, v{t}")
            a(f"{op} v{r}, v{r}, v{t}")
            a(f"v_mov_b32 v{t}, v{r}")
            self.nop(2)
            a(f"v_permlane32_swap_b32 v{r}, v{t}")
            a(f"{op} v{r}, v{r}, v{t}")

    def round2(self, x0, x1, t):
        a = self.a
        a(f"v_cvt_pk_bf16_f32 v{t}, v{x0}, v{x1}")
        a(f"v_lshlrev_b32 v{x0}, 16, v{t}")
        a(f"v_and_b32 v{x1}, s{S_HI16}, v{t}")

    def round1(self, x, t=None):
        a = self.a
        a(f"v_cvt_pk_bf16_f32 v{x}, v{x}, v{x}")
        a(f"v_and_b32 v{x}, s{S_HI16}, v{x}")

    def poll(self, issue, regs, vA, vO, vT, mask=(1 << TAGB) - 1):
        a = self.a
        lp = self.label("poll")
        ld = self.label("pd")
        a(f"s_mov_b32 s{S_IT}, 0")
        a(f"{lp}:")
        issue()
        a("s_waitcnt vmcnt(0)")
        rs = list(regs)
        assert len(rs) >= 3
        a(f"v_bitop3_b32 v{vA}, v{rs[0]}, v{rs[1]}, v{rs[2]} bitop3:0x80")
        a(f"v_or3_b32 v{vO}, v{rs[0]}, v{rs[1]}, v{rs[2]}")
        i = 3
        while i < len(rs):
            r1 = rs[i]
            r2 = rs[i+1] if i+1 < len(rs) else rs[i]
            a(f"v_bitop3_b32 v{vA}, v{vA}, v{r1}, v{r2} bitop3:0x80")
            a(f"v_or3_b32 v{vO}, v{vO}, v{r1}, v{r2}")
            i += 2
        a(f"v_xor_b32 v{vA}, v{vA}, v{vT}")
        a(f"v_xor_b32 v{vO}, v{vO}, v{vT}")
        a(f"v_or_b32 v{vA}, v{vA}, v{vO}")
        a(f"v_and_b32 v{vA}, {mask:#x}, v{vA}")
        a(f"v_cmp_ne_u32 vcc, 0, v{vA}")
        a(f"s_add_u32 s{S_IT}, s{S_IT}, 1")
        a(f"s_cmp_lt_u32 s{S_IT}, {LIMIT}")
        a(f"s_cbranch_scc0 {ld}")
        a(f"s_cbranch_vccnz {lp}")
        a(f"{ld}:")

    def tagcheck(self, rs, vA, vO, vT, mask):
        a = self.a
        rs = list(rs)
        assert len(rs) >= 3
        a(f"v_bitop3_b32 v{vA}, v{rs[0]}, v{rs[1]}, v{rs[2]} bitop3:0x80")
        a(f"v_or3_b32 v{vO}, v{rs[0]}, v{rs[1]}, v{rs[2]}")
        i = 3
        while i < len(rs):
            r1 = rs[i]
            r2 = rs[i+1] if i+1 < len(rs) else rs[i]
            a(f"v_bitop3_b32 v{vA}, v{vA}, v{r1}, v{r2} bitop3:0x80")
            a(f"v_or3_b32 v{vO}, v{vO}, v{r1}, v{r2}")
            i += 2
        a(f"v_xor_b32 v{vA}, v{vA}, v{vT}")
        a(f"v_xor_b32 v{vO}, v{vO}, v{vT}")
        a(f"v_or_b32 v{vA}, v{vA}, v{vO}")
        a(f"v_and_b32 v{vA}, {mask:#x}, v{vA}")
        a(f"v_cmp_ne_u32 vcc, 0, v{vA}")

    def poll2(self, issue, nl, nreg, sets, F, vA, vO, vT, mask=(1 << TAGB) - 1, sleep=None):
        a = self.a
        ns = len(sets)
        if sleep is None:
            sleep = self.psleep3 if ns >= 3 else self.psleep2
        lp = self.label("pp")
        ld = self.label("ppd")
        a(f"s_mov_b32 s{S_IT}, 0")
        if ns == 1:
            a(f"{lp}:")
            issue(F)
            a("s_waitcnt vmcnt(0)")
            self.tagcheck(range(F, F+nreg), vA, vO, vT, mask)
            a("s_mov_b64 exec, vcc")
            a(f"s_cbranch_execz {ld}")
            a(f"s_add_u32 s{S_IT}, s{S_IT}, 1")
            a(f"s_cmp_lt_u32 s{S_IT}, {LIMIT}")
            a(f"s_cbranch_scc1 {lp}")
            a(f"{ld}:")
            a("s_mov_b64 exec, -1")
            return
        for i, S in enumerate(sets):
            issue(S)
            if i < ns - 1 and sleep:
                a(f"s_sleep {sleep}")
        a(f"{lp}:")
        for S in sets:
            a(f"s_waitcnt vmcnt({nl*(ns-1)})")
            self.tagcheck(range(S, S+nreg), vA, vO, vT, mask)
            a("s_andn2_b64 exec, exec, vcc")
            sk = self.label("pps")
            a(f"s_cbranch_execz {sk}")
            for i in range(nreg):
                a(f"v_mov_b32 v{F+i}, v{S+i}")
            a(f"{sk}:")
            a("s_mov_b64 exec, vcc")
            a(f"s_cbranch_execz {ld}")
            issue(S)
            if sleep:
                a(f"s_sleep {sleep}")
        a(f"s_add_u32 s{S_IT}, s{S_IT}, 1")
        a(f"s_cmp_lt_u32 s{S_IT}, {LIMIT}")
        a(f"s_cbranch_scc1 {lp}")
        a(f"{ld}:")
        a("s_mov_b64 exec, -1")

    def mismatch(self, rs, vA, vO, vT):
        a = self.a
        rs = list(rs)
        assert len(rs) >= 3
        a(f"v_bitop3_b32 v{vA}, v{rs[0]}, v{rs[1]}, v{rs[2]} bitop3:0x80")
        a(f"v_or3_b32 v{vO}, v{rs[0]}, v{rs[1]}, v{rs[2]}")
        i = 3
        while i < len(rs):
            r1 = rs[i]
            r2 = rs[i+1] if i+1 < len(rs) else rs[i]
            a(f"v_bitop3_b32 v{vA}, v{vA}, v{r1}, v{r2} bitop3:0x80")
            a(f"v_or3_b32 v{vO}, v{vO}, v{r1}, v{r2}")
            i += 2
        a(f"v_bitop3_b32 v{vA}, v{vA}, v{vO}, v{vT} bitop3:0x7e")

    def poll3(self, issue, r4, r16, vA, vO, vA2, vO2, vT, group, sleep=0):
        a = self.a
        lp = self.label("p3")
        ld = self.label("p3d")
        a(f"s_mov_b32 s{S_IT}, 0")
        a(f"{lp}:")
        issue()
        a("s_waitcnt vmcnt(0)")
        if r4:
            self.mismatch(r4, vA, vO, vT)
        if r16:
            self.mismatch(r16, vA2, vO2, vT)
        if r4 and r16:
            a(f"v_lshlrev_b32 v{vA}, {32-TAGB}, v{vA}")
            a(f"v_lshl_or_b32 v{vA}, v{vA2}, 16, v{vA}")
        elif r4:
            a(f"v_lshlrev_b32 v{vA}, {32-TAGB}, v{vA}")
        else:
            a(f"v_lshlrev_b32 v{vA}, 16, v{vA2}")
        if group == "quad":
            self.nop(2)
            a(f"v_or_b32_dpp v{vA}, v{vA}, v{vA} quad_perm:[1,0,3,2] row_mask:0xf bank_mask:0xf")
            self.nop(2)
            a(f"v_or_b32_dpp v{vA}, v{vA}, v{vA} quad_perm:[2,3,0,1] row_mask:0xf bank_mask:0xf")
        a(f"v_cmp_ne_u32 vcc, 0, v{vA}")
        a(f"s_add_u32 s{S_IT}, s{S_IT}, 1")
        if group == "wave":
            a(f"s_cmp_lt_u32 s{S_IT}, {LIMIT}")
            a(f"s_cbranch_scc0 {ld}")
            a(f"s_cbranch_vccnz {lp}")
            a(f"{ld}:")
            return
        if group == "g16":
            a(f"s_or_b32 s{S_TMP}, vcc_lo, vcc_hi")
            a(f"s_lshr_b32 s{S_TMP2}, s{S_TMP}, 16")
            a(f"s_or_b32 s{S_TMP}, s{S_TMP}, s{S_TMP2}")
            a(f"s_and_b32 s{S_TMP}, s{S_TMP}, 0xffff")
            a(f"s_mul_i32 s{S_TMP}, s{S_TMP}, 0x10001")
            a(f"s_mov_b32 exec_lo, s{S_TMP}")
            a(f"s_mov_b32 exec_hi, s{S_TMP}")
        else:
            a("s_mov_b64 exec, vcc")
        a(f"s_cbranch_execz {ld}")
        if sleep:
            a(f"s_sleep {sleep}")
        a(f"s_cmp_lt_u32 s{S_IT}, {LIMIT}")
        a(f"s_cbranch_scc1 {lp}")
        a(f"{ld}:")
        a("s_mov_b64 exec, -1")

    def fold16(self, sd, st):
        a = self.a
        a(f"s_or_b32 s{sd}, vcc_lo, vcc_hi")
        a(f"s_lshr_b32 s{st}, s{sd}, 16")
        a(f"s_or_b32 s{sd}, s{sd}, s{st}")
        a(f"s_and_b32 s{sd}, s{sd}, 0xffff")

    def poll_gated(self, iss_opp, iss_ml, ro, rm, vA, vO, vA2, vO2, vT, thr):
        a = self.a
        sAct, sGate, sMl = 99, 101, 96
        lp = self.label("pg")
        ld = self.label("pgd")
        sk = self.label("pgs")
        sp = self.label("pgp")
        a(f"s_mov_b32 s{S_IT}, 0")
        a(f"s_mov_b32 s{sAct}, 0xffff")
        a(f"s_mov_b32 s{sGate}, 0xffff")
        a(f"{lp}:")
        a(f"s_mul_i32 s{S_TMP}, s{sGate}, 0x10001")
        a(f"s_mov_b32 exec_lo, s{S_TMP}")
        a(f"s_mov_b32 exec_hi, s{S_TMP}")
        a(f"s_cbranch_execz {sk}")
        iss_opp()
        a(f"{sk}:")
        a(f"s_mul_i32 s{S_TMP}, s{sAct}, 0x10001")
        a(f"s_mov_b32 exec_lo, s{S_TMP}")
        a(f"s_mov_b32 exec_hi, s{S_TMP}")
        iss_ml()
        a("s_waitcnt vmcnt(0)")
        self.mismatch(rm, vA2, vO2, vT)
        self.mismatch(ro, vA, vO, vT)
        a(f"v_lshlrev_b32 v{vA2}, 16, v{vA2}")
        a(f"v_lshlrev_b32 v{vA}, {32-TAGB}, v{vA}")
        a(f"v_cmp_ne_u32 vcc, 0, v{vA2}")
        self.fold16(sMl, S_TMP)
        a(f"v_cmp_ne_u32 vcc, 0, v{vA}")
        self.fold16(sAct, S_TMP)
        a(f"s_or_b32 s{sAct}, s{sAct}, s{sMl}")
        a(f"s_cmp_eq_u32 s{sAct}, 0")
        a(f"s_cbranch_scc1 {ld}")
        a(f"s_andn2_b32 s{sGate}, s{sAct}, s{sMl}")
        a(f"s_bcnt1_i32_b32 s{S_TMP}, s{sAct}")
        a(f"s_cmp_le_u32 s{S_TMP}, {thr}")
        a(f"s_cselect_b32 s{sGate}, s{sAct}, s{sGate}")
        a(f"s_add_u32 s{S_IT}, s{S_IT}, 1")
        a(f"s_cmp_lt_u32 s{S_IT}, {LIMIT}")
        a(f"s_cbranch_scc1 {lp}")
        a(f"{ld}:")
        a("s_mov_b64 exec, -1")

    def poll_pipe(self, issue, nl, nreg, sets, F, vA, vO, vT, bits, group, delay):
        a = self.a
        lp = self.label("pq")
        ld = self.label("pqd")
        a(f"s_mov_b32 s{S_IT}, 0")
        issue(sets[0])
        a(f"s_sleep {delay}")
        issue(sets[1])
        a(f"{lp}:")
        for S in sets:
            a(f"s_waitcnt vmcnt({nl})")
            self.mismatch(range(S, S+nreg), vA, vO, vT)
            a(f"v_lshlrev_b32 v{vA}, {32-bits}, v{vA}")
            if group == "quad":
                self.nop(2)
                a(f"v_or_b32_dpp v{vA}, v{vA}, v{vA} quad_perm:[1,0,3,2] row_mask:0xf bank_mask:0xf")
                self.nop(2)
                a(f"v_or_b32_dpp v{vA}, v{vA}, v{vA} quad_perm:[2,3,0,1] row_mask:0xf bank_mask:0xf")
            a(f"v_cmp_ne_u32 vcc, 0, v{vA}")
            a("s_andn2_b64 exec, exec, vcc")
            sk = self.label("pqs")
            a(f"s_cbranch_execz {sk}")
            for i in range(nreg):
                a(f"v_mov_b32 v{F+i}, v{S+i}")
            a(f"{sk}:")
            a("s_mov_b64 exec, vcc")
            a(f"s_cbranch_execz {ld}")
            issue(S)
        a(f"s_add_u32 s{S_IT}, s{S_IT}, 1")
        a(f"s_cmp_lt_u32 s{S_IT}, {LIMIT}")
        a(f"s_cbranch_scc1 {lp}")
        a(f"{ld}:")
        a("s_mov_b64 exec, -1")

    def lds_bar(self, k, n, vA, vB):
        a = self.a
        lp = self.label("lb")
        ld = self.label("lbd")
        a("s_waitcnt lgkmcnt(0)")
        a(f"v_mov_b32 v{vA}, {L_CNT + 4*k}")
        a(f"v_mov_b32 v{vB}, 1")
        a("s_mov_b64 exec, 1")
        a(f"ds_add_u32 v{vA}, v{vB}")
        a("s_mov_b64 exec, -1")
        self.lds_wait(k, n, vA, vB, sleep=False)

    def lds_wait(self, k, n, vA, vB, sleep=True):
        a = self.a
        lp = self.label("lw")
        ld = self.label("lwd")
        a(f"v_mov_b32 v{vA}, {L_CNT + 4*k}")
        a(f"s_mov_b32 s{S_IT}, 0")
        a(f"{lp}:")
        a(f"ds_read_b32 v{vB}, v{vA}")
        a("s_waitcnt lgkmcnt(0)")
        a(f"v_readfirstlane_b32 s{S_TMP}, v{vB}")
        a(f"s_add_u32 s{S_IT}, s{S_IT}, 1")
        a(f"s_cmp_ge_u32 s{S_TMP}, {n}")
        a(f"s_cbranch_scc1 {ld}")
        if sleep:
            a("s_sleep 1")
        a(f"s_cmp_lt_u32 s{S_IT}, 400000")
        a(f"s_cbranch_scc1 {lp}")
        a(f"{ld}:")

    def tag32(self, r, vT):
        self.a(f"v_and_or_b32 v{r}, v{r}, {-(1 << TAGB)}, s{S_T3}")

    def masks(self, vM0, vM1, vt, four=True):
        a = self.a
        a(f"v_mov_b32 v{vt}, 0xffff")
        a(f"v_mov_b32 v{vM0}, s{S_HI16}")
        a(f"v_cndmask_b32 v{vM0}, v{vt}, v{vM0}, s[{S_B0}:{S_B0+1}]")
        if four:
            a(f"v_mov_b32 v{vt}, 0")
            a(f"v_cndmask_b32 v{vM1}, v{vt}, v{vM0}, s[{S_B1}:{S_B1+1}]")
            a(f"v_cndmask_b32 v{vM0}, v{vM0}, v{vt}, s[{S_B1}:{S_B1+1}]")

    def prologue(self):
        a = self.a
        a("s_cmp_ge_u32 s2, 256")
        a("s_cbranch_scc1 L_end")
        a("s_load_dwordx16 s[64:79], s[0:1], 0")
        a("s_load_dwordx8 s[80:87], s[0:1], 64")
        a("s_load_dwordx2 s[88:89], s[0:1], 104")
        a("v_lshrrev_b32 v1, 6, v0")
        a("v_and_b32 v0, 63, v0")
        a(f"s_mov_b32 s{S_B0}, 0xaaaaaaaa")
        a(f"s_mov_b32 s{S_B0+1}, 0xaaaaaaaa")
        a(f"v_readfirstlane_b32 s{S_WID}, v1")
        a(f"s_mov_b32 s{S_B1}, 0xcccccccc")
        a(f"s_mov_b32 s{S_B1+1}, 0xcccccccc")
        a(f"s_mov_b32 s{S_HI16}, 0xffff0000")
        a("s_waitcnt lgkmcnt(0)")
        a(f"s_load_dword s{S_E}, s[88:89], {WS_E}")
        self.srd(S_WS, 88, WS_SIZE)
        a(f"s_cmp_ge_u32 s{S_WID}, 4")
        a("s_cbranch_scc1 L_kv")
        if self.xl:
            a("s_and_b32 s95, s2, 7")
            a("s_lshl_b32 s95, s95, 5")
            a(f"s_and_b32 s{S_TMP}, s2, 0x18")
            a(f"s_or_b32 s95, s95, s{S_TMP}")
            a(f"s_lshr_b32 s{S_TMP}, s2, 5")
            a(f"s_or_b32 s95, s95, s{S_TMP}")

    def get_tag(self, vT):
        a = self.a
        a("s_waitcnt lgkmcnt(0)")
        a(f"s_add_u32 s{S_E}, s{S_E}, 1")
        a(f"s_and_b32 s{S_T}, s{S_E}, 0xffff")
        a(f"s_and_b32 s{S_T3}, s{S_E}, {(1 << TAGB) - 1}")
        a(f"v_mov_b32 v{vT}, s{S_T}")

    def kv(self):
        a = self.a
        a("L_kv:")
        if self.dbg:
            a(f"s_mov_b32 s{S_IT}, 0")
            a("s_cmp_lt_u32 s2, 128")
            a("s_cbranch_scc1 L_kv_dbg1")
            self.stamp(1, 8)
            a("s_branch L_kv_dbg2")
            a("L_kv_dbg1:")
            self.stamp(10, 8)
            a("L_kv_dbg2:")
        if self.dbg2:
            self.stamp(1, 8, [(1, True), (2, False)])
        vKa, vVa, vT, vM0, vM1, vt0, vt1, vt2 = 1, 2, 3, 4, 5, 6, 7, 8
        self.srd(S_K, 66, 0x2000000)
        self.srd(S_V, 68, 0x2000000)
        a(f"s_sub_u32 s{S_V4}, s{S_WID}, 4")
        if self.xl > 0:
            a(f"s_and_b32 s{S_BK}, s2, 31")
        else:
            a(f"s_and_b32 s{S_BK}, s2, 7")
            a(f"s_lshl_b32 s{S_BK}, s{S_BK}, 2")
            a(f"s_bfe_u32 s{S_TMP}, s2, 0x20003")
            a(f"s_add_u32 s{S_BK}, s{S_BK}, s{S_TMP}")
        a(f"s_lshr_b32 s{S_SP}, s2, 5")
        a(f"v_and_b32 v{vt0}, 3, v0")
        a(f"v_lshlrev_b32 v{vt0}, 4, v{vt0}")
        a(f"v_bfe_u32 v{vt1}, v0, 2, 2")
        a(f"v_lshl_add_u32 v{vt0}, v{vt1}, 8, v{vt0}")
        a(f"v_lshrrev_b32 v{vt1}, 4, v0")
        a(f"v_lshl_add_u32 v{vt0}, v{vt1}, 6, v{vt0}")
        a(f"v_lshlrev_b32 v{vt2}, 4, v0")
        if self.pf:
            self.srd(S_WD, 80, 512*1792*2)
        for i in range(1, 5):
            a(f"s_mov_b32 s{79+i}, {4096*i}")
        a(f"s_lshl_b32 s{S_TMP}, s{S_BK}, 20")
        KF, KM, KH = self.kf, self.km, self.kh
        assert 4*KF + 2*KM + 2*KH == 4096
        classes = [("f", KF, 0, 0, True), ("m", KM, 4*KF, 4, False), ("h", KH, 4*KF + 2*KM, 6, False)]
        used = []
        a(f"s_cmp_ge_u32 s{S_SP}, 6")
        a("s_cbranch_scc1 L_kvc_h")
        a(f"s_cmp_ge_u32 s{S_SP}, 4")
        a("s_cbranch_scc1 L_kvc_m")
        for (nm, K, key0, s0, front) in classes:
            a(f"L_kvc_{nm}:")
            gs = K // 16
            glo, nhi = gs // 8, gs % 8
            assert K % 16 == 0 and 3 <= glo and glo + (1 if nhi else 0) <= 5
            a(f"s_mul_i32 s{S_TMP2}, s{S_SP}, {K}")
            off = key0 - s0*K
            if off > 0:
                a(f"s_add_u32 s{S_TMP2}, s{S_TMP2}, {off}")
            elif off < 0:
                a(f"s_sub_u32 s{S_TMP2}, s{S_TMP2}, {-off}")
            a(f"s_lshl_b32 s{S_TMP2}, s{S_TMP2}, 8")
            a(f"s_add_u32 s{S_TMP}, s{S_TMP}, s{S_TMP2}")
            lo = f"L_kvp_{'f' if front else 'n'}{glo}"
            hi = f"L_kvp_{'f' if front else 'n'}{glo+1}"
            if nhi:
                a(f"s_mul_i32 s{S_TMP2}, s{S_V4}, {16*(glo+1)*256}")
                a(f"s_cmp_lt_u32 s{S_V4}, {nhi}")
                l2 = self.label("kvl")
                a(f"s_cbranch_scc0 {l2}")
                a(f"s_add_u32 s{S_TMP}, s{S_TMP}, s{S_TMP2}")
                a(f"s_branch {hi}")
                a(f"{l2}:")
                if (glo+1, front) not in used:
                    used.append((glo+1, front))
            a(f"s_mul_i32 s{S_TMP2}, s{S_V4}, {16*glo*256}")
            a(f"s_add_u32 s{S_TMP}, s{S_TMP}, s{S_TMP2}")
            if nhi:
                a(f"s_add_u32 s{S_TMP}, s{S_TMP}, {nhi*16*256}")
            a(f"s_branch {lo}")
            if (glo, front) not in used:
                used.append((glo, front))
        for k, (G, front) in enumerate(used):
            a(f"L_kvp_{'f' if front else 'n'}{G}:")
            if front:
                self.kv_path(G, self.na_front, self.p_front, k == len(used) - 1, front=True)
            else:
                self.kv_path(G, self.na_nf, self.p_nf, k == len(used) - 1, self.b0first)

    def kv_path(self, G, nA, P, last, b0first=False, front=False):
        a = self.a
        vKa, vVa, vT, vM0, vM1, vt0, vt1, vt2 = 1, 2, 3, 4, 5, 6, 7, 8
        vQ = 12
        vD = 16
        vS = 32
        vm, vl = 38, 39
        KR = 40
        nL = 4*G
        if G <= 4:
            kreg = [KR + 4*j for j in range(nL)]
            vreg = [104 + 4*j for j in range(nL)]
            pre = [("K", j) for j in range(nL)] + [("V", j) for j in range(nL)]
            post = []
            XR, AC, nch = KR, KR + 32, 2
        else:
            kreg = [KR + 4*j for j in range(nL)]
            vreg = [120 + 4*j for j in range(12)] + [KR + 4*j for j in range(8)]
            pre = [("K", j) for j in range(nL)] + [("V", j) for j in range(12)]
            post = [("V", j) for j in range(12, 20)]
            XR, AC, nch = 72, 112, 1
        so = ["0", "s80", "s81", "s82", "s83"]
        issued = []

        def ld(item):
            t, j = item
            srd, va, reg = (S_K, vKa, kreg[j]) if t == "K" else (S_V, vVa, vreg[j])
            a(f"buffer_load_dwordx4 v[{reg}:{reg+3}], v{va}, s[{srd}:{srd+3}], {so[j//4]} offen offset:{(j%4)*1024} nt")
        a(f"v_add_u32 v{vKa}, s{S_TMP}, v{vt0}")
        a(f"v_add_u32 v{vVa}, s{S_TMP}, v{vt2}")
        nA = min(nA, len(pre))
        if b0first:
            a("s_barrier")
        for it in pre[:nA]:
            ld(it)
        if not b0first:
            a("s_barrier")
        lall = self.label("kvall")
        if nA < len(pre):
            lf = [self.label("kvf") for _ in pre]
            a(f"v_mov_b32 v{vt0}, {L_CNT + (4*self.rel if front else 8)}")
            for idx in range(nA, len(pre)):
                a(f"s_waitcnt vmcnt({P-1})")
                a(f"ds_read_b32 v{vt1}, v{vt0}")
                a("s_waitcnt lgkmcnt(0)")
                a(f"v_readfirstlane_b32 s{S_TMP}, v{vt1}")
                a(f"s_cmp_ge_u32 s{S_TMP}, 4")
                a(f"s_cbranch_scc1 {lf[idx]}")
                ld(pre[idx])
            a(f"s_branch {lall}")
            for idx in range(nA, len(pre)):
                a(f"{lf[idx]}:")
                ld(pre[idx])
        a(f"{lall}:")
        issued = list(pre)
        self.masks(vM0, vM1, vt0)
        self.get_tag(vT)
        self.lds_wait(2, 4, vt0, vt1)
        self.stamp(8, 8, [])
        a(f"v_bfe_u32 v{vt0}, v0, 2, 2")
        a(f"v_lshlrev_b32 v{vt0}, 8, v{vt0}")
        a(f"v_lshrrev_b32 v{vt1}, 4, v0")
        a(f"v_lshl_add_u32 v{vt0}, v{vt1}, 6, v{vt0}")
        a(f"v_and_b32 v{vt1}, 3, v0")
        a(f"v_lshl_add_u32 v{vt0}, v{vt1}, 4, v{vt0}")
        a(f"ds_read_b128 v[{vQ}:{vQ+3}], v{vt0} offset:{L_QL}")
        a("s_waitcnt lgkmcnt(0)")

        def wait_for(item):
            n = len(issued) - 1 - issued.index(item)
            a(f"s_waitcnt vmcnt({n})")
        for J in range(G):
            wait_for(("K", 4*J+3))
            for jj in range(4):
                k = kreg[4*J+jj]
                d = vD + 4*jj
                a(f"v_mfma_f32_16x16x32_bf16 v[{d}:{d+3}], v[{k}:{k+3}], v[{vQ}:{vQ+3}], 0")
            self.nop(8)
            for jj in range(4):
                d = vD + 4*jj
                a(f"v_cndmask_b32 v{d}, v{d}, v{d+1}, s[{S_B0}:{S_B0+1}]")
                a(f"v_cndmask_b32 v{d+2}, v{d+2}, v{d+3}, s[{S_B0}:{S_B0+1}]")
                a(f"v_cndmask_b32 v{d}, v{d}, v{d+2}, s[{S_B1}:{S_B1+1}]")
            if post and J < 2:
                for it in post[4*J:4*J+4]:
                    ld(it)
                    issued.append(it)
            v0_, v1_, v2_, v3_ = vD, vD+4, vD+8, vD+12
            a(f"v_cndmask_b32 v{v0_+1}, v{v0_}, v{v1_}, s[{S_B0}:{S_B0+1}]")
            a(f"v_cndmask_b32 v{v0_+2}, v{v1_}, v{v0_}, s[{S_B0}:{S_B0+1}]")
            a(f"v_cndmask_b32 v{v2_+1}, v{v2_}, v{v3_}, s[{S_B0}:{S_B0+1}]")
            a(f"v_cndmask_b32 v{v2_+2}, v{v3_}, v{v2_}, s[{S_B0}:{S_B0+1}]")
            self.nop(1)
            a(f"v_add_f32_dpp v{v0_}, v{v0_+2}, v{v0_+1} quad_perm:[1,0,3,2] row_mask:0xf bank_mask:0xf")
            a(f"v_add_f32_dpp v{v2_}, v{v2_+2}, v{v2_+1} quad_perm:[1,0,3,2] row_mask:0xf bank_mask:0xf")
            a(f"v_cndmask_b32 v{v0_+1}, v{v0_}, v{v2_}, s[{S_B1}:{S_B1+1}]")
            a(f"v_cndmask_b32 v{v0_+2}, v{v2_}, v{v0_}, s[{S_B1}:{S_B1+1}]")
            self.nop(2)
            a(f"v_add_f32_dpp v{vS+J}, v{v0_+2}, v{v0_+1} quad_perm:[2,3,0,1] row_mask:0xf bank_mask:0xf")
        def rnd():
            for J in range(0, G - 1, 2):
                self.round2(vS+J, vS+J+1, vt0 if J % 4 == 0 else vt1)
            if G % 2:
                self.round1(vS+G-1)
        rnd()
        for J in range(G):
            a(f"v_mul_f32 v{vS+J}, 0x3db504f3, v{vS+J}")
        rnd()
        a(f"v_max3_f32 v{vm}, v{vS}, v{vS+1}, v{vS+2}")
        if G == 4:
            a(f"v_max_f32 v{vm}, v{vm}, v{vS+3}")
        elif G == 5:
            a(f"v_max3_f32 v{vm}, v{vm}, v{vS+3}, v{vS+4}")
        self.allreduce(vm, vt0, "v_max_f32")
        for J in range(G):
            a(f"v_sub_f32 v{vS+J}, v{vS+J}, v{vm}")
        for J in range(G):
            a(f"v_mul_f32 v{vS+J}, 0x3fb8aa3b, v{vS+J}")
        for J in range(G):
            a(f"v_exp_f32 v{vS+J}, v{vS+J}")
        self.nop(1)
        a(f"v_add_f32 v{vl}, v{vS}, v{vS+1}")
        for J in range(2, G):
            a(f"v_add_f32 v{vl}, v{vl}, v{vS+J}")
        for J in range(G):
            a(f"v_cvt_pk_bf16_f32 v{vS+J}, v{vS+J}, v{vS+J}")
        self.nop(1)
        for j in range(nL):
            J, jj = j//4, j % 4
            a(f"v_and_b32_dpp v{XR+2*j}, v{vS+J}, v{vM0} quad_perm:[{jj},{jj},{jj},{jj}] row_mask:0xf bank_mask:0xf")
            a(f"v_and_b32_dpp v{XR+2*j+1}, v{vS+J}, v{vM1} quad_perm:[{jj},{jj},{jj},{jj}] row_mask:0xf bank_mask:0xf")
        self.allreduce(vl, vt0, "v_add_f32")
        a(f"v_bfe_u32 v{vt0}, v0, 2, 2")
        a(f"v_lshlrev_b32 v{vt0}, 6, v{vt0}")
        a(f"s_lshl_b32 s{S_TMP}, s{S_V4}, 3")
        a(f"v_add_u32 v{vt0}, s{S_TMP}, v{vt0}")
        a("s_mov_b64 exec, 0x1111")
        a(f"ds_write_b32 v{vt0}, v{vm} offset:{L_MLW}")
        a(f"ds_write_b32 v{vt0}, v{vl} offset:{L_MLW+4}")
        a("s_mov_b64 exec, -1")
        for j in range(nL):
            wait_for(("V", j))
            v = vreg[j]
            p = (j & 1) if nch == 2 else 0
            d1 = AC + 8*p
            d2 = d1 + 4
            first = j < nch
            c1 = "0" if first else f"v[{d1}:{d1+3}]"
            c2 = "0" if first else f"v[{d2}:{d2+3}]"
            a(f"v_mfma_f32_16x16x16_bf16 v[{d1}:{d1+3}], v[{v}:{v+1}], v[{XR+2*j}:{XR+2*j+1}], {c1}")
            a(f"v_mfma_f32_16x16x16_bf16 v[{d2}:{d2+3}], v[{v+2}:{v+3}], v[{XR+2*j}:{XR+2*j+1}], {c2}")
        self.nop(8)
        if nch == 2:
            for r in range(8):
                a(f"v_add_f32 v{AC+r}, v{AC+r}, v{AC+8+r}")
        self.stamp(15, 8, [(15, False), (0, True)])
        a(f"s_lshl_b32 s{S_TMP}, s{S_V4}, 11")
        a(f"v_lshlrev_b32 v{vt0}, 4, v0")
        a(f"v_add_u32 v{vt0}, s{S_TMP}, v{vt0}")
        a(f"ds_write_b128 v{vt0}, v[{AC}:{AC+3}] offset:{L_OW}")
        a(f"ds_write_b128 v{vt0}, v[{AC+4}:{AC+7}] offset:{L_OW+1024}")
        a("s_waitcnt lgkmcnt(0)")
        a(f"v_mov_b32 v{vt1}, {L_CNT + 12}")
        a(f"v_mov_b32 v{vt2}, 1")
        a("s_mov_b64 exec, 1")
        a(f"ds_add_u32 v{vt1}, v{vt2}")
        a("s_mov_b64 exec, -1")
        a(f"s_cmp_ge_u32 s{S_V4}, 2")
        a("s_cbranch_scc1 L_kv_pf" if self.pf else "s_cbranch_scc1 L_end")
        if not last:
            a("s_branch L_kv_comb")
            return
        a("L_kv_comb:")
        self.lds_wait(3, 8, vt0, vt1, sleep=False)
        OW = 104
        MLr = 136
        a(f"s_lshl_b32 s{S_TMP}, s{S_V4}, 10")
        a(f"v_lshlrev_b32 v{vt0}, 4, v0")
        a(f"v_add_u32 v{vt0}, s{S_TMP}, v{vt0}")
        a(f"v_bfe_u32 v{vt1}, v0, 2, 2")
        a(f"v_lshlrev_b32 v{vt1}, 6, v{vt1}")
        for i in range(4):
            a(f"ds_read_b128 v[{MLr+4*i}:{MLr+4*i+3}], v{vt1} offset:{L_MLW+16*i}")
        for w in range(8):
            a(f"ds_read_b128 v[{OW+4*w}:{OW+4*w+3}], v{vt0} offset:{L_OW+2048*w}")
        a("s_waitcnt lgkmcnt(8)")
        a(f"v_max3_f32 v{vm}, v{MLr}, v{MLr+2}, v{MLr+4}")
        a(f"v_max3_f32 v{vm}, v{vm}, v{MLr+6}, v{MLr+8}")
        a(f"v_max3_f32 v{vm}, v{vm}, v{MLr+10}, v{MLr+12}")
        a(f"v_max_f32 v{vm}, v{vm}, v{MLr+14}")
        for w in range(8):
            a(f"v_sub_f32 v{MLr+2*w}, v{MLr+2*w}, v{vm}")
        for w in range(8):
            a(f"v_mul_f32 v{MLr+2*w}, 0x3fb8aa3b, v{MLr+2*w}")
        for w in range(8):
            a(f"v_exp_f32 v{MLr+2*w}, v{MLr+2*w}")
        self.nop(1)
        a(f"v_mul_f32 v{vl}, v{MLr}, v{MLr+1}")
        for w in range(1, 8):
            a(f"v_fmac_f32 v{vl}, v{MLr+2*w}, v{MLr+2*w+1}")
        a("s_waitcnt lgkmcnt(0)")
        O = 152
        for r in range(4):
            a(f"v_mul_f32 v{O+r}, v{MLr}, v{OW+r}")
        for w in range(1, 8):
            for r in range(4):
                a(f"v_fmac_f32 v{O+r}, v{MLr+2*w}, v{OW+4*w+r}")
        for r in range(4):
            self.tag32(O+r, vT)
        a(f"s_lshl_b32 s{S_TMP}, s{S_BK}, 3")
        a(f"s_add_u32 s{S_TMP}, s{S_TMP}, s{S_SP}")
        a(f"s_lshl_b32 s{S_TMP}, s{S_TMP}, 11")
        a(f"s_add_u32 s{S_TMP}, s{S_TMP}, {WS_OPP}")
        if self.xls:
            a(f"buffer_store_dwordx4 v[{O}:{O+3}], v{vt0}, s[{S_WS}:{S_WS+3}], s{S_TMP} offen")
        a(f"buffer_store_dwordx4 v[{O}:{O+3}], v{vt0}, s[{S_WS}:{S_WS+3}], s{S_TMP} offen sc1")
        a(f"s_cmp_lg_u32 s{S_V4}, 0")
        a("s_cbranch_scc1 L_kv_sig" if self.t2late == 2 else "s_cbranch_scc1 L_end")
        M4 = O + 4
        a(f"v_or_b32 v{M4}, v{vm}, v{vT}")
        a(f"v_and_or_b32 v{M4+1}, v{vl}, s{S_HI16}, v{vT}")
        a(f"v_lshl_or_b32 v{M4+2}, v{vl}, 16, v{vT}")
        a(f"v_mov_b32 v{M4+3}, v{vT}")
        a(f"v_lshlrev_b32 v{vt1}, 1, v{vt1}")
        a(f"s_lshl_b32 s{S_TMP}, s{S_BK}, 9")
        a(f"s_lshl_b32 s{S_TMP2}, s{S_SP}, 4")
        a(f"s_add_u32 s{S_TMP}, s{S_TMP}, s{S_TMP2}")
        a(f"s_add_u32 s{S_TMP}, s{S_TMP}, {WS_ML}")
        a("s_mov_b64 exec, 0x1111")
        if self.xls:
            a(f"buffer_store_dwordx4 v[{M4}:{M4+3}], v{vt1}, s[{S_WS}:{S_WS+3}], s{S_TMP} offen")
        a(f"buffer_store_dwordx4 v[{M4}:{M4+3}], v{vt1}, s[{S_WS}:{S_WS+3}], s{S_TMP} offen sc1")
        a("s_mov_b64 exec, -1")
        self.stamp(9, 8)
        if self.t2late == 2:
            a("L_kv_sig:")
            a(f"v_mov_b32 v{vt1}, {L_CNT + 20}")
            a(f"v_mov_b32 v{vt2}, 1")
            a("s_mov_b64 exec, 1")
            a(f"ds_add_u32 v{vt1}, v{vt2}")
            a("s_waitcnt lgkmcnt(0)")
        a("s_endpgm")
        if self.pf:
            a("L_kv_pf:")
            a(f"s_cmp_lt_u32 s{S_V4}, 4")
            a("s_cbranch_scc1 L_end")
            a(f"s_cmp_lt_u32 s2, {T2_0}")
            a("s_cbranch_scc1 L_end")
            a(f"s_cmp_ge_u32 s2, {T2_0+T2_N}")
            a("s_cbranch_scc1 L_end")
            self.srd(S_WG, 76, 512*1792*2)
            self.srd(S_WU, 78, 512*1792*2)
            ST = 100
            a(f"s_sub_u32 s{S_TMP}, s2, {T2_0}")
            a(f"s_and_b32 s{ST}, s{S_TMP}, 7")
            a(f"s_mul_i32 s{ST}, s{ST}, 7")
            a(f"s_lshr_b32 s{S_TMP}, s{S_TMP}, 3")
            a(f"s_add_u32 s{ST}, s{ST}, s{S_TMP}")
            a(f"s_sub_u32 s{S_V4}, s{S_V4}, 4")
            a(f"v_lshrrev_b32 v{vt0}, 2, v0")
            a(f"v_mul_u32_u24 v{vt0}, 3584, v{vt0}")
            a(f"v_and_b32 v{vt1}, 3, v0")
            a(f"v_lshl_add_u32 v{vt0}, v{vt1}, 4, v{vt0}")
            a(f"s_mul_i32 s{S_TMP}, s{S_V4}, {128*3584}")
            a(f"s_lshl_b32 s{S_TMP2}, s{ST}, 6")
            a(f"s_add_u32 s{S_TMP}, s{S_TMP}, s{S_TMP2}")
            for j in range(8):
                a(f"buffer_load_dwordx4 v[{40+8*j}:{43+8*j}], v{vt0}, s[{S_WG}:{S_WG+3}], s{S_TMP} offen")
                a(f"buffer_load_dwordx4 v[{44+8*j}:{47+8*j}], v{vt0}, s[{S_WU}:{S_WU+3}], s{S_TMP} offen")
                if j < 7:
                    a(f"s_add_u32 s{S_TMP}, s{S_TMP}, {16*3584}")
            if self.pf >= 2:
                a(f"v_lshlrev_b32 v{vt0}, 4, v0")
                a(f"s_lshl_b32 s{S_TMP}, s{ST}, 15")
                a(f"s_lshl_b32 s{S_TMP2}, s{S_V4}, 13")
                a(f"s_add_u32 s{S_TMP}, s{S_TMP}, s{S_TMP2}")
                for j in range(8):
                    a(f"buffer_load_dwordx4 v[{104+4*j}:{107+4*j}], v{vt0}, s[{S_WD}:{S_WD+3}], s{S_TMP} offen")
                    if j < 7:
                        a(f"s_add_u32 s{S_TMP}, s{S_TMP}, 1024")
            a("s_waitcnt vmcnt(0)")
            a("s_endpgm")

    def svc(self):
        a = self.a
        vT, vM0, vM1, vMe, vG, vB, vU = 1, 2, 3, 4, 5, 6, 7
        vA, vO, vt0, vt1, vt2, vt3 = 8, 9, 10, 11, 12, 13
        vC16 = 14
        vL16 = 15
        W0 = 16
        WA = 40
        WB = 56
        WC = 72
        SC = WC + 32
        if self.prio:
            a(f"s_setprio {self.prio}")
        self.srd(S_WQ, 70, 512*4096*2)
        self.srd(S_WO, 72, 512*4096*2)
        self.srd(S_WM, 84, 512*3072*2)
        self.srd(S_WG, 76, 512*1792*2)
        self.srd(S_WU, 78, 512*1792*2)
        self.srd(S_WD, 80, 512*1792*2)
        self.srd(S_X, 64, 4096)
        self.srd(S_C, 82, 4096)
        self.srd(S_OUT, 86, 4096)
        v = S_WID
        a(f"v_lshrrev_b32 v{vG}, 4, v0")
        a(f"v_bfe_u32 v{vB}, v0, 2, 2")
        a(f"v_and_b32 v{vU}, 3, v0")
        a(f"v_and_b32 v{vC16}, 15, v0")
        a(f"v_lshlrev_b32 v{vC16}, 4, v{vC16}")
        a(f"v_lshlrev_b32 v{vL16}, 4, v0")
        a(f"v_mov_b32 v{vt0}, 0")
        a(f"v_lshlrev_b32 v{vt1}, 2, v0")
        a(f"s_cmp_lg_u32 s{v}, 0")
        a("s_cbranch_scc1 L_s_nz")
        a("s_mov_b64 exec, 0xffff")
        a(f"ds_write_b32 v{vt1}, v{vt0} offset:{L_CNT}")
        a("s_mov_b64 exec, -1")
        a("L_s_nz:")

        def t1_loads():
            SROW = 101
            a(f"s_lshr_b32 s{S_TMP}, {self.SP2}, 3")
            a(f"s_lshl_b32 s{SROW}, s{S_TMP}, 7")
            a(f"s_bfe_u32 s{S_TMP}, {self.SP2}, 0x10002")
            a(f"s_lshl_b32 s{S_TMP}, s{S_TMP}, 6")
            a(f"s_add_u32 s{SROW}, s{SROW}, s{S_TMP}")
            a(f"s_lshr_b32 s{S_TMP}, s{v}, 1")
            a(f"s_lshl_b32 s{S_TMP}, s{S_TMP}, 5")
            a(f"s_add_u32 s{SROW}, s{SROW}, s{S_TMP}")
            a(f"s_and_b32 s{S_TMP}, s{v}, 1")
            a(f"s_lshl_b32 s{S_TMP}, s{S_TMP}, 2")
            a(f"s_add_u32 s{SROW}, s{SROW}, s{S_TMP}")
            a(f"s_lshl_b32 s{S_TMP}, s{SROW}, 10")
            a(f"s_and_b32 s{S_TMP2}, {self.SP2}, 3")
            a(f"s_lshl_b32 s{S_TMP2}, s{S_TMP2}, 8")
            a(f"s_add_u32 s{S_TMP}, s{S_TMP}, s{S_TMP2}")
            a(f"v_lshl_add_u32 v{vt0}, v{vG}, 10, v{vC16}")
            for j in range(4):
                a(f"buffer_load_dwordx4 v[{WB+4*j}:{WB+4*j+3}], v{vt0}, s[{S_WO}:{S_WO+3}], s{S_TMP} offen nt")
                if j < 3:
                    a(f"s_add_u32 s{S_TMP}, s{S_TMP}, 8192")

        a(f"s_cmp_ge_u32 s2, {NFRONT}")
        a("s_cbranch_scc1 L_s_nf")
        SK0 = S_R
        a(f"s_and_b32 s{SK0}, s2, 7")
        a(f"s_lshl_b32 s{SK0}, s{SK0}, 6")
        a(f"s_cmp_ge_u32 s2, {F1A_N}")
        a("s_cbranch_scc1 L_s_nof1a")
        CC = W0
        a(f"s_lshl_b32 s{S_TMP}, s{v}, 4")
        a(f"s_add_u32 s{S_TMP}, s{S_TMP}, s{SK0}")
        a(f"v_lshlrev_b32 v{vt0}, 10, v{vB}")
        a(f"v_lshl_add_u32 v{vt0}, v{vG}, 3, v{vt0}")
        a(f"s_lshl_b32 s{S_TMP2}, s{S_TMP}, 1")
        a(f"buffer_load_dwordx2 v[{CC}:{CC+1}], v{vt0}, s[{S_C}:{S_C+3}], s{S_TMP2} offen")
        a(f"v_mul_u32_u24 v{vt0}, {4*6144}, v{vG}")
        a(f"v_add_u32 v{vt0}, v{vt0}, v{vC16}")
        a(f"s_mul_i32 s{S_TMP}, s{S_TMP}, 6144")
        a(f"s_lshr_b32 s{S_TMP2}, s2, 3")
        a(f"s_lshl_b32 s{S_TMP2}, s{S_TMP2}, 8")
        a(f"s_add_u32 s{S_TMP}, s{S_TMP}, s{S_TMP2}")
        for j in range(4):
            a(f"buffer_load_dwordx4 v[{WC+4*j}:{WC+4*j+3}], v{vt0}, s[{S_WM}:{S_WM+3}], s{S_TMP} offen nt")
            if j < 3:
                a(f"s_add_u32 s{S_TMP}, s{S_TMP}, 6144")
        a("L_s_nof1a:")
        XS = SC
        XO = W0 + 4
        a(f"v_lshlrev_b32 v{vt0}, 10, v{vB}")
        a(f"v_lshl_add_u32 v{vt0}, v{vG}, 8, v{vt0}")
        a(f"v_lshl_add_u32 v{vt0}, v{vU}, 6, v{vt0}")
        for i in range(4):
            a(f"buffer_load_dwordx4 v[{XS+4*i}:{XS+4*i+3}], v{vt0}, s[{S_X}:{S_X+3}], 0 offen offset:{16*i}")
        SRB0 = 97
        a(f"s_lshr_b32 s{S_TMP}, s{v}, 1")
        a(f"s_lshl_b32 s{S_TMP}, s{S_TMP}, 5")
        a(f"s_add_u32 s{SRB0}, s{SK0}, s{S_TMP}")
        a(f"s_and_b32 s{S_TMP}, s{v}, 1")
        a(f"s_lshl_b32 s{S_TMP}, s{S_TMP}, 2")
        a(f"s_add_u32 s{SRB0}, s{SRB0}, s{S_TMP}")
        a(f"v_lshlrev_b32 v{vt0}, 10, v{vB}")
        a(f"v_lshl_add_u32 v{vt0}, v{vG}, 1, v{vt0}")
        a(f"s_lshl_b32 s{S_TMP}, s{SRB0}, 1")
        for j in range(4):
            a(f"buffer_load_ushort v{XO+j}, v{vt0}, s[{S_X}:{S_X+3}], s{S_TMP} offen offset:{16*j}")
        a(f"v_lshl_add_u32 v{vt0}, v{vG}, 13, v{vC16}")
        a(f"s_lshl_b32 s{S_TMP}, s{SRB0}, 13")
        a(f"s_lshr_b32 s{S_TMP2}, s2, 3")
        a(f"s_lshl_b32 s{S_TMP2}, s{S_TMP2}, 9")
        a(f"s_add_u32 s{S_TMP}, s{S_TMP}, s{S_TMP2}")
        for j in range(4):
            a(f"buffer_load_dwordx4 v[{WA+4*j}:{WA+4*j+3}], v{vt0}, s[{S_WQ}:{S_WQ+3}], s{S_TMP} offen nt")
            a(f"buffer_load_dwordx4 v[{WB+4*j}:{WB+4*j+3}], v{vt0}, s[{S_WQ}:{S_WQ+3}], s{S_TMP} offen offset:256 nt")
            if j < 3:
                a(f"s_add_u32 s{S_TMP}, s{S_TMP}, {8*8192}")
        a("s_waitcnt lgkmcnt(0)")
        a("s_barrier")
        self.masks(vM0, vM1, vt0)
        self.get_tag(vT)
        self.stamp(0, W0+8, [])
        a(f"s_cmp_ge_u32 s2, {F1A_N}")
        a("s_cbranch_scc1 L_s_nof1b")
        DU = W0 + 8
        BB = W0 + 12
        a("s_waitcnt vmcnt(20)")
        for i in range(2):
            a(f"v_lshlrev_b32 v{DU+2*i}, 16, v{CC+i}")
            a(f"v_and_b32 v{DU+2*i+1}, s{S_HI16}, v{CC+i}")
        for i in range(4):
            a(f"v_mul_f32 v{BB+i}, 0xbfb8aa3b, v{DU+i}")
        for i in range(4):
            a(f"v_exp_f32 v{BB+i}, v{BB+i}")
        self.nop(1)
        for i in range(4):
            a(f"v_add_f32 v{BB+i}, 1.0, v{BB+i}")
        for i in range(4):
            a(f"v_rcp_f32 v{BB+i}, v{BB+i}")
        self.nop(1)
        for i in range(4):
            a(f"v_mul_f32 v{DU+i}, v{DU+i}, v{BB+i}")
        for i in range(4):
            a(f"v_cvt_pk_bf16_f32 v{DU+i}, v{DU+i}, v{DU+i}")
        XB = W0 + 12
        D1, D2 = WC+16, WC+20
        self.gemv_x_build(DU, 4, XB, vM0, vM1)
        a("s_waitcnt vmcnt(16)")
        self.gemv_mfma(WC, 4, XB, D1, D2)
        self.nop(8)

        def modp_addr():
            a(f"s_and_b32 s{S_TMP}, s2, 7")
            a(f"s_lshl_b32 s{S_TMP}, s{S_TMP}, 3")
            a(f"s_lshr_b32 s{S_TMP2}, s2, 3")
            a(f"s_add_u32 s{S_TMP}, s{S_TMP}, s{S_TMP2}")
            a(f"s_lshl_b32 s{S_TMP}, s{S_TMP}, 11")
            a(f"s_add_u32 s{S_TMP}, s{S_TMP}, {WS_MODP}")
        self.cu_reduce([(D1, D2)], 0, L_OW, modp_addr, vt0, vt1, vT, vL16, WC)
        self.stamp(1, W0+8, [])
        a("L_s_nof1b:")
        XF = SC + 16
        a("s_waitcnt vmcnt(8)")
        for i in range(16):
            a(f"v_lshlrev_b32 v{XF+2*i}, 16, v{XS+i}")
            a(f"v_and_b32 v{XF+2*i+1}, s{S_HI16}, v{XS+i}")
        vMean, vVar = W0, W0+1
        Y = W0 + 8
        self.ln_sum(XF, 32, vMean, vt0)
        self.allreduce(vMean, vt0, "v_add_f32")
        a(f"v_mul_f32 v{vMean}, 0x3b000000, v{vMean}")
        for i in range(32):
            a(f"v_sub_f32 v{XF+i}, v{XF+i}, v{vMean}")
        a(f"v_mul_f32 v{vVar}, v{XF}, v{XF}")
        a(f"v_mul_f32 v{vt0}, v{XF+1}, v{XF+1}")
        for i in range(2, 32, 2):
            a(f"v_fmac_f32 v{vVar}, v{XF+i}, v{XF+i}")
            a(f"v_fmac_f32 v{vt0}, v{XF+i+1}, v{XF+i+1}")
        a(f"v_add_f32 v{vVar}, v{vVar}, v{vt0}")
        self.allreduce(vVar, vt0, "v_add_f32")
        a(f"v_mul_f32 v{vVar}, 0x3b000000, v{vVar}")
        self.ln_fin(vMean, vVar, vt0)
        for j in range(4):
            a(f"v_lshlrev_b32 v{Y+j}, 16, v{XO+j}")
        self.ln_norm(Y, 4, vMean, vVar, vt0, vt1)
        P0 = WC
        a(f"v_lshlrev_b32 v{vt2}, 14, v{vU}")
        a(f"v_lshl_add_u32 v{vt2}, v{vB}, 6, v{vt2}")
        a(f"v_lshl_add_u32 v{vt2}, v{vG}, 4, v{vt2}")
        a(f"s_bfe_u32 s{S_TMP}, s2, 0x20001")
        a(f"s_lshl_b32 s{S_SO}, s{S_TMP}, 11")
        a(f"s_and_b32 s{S_TMP}, s{v}, 1")
        a(f"s_lshl_b32 s{S_TMP}, s{S_TMP}, 10")
        a(f"s_add_u32 s{S_SO}, s{S_SO}, s{S_TMP}")
        a(f"s_and_b32 s{S_TMP}, s2, 1")
        a(f"s_lshl_b32 s{S_TMP}, s{S_TMP}, 1")
        a(f"s_lshr_b32 s{S_TMP2}, s{v}, 1")
        a(f"s_add_u32 s{S_TMP}, s{S_TMP}, s{S_TMP2}")
        a(f"s_lshl_b32 s{S_TMP}, s{S_TMP}, 8")
        a(f"s_add_u32 s{S_SO}, s{S_SO}, s{S_TMP}")
        a(f"s_add_u32 s{S_SO}, s{S_SO}, {WS_MODP}")
        a(f"s_add_u32 s97, s{S_SO}, {4*8*2048}")
        a(f"s_add_u32 s98, s{S_SO}, {4*2048}")
        a(f"s_add_u32 s99, s{S_SO}, {4*8*2048 + 4*2048}")

        def iss():
            for q, sreg in enumerate([S_SO, 97, 98, 99]):
                a(f"buffer_load_dwordx4 v[{P0+4*q}:{P0+4*q+3}], v{vt2}, s[{S_WS}:{S_WS+3}], s{sreg} offen sc1")
        self.poll(iss, list(range(P0, P0+16)), vA, vO, vT)
        self.stamp(2, W0+20, [])
        SA, CA = P0, P0+8
        for r in range(4):
            a(f"v_add_f32 v{SA+r}, v{SA+r}, v{SA+4+r}")
            a(f"v_add_f32 v{CA+r}, v{CA+r}, v{CA+4+r}")
        xs = [SA+r for r in range(4)] + [CA+r for r in range(4)]
        self.nop(1)
        for x in xs:
            a(f"v_add_f32_dpp v{x}, v{x}, v{x} quad_perm:[1,0,3,2] row_mask:0xf bank_mask:0xf")
        for x in xs:
            a(f"v_add_f32_dpp v{x}, v{x}, v{x} quad_perm:[2,3,0,1] row_mask:0xf bank_mask:0xf")
        self.round2(SA, SA+1, vt0)
        self.round2(SA+2, SA+3, vt1)
        self.round2(CA, CA+1, vt0)
        self.round2(CA+2, CA+3, vt1)
        self.modulate(Y, 4, SA, CA, vt0, vt1, clean=True)
        XB = W0 + 12
        D1, D2, D3, D4 = W0, W0+4, WC+16, WC+20
        self.gemv_x_build(Y, 4, XB, vM0, vM1)
        self.nop(2)
        self.gemv_mfma(WA, 4, XB, D1, D2)
        self.gemv_mfma(WB, 4, XB, D3, D4)
        self.nop(8)

        def qp_addr():
            a(f"s_and_b32 s{S_TMP}, s2, 7")
            a(f"s_lshl_b32 s{S_TMP}, s{S_TMP}, 5")
            a(f"s_lshr_b32 s{S_TMP2}, s2, 3")
            a(f"s_lshl_b32 s{S_TMP2}, s{S_TMP2}, 1")
            a(f"s_add_u32 s{S_TMP}, s{S_TMP}, s{S_TMP2}")
            a(f"s_lshr_b32 s{S_TMP2}, s{v}, 1")
            a(f"s_add_u32 s{S_TMP}, s{S_TMP}, s{S_TMP2}")
            a(f"s_lshl_b32 s{S_TMP}, s{S_TMP}, 11")
            a(f"s_add_u32 s{S_TMP}, s{S_TMP}, {WS_QP}")
        self.cu_reduce([(D1, D2), (D3, D4)], 1, L_RP, qp_addr, vt0, vt1, vT, vL16, WC+24)
        a(f"v_mov_b32 v{vt0}, {L_CNT+16}")
        a(f"v_mov_b32 v{vt1}, 1")
        a("s_mov_b64 exec, 1")
        a(f"ds_add_u32 v{vt0}, v{vt1}")
        a("s_mov_b64 exec, -1")
        self.stamp(3, W0+20)
        a("s_branch L_s_join")
        STILE = 100
        vCc = W0

        def t2_wloads():
            a(f"s_sub_u32 s{S_TMP}, s2, {T2_0}")
            a(f"s_and_b32 s{STILE}, s{S_TMP}, 7")
            a(f"s_mul_i32 s{STILE}, s{STILE}, 7")
            a(f"s_lshr_b32 s{S_TMP}, s{S_TMP}, 3")
            a(f"s_add_u32 s{STILE}, s{STILE}, s{S_TMP}")
            a(f"v_mul_u32_u24 v{vt0}, {32*3584}, v{vG}")
            a(f"v_and_b32 v{vt1}, 15, v0")
            a(f"v_lshl_add_u32 v{vt0}, v{vt1}, 2, v{vt0}")
            a(f"s_mul_i32 s{S_TMP}, s{v}, {128*3584}")
            a(f"s_lshl_b32 s{S_TMP2}, s{STILE}, 6")
            a(f"s_add_u32 s{S_TMP}, s{S_TMP}, s{S_TMP2}")
            for t in range(32):
                a(f"buffer_load_dword v{WC+t}, v{vt0}, s[{S_WG}:{S_WG+3}], s{S_TMP} offen nt")
                a(f"buffer_load_dword v{WC+32+t}, v{vt0}, s[{S_WU}:{S_WU+3}], s{S_TMP} offen nt")
                if t < 31:
                    a(f"s_add_u32 s{S_TMP}, s{S_TMP}, 3584")

        def f1b_loads():
            a(f"s_sub_u32 s{S_TMP}, s2, {F1B_0}")
            a(f"s_and_b32 s{STILE}, s{S_TMP}, 7")
            a(f"s_lshl_b32 s{STILE}, s{STILE}, 3")
            a(f"s_lshr_b32 s{S_TMP}, s{S_TMP}, 3")
            a(f"s_add_u32 s{STILE}, s{STILE}, s{S_TMP}")
            a(f"s_add_u32 s{STILE}, s{STILE}, 32")
            a(f"v_lshlrev_b32 v{vt0}, 10, v{vB}")
            a(f"v_lshl_add_u32 v{vt0}, v{vG}, 6, v{vt0}")
            a(f"v_lshl_add_u32 v{vt0}, v{vU}, 4, v{vt0}")
            a(f"s_lshl_b32 s{S_TMP}, s{v}, 8")
            a(f"buffer_load_dwordx4 v[{vCc}:{vCc+3}], v{vt0}, s[{S_C}:{S_C+3}], s{S_TMP} offen")
            a(f"v_mul_u32_u24 v{vt0}, {32*6144}, v{vG}")
            a(f"v_and_b32 v{vt1}, 15, v0")
            a(f"v_lshl_add_u32 v{vt0}, v{vt1}, 2, v{vt0}")
            a(f"s_mul_i32 s{S_TMP}, s{v}, {128*6144}")
            a(f"s_lshl_b32 s{S_TMP2}, s{STILE}, 6")
            a(f"s_add_u32 s{S_TMP}, s{S_TMP}, s{S_TMP2}")
            for t in range(32):
                a(f"buffer_load_dword v{WC+t}, v{vt0}, s[{S_WM}:{S_WM+3}], s{S_TMP} offen nt")
                if t < 31:
                    a(f"s_add_u32 s{S_TMP}, s{S_TMP}, 6144")

        def f1b_compute():
            DU = W0 + 8
            BB = W0 + 16
            ACC = W0
            a("s_waitcnt vmcnt(32)")
            for i in range(4):
                a(f"v_lshlrev_b32 v{DU+2*i}, 16, v{vCc+i}")
                a(f"v_and_b32 v{DU+2*i+1}, s{S_HI16}, v{vCc+i}")
            for i in range(8):
                a(f"v_mul_f32 v{BB+i}, 0xbfb8aa3b, v{DU+i}")
            for i in range(8):
                a(f"v_exp_f32 v{BB+i}, v{BB+i}")
            self.nop(1)
            for i in range(8):
                a(f"v_add_f32 v{BB+i}, 1.0, v{BB+i}")
            for i in range(8):
                a(f"v_rcp_f32 v{BB+i}, v{BB+i}")
            self.nop(1)
            for i in range(8):
                a(f"v_mul_f32 v{DU+i}, v{DU+i}, v{BB+i}")
            for i in range(8):
                a(f"v_cvt_pk_bf16_f32 v{DU+i}, v{DU+i}, v{DU+i}")
            self.nop(1)
            for T in range(8):
                us = T//2
                bb = BB + 4*(T & 1)
                for j in range(4):
                    a(f"v_and_b32_dpp v{bb+j}, v{DU+4*(T%2)+j}, v{vMe} quad_perm:[{us},{us},{us},{us}] row_mask:0xf bank_mask:0xf")
                a(f"s_waitcnt vmcnt({28 - 4*T})")
                self.nop(1)
                c = "0" if T == 0 else f"v[{ACC}:{ACC+3}]"
                a(f"v_mfma_f32_16x16x32_bf16 v[{ACC}:{ACC+3}], v[{WC+4*T}:{WC+4*T+3}], v[{bb}:{bb+3}], {c}")
            self.nop(8)
            a(f"s_lshl_b32 s{S_TMP}, s{v}, 10")
            a(f"v_add_u32 v{vt0}, s{S_TMP}, v{vL16}")
            a(f"ds_write_b128 v{vt0}, v[{ACC}:{ACC+3}] offset:{L_F1P}")
            self.lds_bar(0, 4, vt0, vt1)
            a(f"s_lshl_b32 s{S_TMP}, s{v}, 2")
            a(f"v_add_u32 v{vt0}, s{S_TMP}, v{vL16}")
            for i in range(4):
                a(f"ds_read_b32 v{DU+i}, v{vt0} offset:{L_F1P+1024*i}")
            a("s_waitcnt lgkmcnt(0)")
            a(f"v_add_f32 v{DU}, v{DU}, v{DU+1}")
            a(f"v_add_f32 v{DU+2}, v{DU+2}, v{DU+3}")
            a(f"v_add_f32 v{DU}, v{DU}, v{DU+2}")
            a(f"v_cvt_pk_bf16_f32 v{DU}, v{DU}, v{DU}")
            a(f"v_lshl_or_b32 v{DU}, v{DU}, 16, v{vT}")
            a(f"v_mul_u32_u24 v{vt0}, {3072*4}, v{vB}")
            a(f"v_lshl_add_u32 v{vt0}, v{vG}, 5, v{vt0}")
            a(f"v_and_b32 v{vt1}, 1, v0")
            a(f"v_lshl_add_u32 v{vt0}, v{vt1}, 2, v{vt0}")
            a(f"s_lshl_b32 s{S_TMP}, s{STILE}, 7")
            a(f"s_lshl_b32 s{S_TMP2}, s{v}, 3")
            a(f"s_add_u32 s{S_TMP}, s{S_TMP}, s{S_TMP2}")
            a(f"s_add_u32 s{S_TMP}, s{S_TMP}, {WS_MOD}")
            a("s_mov_b32 exec_lo, 0x33333333")
            a("s_mov_b32 exec_hi, 0x33333333")
            a(f"buffer_store_dword v{DU}, v{vt0}, s[{S_WS}:{S_WS+3}], s{S_TMP} offen sc1")
            a("s_mov_b64 exec, -1")

        a("L_s_nf:")
        if self.wearly:
            t1_loads()
            a(f"s_cmp_ge_u32 s2, {F1B_0}")
            a("s_cbranch_scc1 L_s_nf1b")
            t2_wloads()
            a("s_branch L_s_nf1c")
            a("L_s_nf1b:")
            a(f"s_cmp_ge_u32 s2, {F1B_0 + F1B_N}")
            a("s_cbranch_scc1 L_s_nf1c")
            f1b_loads()
            a("L_s_nf1c:")
        a("s_waitcnt lgkmcnt(0)")
        a("s_barrier")
        self.get_tag(vT)
        self.masks(vM0, vM1, vt0)
        self.masks(vMe, None, vt0, four=False)
        self.stamp(0, W0+8, [])
        if self.wearly:
            a(f"s_cmp_lt_u32 s2, {F1B_0}")
            a("s_cbranch_scc1 L_s_join")
            a(f"s_cmp_ge_u32 s2, {F1B_0 + F1B_N}")
            a("s_cbranch_scc1 L_s_join")
            f1b_compute()
        a("L_s_join:")
        QD = W0
        a(f"v_lshrrev_b32 v{vt2}, 5, v0")
        a(f"v_lshlrev_b32 v{vt2}, 16, v{vt2}")
        a(f"v_bfe_u32 v{vt3}, v0, 4, 1")
        a(f"v_lshl_add_u32 v{vt2}, v{vt3}, 10, v{vt2}")
        a(f"v_lshl_add_u32 v{vt2}, v{vB}, 8, v{vt2}")
        a(f"v_lshl_add_u32 v{vt2}, v{vU}, 4, v{vt2}")
        if self.xl > 0:
            a(f"s_and_b32 s{S_TMP}, s2, 7")
        else:
            a(f"s_bfe_u32 s{S_TMP}, s2, 0x20003")
            a(f"s_and_b32 s{S_TMP2}, s2, 1")
            a(f"s_lshl_b32 s{S_TMP2}, s{S_TMP2}, 2")
            a(f"s_add_u32 s{S_TMP}, s{S_TMP}, s{S_TMP2}")
        a(f"s_lshl_b32 s{S_TMP}, s{S_TMP}, 2")
        a(f"s_add_u32 s{S_TMP}, s{S_TMP}, s{v}")
        a(f"s_lshl_b32 s{S_TMP}, s{S_TMP}, 11")
        a(f"s_bfe_u32 s{S_TMP2}, s2, {'0x20003' if self.xl > 0 else '0x20001'}")
        a(f"s_lshl_b32 s{S_TMP2}, s{S_TMP2}, 6")
        a(f"s_add_u32 s{S_TMP}, s{S_TMP}, s{S_TMP2}")
        a(f"s_add_u32 s{S_SO}, s{S_TMP}, {WS_QP}")
        a(f"s_add_u32 s97, s{S_SO}, {1 << 17}")
        a(f"s_add_u32 s98, s{S_SO}, {2 << 17}")
        a(f"s_add_u32 s99, s{S_SO}, {3 << 17}")

        def iss():
            for q, sreg in enumerate([S_SO, 97, 98, 99]):
                a(f"buffer_load_dwordx4 v[{QD+4*q}:{QD+4*q+3}], v{vt2}, s[{S_WS}:{S_WS+3}], s{sreg} offen sc1")
        self.poll(iss, list(range(QD, QD+16)), vA, vO, vT)
        for r in range(4):
            a(f"v_add_f32 v{QD+r}, v{QD+r}, v{QD+4+r}")
            a(f"v_add_f32 v{QD+8+r}, v{QD+8+r}, v{QD+12+r}")
        for r in range(4):
            a(f"v_add_f32 v{QD+r}, v{QD+r}, v{QD+8+r}")
        self.nop(2)
        a(f"v_permlane32_swap_b32 v{QD}, v{QD+2}")
        a(f"v_permlane32_swap_b32 v{QD+1}, v{QD+3}")
        a(f"v_add_f32 v{QD}, v{QD}, v{QD+2}")
        a(f"v_add_f32 v{QD+1}, v{QD+1}, v{QD+3}")
        a(f"v_cvt_pk_bf16_f32 v{QD}, v{QD}, v{QD+1}")
        a(f"v_lshlrev_b32 v{vt0}, 6, v{vB}")
        a(f"v_lshrrev_b32 v{vt1}, 5, v0")
        a(f"v_lshl_add_u32 v{vt0}, v{vt1}, 5, v{vt0}")
        a(f"v_lshl_add_u32 v{vt0}, v{vt3}, 3, v{vt0}")
        a(f"v_lshl_add_u32 v{vt0}, v{vU}, 1, v{vt0}")
        a(f"s_lshl_b32 s{S_TMP}, s{v}, 8")
        a(f"v_add_u32 v{vt0}, s{S_TMP}, v{vt0}")
        a(f"ds_write_b16 v{vt0}, v{QD} offset:{L_QL}")
        a(f"ds_write_b16_d16_hi v{vt0}, v{QD} offset:{L_QL+16}")
        a("s_waitcnt lgkmcnt(0)")
        a(f"v_mov_b32 v{vt0}, {L_CNT+8}")
        a(f"v_mov_b32 v{vt1}, 1")
        a("s_mov_b64 exec, 1")
        a(f"ds_add_u32 v{vt0}, v{vt1}")
        a("s_mov_b64 exec, -1")
        self.stamp(4, W0+20)
        SBC = WA
        if self.wearly:
            a(f"s_cmp_ge_u32 s2, {NFRONT}")
            a("s_cbranch_scc1 L_s_prep_done")
            t1_loads()
        else:
            t1_loads()
            a(f"s_cmp_lt_u32 s2, {NFRONT}")
            a("s_cbranch_scc1 L_s_prep_done")
            a(f"s_cmp_ge_u32 s2, {F1B_0}")
            a("s_cbranch_scc1 L_s_nf1b")
            if not self.t2late:
                t2_wloads()
            a("s_branch L_s_prep_done")
            a("L_s_nf1b:")
            a(f"s_cmp_ge_u32 s2, {F1B_0 + F1B_N}")
            a("s_cbranch_scc1 L_s_prep_done")
            f1b_loads()
            f1b_compute()
        a("L_s_prep_done:")
        OA, OB, MLr = W0, W0+4, W0+8
        a(f"v_lshlrev_b32 v{vt2}, 17, v{vB}")
        a(f"v_lshl_add_u32 v{vt2}, v{vU}, 11, v{vt2}")
        a(f"v_lshl_add_u32 v{vt2}, v{vG}, 4, v{vt2}")
        a(f"s_lshr_b32 s{S_TMP}, {self.SP2}, 5")
        a(f"s_lshl_b32 s{S_SO}, s{S_TMP}, 14")
        a(f"s_and_b32 s{S_TMP}, s{v}, 1")
        a(f"s_lshl_b32 s{S_TMP}, s{S_TMP}, 10")
        a(f"s_add_u32 s{S_SO}, s{S_SO}, s{S_TMP}")
        a(f"s_bfe_u32 s{S_TMP}, {self.SP2}, 0x10002")
        a(f"s_lshl_b32 s{S_TMP}, s{S_TMP}, 1")
        a(f"s_lshr_b32 s{S_TMP2}, s{v}, 1")
        a(f"s_add_u32 s{S_TMP}, s{S_TMP}, s{S_TMP2}")
        a(f"s_lshl_b32 s{S_TMP}, s{S_TMP}, 8")
        a(f"s_add_u32 s{S_SO}, s{S_SO}, s{S_TMP}")
        a(f"s_bfe_u32 s{S_TMP}, {self.SP2}, 0x20003")
        a(f"s_lshl_b32 s{S_TMP2}, s{S_TMP}, 6")
        a(f"s_add_u32 s{S_SO}, s{S_SO}, s{S_TMP2}")
        a(f"s_add_u32 s{S_SO}, s{S_SO}, {WS_OPP}")
        a(f"s_add_u32 s97, s{S_SO}, 8192")
        a(f"v_lshlrev_b32 v{vt3}, 12, v{vB}")
        a(f"v_lshl_add_u32 v{vt3}, v{vU}, 4, v{vt3}")
        a(f"s_lshr_b32 s98, {self.SP2}, 3")
        a(f"s_lshl_b32 s98, s98, 7")
        a(f"s_add_u32 s98, s98, {WS_ML}")
        if self.pt:
            a(f"s_lshl_b32 s{S_TMP}, {self.SP2}, 11")
            a(f"s_add_u32 s{S_TMP}, s{S_TMP}, {WS_AP}")
            a(f"buffer_load_dword v167, v{vL16}, s[{S_WS}:{S_WS+3}], s{S_TMP} offen sc1")
            a(f"s_mov_b32 s{S_TMP}, {WS_X1}")
            a(f"buffer_load_dword v166, v{vL16}, s[{S_WS}:{S_WS+3}], s{S_TMP} offen sc1")
        self.lds_wait(3, 8, vt0, vt1)
        self.stamp(5, W0+20)
        if self.t2late == 2:
            a(f"s_cmp_lt_u32 s2, {T2_0}")
            a("s_cbranch_scc1 L_s_t2w_done")
            a(f"s_cmp_ge_u32 s2, {T2_0+T2_N}")
            a("s_cbranch_scc1 L_s_t2w_done")
            self.lds_wait(5, 2, vt0, vt1, sleep=False)
            t2_wloads()
            if self.pt >= 2:
                a(f"s_lshl_b32 s{S_TMP}, s{STILE}, 13")
                a(f"s_add_u32 s{S_TMP}, s{S_TMP}, {WS_DP}")
                a(f"buffer_load_dword v165, v{vL16}, s[{S_WS}:{S_WS+3}], s{S_TMP} offen sc1")
            a("L_s_t2w_done:")

        def iss_f(fl):
            a(f"buffer_load_dwordx4 v[{OA}:{OA+3}], v{vt2}, s[{S_WS}:{S_WS+3}], s{S_SO} offen {fl}")
            a(f"buffer_load_dwordx4 v[{OB}:{OB+3}], v{vt2}, s[{S_WS}:{S_WS+3}], s97 offen {fl}")
            a(f"buffer_load_dwordx4 v[{MLr}:{MLr+3}], v{vt3}, s[{S_WS}:{S_WS+3}], s98 offen {fl}")
            a(f"buffer_load_dwordx4 v[{MLr+4}:{MLr+7}], v{vt3}, s[{S_WS}:{S_WS+3}], s98 offen offset:64 {fl}")
        def iss():
            if self.xl <= 1:
                iss_f("sc1")
                return
            a(f"s_and_b32 s{S_TMP}, s{S_IT}, {self.xl-1}")
            a(f"s_cmp_eq_u32 s{S_TMP}, {self.xl-1}")
            a("s_cbranch_scc1 L_xl_far")
            iss_f("sc0")
            a("s_branch L_xl_j")
            a("L_xl_far:")
            iss_f("sc1")
            a("L_xl_j:")
        def iss_o():
            a(f"buffer_load_dwordx4 v[{OA}:{OA+3}], v{vt2}, s[{S_WS}:{S_WS+3}], s{S_SO} offen sc1")
            a(f"buffer_load_dwordx4 v[{OB}:{OB+3}], v{vt2}, s[{S_WS}:{S_WS+3}], s97 offen sc1")

        def iss_m():
            a(f"buffer_load_dwordx4 v[{MLr}:{MLr+3}], v{vt3}, s[{S_WS}:{S_WS+3}], s98 offen sc1")
            a(f"buffer_load_dwordx4 v[{MLr+4}:{MLr+7}], v{vt3}, s[{S_WS}:{S_WS+3}], s98 offen offset:64 sc1")
        if self.gate >= 0:
            self.poll_gated(iss_o, iss_m, range(OA, OA+8), range(MLr, MLr+8), vA, vO, vt0, vt1, vT, self.gate)
        else:
            self.poll3(iss, range(OA, OA+8), range(MLr, MLr+8), vA, vO, vt0, vt1, vT, self.g_opp, self.sl[0])
        self.stamp(6, 8)
        m0, l0, m1, l1 = MLr, MLr+1, MLr+4, MLr+5
        a(f"v_and_b32 v{m0}, s{S_HI16}, v{m0}")
        a(f"v_and_b32 v{m1}, s{S_HI16}, v{m1}")
        a(f"v_lshrrev_b32 v{MLr+2}, 16, v{MLr+2}")
        a(f"v_lshrrev_b32 v{MLr+6}, 16, v{MLr+6}")
        a(f"v_and_or_b32 v{l0}, v{l0}, s{S_HI16}, v{MLr+2}")
        a(f"v_and_or_b32 v{l1}, v{l1}, s{S_HI16}, v{MLr+6}")
        a(f"v_max_f32 v{vt0}, v{m0}, v{m1}")
        self.allreduce(vt0, vt1, "v_max_f32", rows=False)
        a(f"v_sub_f32 v{m0}, v{m0}, v{vt0}")
        a(f"v_sub_f32 v{m1}, v{m1}, v{vt0}")
        a(f"v_mul_f32 v{m0}, 0x3fb8aa3b, v{m0}")
        a(f"v_mul_f32 v{m1}, 0x3fb8aa3b, v{m1}")
        a(f"v_exp_f32 v{m0}, v{m0}")
        a(f"v_exp_f32 v{m1}, v{m1}")
        self.nop(1)
        a(f"v_mul_f32 v{l0}, v{m0}, v{l0}")
        a(f"v_fmac_f32 v{l0}, v{m1}, v{l1}")
        for r in range(4):
            a(f"v_mul_f32 v{OA+r}, v{m0}, v{OA+r}")
        for r in range(4):
            a(f"v_fmac_f32 v{OA+r}, v{m1}, v{OB+r}")
        self.nop(2)
        for x in [l0] + [OA+r for r in range(4)]:
            a(f"v_add_f32_dpp v{x}, v{x}, v{x} quad_perm:[1,0,3,2] row_mask:0xf bank_mask:0xf")
        for x in [l0] + [OA+r for r in range(4)]:
            a(f"v_add_f32_dpp v{x}, v{x}, v{x} quad_perm:[2,3,0,1] row_mask:0xf bank_mask:0xf")
        a(f"v_rcp_f32 v{l0}, v{l0}")
        self.nop(1)
        for r in range(4):
            a(f"v_mul_f32 v{OA+r}, v{OA+r}, v{l0}")
        for r in range(4):
            a(f"v_cvt_pk_bf16_f32 v{OA+r}, v{OA+r}, v{OA+r}")
        D1, D2 = W0+4, W0+8
        XB = WC + 88
        self.gemv_x4(OA, WB, 4, XB, D1, D2, vM0, vM1)

        def ap_addr():
            a(f"s_lshl_b32 s{S_TMP}, {self.SP2}, 11")
            a(f"s_add_u32 s{S_TMP}, s{S_TMP}, {WS_AP}")
        self.cu_reduce([(D1, D2)], None, L_RP, ap_addr, vt0, vt1, vT, vL16, WB)
        self.stamp(7, 8)
        a(f"s_cmp_lt_u32 s2, {T2_0}")
        a("s_cbranch_scc1 L_s_r")
        a(f"s_cmp_ge_u32 s2, {T2_0+T2_N}")
        a("s_cbranch_scc1 L_end")
        if self.t2late == 1:
            t2_wloads()
        a(f"v_lshl_add_u32 v{vt0}, v{vG}, 13, v{vC16}")
        a(f"s_lshl_b32 s{S_TMP}, s{STILE}, 15")
        a(f"s_lshl_b32 s{S_TMP2}, s{v}, 8")
        a(f"s_add_u32 s{S_TMP}, s{S_TMP}, s{S_TMP2}")
        for j in range(8):
            a(f"buffer_load_dwordx4 v[{WC+64+4*j}:{WC+64+4*j+3}], v{vt0}, s[{S_WD}:{S_WD+3}], s{S_TMP} offen nt")
            if j < 7:
                a(f"s_add_u32 s{S_TMP}, s{S_TMP}, 1024")
        a(f"v_mul_u32_u24 v{vt2}, {3072*4}, v{vB}")
        a(f"v_lshl_add_u32 v{vt2}, v{vG}, 7, v{vt2}")
        a(f"v_lshl_add_u32 v{vt2}, v{vU}, 5, v{vt2}")
        a(f"s_lshl_b32 s{S_SO}, s{v}, 9")
        a(f"s_add_u32 s{S_SO}, s{S_SO}, {WS_MOD + 1536*4}")
        SB0 = W0

        def iss():
            a(f"buffer_load_dwordx4 v[{SB0}:{SB0+3}], v{vt2}, s[{S_WS}:{S_WS+3}], s{S_SO} offen sc1")
            a(f"buffer_load_dwordx4 v[{SB0+4}:{SB0+7}], v{vt2}, s[{S_WS}:{S_WS+3}], s{S_SO} offen offset:16 sc1")
            a(f"buffer_load_dwordx4 v[{SB0+8}:{SB0+11}], v{vt2}, s[{S_WS}:{S_WS+3}], s{S_SO} offen offset:2048 sc1")
            a(f"buffer_load_dwordx4 v[{SB0+12}:{SB0+15}], v{vt2}, s[{S_WS}:{S_WS+3}], s{S_SO} offen offset:2064 sc1")
        self.poll(iss, list(range(SB0, SB0+16)), vA, vO, vT, mask=0xffff)
        for i in range(8):
            a(f"v_and_b32 v{SBC+i}, s{S_HI16}, v{SB0+i}")
            a(f"v_and_b32 v{SB0+8+i}, s{S_HI16}, v{SB0+8+i}")
        for i in range(8):
            a(f"v_add_f32 v{SBC+8+i}, 1.0, v{SB0+8+i}")
        for i in range(0, 8, 2):
            self.round2(SBC+8+i, SBC+8+i+1, vt0 if (i//2) % 2 == 0 else vt1)
        X1r = W0
        vGW, vGR = WB + 8, WB + 9

        def gu_mfma(X, AG, AU, fill=None):
            BB = WB
            for T in range(8):
                us = T//2
                bb = BB + 4*(T & 1)
                for j in range(4):
                    a(f"v_and_b32_dpp v{bb+j}, v{X+4*(T%2)+j}, v{vMe} quad_perm:[{us},{us},{us},{us}] row_mask:0xf bank_mask:0xf")
                if fill and len(fill[T]) >= 2:
                    for ins in fill[T]:
                        a(ins)
                else:
                    self.nop(2)
                c = "0" if T == 0 else f"v[{AG}:{AG+3}]"
                a(f"v_mfma_f32_16x16x32_bf16 v[{AG}:{AG+3}], v[{WC+4*T}:{WC+4*T+3}], v[{bb}:{bb+3}], {c}")
                c = "0" if T == 0 else f"v[{AU}:{AU+3}]"
                a(f"v_mfma_f32_16x16x32_bf16 v[{AU}:{AU+3}], v[{WC+32+4*T}:{WC+32+4*T+3}], v[{bb}:{bb+3}], {c}")

        def gu_write(AG, AU, base):
            a("s_mov_b32 exec_lo, 0x33333333")
            a("s_mov_b32 exec_hi, 0x33333333")
            for r in range(4):
                a(f"ds_write_b32 v{vGW}, v{AG+r} offset:{base + 32*r}")
                a(f"ds_write_b32 v{vGW}, v{AU+r} offset:{base + 2048 + 32*r}")
            a("s_mov_b64 exec, -1")

        def gu_read(GR, base):
            a(f"ds_read_b128 v[{GR}:{GR+3}], v{vGR} offset:{base}")
            a(f"ds_read_b128 v[{GR+4}:{GR+7}], v{vGR} offset:{base+16}")
            a(f"ds_read_b128 v[{GR+8}:{GR+11}], v{vGR} offset:{base+2048}")
            a(f"ds_read_b128 v[{GR+12}:{GR+15}], v{vGR} offset:{base+2048+16}")

        def gu_sum(GR):
            for i in range(4):
                g = GR + 4*i
                a(f"v_add_f32 v{g}, v{g}, v{g+1}")
                a(f"v_add_f32 v{g+2}, v{g+2}, v{g+3}")
            for i in range(4):
                g = GR + 4*i
                a(f"v_add_f32 v{g}, v{g}, v{g+2}")

        if self.t2alg:
            a(f"v_lshlrev_b32 v{vGW}, 9, v{vB}")
            a(f"v_lshl_add_u32 v{vGW}, v{vG}, 7, v{vGW}")
            a(f"v_lshl_add_u32 v{vGR}, v{vU}, 5, v{vGW}")
            a(f"v_and_b32 v{vt1}, 1, v0")
            a(f"v_lshl_add_u32 v{vGW}, v{vt1}, 4, v{vGW}")
            a(f"s_lshl_b32 s{S_TMP}, s{v}, 2")
            a(f"v_add_u32 v{vGW}, s{S_TMP}, v{vGW}")
            for i in range(8):
                a(f"v_cvt_pk_bf16_f32 v{W0+i}, v{SBC+8+i}, v{SBC+8+i}")
            for i in range(8):
                a(f"v_cvt_pk_bf16_f32 v{W0+16+i}, v{SBC+i}, v{SBC+i}")
            assert self.t2late == 2
            a("s_waitcnt vmcnt(0)")
            gu_mfma(W0, W0+8, W0+12)
            self.nop(8)
            self.nop(6)
            gu_write(W0+8, W0+12, L_OW)
            gu_mfma(W0+16, W0, W0+4)
            self.nop(8)
            self.nop(6)
            gu_write(W0, W0+4, L_OW + 4096)
            a("s_waitcnt lgkmcnt(0)")
            a("s_barrier")
            gu_read(W0, L_OW)
            a("s_waitcnt lgkmcnt(0)")
            gu_sum(W0)
            for i in range(4):
                a(f"v_mov_b32 v{SBC+i}, v{W0+4*i}")
            gu_read(W0, L_OW + 4096)
            a("s_waitcnt lgkmcnt(0)")
            gu_sum(W0)
            for i in range(4):
                a(f"v_mov_b32 v{SBC+4+i}, v{W0+4*i}")
        a(f"v_lshlrev_b32 v{vt2}, 11, v{vB}")
        a(f"v_lshl_add_u32 v{vt2}, v{vG}, 7, v{vt2}")
        a(f"v_lshl_add_u32 v{vt2}, v{vU}, {4 if self.x1p else 5}, v{vt2}")
        a(f"s_lshl_b32 s{S_SO}, s{v}, 9")
        a(f"s_add_u32 s{S_SO}, s{S_SO}, {WS_X1}")
        a(f"v_lshlrev_b32 v{vt3}, 5, v{vB}")
        a(f"s_lshl_b32 s{S_TMP}, s{v}, 3")
        a(f"v_add_u32 v{vt1}, s{S_TMP}, v{vt3}")

        def iss():
            a(f"buffer_load_dwordx4 v[{X1r}:{X1r+3}], v{vt2}, s[{S_WS}:{S_WS+3}], s{S_SO} offen sc1")
            a(f"buffer_load_dwordx4 v[{X1r+4}:{X1r+7}], v{vt2}, s[{S_WS}:{S_WS+3}], s{S_SO} offen offset:{64 if self.x1p else 16} sc1")
        def iss2(S):
            a(f"buffer_load_dwordx4 v[{S}:{S+3}], v{vt2}, s[{S_WS}:{S_WS+3}], s{S_SO} offen sc1")
            a(f"buffer_load_dwordx4 v[{S+4}:{S+7}], v{vt2}, s[{S_WS}:{S_WS+3}], s{S_SO} offen offset:{64 if self.x1p else 16} sc1")
        if self.pipe[1]:
            self.poll_pipe(iss2, 2, 8, [WB, WB+8], X1r, vA, vO, vT, 16, "lane", self.pipe[1])
        else:
            self.poll3(iss, None, range(X1r, X1r+8), vA, vO, vA, vO, vT, self.g_x1, self.sl[2])
        self.stamp(10, 8)
        if self.t2alg:
            s1, s2_ = vA, vO
            Y = W0 + 16
            AG, AU = W0+8, W0+12
            for i in range(8):
                a(f"v_and_b32 v{X1r+i}, s{S_HI16}, v{X1r+i}")
            for i in range(8):
                a(f"v_mul_f32 v{Y+i}, v{X1r+i}, v{SBC+8+i}")
            for i in range(8):
                a(f"v_cvt_pk_bf16_f32 v{Y+i}, v{Y+i}, v{Y+i}")
            st = []
            st.append(f"v_add_f32 v{s1}, v{X1r}, v{X1r+1}")
            st.append(f"v_add_f32 v{vt0}, v{X1r+2}, v{X1r+3}")
            st.append(f"v_mul_f32 v{s2_}, v{X1r}, v{X1r}")
            st.append(f"v_mul_f32 v{vt2}, v{X1r+1}, v{X1r+1}")
            for i in range(4, 8, 2):
                st.append(f"v_add_f32 v{s1}, v{s1}, v{X1r+i}")
                st.append(f"v_add_f32 v{vt0}, v{vt0}, v{X1r+i+1}")
            for i in range(2, 8, 2):
                st.append(f"v_fmac_f32 v{s2_}, v{X1r+i}, v{X1r+i}")
                st.append(f"v_fmac_f32 v{vt2}, v{X1r+i+1}, v{X1r+i+1}")
            st.append(f"v_add_f32 v{s1}, v{s1}, v{vt0}")
            st.append(f"v_add_f32 v{s2_}, v{s2_}, v{vt2}")
            assert len(st) == 16
            fill = [st[2*T:2*T+2] for T in range(8)]
            gu_mfma(Y, AG, AU, fill)
            self.allreduce2(s1, s2_, vt0, vt2)
            a("s_mov_b64 exec, 0x1111")
            a(f"ds_write_b64 v{vt1}, v[{s1}:{s2_}] offset:{L_ST}")
            gu_write(AG, AU, L_GU)
            a(f"s_lshl_b32 s{S_TMP}, s{STILE}, 2")
            a(f"s_add_u32 s{S_TMP}, s{S_TMP}, s{v}")
            a(f"s_lshl_b32 s{S_TMP}, s{S_TMP}, 11")
            a(f"s_add_u32 s{S_TMP}, s{S_TMP}, {WS_DP}")
            a("s_waitcnt lgkmcnt(0)")
            a("s_barrier")
            ST = W0+16
            GR = W0
            a(f"ds_read_b128 v[{ST}:{ST+3}], v{vt3} offset:{L_ST}")
            a(f"ds_read_b128 v[{ST+4}:{ST+7}], v{vt3} offset:{L_ST+16}")
            gu_read(GR, L_GU)
            a("s_waitcnt lgkmcnt(4)")
            a(f"v_add_f32 v{s1}, v{ST}, v{ST+2}")
            a(f"v_add_f32 v{vt0}, v{ST+4}, v{ST+6}")
            a(f"v_add_f32 v{s2_}, v{ST+1}, v{ST+3}")
            a(f"v_add_f32 v{vt1}, v{ST+5}, v{ST+7}")
            a(f"v_add_f32 v{s1}, v{s1}, v{vt0}")
            a(f"v_add_f32 v{s2_}, v{s2_}, v{vt1}")
            a(f"v_mul_f32 v{s1}, 0x3b000000, v{s1}")
            a(f"v_mul_f32 v{s2_}, 0x3b000000, v{s2_}")
            a(f"v_fma_f32 v{s2_}, -v{s1}, v{s1}, v{s2_}")
            a(f"v_max_f32 v{s2_}, 0, v{s2_}")
            self.ln_fin(s1, s2_, vt0)
            a("s_waitcnt lgkmcnt(0)")
            gu_sum(GR)
            for i in range(4):
                a(f"v_fma_f32 v{GR+4*i}, -v{s1}, v{SBC+i}, v{GR+4*i}")
            for i in range(4):
                a(f"v_fma_f32 v{GR+4*i}, v{s2_}, v{GR+4*i}, v{SBC+4+i}")
        else:
            for i in range(8):
                a(f"v_and_b32 v{X1r+i}, s{S_HI16}, v{X1r+i}")
            s1, s2_ = vA, vO
            self.ln_sum(X1r, 8, s1, vt0)
            a(f"v_mul_f32 v{s2_}, v{X1r}, v{X1r}")
            a(f"v_mul_f32 v{vt2}, v{X1r+1}, v{X1r+1}")
            for i in range(2, 8, 2):
                a(f"v_fmac_f32 v{s2_}, v{X1r+i}, v{X1r+i}")
                a(f"v_fmac_f32 v{vt2}, v{X1r+i+1}, v{X1r+i+1}")
            a(f"v_add_f32 v{s2_}, v{s2_}, v{vt2}")
            self.allreduce2(s1, s2_, vt0, vt2)
            a("s_mov_b64 exec, 0x1111")
            a(f"ds_write_b64 v{vt1}, v[{s1}:{s2_}] offset:{L_ST}")
            a("s_mov_b64 exec, -1")
            a("s_waitcnt lgkmcnt(0)")
            a("s_barrier")
            ST = W0+8
            a(f"ds_read_b128 v[{ST}:{ST+3}], v{vt3} offset:{L_ST}")
            a(f"ds_read_b128 v[{ST+4}:{ST+7}], v{vt3} offset:{L_ST+16}")
            a("s_waitcnt lgkmcnt(0)")
            a(f"v_add_f32 v{s1}, v{ST}, v{ST+2}")
            a(f"v_add_f32 v{vt0}, v{ST+4}, v{ST+6}")
            a(f"v_add_f32 v{s2_}, v{ST+1}, v{ST+3}")
            a(f"v_add_f32 v{vt1}, v{ST+5}, v{ST+7}")
            a(f"v_add_f32 v{s1}, v{s1}, v{vt0}")
            a(f"v_add_f32 v{s2_}, v{s2_}, v{vt1}")
            a(f"v_mul_f32 v{s1}, 0x3b000000, v{s1}")
            a(f"v_mul_f32 v{s2_}, 0x3b000000, v{s2_}")
            a(f"v_fma_f32 v{s2_}, -v{s1}, v{s1}, v{s2_}")
            a(f"v_max_f32 v{s2_}, 0, v{s2_}")
            self.ln_fin(s1, s2_, vt0)
            self.ln_norm(X1r, 8, s1, s2_, vt0, vt1)
            for i in range(8):
                a(f"v_mul_f32 v{X1r+i}, v{X1r+i}, v{SBC+8+i}")
            for i in range(0, 8, 2):
                self.round2(X1r+i, X1r+i+1, vt0 if (i//2) % 2 == 0 else vt1)
            for i in range(8):
                a(f"v_add_f32 v{X1r+i}, v{X1r+i}, v{SBC+i}")
            for i in range(8):
                a(f"v_cvt_pk_bf16_f32 v{X1r+i}, v{X1r+i}, v{X1r+i}")
            BB = WB
            AG, AU = W0+8, W0+12
            a("s_waitcnt vmcnt(0)")
            for T in range(8):
                us = T//2
                bb = BB + 4*(T & 1)
                for j in range(4):
                    a(f"v_and_b32_dpp v{bb+j}, v{X1r+4*(T%2)+j}, v{vMe} quad_perm:[{us},{us},{us},{us}] row_mask:0xf bank_mask:0xf")
                self.nop(2)
                c = "0" if T == 0 else f"v[{AG}:{AG+3}]"
                a(f"v_mfma_f32_16x16x32_bf16 v[{AG}:{AG+3}], v[{WC+4*T}:{WC+4*T+3}], v[{bb}:{bb+3}], {c}")
                c = "0" if T == 0 else f"v[{AU}:{AU+3}]"
                a(f"v_mfma_f32_16x16x32_bf16 v[{AU}:{AU+3}], v[{WC+32+4*T}:{WC+32+4*T+3}], v[{bb}:{bb+3}], {c}")
            a(f"v_lshlrev_b32 v{vt0}, 9, v{vB}")
            a(f"v_lshl_add_u32 v{vt0}, v{vG}, 7, v{vt0}")
            a(f"v_lshl_add_u32 v{vt2}, v{vU}, 5, v{vt0}")
            a(f"v_and_b32 v{vt1}, 1, v0")
            a(f"v_lshl_add_u32 v{vt0}, v{vt1}, 4, v{vt0}")
            a(f"s_lshl_b32 s{S_TMP}, s{v}, 2")
            a(f"v_add_u32 v{vt0}, s{S_TMP}, v{vt0}")
            self.nop(4)
            a("s_mov_b32 exec_lo, 0x33333333")
            a("s_mov_b32 exec_hi, 0x33333333")
            for r in range(4):
                a(f"ds_write_b32 v{vt0}, v{AG+r} offset:{L_GU + 32*r}")
                a(f"ds_write_b32 v{vt0}, v{AU+r} offset:{L_GU + 2048 + 32*r}")
            a("s_mov_b64 exec, -1")
            a("s_waitcnt lgkmcnt(0)")
            a("s_barrier")
            GR = WB
            a(f"ds_read_b128 v[{GR}:{GR+3}], v{vt2} offset:{L_GU}")
            a(f"ds_read_b128 v[{GR+4}:{GR+7}], v{vt2} offset:{L_GU+16}")
            a(f"ds_read_b128 v[{GR+8}:{GR+11}], v{vt2} offset:{L_GU+2048}")
            a(f"ds_read_b128 v[{GR+12}:{GR+15}], v{vt2} offset:{L_GU+2048+16}")
            a(f"s_lshl_b32 s{S_TMP}, s{STILE}, 2")
            a(f"s_add_u32 s{S_TMP}, s{S_TMP}, s{v}")
            a(f"s_lshl_b32 s{S_TMP}, s{S_TMP}, 11")
            a(f"s_add_u32 s{S_TMP}, s{S_TMP}, {WS_DP}")
            a("s_waitcnt lgkmcnt(0)")
            for i in range(4):
                g = GR + 4*i
                a(f"v_add_f32 v{g}, v{g}, v{g+1}")
                a(f"v_add_f32 v{g+2}, v{g+2}, v{g+3}")
            for i in range(4):
                g = GR + 4*i
                a(f"v_add_f32 v{g}, v{g}, v{g+2}")
        g0, g1, u0, u1 = GR, GR+4, GR+8, GR+12
        self.round2(g0, g1, vt0)
        self.round2(u0, u1, vt1)
        a(f"v_mul_f32 v{g0+1}, 0xbfb8aa3b, v{g0}")
        a(f"v_mul_f32 v{g1+1}, 0xbfb8aa3b, v{g1}")
        a(f"v_exp_f32 v{g0+1}, v{g0+1}")
        a(f"v_exp_f32 v{g1+1}, v{g1+1}")
        self.nop(1)
        a(f"v_add_f32 v{g0+1}, 1.0, v{g0+1}")
        a(f"v_add_f32 v{g1+1}, 1.0, v{g1+1}")
        a(f"v_rcp_f32 v{g0+1}, v{g0+1}")
        a(f"v_rcp_f32 v{g1+1}, v{g1+1}")
        self.nop(1)
        a(f"v_mul_f32 v{g0}, v{g0}, v{g0+1}")
        a(f"v_mul_f32 v{g1}, v{g1}, v{g1+1}")
        self.round2(g0, g1, vt0)
        a(f"v_mul_f32 v{g0}, v{g0}, v{u0}")
        a(f"v_mul_f32 v{g1}, v{g1}, v{u1}")
        AD = W0
        a(f"v_cvt_pk_bf16_f32 v{AD}, v{g0}, v{g0}")
        a(f"v_cvt_pk_bf16_f32 v{AD+1}, v{g1}, v{g1}")
        self.nop(1)
        XB = WB
        for j in range(8):
            us = j//2
            a(f"v_and_b32_dpp v{XB+2*j}, v{AD+(j%2)}, v{vM0} quad_perm:[{us},{us},{us},{us}] row_mask:0xf bank_mask:0xf")
            a(f"v_and_b32_dpp v{XB+2*j+1}, v{AD+(j%2)}, v{vM1} quad_perm:[{us},{us},{us},{us}] row_mask:0xf bank_mask:0xf")
        self.nop(2)
        D1, D2, D3, D4 = W0+4, W0+8, W0+12, W0+16
        for j in range(8):
            w = WC + 64 + 4*j
            da, db = (D1, D2) if j % 2 == 0 else (D3, D4)
            c1 = "0" if j < 2 else f"v[{da}:{da+3}]"
            c2 = "0" if j < 2 else f"v[{db}:{db+3}]"
            a(f"v_mfma_f32_16x16x16_bf16 v[{da}:{da+3}], v[{w}:{w+1}], v[{XB+2*j}:{XB+2*j+1}], {c1}")
            a(f"v_mfma_f32_16x16x16_bf16 v[{db}:{db+3}], v[{w+2}:{w+3}], v[{XB+2*j}:{XB+2*j+1}], {c2}")
        self.nop(8)
        for r in range(4):
            a(f"v_add_f32 v{D1+r}, v{D1+r}, v{D3+r}")
        for r in range(4):
            a(f"v_add_f32 v{D2+r}, v{D2+r}, v{D4+r}")
        for r in range(4):
            self.tag32(D1+r, vT)
        a(f"buffer_store_dwordx4 v[{D1}:{D1+3}], v{vL16}, s[{S_WS}:{S_WS+3}], s{S_TMP} offen sc1")
        for r in range(4):
            self.tag32(D2+r, vT)
        a(f"buffer_store_dwordx4 v[{D2}:{D2+3}], v{vL16}, s[{S_WS}:{S_WS+3}], s{S_TMP} offen offset:1024 sc1")
        self.stamp(11, 8)
        a("s_endpgm")
        a("L_s_r:")
        a(f"s_cmp_lg_u32 s{v}, 2")
        a("s_cbranch_scc1 L_end")
        SCOL = 100
        a(f"s_lshr_b32 s{SCOL}, s2, 3")
        a(f"s_lshl_b32 s{SCOL}, s{SCOL}, 5")
        a(f"s_bfe_u32 s{S_TMP}, s2, 0x10002")
        a(f"s_lshl_b32 s{S_TMP}, s{S_TMP}, 2")
        a(f"s_add_u32 s{SCOL}, s{SCOL}, s{S_TMP}")
        a(f"s_and_b32 s{S_TMP}, s2, 3")
        a(f"s_lshl_b32 s{S_TMP2}, s{S_TMP}, 9")
        a(f"s_add_u32 s{S_TMP2}, s{S_TMP2}, s{SCOL}")
        a(f"s_mul_i32 s{S_TMP}, s{S_TMP}, 3072")
        a(f"s_add_u32 s{SCOL}, s{SCOL}, s{S_TMP}")
        vCol = SBC + 3
        a(f"v_lshl_add_u32 v{vt1}, v{vG}, 3, v{vU}")
        a(f"v_add_u32 v{vCol}, s{S_TMP2}, v{vt1}")
        a(f"v_lshlrev_b32 v{vt0}, 1, v{vCol}")
        a(f"buffer_load_ushort v{SBC+2}, v{vt0}, s[{S_X}:{S_X+3}], 0 offen")
        a(f"v_add_u32 v{vt2}, s{SCOL}, v{vt1}")
        a(f"v_lshlrev_b32 v{vt2}, 2, v{vt2}")
        a(f"s_mov_b32 s{S_SO}, {WS_MOD + 1024*4}")
        a(f"s_mov_b32 s97, {WS_MOD + 2560*4}")

        def iss():
            a(f"buffer_load_dword v{SBC}, v{vt2}, s[{S_WS}:{S_WS+3}], s{S_SO} offen sc1")
            a(f"buffer_load_dword v{SBC+1}, v{vt2}, s[{S_WS}:{S_WS+3}], s97 offen sc1")
        self.poll(iss, [SBC, SBC+1, SBC+1], vA, vO, vT, mask=0xffff)
        a(f"v_and_b32 v{SBC}, s{S_HI16}, v{SBC}")
        a(f"v_and_b32 v{SBC+1}, s{S_HI16}, v{SBC+1}")
        a(f"v_lshlrev_b32 v{SBC+2}, 16, v{SBC+2}")
        RD = WC
        RS = [WC+16, WC+32, WC+48][:self.nsets]
        SRB = 101
        a(f"s_lshr_b32 s{SRB}, s2, 5")
        a(f"s_lshl_b32 s{SRB}, s{SRB}, 11")
        a(f"s_bfe_u32 s{S_TMP}, s2, 0x10002")
        a(f"s_lshl_b32 s{S_TMP}, s{S_TMP}, 10")
        a(f"s_add_u32 s{SRB}, s{SRB}, s{S_TMP}")
        a(f"s_bfe_u32 s{S_TMP}, s2, 0x20003")
        a(f"s_lshl_b32 s{S_TMP}, s{S_TMP}, 8")
        a(f"s_add_u32 s{SRB}, s{SRB}, s{S_TMP}")
        a(f"s_and_b32 s{S_TMP}, s2, 3")
        a(f"s_lshl_b32 s{S_TMP}, s{S_TMP}, 6")
        a(f"s_add_u32 s{SRB}, s{SRB}, s{S_TMP}")
        a(f"v_lshrrev_b32 v{vt2}, 2, v0")
        a(f"v_lshlrev_b32 v{vt2}, 13, v{vt2}")
        a(f"v_lshl_add_u32 v{vt2}, v{vU}, 4, v{vt2}")
        a(f"v_and_b32 v{vt3}, 0xffff, v{vt2}")
        QS = [S_SO, 97, 98, 99]
        for q in range(4):
            a(f"s_add_u32 s{QS[q]}, s{SRB}, {WS_AP + q*131072}")
        if self.x1p:
            a(f"v_lshl_add_u32 v{SBC+4}, v{vG}, 2, v{vU}")
            a(f"v_lshlrev_b32 v{SBC+4}, 2, v{SBC+4}")
            a(f"s_and_b32 s96, s2, 3")
            a(f"s_lshl_b32 s96, s96, 11")
            a(f"s_lshr_b32 s{S_TMP2}, s2, 3")
            a(f"s_lshl_b32 s{S_TMP2}, s{S_TMP2}, 7")
            a(f"s_add_u32 s96, s96, s{S_TMP2}")
            a(f"s_bfe_u32 s{S_TMP2}, s2, 0x10002")
            a(f"s_lshl_b32 s{S_TMP2}, s{S_TMP2}, 6")
            a(f"s_add_u32 s96, s96, s{S_TMP2}")
            a(f"s_add_u32 s96, s96, {WS_X1}")

        def iss():
            for q in range(4):
                a(f"buffer_load_dwordx4 v[{RD+4*q}:{RD+4*q+3}], v{vt2}, s[{S_WS}:{S_WS+3}], s{QS[q]} offen sc1")
        def iss2(S):
            for q in range(4):
                a(f"buffer_load_dwordx4 v[{S+4*q}:{S+4*q+3}], v{vt2}, s[{S_WS}:{S_WS+3}], s{QS[q]} offen sc1")
        if self.pipe[0]:
            self.poll_pipe(iss2, 4, 16, [WC+16, WC+32], RD, vA, vO, vT, TAGB, "quad", self.pipe[0])
        else:
            self.poll3(iss, range(RD, RD+16), None, vA, vO, vA, vO, vT, self.g_r, self.sl[1])
        self.stamp(12, 8)
        self.reduce_r(RD, False)
        vga, vgb, vx = SBC, SBC+1, SBC+2
        self.round1(RD)
        a(f"v_mul_f32 v{RD}, v{vga}, v{RD}")
        self.round1(RD)
        a(f"v_add_f32 v{vx}, v{vx}, v{RD}")
        a(f"v_cvt_pk_bf16_f32 v{vx}, v{vx}, v{vx}")
        a(f"v_lshl_or_b32 v{RD}, v{vx}, 16, v{vT}")
        if not self.x1p:
            a(f"v_lshlrev_b32 v{vt1}, 2, v{vCol}")
            a(f"s_mov_b32 s{S_TMP}, {WS_X1}")
        a("s_mov_b32 exec_lo, 0x000f000f")
        a("s_mov_b32 exec_hi, 0x000f000f")
        if self.x1p:
            a(f"buffer_store_dword v{RD}, v{SBC+4}, s[{S_WS}:{S_WS+3}], s96 offen sc1")
        else:
            a(f"buffer_store_dword v{RD}, v{vt1}, s[{S_WS}:{S_WS+3}], s{S_TMP} offen sc1")
        a("s_mov_b64 exec, -1")
        a(f"v_and_b32 v{vx}, s{S_HI16}, v{vx}")
        a(f"v_lshlrev_b32 v{vCol}, 1, v{vCol}")
        self.stamp(13, 8)
        for q in range(4):
            a(f"s_add_u32 s{QS[q]}, s{SRB}, {WS_DP + q*131072}")

        def iss():
            for q in range(4):
                va = vt2 if q < 3 else vt3
                a(f"buffer_load_dwordx4 v[{RD+4*q}:{RD+4*q+3}], v{va}, s[{S_WS}:{S_WS+3}], s{QS[q]} offen sc1")
        def iss2(S):
            for q in range(4):
                va = vt2 if q < 3 else vt3
                a(f"buffer_load_dwordx4 v[{S+4*q}:{S+4*q+3}], v{va}, s[{S_WS}:{S_WS+3}], s{QS[q]} offen sc1")
        if self.pipe[2]:
            self.poll_pipe(iss2, 4, 16, [WC+16, WC+32], RD, vA, vO, vT, TAGB, "quad", self.pipe[2])
        else:
            self.poll3(iss, range(RD, RD+16), None, vA, vO, vA, vO, vT, self.g_r, self.sl[3])
        self.reduce_r(RD, True)
        self.round1(RD)
        a(f"v_mul_f32 v{RD}, v{vgb}, v{RD}")
        self.round1(RD)
        a(f"v_add_f32 v{RD}, v{vx}, v{RD}")
        a(f"v_cvt_pk_bf16_f32 v{RD}, v{RD}, v{RD}")
        a("s_mov_b32 exec_lo, 0x000f000f")
        a("s_mov_b32 exec_hi, 0x000f000f")
        a(f"buffer_store_short v{RD}, v{vCol}, s[{S_OUT}:{S_OUT+3}], 0 offen")
        a("s_mov_b64 exec, -1")
        self.stamp(14, 8)
        if self.delay:
            a("s_mov_b32 s90, 0")
            a("L_dl_loop:")
            for i in range(256):
                a(f"v_mul_f32_e64 v{40+(i%16)}, v{60+(i%8)}, v{70+(i%8)}")
            a("s_add_u32 s90, s90, 1")
            a(f"s_cmp_lt_u32 s90, {self.delay}")
            a("s_cbranch_scc1 L_dl_loop")
        if self.dbg2 >= 2:
            a("s_mov_b32 s90, 0")
            a("s_memtime s[92:93]")
            a("s_waitcnt lgkmcnt(0)")
            a("s_mov_b32 s3, s92")
            a("L_ic_loop:")
            for i in range(self.dbg2):
                a(f"v_mul_f32_e64 v{40+(i%16)}, v{60+(i%8)}, v{70+(i%8)}")
            a("s_memtime s[92:93]")
            a("s_waitcnt lgkmcnt(0)")
            a("s_sub_u32 s3, s92, s3")
            a("v_mov_b32 v10, s3")
            a("s_mov_b32 s3, s92")
            a("s_and_b32 s57, s2, 0x38")
            a("s_cbranch_scc1 L_ic_skip")
            a("s_load_dwordx2 s[92:93], s[0:1], 96")
            a("s_waitcnt lgkmcnt(0)")
            a("s_mov_b64 exec, 1")
            a("v_mov_b32 v8, s92")
            a("v_mov_b32 v9, s93")
            a("s_lshl_b32 s57, s90, 2")
            a("v_add_u32 v8, s57, v8")
            a("global_atomic_umax v[8:9], v10, off offset:12 sc1")
            a("v_not_b32 v11, v10")
            a("global_atomic_umax v[8:9], v11, off offset:24 sc1")
            a("s_mov_b64 exec, -1")
            a("s_memtime s[92:93]")
            a("s_waitcnt lgkmcnt(0)")
            a("s_mov_b32 s3, s92")
            a("L_ic_skip:")
            a("s_add_u32 s90, s90, 1")
            a("s_cmp_lt_u32 s90, 3")
            a("s_cbranch_scc1 L_ic_loop")
        a(f"s_cmp_lg_u32 s2, {R_0}")
        a("s_cbranch_scc1 L_end")
        a(f"v_mov_b32 v{vt0}, s{S_E}")
        a(f"v_mov_b32 v{vt1}, {WS_E}")
        a("s_mov_b64 exec, 1")
        a(f"buffer_store_dword v{vt0}, v{vt1}, s[{S_WS}:{S_WS+3}], 0 offen sc1")
        a("s_endpgm")

    def reduce_r(self, RD, half_last):
        a = self.a
        for r in range(4):
            a(f"v_add_f32 v{RD+r}, v{RD+r}, v{RD+4+r}")
        if half_last:
            a("s_mov_b32 exec_hi, 0")
        for r in range(4):
            a(f"v_add_f32 v{RD+8+r}, v{RD+8+r}, v{RD+12+r}")
        if half_last:
            a("s_mov_b32 exec_hi, -1")
        for r in range(4):
            a(f"v_add_f32 v{RD+r}, v{RD+r}, v{RD+8+r}")
        self.nop(2)
        a(f"v_permlane32_swap_b32 v{RD}, v{RD+2}")
        a(f"v_permlane32_swap_b32 v{RD+1}, v{RD+3}")
        a(f"v_add_f32 v{RD}, v{RD}, v{RD+2}")
        a(f"v_add_f32 v{RD+1}, v{RD+1}, v{RD+3}")
        self.nop(2)
        a(f"v_permlane16_swap_b32 v{RD}, v{RD+1}")
        a(f"v_add_f32 v{RD}, v{RD}, v{RD+1}")
        self.nop(2)
        a(f"v_add_f32_dpp v{RD}, v{RD}, v{RD} row_ror:8 row_mask:0xf bank_mask:0xf")
        self.nop(2)
        a(f"v_add_f32_dpp v{RD}, v{RD}, v{RD} row_ror:4 row_mask:0xf bank_mask:0xf")

    def allreduce2(self, r1, r2, t1, t2):
        a = self.a
        self.nop(1)
        for qp in ("[1,0,3,2]", "[2,3,0,1]"):
            a(f"v_add_f32_dpp v{r1}, v{r1}, v{r1} quad_perm:{qp} row_mask:0xf bank_mask:0xf")
            a(f"v_add_f32_dpp v{r2}, v{r2}, v{r2} quad_perm:{qp} row_mask:0xf bank_mask:0xf")
            self.nop(1)
        for sw in ("v_permlane16_swap_b32", "v_permlane32_swap_b32"):
            a(f"v_mov_b32 v{t1}, v{r1}")
            a(f"v_mov_b32 v{t2}, v{r2}")
            self.nop(1)
            a(f"{sw} v{r1}, v{t1}")
            a(f"{sw} v{r2}, v{t2}")
            a(f"v_add_f32 v{r1}, v{r1}, v{t1}")
            a(f"v_add_f32 v{r2}, v{r2}, v{t2}")

    def reduce_q(self, RD, n):
        a = self.a
        idx = list(range(n))
        while len(idx) > 1:
            nxt = []
            for i in range(0, len(idx)-1, 2):
                for r in range(4):
                    a(f"v_add_f32 v{RD+4*idx[i]+r}, v{RD+4*idx[i]+r}, v{RD+4*idx[i+1]+r}")
                nxt.append(idx[i])
            if len(idx) % 2:
                nxt.append(idx[-1])
            idx = nxt
        self.nop(2)
        a(f"v_permlane32_swap_b32 v{RD}, v{RD+2}")
        a(f"v_permlane32_swap_b32 v{RD+1}, v{RD+3}")
        a(f"v_add_f32 v{RD}, v{RD}, v{RD+2}")
        a(f"v_add_f32 v{RD+1}, v{RD+1}, v{RD+3}")
        self.nop(2)
        a(f"v_permlane16_swap_b32 v{RD}, v{RD+1}")
        a(f"v_add_f32 v{RD}, v{RD}, v{RD+1}")

    def ln_sum(self, R, n, dst, t):
        a = self.a
        a(f"v_add_f32 v{dst}, v{R}, v{R+1}")
        a(f"v_add_f32 v{t}, v{R+2}, v{R+3}")
        for i in range(4, n, 2):
            a(f"v_add_f32 v{dst}, v{dst}, v{R+i}")
            a(f"v_add_f32 v{t}, v{t}, v{R+i+1}")
        a(f"v_add_f32 v{dst}, v{dst}, v{t}")

    def ln_fin(self, vMean, vVar, t):
        a = self.a
        self.round2(vMean, vVar, t)
        a(f"v_add_f32 v{vVar}, 0x3727c5ac, v{vVar}")
        self.round1(vVar)
        a(f"v_sqrt_f32 v{vVar}, v{vVar}")
        self.nop(1)
        self.round1(vVar)
        a(f"v_rcp_f32 v{vVar}, v{vVar}")
        self.nop(1)

    def ln_norm(self, Y, n, vMean, vRcp, t0, t1):
        a = self.a
        for i in range(n):
            a(f"v_sub_f32 v{Y+i}, v{Y+i}, v{vMean}")
        for i in range(0, n, 2):
            self.round2(Y+i, Y+i+1, t0 if (i//2) % 2 == 0 else t1)
        for i in range(n):
            a(f"v_mul_f32 v{Y+i}, v{Y+i}, v{vRcp}")
        for i in range(0, n, 2):
            self.round2(Y+i, Y+i+1, t0 if (i//2) % 2 == 0 else t1)

    def modulate(self, Y, n, SH, SCL, t0, t1, clean=False):
        a = self.a
        if not clean:
            for i in range(n):
                a(f"v_and_b32 v{SH+i}, s{S_HI16}, v{SH+i}")
                a(f"v_and_b32 v{SCL+i}, s{S_HI16}, v{SCL+i}")
        for i in range(n):
            a(f"v_add_f32 v{SCL+i}, 1.0, v{SCL+i}")
        for i in range(0, n, 2):
            self.round2(SCL+i, SCL+i+1, t0 if (i//2) % 2 == 0 else t1)
        for i in range(n):
            a(f"v_mul_f32 v{Y+i}, v{Y+i}, v{SCL+i}")
        for i in range(0, n, 2):
            self.round2(Y+i, Y+i+1, t0 if (i//2) % 2 == 0 else t1)
        for i in range(n):
            a(f"v_add_f32 v{Y+i}, v{Y+i}, v{SH+i}")
        for i in range(n):
            a(f"v_cvt_pk_bf16_f32 v{Y+i}, v{Y+i}, v{Y+i}")

    def gemv_x4(self, DU, W, n, XB, D1, D2, vM0, vM1):
        a = self.a
        for j in range(n):
            a(f"v_and_b32 v{XB+2*j}, v{DU+j}, v{vM0}")
            a(f"v_and_b32 v{XB+2*j+1}, v{DU+j}, v{vM1}")
        self.nop(2)
        for j in range(n):
            w = W + 4*j
            c1 = "0" if j == 0 else f"v[{D1}:{D1+3}]"
            c2 = "0" if j == 0 else f"v[{D2}:{D2+3}]"
            a(f"v_mfma_f32_16x16x16_bf16 v[{D1}:{D1+3}], v[{w}:{w+1}], v[{XB+2*j}:{XB+2*j+1}], {c1}")
            a(f"v_mfma_f32_16x16x16_bf16 v[{D2}:{D2+3}], v[{w+2}:{w+3}], v[{XB+2*j}:{XB+2*j+1}], {c2}")
        self.nop(8)

    def gemv_x_build(self, DU, n, XB, vM0, vM1):
        a = self.a
        for j in range(n):
            a(f"v_and_b32 v{XB+2*j}, v{DU+j}, v{vM0}")
            a(f"v_and_b32 v{XB+2*j+1}, v{DU+j}, v{vM1}")
        self.nop(2)

    def gemv_mfma(self, W, n, XB, D1, D2):
        a = self.a
        for j in range(n):
            w = W + 4*j
            c1 = "0" if j == 0 else f"v[{D1}:{D1+3}]"
            c2 = "0" if j == 0 else f"v[{D2}:{D2+3}]"
            a(f"v_mfma_f32_16x16x16_bf16 v[{D1}:{D1+3}], v[{w}:{w+1}], v[{XB+2*j}:{XB+2*j+1}], {c1}")
            a(f"v_mfma_f32_16x16x16_bf16 v[{D2}:{D2+3}], v[{w+2}:{w+3}], v[{XB+2*j}:{XB+2*j+1}], {c2}")

    def cu_reduce(self, tiles, cnt, lbase, addr_fn, vt0, vt1, vT, vL16, R):
        a = self.a
        v = S_WID
        nt = len(tiles)
        a(f"s_lshl_b32 s{S_TMP}, s{v}, 11")
        a(f"v_add_u32 v{vt0}, s{S_TMP}, v{vL16}")
        for t, (D1, D2) in enumerate(tiles):
            a(f"ds_write_b128 v{vt0}, v[{D1}:{D1+3}] offset:{lbase+8192*t}")
            a(f"ds_write_b128 v{vt0}, v[{D2}:{D2+3}] offset:{lbase+8192*t+1024}")
        if cnt is not None:
            self.lds_bar(cnt, 4, vt0, vt1)
        else:
            a("s_waitcnt lgkmcnt(0)")
            a("s_barrier")
        skip = self.label("crs")
        if nt == 1:
            a(f"s_cmp_ge_u32 s{v}, 2")
            a(f"s_cbranch_scc1 {skip}")
        a(f"s_and_b32 s{S_TMP}, s{v}, 1")
        a(f"s_lshl_b32 s{S_TMP}, s{S_TMP}, 10")
        a(f"v_add_u32 v{vt0}, s{S_TMP}, v{vL16}")
        if nt == 2:
            a(f"s_lshr_b32 s{S_TMP}, s{v}, 1")
            a(f"s_lshl_b32 s{S_TMP}, s{S_TMP}, 13")
            a(f"v_add_u32 v{vt1}, s{S_TMP}, v{vt0}")
            rd = vt1
        else:
            rd = vt0
        assert R % 4 == 0
        for i in range(4):
            a(f"ds_read_b128 v[{R+4*i}:{R+4*i+3}], v{rd} offset:{lbase+2048*i}")
        addr_fn()
        a("s_waitcnt lgkmcnt(0)")
        for r in range(4):
            a(f"v_add_f32 v{R+r}, v{R+r}, v{R+4+r}")
            a(f"v_add_f32 v{R+8+r}, v{R+8+r}, v{R+12+r}")
        for r in range(4):
            a(f"v_add_f32 v{R+r}, v{R+r}, v{R+8+r}")
        for r in range(4):
            self.tag32(R+r, vT)
        a(f"buffer_store_dwordx4 v[{R}:{R+3}], v{vt0}, s[{S_WS}:{S_WS+3}], s{S_TMP} offen sc1")
        a(f"{skip}:")

    def build(self):
        self.prologue()
        self.svc()
        self.kv()
        self.a("L_end:")
        body = "\n".join(self.L)
        return f"""; @launch grid=(256,1,1) block=(768,1,1) lds={LDS_SIZE}
.amdgcn_target "amdgcn-amd-amdhsa--gfx950"
.text
.globl {KN}
.p2align 8
.type {KN},@function
{KN}:
{body}
s_endpgm
.section .rodata,"a"
.p2align 6
.amdhsa_kernel {KN}
  .amdhsa_next_free_vgpr 168
  .amdhsa_next_free_sgpr 102
  .amdhsa_accum_offset 168
  .amdhsa_group_segment_fixed_size 0
  .amdhsa_kernarg_size 112
  .amdhsa_user_sgpr_count 2
  .amdhsa_user_sgpr_kernarg_segment_ptr 1
  .amdhsa_system_sgpr_workgroup_id_x 1
.end_amdhsa_kernel
"""


if __name__ == "__main__":
    import argparse
    ap = argparse.ArgumentParser()
    ap.add_argument("-o", default="k1.s")
    ap.add_argument("--dbg", action="store_true")
    ap.add_argument("--dbg2", type=int, default=0)
    ap.add_argument("--xl", type=int, default=0)
    ap.add_argument("--pt", type=int, default=0)
    ap.add_argument("--delay", type=int, default=0)
    ap.add_argument("--t2alg", type=int, default=0)
    ap.add_argument("--xls", type=int, default=0)
    ap.add_argument("--prio", type=int, default=3)
    ap.add_argument("--na-front", type=int, default=2)
    ap.add_argument("--p-front", type=int, default=1)
    ap.add_argument("--na-nf", type=int, default=16)
    ap.add_argument("--p-nf", type=int, default=2)
    ap.add_argument("--psleep2", type=int, default=8)
    ap.add_argument("--psleep3", type=int, default=5)
    ap.add_argument("--nsets", type=int, default=1)
    ap.add_argument("--kf", type=int, default=512)
    ap.add_argument("--km", type=int, default=384)
    ap.add_argument("--kh", type=int, default=640)
    ap.add_argument("--wearly", type=int, default=0)
    ap.add_argument("--b0first", type=int, default=0)
    ap.add_argument("--g-opp", default="g16")
    ap.add_argument("--g-x1", default="lane")
    ap.add_argument("--g-r", default="quad")
    ap.add_argument("--t2late", type=int, default=0)
    ap.add_argument("--pf", type=int, default=0)
    ap.add_argument("--pipe", default="0,0,0")
    ap.add_argument("--gate", type=int, default=-1)
    ap.add_argument("--x1p", type=int, default=0)
    ap.add_argument("--rel", type=int, default=2)
    ap.add_argument("--sl", default="0,0,0,0")
    args = ap.parse_args()
    g = Gen(pt=args.pt, delay=args.delay, t2alg=args.t2alg, xl=args.xl, xls=args.xls, dbg2=args.dbg2, dbg=args.dbg, prio=args.prio, na_front=args.na_front, p_front=args.p_front, na_nf=args.na_nf, p_nf=args.p_nf,
            psleep2=args.psleep2, psleep3=args.psleep3, nsets=args.nsets, kf=args.kf, km=args.km, kh=args.kh, wearly=args.wearly, b0first=args.b0first,
            g_opp=args.g_opp, g_x1=args.g_x1, g_r=args.g_r, t2late=args.t2late, pf=args.pf, pipe=tuple(int(x) for x in args.pipe.split(',')), gate=args.gate, x1p=args.x1p, rel=args.rel, sl=tuple(int(x) for x in args.sl.split(',')))
    open(args.o, "w").write(g.build())
```
